```python
import torch

def _softmax(x, axis=-1):
    return torch.softmax(x, dim=axis)
def _gelu(x):
    return torch.nn.functional.gelu(x, approximate="tanh")
def _silu(x):
    return torch.nn.functional.silu(x)
def _sigmoid(x):
    return torch.sigmoid(x)
def _layernorm(x, axis=-1, eps=1e-5):
    m = x.mean(dim=axis, keepdim=True)
    v = x.var(dim=axis, keepdim=True, unbiased=False)
    return (x - m) / torch.sqrt(v + eps)
def _scatter_add(tgt, idx, src, axis=0):
    return tgt.clone().index_add_(axis, idx, src)
def _segment_sum(src, seg, n):
    out = torch.zeros((n,) + src.shape[1:], dtype=src.dtype)
    return out.index_add_(0, seg, src)
def _pad(x, pw):
    flat = tuple(v for pair in reversed(pw) for v in pair)
    return torch.nn.functional.pad(x, flat)

kernel_name = 'gated_mix__ssm_conv_h3__dense_activation_gelu__prompt'

def setup_inputs():

    _w = (lambda a: (lambda t: t.to(torch.bfloat16) if t.is_floating_point() else t)(torch.as_tensor(a)))
    def _A_setup():
        B, S, D = 1, 2048, 448
        ks = 4
        return {
            "q": _w((lambda *s: torch.randn(*s, dtype=torch.bfloat16) * 0.05)(B, S, D)),
            "k": _w((lambda *s: torch.randn(*s, dtype=torch.bfloat16) * 0.8)(B, S, D)),
            "v": _w((lambda *s: torch.randn(*s, dtype=torch.bfloat16) * 0.8)(B, S, D)),
            "shift_k": _w((lambda *s: torch.randn(*s, dtype=torch.bfloat16) * 0.8)(D, ks) * 0.5),
            "ssm_k": _w((lambda *s: torch.randn(*s, dtype=torch.bfloat16) * 0.8)(D, S) * (1.0 / S ** 0.5)),
            "ssm_D": _w((lambda *s: torch.randn(*s, dtype=torch.bfloat16) * 0.8)(D)),
        }
    _A_in = _A_setup()

    def _B_setup():
        B, S, D, F = 1, 2048, 448, 1792
        return {
            "x": _w((lambda *s: torch.randn(*s, dtype=torch.bfloat16) * 0.05)(B, S, D)),
            "w1": _w((lambda *s: torch.randn(*s, dtype=torch.bfloat16) * 3.2)(D, F) * (D ** -0.5)),
            "b1": _w((lambda *s: torch.randn(*s, dtype=torch.bfloat16) * 3.2)(F) * 0.01),
            "w2": _w((lambda *s: torch.randn(*s, dtype=torch.bfloat16) * 1.6)(F, D) * (F ** -0.5)),
            "b2": _w((lambda *s: torch.randn(*s, dtype=torch.bfloat16) * 3.2)(D) * 0.01),
        }
    _B_in = _B_setup()

    return {
        "A_q": _A_in["q"],
        "A_k": _A_in["k"],
        "A_v": _A_in["v"],
        "A_shift_k": _A_in["shift_k"],
        "A_ssm_k": _A_in["ssm_k"],
        "A_ssm_D": _A_in["ssm_D"],
        "B_x": _B_in["x"],
        "B_w1": _B_in["w1"],
        "B_b1": _B_in["b1"],
        "B_w2": _B_in["w2"],
        "B_b2": _B_in["b2"],
        "gate_w": _w((lambda *s: torch.randn(*s, dtype=torch.bfloat16) * 0.05)(448) * 16.0),
    }

def reference(A_q, A_k, A_v, A_shift_k, A_ssm_k, A_ssm_D, B_x, B_w1, B_b1, B_w2, B_b2, gate_w):
    def _A_ref(q, k, v, shift_k, ssm_k, ssm_D):
        B, S, D = q.shape
        ks = shift_k.shape[-1]
        k_pad = _pad(k, ((0, 0), (ks - 1, 0), (0, 0)))
        k_shift = torch.zeros_like(k)
        for t in range(ks):
            k_shift = k_shift + k_pad[:, t:t + S, :] * shift_k[:, ks - 1 - t][None, None, :]
        kv = k_shift * v
        L = 2 * S
        kv_pad = _pad(kv, ((0, 0), (0, S), (0, 0)))
        kf_pad = _pad(ssm_k, ((0, 0), (0, S)))
        kv_f = (lambda x, axes=(-2,-1): torch.fft.rfft2(x.float(), dim=axes))(kv_pad[:, None, :, :], axes=(1, 2))
        kf_f = (lambda x, axes=(-2,-1): torch.fft.rfft2(x.float(), dim=axes))(kf_pad[:, None, :], axes=(1, 2))
        kf_f = (lambda x, *d: x.permute(*d))(kf_f, 1, 2, 0)
        y_f = kv_f * kf_f[None, :, :, :]
        y = (lambda x, s, axes=(-2,-1): torch.fft.irfft2(x, s=s, dim=axes).to(torch.bfloat16))(y_f, (1, L), axes=(1, 2))[:, 0, :S, :]
        y = y + kv * ssm_D[None, None, :]
        return q * y

    def _B_ref(x, w1, b1, w2, b2):
        h = torch.einsum("bsd,df->bsf", x, w1) + b1
        h = _gelu(h)
        return torch.einsum("bsf,fd->bsd", h, w2) + b2

    x = A_q
    g = _sigmoid((x * gate_w).sum(-1, keepdims=True))
    a = _A_ref(x, A_k, A_v, A_shift_k, A_ssm_k, A_ssm_D)
    b = _B_ref(x, B_w1, B_b1, B_w2, B_b2)
    return g * a + (1 - g) * b
```

```python
import re

TRANS = ("v_exp_f32", "v_log_f32", "v_rcp_f32", "v_rsq_f32", "v_sqrt_f32", "v_sin_f32", "v_cos_f32")

class Op:
    __slots__ = ("text", "kind", "tag", "waitfor", "reads", "writes", "srcc", "passes", "ab", "cost", "glue")
    def __init__(self, text, kind, tag=None):
        self.text = text; self.kind = kind; self.tag = tag
        self.waitfor = None
        self.reads = set(); self.writes = set(); self.srcc = (); self.passes = 0; self.ab = set()
        self.cost = 1; self.glue = False

_reg_re = re.compile(r"^(-|abs\()?\|?([vas])(\d+|\[(\d+):(\d+)\])\|?\)?$")

def regs_of(tok):
    tok = tok.strip()
    if tok in ("vcc",): return [("s", 106), ("s", 107)]
    if tok in ("vcc_lo",): return [("s", 106)]
    if tok in ("exec",): return [("s", 126), ("s", 127)]
    if tok == "m0": return [("s", 124)]
    m = _reg_re.match(tok)
    if not m: return []
    f = m.group(2)
    if m.group(4) is not None:
        return [(f, i) for i in range(int(m.group(4)), int(m.group(5)) + 1)]
    return [(f, int(m.group(3)))]

def split_ops(rest):
    out = []; cur = ""; depth = 0
    for ch in rest:
        if ch in "[(": depth += 1
        if ch in "])": depth -= 1
        if ch == "," and depth == 0:
            out.append(cur.strip()); cur = ""
        else:
            cur += ch
    if cur.strip(): out.append(cur.strip())
    if out:
        last = out[-1].split()
        out[-1] = last[0]
        mods = last[1:]
    else:
        mods = []
    return out, mods

def analyze(op):
    t = op.text.split(";")[0].strip()
    if not t or t.endswith(":") or t.startswith("."):
        op.kind = "label"; return
    parts = t.split(None, 1)
    mn = parts[0]; rest = parts[1] if len(parts) > 1 else ""
    ops, mods = split_ops(rest)
    R = lambda i: regs_of(ops[i]) if i < len(ops) else []
    if mn.startswith("v_mfma"):
        op.kind = "mfma"
        op.passes = 8 if "32x32x16" in mn else 4
        op.writes = set(R(0)); op.ab = set(R(1)) | set(R(2)); op.srcc = tuple(R(3))
        op.reads = op.ab | set(op.srcc)
        op.cost = 2
    elif mn.startswith("v_"):
        op.kind = "trans" if mn.split("_e")[0] in TRANS or mn in TRANS else "valu"
        if op.kind == "trans": op.cost = 2
        if mn.startswith("v_dot2"):
            op.kind = "dot"; op.ab = set(R(1)) | set(R(2))
        op.writes = set(R(0))
        for i in range(1, len(ops)): op.reads |= set(R(i))
        if mn.startswith(("v_fmac", "v_dot2c", "v_pk_fmac")): op.reads |= set(R(0))
        if mn.startswith("v_permlane"):
            op.reads |= set(R(0)); op.writes |= set(R(1)); op.kind = "permlane"
        if mn.startswith(("v_add_co", "v_sub_co", "v_addc_co", "v_subb_co")):
            op.writes |= set(R(1))
        if "dpp" in mn or any(m.startswith(("row_", "quad_perm", "wave_")) for m in mods):
            op.kind = "dpp"
            op.reads |= set(R(0))
        if mn.startswith(("v_readfirstlane", "v_readlane")): op.kind = "readlane"
    elif mn.startswith(("buffer_", "global_")):
        op.kind = "vmem"
        if mn.startswith(("buffer_wbl2", "buffer_inv")): return
        lds = "lds" in mods or "_lds_" in mn
        if "store" in mn:
            op.kind = "vstore"
            for i in range(len(ops)): op.reads |= set(R(i))
            if mn.endswith(("x3", "x4")):
                op.srcc = tuple(R(0) if mn.startswith("buffer_") else R(1))
        elif lds:
            op.kind = "vdma"
            for i in range(len(ops)): op.reads |= set(R(i))
            op.reads.add(("s", 124))
        else:
            op.writes = set(R(0))
            for i in range(1, len(ops)): op.reads |= set(R(i))
            if "d16" in mn: op.reads |= set(R(0))
    elif mn.startswith("ds_"):
        op.kind = "ds"
        if "write" in mn or "add" in mn:
            for i in range(len(ops)): op.reads |= set(R(i))
        else:
            op.writes = set(R(0))
            for i in range(1, len(ops)): op.reads |= set(R(i))
    elif mn.startswith("s_"):
        op.kind = "salu"
        if mn == "s_nop":
            op.kind = "nop"; op.cost = int(ops[0], 0) + 1
        elif mn.startswith(("s_waitcnt", "s_barrier", "s_branch", "s_cbranch", "s_endpgm", "s_sleep", "s_setprio")):
            op.kind = "ctl"
        elif mn.startswith(("s_cmp", "s_bitcmp")):
            for i in range(len(ops)): op.reads |= set(R(i))
        elif mn.startswith(("s_load", "s_memtime", "s_memrealtime", "s_buffer_load")):
            op.kind = "smem"; op.writes = set(R(0))
            for i in range(1, len(ops)): op.reads |= set(R(i))
        else:
            op.writes = set(R(0))
            for i in range(1, len(ops)): op.reads |= set(R(i))
            if "saveexec" in mn: op.writes |= {("s", 126), ("s", 127)}
    else:
        raise ValueError("unknown instr: " + t)

VALUK = ("valu", "trans", "dot", "dpp", "permlane", "readlane")
VMEMK = ("vmem", "vstore", "vdma")

class Stream:
    def __init__(self):
        self.ops = []
        self._g = None
    def begin(self): self._g = len(self.ops)
    def end(self):
        for o in self.ops[self._g + 1:]: o.glue = True
        self._g = None
    def __call__(self, text, tag=None):
        for line in text.split("\n"):
            line = line.strip()
            if not line: continue
            op = Op(line, None, tag)
            analyze(op)
            self.ops.append(op)
        return self
    def wait_vm(self, tag):
        op = Op("WAITVM", "waitvm"); op.waitfor = tag; self.ops.append(op)
    def wait_lgkm(self, tag):
        op = Op("WAITLGKM", "waitlgkm"); op.waitfor = tag; self.ops.append(op)
    def extend(self, other):
        self.ops.extend(other.ops)
    def cost(self):
        return sum(o.cost for o in self.ops if o.kind != "label")

def merge(primary, secondary, start=0.0, end=1.0):
    out = Stream()
    P = primary.ops; S = secondary.ops
    pc = sum(o.cost for o in P); sc = sum(o.cost for o in S)
    if sc == 0:
        out.ops = list(P); return out
    acc_p = 0; acc_s = 0; j = 0
    for pi, o in enumerate(P):
        out.ops.append(o); acc_p += o.cost
        if pi + 1 < len(P) and P[pi + 1].glue: continue
        frac = (acc_p / pc - start) / max(end - start, 1e-9)
        while j < len(S) and (acc_s < frac * sc or S[j].glue):
            out.ops.append(S[j]); acc_s += S[j].cost; j += 1
    out.ops.extend(S[j:])
    return out

def resolve_waits(ops):
    res = []
    vm_list = []
    lg_list = []
    vm_done = 0
    lg_done = 0
    for o in ops:
        if o.kind == "waitvm":
            idx = [i for i, t in enumerate(vm_list) if t == o.waitfor]
            assert idx, "waitvm: no op tagged %r" % (o.waitfor,)
            last = idx[-1]
            if last < vm_done: continue
            n = len(vm_list) - 1 - last
            n = min(n, 63)
            w = Op("s_waitcnt vmcnt(%d)" % n, "ctl"); res.append(w)
            vm_done = max(vm_done, len(vm_list) - n)
        elif o.kind == "waitlgkm":
            idx = [i for i, t in enumerate(lg_list) if t == o.waitfor]
            assert idx, "waitlgkm: no op tagged %r" % (o.waitfor,)
            last = idx[-1]
            if last < lg_done: continue
            n = len(lg_list) - 1 - last
            n = min(n, 15)
            w = Op("s_waitcnt lgkmcnt(%d)" % n, "ctl"); res.append(w)
            lg_done = max(lg_done, len(lg_list) - n)
        else:
            if o.kind in VMEMK: vm_list.append(o.tag)
            if o.kind == "ds": lg_list.append(o.tag)
            if o.kind == "smem": raise_smem = True; lg_list.append(o.tag); lg_list.append(o.tag)
            if o.kind == "ctl" and o.text.startswith("s_waitcnt"):
                m = re.search(r"vmcnt\((\d+)\)", o.text)
                if m: vm_done = max(vm_done, len(vm_list) - int(m.group(1)))
                m = re.search(r"lgkmcnt\((\d+)\)", o.text)
                if m: lg_done = max(lg_done, len(lg_list) - int(m.group(1)))
            res.append(o)
    return res

def need_dist(p, c):
    d = 0
    if p.kind in VALUK:
        wv = {r for r in p.writes if r[0] in "va"}
        ws = {r for r in p.writes if r[0] == "s"}
        if c.kind == "mfma" and wv & c.reads: d = max(d, 2)
        if p.kind == "trans" and c.kind in VALUK and c.kind != "trans" and wv & c.reads: d = max(d, 1)
        if p.kind == "dot" and (c.kind in VALUK or c.kind in VMEMK or c.kind == "ds") and wv & (c.reads | c.writes):
            same_c = c.kind == "dot" and c.text.split()[0] == p.text.split()[0] and not (wv & c.ab)
            if not same_c: d = max(d, 3)
        if c.kind == "readlane" and wv & c.reads: d = max(d, 1)
        if c.kind in ("dpp", "permlane") and wv & c.reads: d = max(d, 2)
        if ws:
            if c.kind in VMEMK and ws & c.reads: d = max(d, 5)
            if c.kind in VALUK and ws & c.reads: d = max(d, 4 if c.kind == "readlane" else 2)
            if c.kind == "ctl" and "vcc" in c.text and ("s", 106) in ws: d = max(d, 1)
    if p.kind == "mfma":
        big = 12 if p.passes == 8 else 8
        mid = 10 if p.passes == 8 else 6
        if c.kind == "mfma":
            if p.writes & c.ab: d = max(d, big)
            if p.writes & set(c.srcc):
                if not (set(c.srcc) == p.writes and c.passes == p.passes): d = max(d, mid)
            elif p.writes & c.writes: d = max(d, mid)
        elif c.kind in VALUK or c.kind in VMEMK or c.kind == "ds":
            if p.writes & (c.reads | c.writes): d = max(d, big)
            if c.kind in VALUK and set(p.srcc) & c.writes: d = max(d, 7 if p.passes == 8 else 3)
    if p.kind == "salu" and ("s", 124) in p.writes and c.kind == "vdma": d = max(d, 1)
    if p.kind == "vstore" and p.srcc and set(p.srcc) & c.writes:
        d = max(d, 2 if c.kind in VALUK else 1)
    return d

def insert_nops(ops):
    res = []
    for o in ops:
        if o.kind == "label":
            res.append(o); continue
        dist = 0; need = 0
        for p in reversed(res):
            if p.kind == "label": continue
            nd = need_dist(p, o)
            if nd > dist: need = max(need, nd - dist)
            dist += p.cost if p.kind == "nop" else 1
            if dist >= 14: break
        while need > 0:
            k = min(need, 16)
            n = Op("s_nop %d" % (k - 1), "nop"); n.cost = k
            res.append(n); need -= k
        res.append(o)
    return res

def finalize(stream):
    ops = resolve_waits(stream.ops)
    ops = insert_nops(ops)
    return ops

def render(ops):
    out = []
    for o in ops:
        out.append(o.text if o.kind == "label" else "  " + o.text)
    return "\n".join(out)
```

```python
import sys, math
sys.path.insert(0, "gen")
from asmlib import *

NAME = "gated_mix__ssm_conv_h3__dense_activation_gelu__prompt"
STAMP = int(sys.argv[2]) if len(sys.argv) > 2 else 0

WS_EPOCH = 0
WS_FU = 0x1000
WS_FZ = 0x2000
WS_FH = 0x3000
WS_G  = 0x8000
WS_STAMP = 0x10000
WS_U  = 0x100000
WS_Z  = 0x300000
WS_H  = 0x500000
WS_SIZE = 0x1000000
TAG_INC = 0x9E3779B9
L_W1 = 0
L_XR = 57344; XR_SZ = 14336
L_HC = 114688; HC_SZ = 4128
L_UW = 131200; UW_SZ = 4624; UP = 1152
L_P0 = 149696
L_Y = 114688; Y_SZ = 10256
L_PB0 = 114688; PB_SZ = 8704
L_ZT = 149696
LDS_TOTAL = 163840

Q, K, V, SSM, W1, W2, OUT, WS = ["s[%d:%d]" % (b, b + 3) for b in range(8, 40, 4)]
P_SHIFT, P_D, P_B1, P_B2, P_GATE = "s[46:47]", "s[50:51]", "s[56:57]", "s[60:61]", "s[62:63]"
sW, sX, sI, sA, sC, sRB128, sCB128, sRB64 = "s70", "s71", "s72", "s73", "s74", "s75", "s76", "s77"
sT0, sT1, sT2, sT3 = "s78", "s79", "s80", "s81"
sSELLO, sSELHI = "s82", "s83"
sXR, sROT, sSPIN = "s84", "s85", "s86"
sKX, sKW = "s87", "s88"
sC0 = "s[90:91]"; sC1 = "s[92:93]"
sHB, sW2B, sCBR = "s94", "s95", "s96"
sST = "s[98:99]"

class VA:
    def __init__(self, lo, hi): self.n = lo; self.hi = hi
    def get(self, k=1, align=1):
        self.n = (self.n + align - 1) // align * align
        r = self.n; self.n += k
        assert self.n <= self.hi, "out of regs"
        return r
def vr(b, k=1): return "v%d" % b if k == 1 else "v[%d:%d]" % (b, b + k - 1)
def ar(b, k=1): return "a%d" % b if k == 1 else "a[%d:%d]" % (b, b + k - 1)

spins = Stream()
nstamp = [0]
va = VA(0, 64)
vb = VA(128, 256)
vTID = va.get(); vLANE = va.get(); vTAG = va.get(); vSTA = va.get()
vT = [va.get() for _ in range(8)]

def stamp(s):
    if not STAMP: return
    i = nstamp[0]; nstamp[0] += 1
    s("s_memtime %s" % sST)
    s("s_waitcnt lgkmcnt(0)")
    s("v_writelane_b32 v%d, s98, %d" % (vSTA, i))

def flag_store(s, vaddr, tagwait):
    s.wait_vm(tagwait)
    s.begin()
    s("s_mov_b64 exec, 1")
    s("buffer_store_dword v%d, v%d, %s, 0 offen sc1" % (vTAG, vaddr, WS), tag="flag")
    s("s_mov_b64 exec, -1")
    s.end()

def poll_issue(s, vdst, vaddr, tag, wide=False):
    if wide: s("buffer_load_dwordx2 %s, v%d, %s, 0 offen sc1" % (vr(vdst, 2), vaddr, WS), tag=tag)
    else: s("buffer_load_dword v%d, v%d, %s, 0 offen sc1" % (vdst, vaddr, WS), tag=tag)

def poll_check(s, vdst, vaddr, tag, wide=False):
    vc = vdst + 1 if wide else vdst
    s.wait_vm(tag)
    s.begin()
    s("v_cmp_ne_u32 vcc, v%d, v%d" % (vc, vTAG))
    s("s_cbranch_vccnz L_spin_%s" % tag)
    s("L_ok_%s:" % tag)
    s.end()
    t = spins
    t("L_spin_%s:" % tag)
    t("s_mov_b32 %s, 0" % sSPIN)
    t("L_spin2_%s:" % tag)
    t("s_sleep 2")
    poll_issue(t, vdst, vaddr, tag, wide)
    t("s_add_u32 %s, %s, 1" % (sSPIN, sSPIN))
    t("s_waitcnt vmcnt(0)")
    t("v_cmp_ne_u32 vcc, v%d, v%d" % (vc, vTAG))
    t("s_cmp_gt_u32 %s, 0x40000" % sSPIN)
    t("s_cbranch_scc1 L_ok_%s" % tag)
    t("s_cbranch_vccnz L_spin2_%s" % tag)
    t("s_branch L_ok_%s" % tag)

def srd(s, name, lo, nbytes):
    b = int(name[2:].split(":")[0])
    s("s_mov_b32 s%d, s%d" % (b, lo)); s("s_mov_b32 s%d, s%d" % (b + 1, lo + 1))
    s("s_mov_b32 s%d, 0x%x" % (b + 2, nbytes)); s("s_mov_b32 s%d, 0x20000" % (b + 3))

m = Stream()
m("s_load_dwordx16 s[40:55], s[0:1], 0")
m("s_load_dwordx8 s[56:63], s[0:1], 64")
m("s_load_dwordx4 s[64:67], s[0:1], 96")
m("s_load_dwordx2 s[68:69], s[0:1], 112")
m("s_cmp_ge_u32 s2, 256")
m("s_cbranch_scc1 L_end")
m("v_mov_b32 v%d, 0" % vSTA)
m("s_getpc_b64 s[4:5]")
m("v_lshlrev_b32 v%d, 7, v0" % vT[0])
m("v_min_u32 v%d, CODE_BYTES, v%d" % (vT[0], vT[0]))
m("global_load_dword v255, v%d, s[4:5]" % (vT[0]), tag="cpf")
m("v_and_b32 v%d, 63, v0" % vLANE)
m("v_lshrrev_b32 v%d, 6, v0" % vT[2])
m("v_readfirstlane_b32 %s, v%d" % (sW, vT[2]))
m("s_and_b32 %s, s2, 7" % sX)
m("s_lshr_b32 %s, s2, 3" % sI)
m("s_mul_i32 %s, %s, 37" % (sA, sI)); m("s_lshr_b32 %s, %s, 8" % (sA, sA))
m("s_mul_i32 %s, %s, 7" % (sC, sA)); m("s_sub_u32 %s, %s, %s" % (sC, sI, sC))
m("s_lshr_b32 %s, %s, 1" % (sRB128, sX)); m("s_lshl_b32 %s, %s, 2" % (sRB128, sRB128)); m("s_add_u32 %s, %s, %s" % (sRB128, sRB128, sA))
m("s_and_b32 %s, %s, 1" % (sCB128, sX)); m("s_mul_i32 %s, %s, 7" % (sCB128, sCB128)); m("s_add_u32 %s, %s, %s" % (sCB128, sCB128, sC))
m("s_lshl_b32 %s, %s, 2" % (sRB64, sX)); m("s_add_u32 %s, %s, %s" % (sRB64, sRB64, sA))
m("s_mov_b32 %s, 0x05040100" % sSELLO); m("s_mov_b32 %s, 0x07060302" % sSELHI)
m("s_waitcnt lgkmcnt(0)")
stamp(m)
NB = 2048 * 448 * 2
srd(m, Q, 40, NB); srd(m, K, 42, NB); srd(m, V, 44, NB); srd(m, SSM, 48, NB)
srd(m, W1, 54, 448 * 1792 * 2); srd(m, W2, 58, 448 * 1792 * 2); srd(m, OUT, 64, NB); srd(m, WS, 68, WS_SIZE)
m("v_mov_b32 v%d, 0" % vT[0])
m("buffer_load_dword v%d, v%d, %s, 0 offen sc1" % (vTAG, vT[0], WS), tag="epoch")
m("s_cmp_ge_u32 %s, 28" % sI)
m("s_cbranch_scc1 L_spare")

L = vLANE
vL8 = va.get(); vLd8 = va.get()
m("v_and_b32 v%d, 7, v%d" % (vL8, L)); m("v_lshrrev_b32 v%d, 3, v%d" % (vLd8, L))
vXV = [va.get() for _ in range(4)]
vWV = [va.get() for _ in range(2)]
m("s_lshl_b32 %s, %s, 7" % (sT0, sRB128)); m("s_lshl_b32 %s, %s, 5" % (sT1, sW)); m("s_add_u32 %s, %s, %s" % (sT0, sT0, sT1))
m("v_add_u32 v%d, %s, v%d" % (vT[0], sT0, vLd8))
m("v_mul_u32_u24 v%d, 896, v%d" % (vT[0], vT[0]))
m("v_lshrrev_b32 v%d, 4, v%d" % (vT[2], L))
m("v_xor_b32 v%d, v%d, v%d" % (vT[3], vL8, vT[2]))
m("v_lshl_add_u32 v%d, v%d, 4, v%d" % (vXV[0], vT[3], vT[0]))
m("v_xor_b32 v%d, 4, v%d" % (vT[3], vT[3]))
m("v_lshl_add_u32 v%d, v%d, 4, v%d" % (vXV[1], vT[3], vT[0]))
m("v_add_u32 v%d, %d, v%d" % (vXV[2], 2 * 6144, vXV[0]))
m("v_add_u32 v%d, %d, v%d" % (vXV[3], 3 * 6144, vXV[1]))
m("v_add_u32 v%d, %d, v%d" % (vXV[1], 6144, vXV[1]))
vSWZ = va.get()
m("v_and_b32 v%d, 1, v%d" % (vT[3], vT[2])); m("v_lshlrev_b32 v%d, 2, v%d" % (vT[3], vT[3]))
m("v_xor_b32 v%d, v%d, v%d" % (vT[3], vL8, vT[3])); m("v_lshlrev_b32 v%d, 4, v%d" % (vSWZ, vT[3]))
m("s_lshl_b32 %s, %s, 4" % (sT0, sW))
m("v_add_u32 v%d, %s, v%d" % (vT[0], sT0, vLd8))
m("v_mul_u32_u24 v%d, 3584, v%d" % (vT[0], vT[0]))
m("s_lshl_b32 %s, %s, 8" % (sT0, sCB128))
m("v_add3_u32 v%d, v%d, v%d, %s" % (vWV[0], vT[0], vSWZ, sT0))
m("v_add_u32 v%d, %d, v%d" % (vWV[1], 8 * 3584 - 1024, vWV[0]))
m("s_lshl_b32 %s, %s, 1" % (sROT, sA)); m("s_add_u32 %s, %s, %s" % (sROT, sROT, sC))
m("s_cmp_ge_u32 %s, 7" % sROT); m("s_cselect_b32 %s, 7, 0" % sT0); m("s_sub_u32 %s, %s, %s" % (sROT, sROT, sT0))
m("s_mul_i32 %s, %s, %d" % (sXR, sW, XR_SZ)); m("s_add_u32 %s, %s, %d" % (sXR, sXR, L_XR))
m("s_lshl_b32 %s, %s, 7" % (sKX, sROT))
m("s_mul_i32 %s, %s, %d" % (sKW, sROT, 64 * 3584))
sW1L = "s89"
m("s_lshl_b32 %s, %s, 11" % (sW1L, sW))

def x_issue(s, t):
    s.begin()
    s("s_add_u32 m0, %s, %d" % (sXR, (t % 3) * 4096))
    for q in range(4):
        s("buffer_load_dwordx4 v%d, %s, %s offen offset:%d lds" % (vXV[q], Q, sKX, 1024 * q), tag="st%d" % t)
    s("s_add_u32 %s, %s, 128" % (sKX, sKX))
    s("s_cmp_ge_u32 %s, 896" % sKX); s("s_cselect_b32 %s, 0, %s" % (sKX, sKX))
    s.end()
def w1_issue(s, p, t):
    s.begin()
    s("s_add_u32 m0, %s, %d" % (sW1L, L_W1 + t * 8192))
    for q in range(2):
        s("buffer_load_dwordx4 v%d, %s, %s offen offset:%d lds" % (vWV[q], W1, sKW, 1024 * q), tag="st%d" % t if p == 0 else "w1b%d" % t)
    s("s_add_u32 %s, %s, %d" % (sKW, sKW, 64 * 3584))
    s("s_cmp_ge_u32 %s, %d" % (sKW, 448 * 3584)); s("s_cselect_b32 %s, %d, 0" % (sT0, 448 * 3584)); s("s_sub_u32 %s, %s, %s" % (sKW, sKW, sT0))
    if p == 0 and t == 6:
        s("s_add_u32 %s, %s, 128" % (sKW, sKW))
    s.end()

x_issue(m, 0); w1_issue(m, 0, 0)

mark = va.n
vKR = [vb.get(4, 4) for _ in range(5)]; vVR = [vb.get(4, 4) for _ in range(2)]; vTP = vb.get(16, 4)
m("s_lshl_b32 %s, %s, 6" % (sT0, sRB64))
m("v_lshrrev_b32 v%d, 3, v0" % vT[0])
m("v_lshl_add_u32 v%d, v%d, 1, %s" % (vT[0], vT[0], sT0))
m("v_mul_u32_u24 v%d, 896, v%d" % (vT[0], vT[0]))
m("s_lshl_b32 %s, %s, 7" % (sT1, sC))
m("v_lshl_add_u32 v%d, v%d, 4, %s" % (vT[1], vL8, sT1))
m("v_add_u32 v%d, v%d, v%d" % (vT[0], vT[0], vT[1]))
for j in range(3):
    m("v_subrev_u32 v%d, %d, v%d" % (vT[2 + j], 896 * (3 - j), vT[0]))
for j in range(3):
    m("buffer_load_dwordx4 %s, v%d, %s, 0 offen" % (vr(vKR[j], 4), vT[2 + j], K), tag="p0")
m("buffer_load_dwordx4 %s, v%d, %s, 0 offen" % (vr(vKR[3], 4), vT[0], K), tag="p0")
m("buffer_load_dwordx4 %s, v%d, %s, 0 offen offset:896" % (vr(vKR[4], 4), vT[0], K), tag="p0")
m("buffer_load_dwordx4 %s, v%d, %s, 0 offen" % (vr(vVR[0], 4), vT[0], V), tag="p0")
m("buffer_load_dwordx4 %s, v%d, %s, 0 offen offset:896" % (vr(vVR[1], 4), vT[0], V), tag="p0")
m("v_lshlrev_b32 v%d, 2, v%d" % (vT[1], vT[1]))
for j in range(4):
    m("global_load_dwordx4 %s, v%d, %s offset:%d" % (vr(vTP + 4 * j, 4), vT[1], P_SHIFT, 16 * j), tag="p0")
vB1 = vb.get(4, 4)
m("v_and_b32 v%d, 31, v%d" % (vT[1], L))
m("s_lshl_b32 %s, %s, 8" % (sT0, sCB128))
m("v_lshl_add_u32 v%d, v%d, 1, %s" % (vT[1], vT[1], sT0))
m("global_load_ushort v%d, v%d, %s" % (vB1, vT[1], P_B1), tag="b1a")
m("global_load_ushort v%d, v%d, %s offset:128" % (vB1 + 1, vT[1], P_B1), tag="b1a")
m("global_load_ushort v%d, v%d, %s offset:64" % (vB1 + 2, vT[1], P_B1), tag="b1a")
m("global_load_ushort v%d, v%d, %s offset:192" % (vB1 + 3, vT[1], P_B1), tag="b1a")
vHP = vb.get(2, 2); vDP = vb.get()
sCH = "s97"
m("s_lshl_b32 %s, %s, 6" % (sCH, sC)); m("s_lshl_b32 %s, %s, 1" % (sT0, sRB64)); m("s_add_u32 %s, %s, %s" % (sCH, sCH, sT0))
m("s_lshr_b32 %s, %s, 1" % (sT0, sW)); m("s_add_u32 %s, %s, %s" % (sCH, sCH, sT0))
m("s_lshl_b32 %s, %s, 12" % (sT0, sCH))
m("v_mov_b32 v%d, %s" % (vT[1], sT0))
m("buffer_load_dwordx2 %s, v%d, %s, 0 offen" % (vr(vHP, 2), vT[1], SSM), tag="b1a")
m("s_lshl_b32 %s, %s, 1" % (sT0, sCH))
m("v_mov_b32 v%d, %s" % (vT[1], sT0))
m("global_load_ushort v%d, v%d, %s" % (vDP, vT[1], P_D), tag="b1a")

x_issue(m, 1); w1_issue(m, 0, 1)

vXA = [va.get() for _ in range(4)]
vWA = [va.get() for _ in range(2)]
vW2A = [va.get() for _ in range(2)]
vS32 = va.get(); vHH = va.get()
m("v_and_b32 v%d, 31, v%d" % (vS32, L)); m("v_lshrrev_b32 v%d, 5, v%d" % (vHH, L))
m("v_bfe_u32 v%d, v%d, 1, 3" % (vT[0], L))
m("v_xor_b32 v%d, v%d, v%d" % (vT[0], vT[0], vHH))
m("v_lshlrev_b32 v%d, 4, v%d" % (vT[0], vT[0]))
m("v_lshl_add_u32 v%d, v%d, 7, v%d" % (vT[0], vS32, vT[0]))
for ks in range(4):
    m("v_xor_b32 v%d, %d, v%d" % (vXA[ks], 32 * ks, vT[0]))
    m("v_add_u32 v%d, %s, v%d" % (vXA[ks], sXR, vXA[ks]))
vC4 = va.get(); vR4 = va.get(); vG4 = va.get()
m("v_and_b32 v%d, 3, v%d" % (vC4, L)); m("v_bfe_u32 v%d, v%d, 2, 2" % (vR4, L)); m("v_lshrrev_b32 v%d, 4, v%d" % (vG4, L))
m("v_bfe_u32 v%d, v%d, 4, 1" % (vT[0], L))
m("v_lshlrev_b32 v%d, 5, v%d" % (vT[0], vT[0]))
m("v_lshl_add_u32 v%d, v%d, 3, v%d" % (vT[0], vC4, vT[0]))
m("v_lshl_add_u32 v%d, v%d, 7, v%d" % (vT[0], vR4, vT[0]))
m("v_bfe_u32 v%d, v%d, 3, 1" % (vT[1], L))
m("v_lshl_add_u32 v%d, v%d, 6, v%d" % (vT[0], vT[1], vT[0]))
m("v_lshl_add_u32 v%d, v%d, 10, v%d" % (vWA[0], vHH, vT[0]))
m("v_xor_b32 v%d, 64, v%d" % (vWA[1], vWA[0]))
m("v_lshl_add_u32 v%d, v%d, 9, v%d" % (vW2A[0], vHH, vT[0]))
m("v_xor_b32 v%d, 64, v%d" % (vW2A[1], vW2A[0]))

vZ4 = va.get(4, 4)
for i in range(4): m("v_mov_b32 v%d, 0" % (vZ4 + i))
sUW = "s3"
m("s_mul_i32 %s, %s, %d" % (sUW, sW, UW_SZ)); m("s_add_u32 %s, %s, %d" % (sUW, sUW, L_UW))
m("v_mul_u32_u24 v%d, 57, v%d" % (vT[0], L)); m("v_lshrrev_b32 v%d, 9, v%d" % (vT[0], vT[0]))
m("v_mul_u32_u24 v%d, %d, v%d" % (vT[1], UP - 144, vT[0]))
m("v_lshl_add_u32 v%d, v%d, 4, v%d" % (vT[1], L, vT[1]))
m("v_add_u32 v%d, %s, v%d" % (vT[1], sUW, vT[1]))
m("s_mov_b32 exec_hi, 15")
m("ds_write_b128 v%d, %s" % (vT[1], vr(vZ4, 4)), tag="z0")
m("s_mov_b64 exec, -1")

vACC = [64 + 16 * i for i in range(4)]
vONE = vb.get(16, 4)
for i in range(16): m("v_mov_b32 v%d, 0" % (vONE + i))
m("v_cmp_gt_u32 vcc, 32, v%d" % L)
m("v_mov_b32 v%d, 0x3f80" % vT[0])
m("v_cndmask_b32 v%d, 0, v%d, vcc" % (vT[0], vT[0]))
sel = {0: 0, 2: 1, 1: 2, 3: 3}
for t in range(4):
    m("v_mov_b32 v%d, v%d" % (vONE + 4 * t + sel[t], vT[0]))

x_issue(m, 2); w1_issue(m, 0, 2)

vL16 = va.get()
m("v_lshlrev_b32 v%d, 4, v%d" % (vL16, L))
m("s_and_b32 %s, %s, 1" % (sT1, sW)); m("s_lshl_b32 %s, %s, 1" % (sT1, sT1))
m("s_lshl_b32 %s, %s, 12" % (sT0, sCH)); m("s_add_u32 %s, %s, 8" % (sT0, sT0)); m("s_sub_u32 %s, %s, %s" % (sT0, sT0, sT1))
sHC = "s6"
m("s_mul_i32 %s, %s, %d" % (sHC, sW, HC_SZ)); m("s_add_u32 %s, %s, %d" % (sHC, sHC, L_HC))
hc = Stream()
hc("s_add_u32 m0, %s, 32" % sHC)
sHSRC = "s7"
m("s_mov_b32 %s, %s" % (sHSRC, sT0))
for q in range(4):
    hc("buffer_load_dwordx4 v%d, %s, %s offen offset:%d lds" % (vL16, SSM, sHSRC, 1024 * q), tag="hc")

m.wait_vm("b1a")
stamp(m)
m("v_add_u32 v%d, 0x%x, v%d" % (vTAG, TAG_INC, vTAG))
for t in range(4):
    m("v_mfma_f32_32x32x16_bf16 %s, %s, %s, 0" % (vr(vACC[t], 16), vr(vB1, 4), vr(vONE + 4 * t, 4)))
m("v_lshlrev_b32 v%d, 16, v%d" % (vT[0], vHP)); m("v_lshlrev_b32 v%d, 16, v%d" % (vT[1], vDP))
m("v_add_f32 v%d, v%d, v%d" % (vT[0], vT[0], vT[1]))
m("v_and_b32 v%d, 0xffff0000, v%d" % (vT[1], vHP))
m("v_cvt_pk_bf16_f32 v%d, v%d, v%d" % (vHP, vT[0], vT[1]))
m("s_and_b32 %s, %s, 1" % (sT0, sW)); m("s_lshl_b32 %s, %s, 4" % (sT0, sT0))
m("v_lshlrev_b64 %s, %s, %s" % (vr(vT[2], 2), sT0, vr(vHP, 2)))
m("v_mov_b32 v%d, 0" % vT[0]); m("v_mov_b32 v%d, 0" % vT[1])
m("v_mov_b32 v%d, %s" % (vT[4], sHC))
m("s_mov_b64 exec, 1")
m("ds_write_b128 v%d, %s" % (vT[4], vr(vZ4, 4)), tag="z0")
m("ds_write_b128 v%d, %s offset:16" % (vT[4], vr(vT[0], 4)), tag="z0")
m("s_mov_b64 exec, -1")

vKS = vb.get(16, 4)
vPR = vb.get(8, 4)
for e in range(8):
    sel_ = sSELLO if e % 2 == 0 else sSELHI
    dw = e // 2
    pr = vPR + 4 * (e % 2)
    m("v_perm_b32 v%d, v%d, v%d, %s" % (pr + 0, vKR[2] + dw, vKR[3] + dw, sel_))
    m("v_perm_b32 v%d, v%d, v%d, %s" % (pr + 1, vKR[0] + dw, vKR[1] + dw, sel_))
    m("v_perm_b32 v%d, v%d, v%d, %s" % (pr + 2, vKR[3] + dw, vKR[4] + dw, sel_))
    m("v_perm_b32 v%d, v%d, v%d, %s" % (pr + 3, vKR[1] + dw, vKR[2] + dw, sel_))
    m("v_dot2_f32_bf16 v%d, v%d, v%d, 0" % (vKS + e, pr + 0, vTP + 2 * e))
    m("v_dot2_f32_bf16 v%d, v%d, v%d, 0" % (vKS + 8 + e, pr + 2, vTP + 2 * e))
    if e > 0:
        pp_ = vPR + 4 * ((e - 1) % 2)
    m("v_mov_b32 v%d, v%d" % (vKR[0] + 0, vKR[0] + 0)) if False else None
    m("v_dot2_f32_bf16 v%d, v%d, v%d, v%d" % (vKS + e, pr + 1, vTP + 2 * e + 1, vKS + e))
    m("v_dot2_f32_bf16 v%d, v%d, v%d, v%d" % (vKS + 8 + e, pr + 3, vTP + 2 * e + 1, vKS + 8 + e))
for row in range(2):
    for dw in range(4):
        m("v_lshlrev_b32 v%d, 16, v%d" % (vPR + 0, vVR[row] + dw))
        m("v_and_b32 v%d, 0xffff0000, v%d" % (vPR + 1, vVR[row] + dw))
        m("v_pk_mul_f32 %s, %s, %s" % (vr(vPR + 2, 2), vr(vPR, 2), vr(vKS + 8 * row + 2 * dw, 2)))
        m("v_cvt_pk_bf16_f32 v%d, v%d, v%d" % (vVR[row] + dw, vPR + 2, vPR + 3))
m("v_lshrrev_b32 v%d, 3, v0" % vT[0])
m("v_mul_u32_u24 v%d, 288, v%d" % (vT[0], vT[0]))
m("v_lshl_add_u32 v%d, v%d, 4, v%d" % (vT[0], vL8, vT[0]))
m("v_add_u32 v%d, %d, v%d" % (vT[0], L_P0, vT[0]))
m("ds_write_b128 v%d, %s" % (vT[0], vr(vVR[0], 4)), tag="p0w")
m("ds_write_b128 v%d, %s offset:144" % (vT[0], vr(vVR[1], 4)), tag="p0w")
m("v_and_b32 v%d, 1, v%d" % (vT[1], vG4)); m("v_lshlrev_b32 v%d, 5, v%d" % (vT[1], vT[1]))
m("v_lshl_add_u32 v%d, v%d, 2, v%d" % (vT[1], vR4, vT[1]))
m("v_add_u32 v%d, v%d, v%d" % (vT[1], vT[1], vHH))
m("v_mul_u32_u24 v%d, 144, v%d" % (vT[1], vT[1]))
m("v_lshl_add_u32 v%d, v%d, 3, v%d" % (vT[1], vC4, vT[1]))
m("s_lshl_b32 %s, %s, 5" % (sT0, sW)); m("s_add_u32 %s, %s, %d" % (sT0, sT0, L_P0))
m("v_add_u32 v%d, %s, v%d" % (vT[1], sT0, vT[1]))
m("s_lshl_b32 %s, %s, 6" % (sT0, sC)); m("s_lshl_b32 %s, %s, 4" % (sT1, sW)); m("s_add_u32 %s, %s, %s" % (sT0, sT0, sT1))
m("v_and_b32 v%d, 15, v%d" % (vT[2], L)); m("v_add_u32 v%d, %s, v%d" % (vT[2], sT0, vT[2]))
m("v_lshlrev_b32 v%d, 12, v%d" % (vT[2], vT[2]))
m("v_lshl_add_u32 v%d, v%d, 4, v%d" % (vT[2], vG4, vT[2]))
m("s_lshl_b32 %s, %s, 7" % (sT2, sRB64)); m("s_add_u32 %s, %s, 0x%x" % (sT2, sT2, WS_U))
m.wait_lgkm("p0w")
m("s_barrier")
for rho in range(2):
    m("ds_read_b64_tr_b16 %s, v%d offset:%d" % (vr(vKS + 4 * rho, 2), vT[1], 288 * rho), tag="p0r")
    m("ds_read_b64_tr_b16 %s, v%d offset:%d" % (vr(vKS + 4 * rho + 2, 2), vT[1], 288 * rho + 2304), tag="p0r")
m.wait_lgkm("p0r")
for rho in range(2):
    m("buffer_store_dwordx4 %s, v%d, %s, %s offen offset:%d sc1" % (vr(vKS + 4 * rho, 4), vT[2], WS, sT2, 64 * rho), tag="ust")
vFUA = va.get()
m("s_lshl_b32 %s, %s, 2" % (sT0, sC)); m("s_add_u32 %s, %s, %s" % (sT0, sT0, sW)); m("s_lshl_b32 %s, %s, 7" % (sT0, sT0))
m("s_lshl_b32 %s, %s, 2" % (sT1, sRB64)); m("s_add_u32 %s, %s, %s" % (sT0, sT0, sT1)); m("s_add_u32 %s, %s, 0x%x" % (sT0, sT0, WS_FU))
m("v_mov_b32 v%d, %s" % (vFUA, sT0))
stamp(m)

aX = 0
aWF = 240
aWF = 112
def w1_reads(s, p, kap):
    t, ks = kap // 4, kap % 4
    for ft in range(2):
        b = aWF + 8 * (kap % 3) + 4 * ft
        off = L_W1 + t * 8192 + ks * 2048
        s("ds_read_b64_tr_b16 %s, v%d offset:%d" % (ar(b, 2), vWA[ft], off), tag="w%d_%d" % (p, kap))
        s("ds_read_b64_tr_b16 %s, v%d offset:%d" % (ar(b + 2, 2), vWA[ft], off + 512), tag="w%d_%d" % (p, kap))
def g1_pass(p, extra):
    s = Stream()
    for kap in range(-2, 28):
        k2 = kap + 2
        if k2 < 28:
            if k2 % 4 == 0:
                t = k2 // 4
                s.wait_vm("st%d" % t if p == 0 else "w1b%d" % t)
                s("s_barrier")
                if p == 0:
                    for ks in range(4):
                        s("ds_read_b128 %s, v%d offset:%d" % (ar(aX + 16 * t + 4 * ks, 4), vXA[ks], (t % 3) * 4096), tag="x%d" % t)
                if ("bar", t) in extra: s.extend(extra[("bar", t)])
            w1_reads(s, p, k2)
        if kap >= 0:
            s.wait_lgkm("w%d_%d" % (p, kap))
            if kap % 4 == 0 and ("k0", kap // 4) in extra: s.extend(extra[("k0", kap // 4)])
            for ft in range(2):
                b = aWF + 8 * (kap % 3) + 4 * ft
                s("v_mfma_f32_32x32x16_bf16 %s, %s, %s, %s" % (vr(vACC[2 * p + ft], 16), ar(b, 4), ar(aX + 4 * kap, 4), vr(vACC[2 * p + ft], 16)))
    return s

ex = {}
for t in range(4):
    e = Stream(); x_issue(e, t + 3); w1_issue(e, 0, t + 3); ex[("k0", t)] = e
e = Stream(); flag_store(e, vFUA, "ust"); ex[("bar", 3)] = e
e = Stream(); w1_issue(e, 1, 0); w1_issue(e, 1, 1); w1_issue(e, 1, 2); ex[("bar", 4)] = e
e = Stream(); w1_issue(e, 1, 3); e.extend(hc); ex[("bar", 5)] = e
e = Stream(); w1_issue(e, 1, 4); ex[("bar", 6)] = e
m.extend(g1_pass(0, ex))
stamp(m)

c_ = math.sqrt(2.0 / math.pi) * 2.0 * math.log2(math.e)
import struct
f2u = lambda f: struct.unpack("<I", struct.pack("<f", f))[0]
m("s_mov_b32 s90, 0x%x" % f2u(-c_)); m("s_mov_b32 s91, 0x%x" % f2u(-c_))
m("s_mov_b32 s92, 0x%x" % f2u(-c_ * 0.044715)); m("s_mov_b32 s93, 0x%x" % f2u(-c_ * 0.044715))
vC0 = va.get(2, 2)
m("v_mov_b32 v%d, s90" % vC0); m("v_mov_b32 v%d, s90" % (vC0 + 1))
vb = VA(128, 256)
vGT = vb.get(16, 4)
vHO = vb.get(8, 4)
m("s_mul_i32 %s, %s, 14" % (sHB, sRB128)); m("s_add_u32 %s, %s, %s" % (sHB, sHB, sCB128)); m("s_lshl_b32 %s, %s, 2" % (sHB, sHB))
m("s_add_u32 %s, %s, %s" % (sHB, sHB, sW)); m("s_lshl_b32 %s, %s, 13" % (sHB, sHB)); m("s_add_u32 %s, %s, 0x%x" % (sHB, sHB, WS_H))
vFHA = va.get()
m("s_lshl_b32 %s, %s, 2" % (sT0, sRB128)); m("s_add_u32 %s, %s, %s" % (sT0, sT0, sW)); m("s_lshl_b32 %s, %s, 7" % (sT0, sT0))
m("s_lshl_b32 %s, %s, 2" % (sT1, sCB128)); m("s_add_u32 %s, %s, %s" % (sT0, sT0, sT1)); m("s_add_u32 %s, %s, 0x%x" % (sT0, sT0, WS_FH))
m("v_mov_b32 v%d, %s" % (vFHA, sT0))

def gelu(p):
    s = Stream()
    for ft in range(2):
        for hf in range(2):
            x0 = vACC[2 * p + ft] + 8 * hf
            T = vGT + 8 * hf
            ho = vHO + 4 * hf
            for j in range(4): s("v_pk_mul_f32 %s, %s, %s" % (vr(T + 2 * j, 2), vr(x0 + 2 * j, 2), vr(x0 + 2 * j, 2)))
            for j in range(4): s("v_pk_fma_f32 %s, %s, %s, %s" % (vr(T + 2 * j, 2), vr(T + 2 * j, 2), sC1, vr(vC0, 2)))
            for j in range(4): s("v_pk_mul_f32 %s, %s, %s" % (vr(T + 2 * j, 2), vr(T + 2 * j, 2), vr(x0 + 2 * j, 2)))
            for j in range(8): s("v_exp_f32 v%d, v%d" % (T + j, T + j))
            for j in range(4): s("v_pk_add_f32 %s, %s, 1.0 op_sel_hi:[1,0]" % (vr(T + 2 * j, 2), vr(T + 2 * j, 2)))
            for j in range(8): s("v_rcp_f32 v%d, v%d" % (T + j, T + j))
            for j in range(4): s("v_pk_mul_f32 %s, %s, %s" % (vr(T + 2 * j, 2), vr(T + 2 * j, 2), vr(x0 + 2 * j, 2)))
            for j in range(4): s("v_cvt_pk_bf16_f32 v%d, v%d, v%d" % (ho + j, T + 2 * j, T + 2 * j + 1))
            s("buffer_store_dwordx4 %s, v%d, %s, %s offen offset:%d sc1" % (vr(ho, 4), vL16, WS, sHB, 1024 * (2 * ft + hf)), tag="hst%d" % p)
    if p == 0: s("s_add_u32 %s, %s, 4096" % (sHB, sHB))
    return s

vW2V = [va.get() for _ in range(2)]
m("v_mul_u32_u24 v%d, 896, v%d" % (vT[0], vLd8))
m("s_lshl_b32 %s, %s, 7" % (sT0, sC)); m("s_mul_i32 %s, %s, %d" % (sT1, sW, 16 * 896)); m("s_add_u32 %s, %s, %s" % (sT0, sT0, sT1))
m("v_add3_u32 v%d, v%d, v%d, %s" % (vW2V[0], vT[0], vSWZ, sT0))
m("v_add_u32 v%d, %d, v%d" % (vW2V[1], 8 * 896 - 1024, vW2V[0]))
m("s_lshl_b32 %s, %s, 1" % (sCBR, sROT))
m("s_mul_i32 %s, %s, %d" % (sW2B, sCBR, 128 * 896))
def w2_lds(j):
    return (sXR, 2048 * j) if j < 7 else (sW1L, L_W1 + (j - 7) * 8192)
def w2_issue(s, half, j):
    s.begin()
    sr, imm = w2_lds(j)
    s("s_add_u32 m0, %s, %d" % (sr, imm))
    for q in range(2):
        s("buffer_load_dwordx4 v%d, %s, %s offen offset:%d lds" % (vW2V[q], W2, sW2B, 1024 * q), tag="w2_%d_%d" % (half, j))
    s("s_add_u32 %s, %s, %d" % (sW2B, sW2B, 128 * 896))
    s("s_cmp_ge_u32 %s, %d" % (sW2B, 1792 * 896)); s("s_cselect_b32 %s, %d, 0" % (sT0, 1792 * 896)); s("s_sub_u32 %s, %s, %s" % (sW2B, sW2B, sT0))
    if half == 0 and j == 13: s("s_add_u32 %s, %s, %d" % (sW2B, sW2B, 64 * 896))
    s.end()
vW2R = [[va.get() for _ in range(2)] for _ in range(2)]
for t in range(2):
    m("v_add_u32 v%d, %s, v%d" % (vW2R[0][t], sXR, vW2A[t]))
    m("v_add_u32 v%d, %s, v%d" % (vW2R[1][t], sW1L, vW2A[t]))
aW2 = [136, 0]
def w2_reads(s, half, j):
    reg = 0 if j < 7 else 1
    off = 2048 * j if j < 7 else L_W1 + (j - 7) * 8192
    for t in range(2):
        b = aW2[half] + 8 * j + 4 * t
        s("ds_read_b64_tr_b16 %s, v%d offset:%d" % (ar(b, 2), vW2R[reg][t], off), tag="w2r%d_%d" % (half, j))
        s("ds_read_b64_tr_b16 %s, v%d offset:%d" % (ar(b + 2, 2), vW2R[reg][t], off + 1024), tag="w2r%d_%d" % (half, j))

vPA = va.get(); vPD = va.get(2, 2)
m("s_lshl_b32 %s, %s, 2" % (sT0, sC)); m("s_lshr_b32 %s, %s, 3" % (sT1, sRB64)); m("s_add_u32 %s, %s, %s" % (sT0, sT0, sT1))
m("s_lshl_b32 %s, %s, 7" % (sT0, sT0)); m("s_add_u32 %s, %s, 0x%x" % (sT0, sT0, WS_FU))
m("v_lshl_add_u32 v%d, v%d, 2, %s" % (vPA, vS32, sT0))

ex = {}
e = Stream(); w1_issue(e, 1, 5); ex[("bar", 0)] = e
e = Stream(); w1_issue(e, 1, 6); poll_issue(e, vPD, vPA, "pu"); ex[("bar", 1)] = e
vUL = vb.get(8, 4)
e = Stream()
poll_check(e, vPD, vPA, "pu")
e("v_lshrrev_b32 v%d, 2, v%d" % (vT[0], L))
e("v_lshlrev_b32 v%d, 7, v%d" % (vT[1], vT[0]))
e("v_lshl_add_u32 v%d, v%d, 4, v%d" % (vT[1], vC4, vT[1]))
e("s_lshl_b32 %s, %s, 12" % (sT0, sCH)); e("s_and_b32 %s, %s, 1" % (sT1, sW)); e("s_lshl_b32 %s, %s, 6" % (sT1, sT1))
e("s_add_u32 %s, %s, %s" % (sT0, sT0, sT1)); e("s_add_u32 %s, %s, 0x%x" % (sT0, sT0, WS_U))
for q in range(2):
    e("buffer_load_dwordx4 %s, v%d, %s, %s offen offset:%d sc1" % (vr(vUL + 4 * q, 4), vT[1], WS, sT0, 2048 * q), tag="ul")
for j in range(7): w2_issue(e, 0, j)
ex[("bar", 4)] = e
p2 = g1_pass(1, ex)
m.extend(merge(p2, gelu(0), 0.05, 0.95))
stamp(m)
m("v_lshrrev_b32 v%d, 1, v%d" % (vT[2], vC4)); m("v_mul_u32_u24 v%d, %d, v%d" % (vT[2], 2 * UP, vT[2]))
m("v_lshrrev_b32 v%d, 2, v%d" % (vT[0], L)); m("v_lshl_add_u32 v%d, v%d, 5, v%d" % (vT[2], vT[0], vT[2]))
m("v_and_b32 v%d, 1, v%d" % (vT[0], L)); m("v_lshl_add_u32 v%d, v%d, 4, v%d" % (vT[2], vT[0], vT[2]))
m("v_add_u32 v%d, %s, v%d" % (vT[2], sUW, vT[2]))
m("v_add_u32 v%d, %d, v%d" % (vT[3], 128 + UP + 8, vT[2]))
m.wait_vm("ul")
for q in range(2):
    m("ds_write_b128 v%d, %s offset:%d" % (vT[2], vr(vUL + 4 * q, 4), 128 + 512 * q), tag="uw")
    m("ds_write2_b64 v%d, %s, %s offset0:%d offset1:%d" % (vT[3], vr(vUL + 4 * q, 2), vr(vUL + 4 * q + 2, 2), 64 * q, 64 * q + 1), tag="uw")
flag_store(m, vFHA, "hst0")
m("v_add_u32 v%d, %d, v%d" % (vFHA, 64 * 128, vFHA))
m("s_barrier")
for j in range(7, 14): w2_issue(m, 0, j)

vCA = va.get(); vCB = va.get()
m("v_sub_u32 v%d, v%d, v%d" % (vT[0], vC4, vR4)); m("v_lshlrev_b32 v%d, 3, v%d" % (vT[0], vT[0]))
m("v_lshlrev_b32 v%d, 6, v%d" % (vT[1], vG4)); m("v_sub_u32 v%d, v%d, v%d" % (vT[0], vT[0], vT[1]))
m("s_lshr_b32 %s, %s, 1" % (sT0, sW)); m("s_mul_i32 %s, %s, %d" % (sT0, sT0, 2 * HC_SZ)); m("s_add_u32 %s, %s, %d" % (sT0, sT0, L_HC + 216))
m("v_add_u32 v%d, %s, v%d" % (vCA, sT0, vT[0]))
m("v_and_b32 v%d, 15, v%d" % (vT[0], L)); m("v_lshlrev_b32 v%d, 3, v%d" % (vT[1], vT[0]))
m("v_lshl_add_u32 v%d, v%d, 4, v%d" % (vT[1], vG4, vT[1]))
m("v_and_b32 v%d, 1, v%d" % (vT[0], L)); m("v_xor_b32 v%d, 1, v%d" % (vT[0], vT[0]))
m("v_mul_u32_u24 v%d, %d, v%d" % (vT[0], UP + 8, vT[0]))
m("v_add3_u32 v%d, v%d, v%d, %s" % (vCB, vT[0], vT[1], sUW))
m("v_add_u32 v%d, 8, v%d" % (vCB, vCB))
vCACC = vACC[0]
aCF = 0
def conv_reads(bi):
    s = Stream()
    e2, r = bi >> 1, bi & 1
    base = aCF + 64 * (bi & 1)
    for a in range(8):
        off = e2 * HC_SZ + 256 * (2 * a + r)
        s("ds_read_b64_tr_b16 %s, v%d offset:%d" % (ar(base + 8 * a, 2), vCA, off + 32), tag="c%d_%d" % (bi, a))
        s("ds_read_b64_tr_b16 %s, v%d offset:%d" % (ar(base + 8 * a + 2, 2), vCA, off), tag="c%d_%d" % (bi, a))
        s("ds_read_b128 %s, v%d offset:%d" % (ar(base + 8 * a + 4, 4), vCB, e2 * 2 * UP + 64 * (2 * a - r + 1)), tag="c%d_%d" % (bi, a))
    return s
def conv_mfma(bi):
    s = Stream()
    base = aCF + 64 * (bi & 1)
    first = set()
    for mx in range(8):
        s.wait_lgkm("c%d_%d" % (bi, mx))
        prs = [(mx, i) for i in range(mx + 1)] + [(a, mx) for a in range(mx)]
        for a, i in prs:
            if a + i > 7: continue
            j = a + i
            c = vr(vCACC + 4 * j, 4)
            if bi == 0 and j not in first:
                first.add(j); c = "0"
            s("v_mfma_f32_16x16x32_bf16 %s, %s, %s, %s" % (vr(vCACC + 4 * j, 4), ar(base + 8 * a, 4), ar(base + 8 * i + 4, 4), c))
    return s
m.wait_lgkm("uw")
cv = Stream()
cv.extend(conv_reads(0))
for bi in range(4):
    mf = conv_mfma(bi)
    if bi < 3: mf = merge(mf, conv_reads(bi + 1), 0.1, 0.9)
    cv.extend(mf)
g2s = gelu(1)
w2s = Stream()
for j in range(14):
    w2s.wait_vm("w2_0_%d" % j); w2_reads(w2s, 0, j)
w2s.wait_lgkm("w2r0_13")
for j in range(14): w2_issue(w2s, 1, j)
cv = merge(cv, g2s, 0.0, 0.5)
cv = merge(cv, w2s, 0.6, 1.0)
m.extend(cv)
stamp(m)
flag_store(m, vFHA, "hst1")
m("s_lshl_b32 %s, %s, 8" % (sT0, sRB64)); m("s_add_u32 %s, %s, 0x%x" % (sT0, sT0, WS_FH))
m("v_and_b32 v%d, 15, v%d" % (vT[0], L)); m("v_min_u32 v%d, 13, v%d" % (vT[0], vT[0]))
m("v_bfe_u32 v%d, v%d, 4, 1" % (vT[1], L)); m("v_lshlrev_b32 v%d, 7, v%d" % (vT[1], vT[1]))
m("v_lshl_add_u32 v%d, v%d, 2, v%d" % (vT[0], vT[0], vT[1]))
m("v_add_u32 v%d, %s, v%d" % (vPA, sT0, vT[0]))
poll_issue(m, vPD, vPA, "ph0")
m("s_barrier")
m("v_and_b32 v%d, 15, v%d" % (vT[0], L)); m("v_mul_u32_u24 v%d, 80, v%d" % (vT[0], vT[0]))
m("v_lshl_add_u32 v%d, v%d, 4, v%d" % (vT[0], vG4, vT[0]))
m("s_mul_i32 %s, %s, %d" % (sT0, sW, Y_SZ)); m("s_and_b32 %s, %s, 1" % (sT1, sW)); m("s_lshl_b32 %s, %s, 3" % (sT2, sT1))
m("s_add_u32 %s, %s, %d" % (sT0, sT0, L_Y)); m("s_add_u32 %s, %s, %s" % (sT2, sT2, sT0))
m("v_add_u32 v%d, %s, v%d" % (vT[0], sT2, vT[0]))
m("v_cmp_eq_u32 vcc, 3, v%d" % vG4)
m("s_lshl_b32 %s, %s, 4" % (sT1, sT1))
m("v_mov_b32 v%d, %s" % (vT[2], sT1))
m("v_cndmask_b32 v%d, 0, v%d, vcc" % (vT[2], vT[2]))
m("v_add3_u32 v%d, v%d, v%d, 8" % (vT[1], vT[0], vT[2]))
m("v_mov_b32 v%d, %s" % (vT[2], sT0))
m("s_mov_b64 exec, 1")
m("ds_write_b64 v%d, %s" % (vT[2], vr(vZ4, 2)), tag="yw")
m("s_mov_b64 exec, -1")
for j in range(8):
    m("ds_write_b64 v%d, %s offset:%d" % (vT[0], vr(vCACC + 4 * j, 2), 1280 * j), tag="yw")
    m("ds_write_b64 v%d, %s offset:%d" % (vT[1], vr(vCACC + 4 * j + 2, 2), 1280 * j), tag="yw")
m("v_lshrrev_b32 v%d, 1, v%d" % (vT[2], L)); m("v_mul_u32_u24 v%d, 80, v%d" % (vT[2], vT[2]))
m("v_and_b32 v%d, 1, v%d" % (vT[3], L)); m("v_lshl_add_u32 v%d, v%d, 5, v%d" % (vT[2], vT[3], vT[2]))
m("s_lshr_b32 %s, %s, 1" % (sT0, sW)); m("s_mul_i32 %s, %s, %d" % (sT0, sT0, 2 * Y_SZ))
m("s_and_b32 %s, %s, 1" % (sT1, sW)); m("s_mul_i32 %s, %s, %d" % (sT2, sT1, 64 * 80))
m("s_add_u32 %s, %s, %s" % (sT0, sT0, sT2)); m("s_add_u32 %s, %s, %d" % (sT0, sT0, L_Y))
m("v_add_u32 v%d, %s, v%d" % (vT[2], sT0, vT[2]))
m("s_lshl_b32 %s, %s, 12" % (sT0, sCH)); m("s_lshl_b32 %s, %s, 11" % (sT1, sT1)); m("s_add_u32 %s, %s, %s" % (sT0, sT0, sT1)); m("s_add_u32 %s, %s, 0x%x" % (sT3, sT0, WS_Z))
m.wait_lgkm("yw")
m("s_barrier")
for q in range(2):
    for y in range(2):
        for hf in range(2):
            m("ds_read_b128 %s, v%d offset:%d" % (vr(vCACC + 16 * q + 8 * y + 4 * hf, 4), vT[2], 2560 * q + Y_SZ * y + 16 * hf), tag="yr%d" % q)
for q in range(2):
    m.wait_lgkm("yr%d" % q)
    b = vCACC + 16 * q
    for j in range(4): m("v_pk_add_f32 %s, %s, %s" % (vr(b + 2 * j, 2), vr(b + 2 * j, 2), vr(b + 8 + 2 * j, 2)))
    for j in range(4): m("v_cvt_pk_bf16_f32 v%d, v%d, v%d" % (b + 8 + j, b + 2 * j, b + 2 * j + 1))
    m("buffer_store_dwordx4 %s, v%d, %s, %s offen offset:%d sc1" % (vr(b + 8, 4), vL16, WS, sT3, 1024 * q), tag="zst")
m("s_barrier")
vFZA = vFUA
m("s_lshl_b32 %s, %s, 1" % (sT0, sC)); m("s_and_b32 %s, %s, 1" % (sT1, sW)); m("s_add_u32 %s, %s, %s" % (sT0, sT0, sT1)); m("s_lshl_b32 %s, %s, 8" % (sT0, sT0))
m("s_and_b32 %s, %s, 63" % (sT1, sCH)); m("s_lshl_b32 %s, %s, 2" % (sT1, sT1)); m("s_add_u32 %s, %s, %s" % (sT0, sT0, sT1)); m("s_add_u32 %s, %s, 0x%x" % (sT0, sT0, WS_FZ))
m("v_mov_b32 v%d, %s" % (vFZA, sT0))
stamp(m)

vA2 = vACC
print("vgprs used before GEMM2:", va.n, file=sys.stderr)
NRING = 14
aHR = None
vb = VA(128, 256)
vEPB = vb.get(32, 4)
vQ = [vb.get(4, 4) for _ in range(2)]; vG = [vb.get(2, 2) for _ in range(2)]; vB2 = vb.get(4, 4)
ring = [vb.get(4, 4) for _ in range(20)]
ringa = [112 + 4 * i for i in range(6)] + [248, 252]
RING = [("v", r) for r in ring] + [("a", r) for r in ringa]
NR = len(RING)
def rr(i): f, b = RING[i % NR]; return ("%s[%d:%d]" % (f, b, b + 3))
sHL = sHB; sHO = sKX
m("s_lshr_b32 %s, %s, 1" % (sHL, sRB64)); m("s_mul_i32 %s, %s, %d" % (sHL, sHL, 14 * 32768))
m("s_and_b32 %s, %s, 1" % (sT0, sRB64)); m("s_lshl_b32 %s, %s, 14" % (sT0, sT0)); m("s_add_u32 %s, %s, %s" % (sHL, sHL, sT0))
m("s_lshl_b32 %s, %s, 10" % (sT0, sW)); m("s_add_u32 %s, %s, %s" % (sHL, sHL, sT0)); m("s_add_u32 %s, %s, 0x%x" % (sHL, sHL, WS_H))
m("s_lshl_b32 %s, %s, 15" % (sHO, sCBR))
vHV = vXV
for hs in range(4):
    half, sg = hs >> 1, hs & 1
    m("v_add_u32 v%d, %d, v%d" % (vHV[hs], sg * 8192 + half * 4096, vL16))
def h_issue(s, n):
    s.begin()
    hs, j = n // 14, n % 14
    s("s_add_u32 %s, %s, %s" % (sT0, sHL, sHO))
    s("buffer_load_dwordx4 %s, v%d, %s, %s offen sc1" % (rr(n), vHV[hs], WS, sT0), tag="h%d" % n)
    s("s_add_u32 %s, %s, 32768" % (sHO, sHO))
    s("s_cmp_ge_u32 %s, %d" % (sHO, 14 * 32768)); s("s_cselect_b32 %s, 0, %s" % (sHO, sHO))
    s.end()
vQO = va.get(); vGA = va.get(); vPW = va.get(); vPR_ = va.get(); vZR = va.get()
m("s_lshl_b32 %s, %s, 6" % (sT0, sRB64)); m("s_lshl_b32 %s, %s, 3" % (sT1, sW)); m("s_add_u32 %s, %s, %s" % (sT0, sT0, sT1))
m("v_add_u32 v%d, %s, v%d" % (vT[0], sT0, vLd8))
m("v_lshlrev_b32 v%d, 3, v%d" % (vGA, vT[0])); m("v_add_u32 v%d, 0x%x, v%d" % (vGA, WS_G, vGA))
m("v_mul_u32_u24 v%d, 896, v%d" % (vT[0], vT[0]))
m("s_lshl_b32 %s, %s, 7" % (sT0, sC))
m("v_lshl_add_u32 v%d, v%d, 4, %s" % (vT[1], vL8, sT0))
m("v_add_u32 v%d, v%d, v%d" % (vQO, vT[0], vT[1]))
poll_check(m, vPD, vPA, "ph0")
stamp(m)
PRE = 11
for n in range(PRE): h_issue(m, n)
m("global_load_dwordx4 %s, v%d, %s" % (vr(vB2, 4), vT[1], P_B2), tag="q")
m("s_mov_b32 %s, %d" % (sT3, 32 * 896))
m("buffer_load_dwordx4 %s, v%d, %s, 0 offen" % (vr(vQ[0], 4), vQO, Q), tag="q")
m("buffer_load_dwordx4 %s, v%d, %s, %s offen" % (vr(vQ[1], 4), vQO, Q, sT3), tag="q")
flag_store(m, vFZA, "zst")
m("v_add_u32 v%d, %d, v%d" % (vPA, 64 * 128, vPA))
poll_issue(m, vPD, vPA, "ph1")
m("v_mul_u32_u24 v%d, 272, v%d" % (vT[0], vS32)); m("v_lshl_add_u32 v%d, v%d, 4, v%d" % (vPW, vHH, vT[0]))
m("s_lshl_b32 %s, %s, 3" % (sT0, sW))
m("v_add_u32 v%d, %s, v%d" % (vT[0], sT0, vLd8))
m("v_mul_u32_u24 v%d, 272, v%d" % (vT[1], vT[0])); m("v_lshl_add_u32 v%d, v%d, 5, v%d" % (vPR_, vL8, vT[1]))
m("v_mul_u32_u24 v%d, 144, v%d" % (vT[1], vT[0])); m("v_lshl_add_u32 v%d, v%d, 4, v%d" % (vZR, vL8, vT[1]))
m("v_add_u32 v%d, %d, v%d" % (vZR, L_ZT, vZR))
sPB0 = sUW
m("s_mul_i32 %s, %s, %d" % (sPB0, sW, PB_SZ)); m("s_add_u32 %s, %s, %d" % (sPB0, sPB0, L_PB0))

vZL = vEPB
vEP = vEPB
def z_poll(s):
    s("s_lshl_b32 %s, %s, 1" % (sT1, sC)); s("s_lshr_b32 %s, %s, 4" % (sT2, sRB64)); s("s_add_u32 %s, %s, %s" % (sT1, sT1, sT2)); s("s_lshl_b32 %s, %s, 8" % (sT1, sT1))
    s("s_lshl_b32 %s, %s, 6" % (sT2, sW)); s("s_add_u32 %s, %s, %s" % (sT1, sT1, sT2)); s("s_add_u32 %s, %s, 0x%x" % (sT1, sT1, WS_FZ))
    s("v_and_b32 v%d, 15, v%d" % (vT[0], L))
    s("v_lshl_add_u32 v%d, v%d, 2, %s" % (vPA, vT[0], sT1))
    poll_issue(s, vPD, vPA, "pz")
    poll_issue(s, vG[0], vGA, "pg0", wide=True)
    s("v_add_u32 v%d, 256, v%d" % (vT[5], vGA))
    poll_issue(s, vG[1], vT[5], "pg1", wide=True)
def z_load(s):
    poll_check(s, vPD, vPA, "pz")
    s("s_lshl_b32 %s, %s, 6" % (sT1, sC)); s("s_lshl_b32 %s, %s, 4" % (sT2, sW)); s("s_add_u32 %s, %s, %s" % (sT1, sT1, sT2)); s("s_lshl_b32 %s, %s, 12" % (sT1, sT1))
    s("s_lshl_b32 %s, %s, 7" % (sT2, sRB64)); s("s_add_u32 %s, %s, %s" % (sT1, sT1, sT2)); s("s_add_u32 %s, %s, 0x%x" % (sT1, sT1, WS_Z))
    s("v_lshlrev_b32 v%d, 12, v%d" % (vT[0], vLd8)); s("v_lshl_add_u32 v%d, v%d, 4, v%d" % (vT[0], vL8, vT[0]))
    s("buffer_load_dwordx4 %s, v%d, %s, %s offen sc1" % (vr(vZL, 4), vT[0], WS, sT1), tag="zl")
    s("s_add_u32 %s, %s, 32768" % (sT1, sT1))
    s("buffer_load_dwordx4 %s, v%d, %s, %s offen sc1" % (vr(vZL + 4, 4), vT[0], WS, sT1), tag="zl")
    poll_check(s, vG[0], vGA, "pg0", wide=True)
    poll_check(s, vG[1], vT[5], "pg1", wide=True)
def z_xpose(s):
    s("v_add_u32 v%d, %s, v%d" % (vT[0], sPB0, vL16))
    s("v_lshlrev_b32 v%d, 7, v%d" % (vT[1], vR4)); s("v_lshl_add_u32 v%d, v%d, 5, v%d" % (vT[1], vG4, vT[1])); s("v_lshl_add_u32 v%d, v%d, 3, v%d" % (vT[1], vC4, vT[1]))
    s("v_add_u32 v%d, %s, v%d" % (vT[1], sPB0, vT[1]))
    s("v_mul_u32_u24 v%d, 144, v%d" % (vT[2], L)); s("s_lshl_b32 %s, %s, 5" % (sT1, sW)); s("s_add_u32 %s, %s, %d" % (sT1, sT1, L_ZT))
    s("v_add_u32 v%d, %s, v%d" % (vT[2], sT1, vT[2]))
    s.wait_vm("zl")
    s("ds_write_b128 v%d, %s" % (vT[0], vr(vZL, 4)), tag="zw")
    s("ds_write_b128 v%d, %s offset:1024" % (vT[0], vr(vZL + 4, 4)), tag="zw")
    s.wait_lgkm("zw")
    for i in range(4):
        s("ds_read_b64_tr_b16 %s, v%d offset:%d" % (vr(vZL + 8 + 2 * i, 2), vT[1], 512 * i), tag="zr")
    s.wait_lgkm("zr")
    s("ds_write_b128 v%d, %s" % (vT[2], vr(vZL + 8, 4)), tag="zw2")
    s("ds_write_b128 v%d, %s offset:16" % (vT[2], vr(vZL + 12, 4)), tag="zw2")
def part_write(s, sg):
    s("v_add_u32 v%d, %s, v%d" % (vT[0], sPB0 if sg == 0 else sXR, vPW))
    for t in range(2):
        for a in range(4):
            s("ds_write_b128 v%d, %s offset:%d" % (vT[0], vr(vA2[2 * sg + t] + 4 * a, 4), 128 * t + 32 * a), tag="pw%d" % sg)
    s.wait_lgkm("pw%d" % sg)
    s("s_barrier")
def epilogue(s, sg):
    base = L_PB0 if sg == 0 else L_XR
    stride = PB_SZ if sg == 0 else XR_SZ
    s("v_add_u32 v%d, %d, v%d" % (vT[0], base, vPR_))
    for w in range(4):
        for hf in range(2):
            s("ds_read_b128 %s, v%d offset:%d" % (vr(vEP + 8 * w + 4 * hf, 4), vT[0], stride * w + 16 * hf), tag="pr%d" % sg)
    s("ds_read_b128 %s, v%d offset:%d" % (vr(vT[4], 4), vZR, 32 * 144 * sg), tag="pr%d" % sg)
    s.wait_vm("q")
    s.wait_lgkm("pr%d" % sg)
    for j in range(4):
        s("v_pk_add_f32 %s, %s, %s" % (vr(vEP + 2 * j, 2), vr(vEP + 2 * j, 2), vr(vEP + 8 + 2 * j, 2)))
        s("v_pk_add_f32 %s, %s, %s" % (vr(vEP + 16 + 2 * j, 2), vr(vEP + 16 + 2 * j, 2), vr(vEP + 24 + 2 * j, 2)))
    for j in range(4):
        s("v_lshlrev_b32 v%d, 16, v%d" % (vEP + 8 + 2 * j, vB2 + j)); s("v_and_b32 v%d, 0xffff0000, v%d" % (vEP + 9 + 2 * j, vB2 + j))
        s("v_pk_add_f32 %s, %s, %s" % (vr(vEP + 2 * j, 2), vr(vEP + 2 * j, 2), vr(vEP + 16 + 2 * j, 2)))
    for j in range(4):
        s("v_pk_add_f32 %s, %s, %s" % (vr(vEP + 2 * j, 2), vr(vEP + 2 * j, 2), vr(vEP + 8 + 2 * j, 2)))
        s("v_lshlrev_b32 v%d, 16, v%d" % (vEP + 16 + 2 * j, vQ[sg] + j)); s("v_and_b32 v%d, 0xffff0000, v%d" % (vEP + 17 + 2 * j, vQ[sg] + j))
        s("v_lshlrev_b32 v%d, 16, v%d" % (vEP + 24 + 2 * j, vT[4] + j)); s("v_and_b32 v%d, 0xffff0000, v%d" % (vEP + 25 + 2 * j, vT[4] + j))
    for j in range(4):
        s("v_pk_fma_f32 %s, %s, %s, %s neg_lo:[0,0,1] neg_hi:[0,0,1]" % (vr(vEP + 16 + 2 * j, 2), vr(vEP + 16 + 2 * j, 2), vr(vEP + 24 + 2 * j, 2), vr(vEP + 2 * j, 2)))
    for j in range(4):
        s("v_pk_fma_f32 %s, %s, %s, %s op_sel_hi:[1,0,1]" % (vr(vEP + 2 * j, 2), vr(vEP + 16 + 2 * j, 2), vr(vG[sg], 2), vr(vEP + 2 * j, 2)))
    for j in range(4):
        s("v_cvt_pk_bf16_f32 v%d, v%d, v%d" % (vEP + 8 + j, vEP + 2 * j, vEP + 2 * j + 1))
    s("buffer_store_dwordx4 %s, v%d, %s, %s offen" % (vr(vEP + 8, 4), vQO, OUT, "0" if sg == 0 else sT3), tag="ost")

for n in range(56):
    hs, j = n // 14, n % 14
    half, sg = hs >> 1, hs & 1
    nn = n + PRE
    if nn == 28: poll_check(m, vPD, vPA, "ph1"); z_poll(m)
    if nn < 56: h_issue(m, nn)
    if hs == 1:
        m.wait_vm("w2_1_%d" % j); w2_reads(m, 1, j)
    if n == 30: z_load(m)
    if n == 38: z_xpose(m)
    if n == 44: part_write(m, 0)
    if n == 46: epilogue(m, 0)
    m.wait_vm("h%d" % n)
    if hs == 2: m.wait_lgkm("w2r1_%d" % j)
    for t in range(2):
        c = "0" if (half == 0 and j == 0) else vr(vA2[2 * sg + t], 16)
        m("v_mfma_f32_32x32x16_bf16 %s, %s, %s, %s" % (vr(vA2[2 * sg + t], 16), ar(aW2[half] + 8 * j + 4 * t, 4), rr(n), c))
stamp(m)
part_write(m, 1)
epilogue(m, 1)
stamp(m)
print("vgprs used:", va.n, file=sys.stderr)

def stamp_out(s):
    if not STAMP: return
    s("s_waitcnt vmcnt(0)")
    stamp(s)
    s("s_lshl_b32 %s, s2, 2" % sT0); s("s_add_u32 %s, %s, %s" % (sT0, sT0, sW)); s("s_lshl_b32 %s, %s, 8" % (sT0, sT0)); s("s_add_u32 %s, %s, 0x%x" % (sT0, sT0, WS_STAMP))
    s("v_lshlrev_b32 v%d, 2, v%d" % (vT[0], vLANE))
    s("buffer_store_dword v%d, v%d, %s, %s offen" % (vSTA, vT[0], WS, sT0))
stamp_out(m)
m("s_endpgm")

g = Stream()
g("L_spare:")
nstamp[0] = 1
sJ = sA
g("s_sub_u32 %s, %s, 28" % (sJ, sI)); g("s_lshl_b32 %s, %s, 3" % (sJ, sJ)); g("s_add_u32 %s, %s, %s" % (sJ, sJ, sX))
g("s_lshl_b32 %s, %s, 6" % (sT0, sJ)); g("s_lshl_b32 %s, %s, 4" % (sT1, sW)); g("s_add_u32 %s, %s, %s" % (sT0, sT0, sT1))
g("v_lshrrev_b32 v12, 2, v%d" % vLANE); g("v_add_u32 v12, %s, v12" % sT0)
g("v_and_b32 v13, 3, v%d" % vLANE); g("v_lshlrev_b32 v13, 4, v13")
g("v_mul_u32_u24 v14, 896, v12"); g("v_add_u32 v14, v14, v13")
for i in range(14):
    g("buffer_load_dwordx4 v[%d:%d], v14, %s, 0 offen offset:%d" % (16 + 4 * i, 19 + 4 * i, Q, 64 * i), tag="gq")
for i in range(14):
    g("global_load_dwordx4 v[%d:%d], v13, %s offset:%d" % (80 + 4 * i, 83 + 4 * i, P_GATE, 64 * i), tag="gq")
g("s_waitcnt vmcnt(0)")
g("v_add_u32 v%d, 0x%x, v%d" % (vTAG, TAG_INC, vTAG))
for i in range(56):
    acc = 140 + (i % 4)
    g("v_dot2_f32_bf16 v%d, v%d, v%d, %s" % (acc, 16 + i, 80 + i, "0" if i < 4 else "v%d" % acc))
g("v_add_f32 v140, v140, v141"); g("v_add_f32 v142, v142, v143"); g("v_add_f32 v140, v140, v142")
g("v_add_f32_dpp v140, v140, v140 quad_perm:[1,0,3,2] row_mask:0xf bank_mask:0xf")
g("v_add_f32_dpp v140, v140, v140 quad_perm:[2,3,0,1] row_mask:0xf bank_mask:0xf")
g("v_mul_f32 v140, 0x%x, v140" % f2u(-math.log2(math.e)))
g("v_exp_f32 v140, v140"); g("v_add_f32 v140, 1.0, v140"); g("v_rcp_f32 v140, v140")
g("v_mov_b32 v141, v%d" % vTAG)
g("v_lshlrev_b32 v12, 3, v12"); g("v_add_u32 v12, 0x%x, v12" % WS_G)
g("s_mov_b32 exec_lo, 0x11111111"); g("s_mov_b32 exec_hi, 0x11111111")
g("buffer_store_dwordx2 v[140:141], v12, %s, 0 offen sc1" % WS)
g("s_mov_b64 exec, -1")
g("s_cmp_lg_u32 s2, 255"); g("s_cbranch_scc1 L_spare_done")
g("s_cmp_lg_u32 %s, 0" % sW); g("s_cbranch_scc1 L_spare_done")
g("v_lshlrev_b32 v12, 4, v%d" % vLANE); g("v_add_u32 v12, 0x%x, v12" % WS_FU)
g("v_min_u32 v15, 31, v%d" % vLANE); g("v_lshlrev_b32 v15, 4, v15"); g("v_add_u32 v15, 0x%x, v15" % (WS_FU + 3072))
g("v_lshlrev_b32 v13, 7, v%d" % vLANE); g("v_add_u32 v13, 0x%x, v13" % (WS_G + 4))
g("v_add_u32 v14, 8192, v13")
g("s_mov_b32 %s, 0" % sSPIN)
g("L_upd:")
g("s_sleep 8")
for i in range(3):
    g("buffer_load_dwordx4 v[%d:%d], v12, %s, 0 offen offset:%d sc1" % (16 + 4 * i, 19 + 4 * i, WS, 1024 * i))
g("buffer_load_dwordx4 v[28:31], v15, %s, 0 offen sc1" % WS)
g("buffer_load_dword v32, v13, %s, 0 offen sc1" % WS)
g("buffer_load_dword v33, v14, %s, 0 offen sc1" % WS)
g("s_add_u32 %s, %s, 1" % (sSPIN, sSPIN))
g("s_waitcnt vmcnt(0)")
for i in range(18): g("v_xor_b32 v%d, v%d, v%d" % (16 + i, 16 + i, vTAG))
for i in range(1, 18): g("v_or_b32 v16, v16, v%d" % (16 + i))
g("v_cmp_ne_u32 vcc, 0, v16")
g("s_cmp_gt_u32 %s, 0x40000" % sSPIN)
g("s_cbranch_scc1 L_upd_go")
g("s_cbranch_vccnz L_upd")
g("L_upd_go:")
g("v_mov_b32 v12, 0")
g("s_mov_b64 exec, 1")
g("buffer_store_dword v%d, v12, %s, 0 offen sc1" % (vTAG, WS))
g("s_mov_b64 exec, -1")
g("L_spare_done:")
stamp_out(g)
g("L_end:")
g("s_endpgm")

body = render(finalize(m)) + "\n" + render(insert_nops(spins.ops)) + "\n" + render(insert_nops(resolve_waits(g.ops)))
hdr = open("cdna_kernels/%s.s.ref" % NAME).read().split("; Override launch")[0]
out = hdr + "; @launch grid=(256,1,1) block=(256,1,1) lds=%d\n" % LDS_TOTAL
out += '.amdgcn_target "amdgcn-amd-amdhsa--gfx950"\n.text\n.globl %s_kernel\n.p2align 8\n.type %s_kernel,@function\n%s_kernel:\n' % (NAME, NAME, NAME)
out += body + "\nL_code_end:\n"
out = out.replace("CODE_BYTES", "L_code_end-%s_kernel-64" % NAME)
out += '.section .rodata,"a"\n.p2align 6\n.amdhsa_kernel %s_kernel\n' % NAME
out += "  .amdhsa_next_free_vgpr 512\n  .amdhsa_next_free_sgpr 102\n  .amdhsa_accum_offset 256\n  .amdhsa_group_segment_fixed_size 0\n"
out += "  .amdhsa_kernarg_size 120\n  .amdhsa_user_sgpr_count 2\n  .amdhsa_user_sgpr_kernarg_segment_ptr 1\n  .amdhsa_system_sgpr_workgroup_id_x 1\n.end_amdhsa_kernel\n"
open(sys.argv[1], "w").write(out)
```

```python
import re

TRANS = ("v_exp_f32", "v_log_f32", "v_rcp_f32", "v_rsq_f32", "v_sqrt_f32", "v_sin_f32", "v_cos_f32")

class Op:
    __slots__ = ("text", "kind", "tag", "waitfor", "reads", "writes", "srcc", "passes", "ab", "cost", "glue")
    def __init__(self, text, kind, tag=None):
        self.text = text; self.kind = kind; self.tag = tag
        self.waitfor = None
        self.reads = set(); self.writes = set(); self.srcc = (); self.passes = 0; self.ab = set()
        self.cost = 1; self.glue = False

_reg_re = re.compile(r"^(-|abs\()?\|?([vas])(\d+|\[(\d+):(\d+)\])\|?\)?$")

def regs_of(tok):
    tok = tok.strip()
    if tok in ("vcc",): return [("s", 106), ("s", 107)]
    if tok in ("vcc_lo",): return [("s", 106)]
    if tok in ("exec",): return [("s", 126), ("s", 127)]
    if tok == "m0": return [("s", 124)]
    m = _reg_re.match(tok)
    if not m: return []
    f = m.group(2)
    if m.group(4) is not None:
        return [(f, i) for i in range(int(m.group(4)), int(m.group(5)) + 1)]
    return [(f, int(m.group(3)))]

def split_ops(rest):
    out = []; cur = ""; depth = 0
    for ch in rest:
        if ch in "[(": depth += 1
        if ch in "])": depth -= 1
        if ch == "," and depth == 0:
            out.append(cur.strip()); cur = ""
        else:
            cur += ch
    if cur.strip(): out.append(cur.strip())
    if out:
        last = out[-1].split()
        out[-1] = last[0]
        mods = last[1:]
    else:
        mods = []
    return out, mods

def analyze(op):
    t = op.text.split(";")[0].strip()
    if not t or t.endswith(":") or t.startswith("."):
        op.kind = "label"; return
    parts = t.split(None, 1)
    mn = parts[0]; rest = parts[1] if len(parts) > 1 else ""
    ops, mods = split_ops(rest)
    R = lambda i: regs_of(ops[i]) if i < len(ops) else []
    if mn.startswith("v_mfma"):
        op.kind = "mfma"
        op.passes = 8 if "32x32x16" in mn else 4
        op.writes = set(R(0)); op.ab = set(R(1)) | set(R(2)); op.srcc = tuple(R(3))
        op.reads = op.ab | set(op.srcc)
        op.cost = 2
    elif mn.startswith("v_"):
        op.kind = "trans" if mn.split("_e")[0] in TRANS or mn in TRANS else "valu"
        if op.kind == "trans": op.cost = 2
        if mn.startswith("v_dot2"):
            op.kind = "dot"; op.ab = set(R(1)) | set(R(2))
        op.writes = set(R(0))
        for i in range(1, len(ops)): op.reads |= set(R(i))
        if mn.startswith(("v_fmac", "v_dot2c", "v_pk_fmac")): op.reads |= set(R(0))
        if mn.startswith("v_permlane"):
            op.reads |= set(R(0)); op.writes |= set(R(1)); op.kind = "permlane"
        if mn.startswith(("v_add_co", "v_sub_co", "v_addc_co", "v_subb_co")):
            op.writes |= set(R(1))
        if "dpp" in mn or any(m.startswith(("row_", "quad_perm", "wave_")) for m in mods):
            op.kind = "dpp"
            op.reads |= set(R(0))
        if mn.startswith(("v_readfirstlane", "v_readlane")): op.kind = "readlane"
    elif mn.startswith(("buffer_", "global_")):
        op.kind = "vmem"
        if mn.startswith(("buffer_wbl2", "buffer_inv")): return
        lds = "lds" in mods or "_lds_" in mn
        if "store" in mn:
            op.kind = "vstore"
            for i in range(len(ops)): op.reads |= set(R(i))
            if mn.endswith(("x3", "x4")):
                op.srcc = tuple(R(0) if mn.startswith("buffer_") else R(1))
        elif lds:
            op.kind = "vdma"
            for i in range(len(ops)): op.reads |= set(R(i))
            op.reads.add(("s", 124))
        else:
            op.writes = set(R(0))
            for i in range(1, len(ops)): op.reads |= set(R(i))
            if "d16" in mn: op.reads |= set(R(0))
    elif mn.startswith("ds_"):
        op.kind = "ds"
        if "write" in mn or "add" in mn:
            for i in range(len(ops)): op.reads |= set(R(i))
        else:
            op.writes = set(R(0))
            for i in range(1, len(ops)): op.reads |= set(R(i))
    elif mn.startswith("s_"):
        op.kind = "salu"
        if mn == "s_nop":
            op.kind = "nop"; op.cost = int(ops[0], 0) + 1
        elif mn.startswith(("s_waitcnt", "s_barrier", "s_branch", "s_cbranch", "s_endpgm", "s_sleep", "s_setprio")):
            op.kind = "ctl"
        elif mn.startswith(("s_cmp", "s_bitcmp")):
            for i in range(len(ops)): op.reads |= set(R(i))
        elif mn.startswith(("s_load", "s_memtime", "s_memrealtime", "s_buffer_load")):
            op.kind = "smem"; op.writes = set(R(0))
            for i in range(1, len(ops)): op.reads |= set(R(i))
        else:
            op.writes = set(R(0))
            for i in range(1, len(ops)): op.reads |= set(R(i))
            if "saveexec" in mn: op.writes |= {("s", 126), ("s", 127)}
    else:
        raise ValueError("unknown instr: " + t)

VALUK = ("valu", "trans", "dot", "dpp", "permlane", "readlane")
VMEMK = ("vmem", "vstore", "vdma")

class Stream:
    def __init__(self):
        self.ops = []
        self._g = None
    def begin(self): self._g = len(self.ops)
    def end(self):
        for o in self.ops[self._g + 1:]: o.glue = True
        self._g = None
    def __call__(self, text, tag=None):
        for line in text.split("\n"):
            line = line.strip()
            if not line: continue
            op = Op(line, None, tag)
            analyze(op)
            self.ops.append(op)
        return self
    def wait_vm(self, tag):
        op = Op("WAITVM", "waitvm"); op.waitfor = tag; self.ops.append(op)
    def wait_lgkm(self, tag):
        op = Op("WAITLGKM", "waitlgkm"); op.waitfor = tag; self.ops.append(op)
    def extend(self, other):
        self.ops.extend(other.ops)
    def cost(self):
        return sum(o.cost for o in self.ops if o.kind != "label")

def merge(primary, secondary, start=0.0, end=1.0):
    out = Stream()
    P = primary.ops; S = secondary.ops
    pc = sum(o.cost for o in P); sc = sum(o.cost for o in S)
    if sc == 0:
        out.ops = list(P); return out
    acc_p = 0; acc_s = 0; j = 0
    for pi, o in enumerate(P):
        out.ops.append(o); acc_p += o.cost
        if pi + 1 < len(P) and P[pi + 1].glue: continue
        frac = (acc_p / pc - start) / max(end - start, 1e-9)
        while j < len(S) and (acc_s < frac * sc or S[j].glue):
            out.ops.append(S[j]); acc_s += S[j].cost; j += 1
    out.ops.extend(S[j:])
    return out

def resolve_waits(ops):
    res = []
    vm_list = []
    lg_list = []
    vm_done = 0
    lg_done = 0
    for o in ops:
        if o.kind == "waitvm":
            idx = [i for i, t in enumerate(vm_list) if t == o.waitfor]
            assert idx, "waitvm: no op tagged %r" % (o.waitfor,)
            last = idx[-1]
            if last < vm_done: continue
            n = len(vm_list) - 1 - last
            n = min(n, 63)
            w = Op("s_waitcnt vmcnt(%d)" % n, "ctl"); res.append(w)
            vm_done = max(vm_done, len(vm_list) - n)
        elif o.kind == "waitlgkm":
            idx = [i for i, t in enumerate(lg_list) if t == o.waitfor]
            assert idx, "waitlgkm: no op tagged %r" % (o.waitfor,)
            last = idx[-1]
            if last < lg_done: continue
            n = len(lg_list) - 1 - last
            n = min(n, 15)
            w = Op("s_waitcnt lgkmcnt(%d)" % n, "ctl"); res.append(w)
            lg_done = max(lg_done, len(lg_list) - n)
        else:
            if o.kind in VMEMK: vm_list.append(o.tag)
            if o.kind == "ds": lg_list.append(o.tag)
            if o.kind == "ctl" and o.text.startswith("s_waitcnt"):
                m = re.search(r"vmcnt\((\d+)\)", o.text)
                if m: vm_done = max(vm_done, len(vm_list) - int(m.group(1)))
                m = re.search(r"lgkmcnt\((\d+)\)", o.text)
                if m: lg_done = max(lg_done, len(lg_list) - int(m.group(1)))
            res.append(o)
    return res

def need_dist(p, c):
    d = 0
    if p.kind in VALUK:
        wv = {r for r in p.writes if r[0] in "va"}
        ws = {r for r in p.writes if r[0] == "s"}
        if c.kind == "mfma" and wv & c.reads: d = max(d, 2)
        if p.kind == "trans" and c.kind in VALUK and c.kind != "trans" and wv & c.reads: d = max(d, 1)
        if p.kind == "dot" and (c.kind in VALUK or c.kind in VMEMK or c.kind == "ds") and wv & (c.reads | c.writes):
            same_c = c.kind == "dot" and c.text.split()[0] == p.text.split()[0] and not (wv & c.ab)
            if not same_c: d = max(d, 3)
        if c.kind == "readlane" and wv & c.reads: d = max(d, 1)
        if c.kind in ("dpp", "permlane") and wv & c.reads: d = max(d, 2)
        if ws:
            if c.kind in VMEMK and ws & c.reads: d = max(d, 5)
            if c.kind in VALUK and ws & c.reads: d = max(d, 4 if c.kind == "readlane" else 2)
            if c.kind == "ctl" and "vcc" in c.text and ("s", 106) in ws: d = max(d, 1)
    if p.kind == "mfma":
        big = 12 if p.passes == 8 else 8
        mid = 10 if p.passes == 8 else 6
        if c.kind == "mfma":
            if p.writes & c.ab: d = max(d, big)
            if p.writes & set(c.srcc):
                if not (set(c.srcc) == p.writes and c.passes == p.passes): d = max(d, mid)
            elif p.writes & c.writes: d = max(d, mid)
        elif c.kind in VALUK or c.kind in VMEMK or c.kind == "ds":
            if p.writes & (c.reads | c.writes): d = max(d, big)
            if c.kind in VALUK and set(p.srcc) & c.writes: d = max(d, 7 if p.passes == 8 else 3)
    if p.kind == "salu" and ("s", 124) in p.writes and c.kind == "vdma": d = max(d, 1)
    if p.kind == "vstore" and p.srcc and set(p.srcc) & c.writes:
        d = max(d, 2 if c.kind in VALUK else 1)
    return d

def insert_nops(ops):
    res = []
    for o in ops:
        if o.kind == "label":
            res.append(o); continue
        dist = 0; need = 0
        for p in reversed(res):
            if p.kind == "label": continue
            nd = need_dist(p, o)
            if nd > dist: need = max(need, nd - dist)
            dist += p.cost if p.kind == "nop" else 1
            if dist >= 14: break
        while need > 0:
            k = min(need, 16)
            n = Op("s_nop %d" % (k - 1), "nop"); n.cost = k
            res.append(n); need -= k
        res.append(o)
    return res

def finalize(stream):
    ops = resolve_waits(stream.ops)
    ops = insert_nops(ops)
    return ops

def render(ops):
    out = []
    for o in ops:
        out.append(o.text if o.kind == "label" else "  " + o.text)
    return "\n".join(out)

def groups(ops):
    out = []
    for o in ops:
        if o.glue and out: out[-1].append(o)
        else: out.append([o])
    return out

def gcost(g):
    c = 0
    for o in g:
        if o.kind in VMEMK: c += 3
        elif o.kind == "label": c += 0
        else: c += o.cost
    return c

def spread(primary, secondary, lo=0.0, hi=1.0, unit="mfma"):
    P = groups(primary.ops); S = groups(secondary.ops)
    isanchor = (lambda g: any(o.kind == "mfma" for o in g)) if unit == "mfma" else (lambda g: g[0].kind not in ("label", "waitvm", "waitlgkm"))
    wts = [(sum((o.passes for o in g if o.kind == "mfma")) if unit == "mfma" else gcost(g)) if isanchor(g) else 0 for g in P]
    tot = float(sum(wts)); sc = float(sum(gcost(g) for g in S))
    out = Stream(); acc = 0; accs = 0; j = 0
    for g, w in zip(P, wts):
        out.ops.extend(g); acc += w
        if w == 0: continue
        frac = (acc / tot - lo) / max(hi - lo, 1e-9)
        while j < len(S) and accs + 0.5 * gcost(S[j]) <= frac * sc:
            out.ops.extend(S[j]); accs += gcost(S[j]); j += 1
    for g in S[j:]: out.ops.extend(g)
    return out
```

```python
import sys, math, struct
sys.path.insert(0, "gen")
from asmlib import *

NAME = "gated_mix__ssm_conv_h3__dense_activation_gelu__prompt"
STAMP = int(sys.argv[2]) if len(sys.argv) > 2 else 0
OPT = dict(a.split("=") for a in sys.argv[3:])
def opt(k, d): return type(d)(OPT.get(k, d))
f2u = lambda f: struct.unpack("<I", struct.pack("<f", f))[0]

WS_FU = 0x1000
WS_FZ = 0x2000
WS_FH = 0x3000
WS_G  = 0x8000
WS_STAMP = 0x10000
WS_U  = 0x100000
WS_Z  = 0x300000
WS_H  = 0x500000
CBS = 128 * 896
WS_SIZE = 0x1000000
TAG_INC = 0x9E3779B9
SLOT = 32768
W2L = 28672
L_HC = 114688; HC_SZ = 4128
L_UW = 131200; UW_SZ = 4624; UP = 1152
L_P0 = 149696
L_Y = 114688; Y_SZ = 10256
L_PB0 = 114688; PB_SZ = 8704
L_ZT = 149696
LDS_TOTAL = 163840

Q, K, V, SSM, W1, W2, OUT, WS = ["s[%d:%d]" % (b, b + 3) for b in range(8, 40, 4)]
P_SHIFT, P_D, P_B1, P_B2, P_GATE = "s[46:47]", "s[50:51]", "s[56:57]", "s[60:61]", "s[62:63]"
sW, sX, sI, sA, sC, sRB128, sCB128, sRB64 = "s70", "s71", "s72", "s73", "s74", "s75", "s76", "s77"
sT0, sT1, sT2, sT3 = "s78", "s79", "s80", "s81"
sSELLO, sSELHI = "s82", "s83"
sROT, sSPIN, sCH, sHB = "s84", "s85", "s86", "s87"
sXL, sWL, sW2L, sUW, sHC, sHSRC = "s88", "s89", "s3", "s4", "s6", "s7"
sC1 = "s[64:65]"
sST = "s[66:67]"
tXO = ["s40", "s41", "s42", "s43", "s44", "s45", "s48"]
tWO = ["s49", "s52", "s53", "s54", "s55", "s58", "s59"]
tCB = ["s%d" % i for i in range(90, 102)] + ["s68", "s69"]

class VA:
    def __init__(self, lo, hi): self.n = lo; self.hi = hi
    def get(self, k=1, align=1):
        self.n = (self.n + align - 1) // align * align
        r = self.n; self.n += k
        assert self.n <= self.hi, "out of regs"
        return r
def vr(b, k=1): return "v%d" % b if k == 1 else "v[%d:%d]" % (b, b + k - 1)
def ar(b, k=1): return "a%d" % b if k == 1 else "a[%d:%d]" % (b, b + k - 1)

spins = Stream()
nstamp = [0]
va = VA(0, 64); vb = VA(128, 256)
vTID = va.get(); vLANE = va.get(); vTAG = va.get(); vSTA = va.get()
vT = [va.get() for _ in range(8)]

def stamp(s, rt=False):
    if not STAMP: return
    i = nstamp[0]; nstamp[0] += 1
    s.begin()
    s("%s %s" % ("s_memrealtime" if rt else "s_memtime", sST))
    s("s_waitcnt lgkmcnt(0)")
    s("v_writelane_b32 v%d, s66, %d" % (vSTA, i))
    s.end()

def flag_store(s, vaddr, tagwait):
    s.wait_vm(tagwait)
    s.begin()
    s("s_mov_b64 exec, 1")
    s("buffer_store_dword v%d, v%d, %s, 0 offen sc1" % (vTAG, vaddr, WS), tag="flag")
    s("s_mov_b64 exec, -1")
    s.end()

def poll_issue(s, vdst, vaddr, tag, wide=False):
    if wide: s("buffer_load_dwordx2 %s, v%d, %s, 0 offen sc1" % (vr(vdst, 2), vaddr, WS), tag=tag)
    else: s("buffer_load_dword v%d, v%d, %s, 0 offen sc1" % (vdst, vaddr, WS), tag=tag)

npoll = [0]
def poll_check(s, vdst, vaddr, tag, wide=False):
    vc = vdst + 1 if wide else vdst
    s.wait_vm(tag)
    s.begin()
    s("v_cmp_ne_u32 vcc, v%d, v%d" % (vc, vTAG))
    s("s_cbranch_vccnz L_spin_%s" % tag)
    s("L_ok_%s:" % tag)
    s.end()
    t = spins
    t("L_spin_%s:" % tag)
    t("s_mov_b32 %s, 0" % sSPIN)
    t("L_spin2_%s:" % tag)
    t("s_sleep 1")
    poll_issue(t, vdst, vaddr, tag, wide)
    t("s_add_u32 %s, %s, 1" % (sSPIN, sSPIN))
    t("s_waitcnt vmcnt(0)")
    t("v_cmp_ne_u32 vcc, v%d, v%d" % (vc, vTAG))
    if STAMP: t("v_writelane_b32 v%d, %s, %d" % (vSTA, sSPIN, 48 + npoll[0]))
    npoll[0] += 1
    t("s_cmp_gt_u32 %s, 0x40000" % sSPIN)
    t("s_cbranch_scc1 L_ok_%s" % tag)
    t("s_cbranch_vccnz L_spin2_%s" % tag)
    t("s_branch L_ok_%s" % tag)

def srd(s, name, lo, nbytes):
    b = int(name[2:].split(":")[0])
    s("s_mov_b32 s%d, s%d" % (b, lo)); s("s_mov_b32 s%d, s%d" % (b + 1, lo + 1))
    s("s_mov_b32 s%d, 0x%x" % (b + 2, nbytes)); s("s_mov_b32 s%d, 0x20000" % (b + 3))

m = Stream()
L = vLANE
if STAMP: m("s_memrealtime s[6:7]")
m("s_load_dwordx16 s[40:55], s[0:1], 0")
m("s_load_dwordx8 s[56:63], s[0:1], 64")
m("s_load_dwordx4 s[64:67], s[0:1], 96")
m("s_load_dwordx2 s[68:69], s[0:1], 112")
m("s_cmp_ge_u32 s2, 256")
m("s_cbranch_scc1 L_end")
m("s_getpc_b64 s[4:5]")
m("v_lshlrev_b32 v%d, 7, v0" % vT[0])
m("v_min_u32 v%d, CODE_BYTES, v%d" % (vT[0], vT[0]))
m("global_load_dword v255, v%d, s[4:5]" % vT[0], tag="cpf")
m("v_mov_b32 v%d, 0" % vSTA)
m("v_and_b32 v%d, 63, v0" % vLANE)
m("v_lshrrev_b32 v%d, 6, v0" % vT[2])
m("v_readfirstlane_b32 %s, v%d" % (sW, vT[2]))
m("s_and_b32 %s, s2, 7" % sX)
m("s_lshr_b32 %s, s2, 3" % sI)
m("s_mul_i32 %s, %s, 37" % (sA, sI)); m("s_lshr_b32 %s, %s, 8" % (sA, sA))
m("s_mul_i32 %s, %s, 7" % (sC, sA)); m("s_sub_u32 %s, %s, %s" % (sC, sI, sC))
m("s_lshr_b32 %s, %s, 1" % (sRB128, sX)); m("s_lshl_b32 %s, %s, 2" % (sRB128, sRB128)); m("s_add_u32 %s, %s, %s" % (sRB128, sRB128, sA))
m("s_and_b32 %s, %s, 1" % (sCB128, sX)); m("s_mul_i32 %s, %s, 7" % (sCB128, sCB128)); m("s_add_u32 %s, %s, %s" % (sCB128, sCB128, sC))
m("s_lshl_b32 %s, %s, 2" % (sRB64, sX)); m("s_add_u32 %s, %s, %s" % (sRB64, sRB64, sA))
m("s_mov_b32 %s, 0x05040100" % sSELLO); m("s_mov_b32 %s, 0x07060302" % sSELHI)
m("s_lshl_b32 %s, %s, 1" % (sROT, sA)); m("s_add_u32 %s, %s, %s" % (sROT, sROT, sC))
m("s_cmp_ge_u32 %s, 7" % sROT); m("s_cselect_b32 %s, 7, 0" % sT0); m("s_sub_u32 %s, %s, %s" % (sROT, sROT, sT0))
vL8 = va.get(); vLd8 = va.get()
m("v_and_b32 v%d, 7, v%d" % (vL8, L)); m("v_lshrrev_b32 v%d, 3, v%d" % (vLd8, L))
vXV = [va.get() for _ in range(4)]
vWV = [va.get() for _ in range(4)]
m("s_lshl_b32 %s, %s, 7" % (sT0, sRB128)); m("s_lshl_b32 %s, %s, 5" % (sT1, sW)); m("s_add_u32 %s, %s, %s" % (sT0, sT0, sT1))
m("v_add_u32 v%d, %s, v%d" % (vT[0], sT0, vLd8))
m("v_mul_u32_u24 v%d, 896, v%d" % (vT[0], vT[0]))
m("v_lshrrev_b32 v%d, 4, v%d" % (vT[2], L))
m("v_xor_b32 v%d, v%d, v%d" % (vT[3], vL8, vT[2]))
m("v_lshl_add_u32 v%d, v%d, 4, v%d" % (vXV[0], vT[3], vT[0]))
m("v_xor_b32 v%d, 4, v%d" % (vT[3], vT[3]))
m("v_lshl_add_u32 v%d, v%d, 4, v%d" % (vXV[1], vT[3], vT[0]))
m("v_add_u32 v%d, %d, v%d" % (vXV[2], 2 * 6144, vXV[0]))
m("v_add_u32 v%d, %d, v%d" % (vXV[3], 3 * 6144, vXV[1]))
m("v_add_u32 v%d, %d, v%d" % (vXV[1], 6144, vXV[1]))
vSWZ = va.get()
m("v_and_b32 v%d, 1, v%d" % (vT[3], vT[2])); m("v_lshlrev_b32 v%d, 2, v%d" % (vT[3], vT[3]))
m("v_xor_b32 v%d, v%d, v%d" % (vT[3], vL8, vT[3])); m("v_lshlrev_b32 v%d, 4, v%d" % (vSWZ, vT[3]))
m("s_lshl_b32 %s, %s, 4" % (sT0, sW))
m("v_add_u32 v%d, %s, v%d" % (vT[0], sT0, vLd8))
m("v_mul_u32_u24 v%d, 3584, v%d" % (vT[0], vT[0]))
m("s_lshl_b32 %s, %s, 8" % (sT0, sCB128))
m("v_add3_u32 v%d, v%d, v%d, %s" % (vWV[0], vT[0], vSWZ, sT0))
m("v_add_u32 v%d, %d, v%d" % (vWV[1], 8 * 3584 - 1024, vWV[0]))
m("v_add_u32 v%d, %d, v%d" % (vWV[3], 8 * 3584 + 128 - 3072, vWV[0]))
m("v_add_u32 v%d, %d, v%d" % (vWV[2], 3584 * 64 + 128 - 2048, vWV[0]))
m("s_lshl_b32 %s, %s, 12" % (sXL, sW))
m("s_add_u32 %s, %s, 16384" % (sWL, sXL))
m("s_waitcnt lgkmcnt(0)")
NB = 2048 * 448 * 2
srd(m, Q, 40, NB); srd(m, W1, 54, 448 * 1792 * 2); srd(m, WS, 68, WS_SIZE)
srd(m, K, 42, NB); srd(m, V, 44, NB); srd(m, SSM, 48, NB)
srd(m, W2, 58, 448 * 1792 * 2); srd(m, OUT, 64, NB)
stamp(m, rt=True)
stamp(m)
if STAMP: m("v_writelane_b32 v%d, s6, 41" % vSTA)
m("v_mov_b32 v%d, 0" % vT[0])
m("buffer_load_dword v%d, v%d, %s, 0 offen sc1" % (vTAG, vT[0], WS), tag="epoch")
m("s_cmp_ge_u32 %s, 28" % sI)
m("s_cbranch_scc1 L_spare")
m("v_subrev_u32 v%d, %d, v%d" % (vWV[2], 3584 * 64, vWV[2]))
m("s_lshl_b32 %s, %s, 7" % (tXO[0], sROT)); m("s_mul_i32 %s, %s, %d" % (tWO[0], sROT, 64 * 3584))

def st_issue_groups(t):
    gs = []
    slot = (t % 4) * SLOT
    for q in range(4):
        s = Stream(); s.begin()
        if q == 0: s("s_add_u32 m0, %s, %d" % (sXL, slot))
        s("buffer_load_dwordx4 v%d, %s, %s offen offset:%d lds" % (vXV[q], Q, tXO[t], 1024 * q), tag="st%d" % t)
        s.end(); gs.append(s)
    for q in range(4):
        s = Stream(); s.begin()
        if q in (0, 2): s("s_add_u32 m0, %s, %d" % (sWL, slot + (2048 if q == 2 else 0)))
        s("buffer_load_dwordx4 v%d, %s, %s offen offset:%d lds" % (vWV2[q], W1, tWO[t], 1024 * (q & 1)), tag="st%d" % t)
        s.end(); gs.append(s)
    return gs
vWV2 = vWV
m("v_add_u32 v%d, 128, v%d" % (vWV[2], vWV[0]))
m("v_add_u32 v%d, 128, v%d" % (vWV[3], vWV[1]))
def st_issue(s, t):
    for g_ in st_issue_groups(t): s.extend(g_)
st_issue(m, 0)
for t in range(1, 7):
    m("s_add_u32 %s, %s, 128" % (tXO[t], tXO[t - 1])); m("s_cmp_ge_u32 %s, 896" % tXO[t]); m("s_cselect_b32 %s, 0, %s" % (tXO[t], tXO[t]))
    m("s_mul_i32 %s, %s, %d" % (tWO[t], tXO[t], 64 * 3584 // 128))

vKR = [vb.get(4, 4) for _ in range(5)]; vVR = [vb.get(4, 4) for _ in range(2)]; vTP = vb.get(16, 4)
m("s_lshl_b32 %s, %s, 6" % (sT0, sRB64))
m("v_lshrrev_b32 v%d, 3, v0" % vT[0])
m("v_lshl_add_u32 v%d, v%d, 1, %s" % (vT[0], vT[0], sT0))
m("v_mul_u32_u24 v%d, 896, v%d" % (vT[0], vT[0]))
m("s_lshl_b32 %s, %s, 7" % (sT1, sC))
m("v_lshl_add_u32 v%d, v%d, 4, %s" % (vT[1], vL8, sT1))
m("v_add_u32 v%d, v%d, v%d" % (vT[0], vT[0], vT[1]))
for j in range(3):
    m("v_subrev_u32 v%d, %d, v%d" % (vT[2 + j], 896 * (3 - j), vT[0]))
m("buffer_load_dwordx4 %s, v%d, %s, 0 offen" % (vr(vKR[3], 4), vT[0], K), tag="p0")
m("buffer_load_dwordx4 %s, v%d, %s, 0 offen offset:896" % (vr(vKR[4], 4), vT[0], K), tag="p0")
m("buffer_load_dwordx4 %s, v%d, %s, 0 offen" % (vr(vVR[0], 4), vT[0], V), tag="p0")
m("buffer_load_dwordx4 %s, v%d, %s, 0 offen offset:896" % (vr(vVR[1], 4), vT[0], V), tag="p0")
for j in range(3):
    m("buffer_load_dwordx4 %s, v%d, %s, 0 offen" % (vr(vKR[j], 4), vT[2 + j], K), tag="p0")
m("v_lshlrev_b32 v%d, 2, v%d" % (vT[1], vT[1]))
for j in range(4):
    m("global_load_dwordx4 %s, v%d, %s offset:%d" % (vr(vTP + 4 * j, 4), vT[1], P_SHIFT, 16 * j), tag="p0")
vB1 = vb.get(4, 4)
vS32 = va.get(); vHH = va.get()
m("v_and_b32 v%d, 31, v%d" % (vS32, L)); m("v_lshrrev_b32 v%d, 5, v%d" % (vHH, L))
m("s_lshl_b32 %s, %s, 8" % (sT0, sCB128)); m("s_and_b32 %s, %s, 1" % (sT1, sW)); m("s_lshl_b32 %s, %s, 7" % (sT1, sT1)); m("s_add_u32 %s, %s, %s" % (sT0, sT0, sT1))
m("v_lshl_add_u32 v%d, v%d, 1, %s" % (vT[1], vS32, sT0))
m("global_load_ushort v%d, v%d, %s" % (vB1, vT[1], P_B1), tag="b1a")
m("global_load_ushort v%d, v%d, %s offset:64" % (vB1 + 2, vT[1], P_B1), tag="b1a")
m("v_mov_b32 v%d, 0" % (vB1 + 1)); m("v_mov_b32 v%d, 0" % (vB1 + 3))
vHP = va.get(2, 2); vDP = va.get()
m("s_lshl_b32 %s, %s, 6" % (sCH, sC)); m("s_lshl_b32 %s, %s, 1" % (sT0, sRB64)); m("s_add_u32 %s, %s, %s" % (sCH, sCH, sT0))
m("s_lshr_b32 %s, %s, 1" % (sT0, sW)); m("s_add_u32 %s, %s, %s" % (sCH, sCH, sT0))
m("s_lshl_b32 %s, %s, 12" % (sT0, sCH))
m("v_mov_b32 v%d, %s" % (vT[1], sT0))
m("buffer_load_dwordx2 %s, v%d, %s, 0 offen" % (vr(vHP, 2), vT[1], SSM), tag="b1a")
m("s_lshl_b32 %s, %s, 1" % (sT0, sCH))
m("v_mov_b32 v%d, %s" % (vT[1], sT0))
m("global_load_ushort v%d, v%d, %s" % (vDP, vT[1], P_D), tag="b1a")

su = Stream()
vXA = [va.get() for _ in range(4)]
vWA = [va.get() for _ in range(2)]
vW2R = [va.get() for _ in range(2)]
su("v_bfe_u32 v%d, v%d, 1, 3" % (vT[0], L))
su("v_xor_b32 v%d, v%d, v%d" % (vT[0], vT[0], vHH))
su("v_lshlrev_b32 v%d, 4, v%d" % (vT[0], vT[0]))
su("v_lshl_add_u32 v%d, v%d, 7, v%d" % (vT[0], vS32, vT[0]))
su("s_lshr_b32 %s, %s, 1" % (sT1, sW)); su("s_lshl_b32 %s, %s, 13" % (sT1, sT1))
for ks in range(4):
    su("v_xor_b32 v%d, %d, v%d" % (vXA[ks], 32 * ks, vT[0]))
    su("v_add_u32 v%d, %s, v%d" % (vXA[ks], sT1, vXA[ks]))
vC4 = va.get(); vR4 = va.get(); vG4 = va.get()
su("v_and_b32 v%d, 3, v%d" % (vC4, L)); su("v_bfe_u32 v%d, v%d, 2, 2" % (vR4, L)); su("v_lshrrev_b32 v%d, 4, v%d" % (vG4, L))
su("v_bfe_u32 v%d, v%d, 4, 1" % (vT[0], L))
su("v_lshlrev_b32 v%d, 5, v%d" % (vT[0], vT[0]))
su("v_lshl_add_u32 v%d, v%d, 3, v%d" % (vT[0], vC4, vT[0]))
su("v_lshl_add_u32 v%d, v%d, 7, v%d" % (vT[0], vR4, vT[0]))
su("v_bfe_u32 v%d, v%d, 3, 1" % (vT[1], L))
su("v_lshl_add_u32 v%d, v%d, 6, v%d" % (vT[0], vT[1], vT[0]))
su("v_lshl_add_u32 v%d, v%d, 10, v%d" % (vWA[0], vHH, vT[0]))
su("s_and_b32 %s, %s, 1" % (sT1, sW)); su("s_lshl_b32 %s, %s, 11" % (sT1, sT1)); su("s_add_u32 %s, %s, 16384" % (sT1, sT1))
su("v_add_u32 v%d, %s, v%d" % (vWA[0], sT1, vWA[0]))
su("v_xor_b32 v%d, 64, v%d" % (vWA[1], vWA[0]))
su("s_mul_i32 %s, %s, %d" % (sW2L, sW, W2L))
su("v_lshl_add_u32 v%d, v%d, 9, v%d" % (vW2R[0], vHH, vT[0]))
su("v_add_u32 v%d, %s, v%d" % (vW2R[0], sW2L, vW2R[0]))
su("v_xor_b32 v%d, 64, v%d" % (vW2R[1], vW2R[0]))
vZ4 = va.get(4, 4)
for i in range(4): su("v_mov_b32 v%d, 0" % (vZ4 + i))
su("s_mul_i32 %s, %s, %d" % (sUW, sW, UW_SZ)); su("s_add_u32 %s, %s, %d" % (sUW, sUW, L_UW))
su("v_mul_u32_u24 v%d, 57, v%d" % (vT[0], L)); su("v_lshrrev_b32 v%d, 9, v%d" % (vT[0], vT[0]))
su("v_mul_u32_u24 v%d, %d, v%d" % (vT[1], UP - 144, vT[0]))
su("v_lshl_add_u32 v%d, v%d, 4, v%d" % (vT[1], L, vT[1]))
su("v_add_u32 v%d, %s, v%d" % (vT[1], sUW, vT[1]))
su.begin()
su("s_mov_b32 exec_hi, 15")
su("ds_write_b128 v%d, %s" % (vT[1], vr(vZ4, 4)), tag="z0")
su("s_mov_b64 exec, -1")
su.end()
vACC = [64 + 16 * i for i in range(4)]
vONE = vb.get(8, 4)
for i in range(8): su("v_mov_b32 v%d, 0" % (vONE + i))
su.begin()
su("v_cmp_gt_u32 vcc, 32, v%d" % L)
su("v_mov_b32 v%d, 0x3f80" % vT[0])
su("v_cndmask_b32 v%d, 0, v%d, vcc" % (vONE, vT[0]))
su.end()
su("v_mov_b32 v%d, v%d" % (vONE + 6, vONE))
vL16 = va.get()
su("v_lshlrev_b32 v%d, 4, v%d" % (vL16, L))
su("s_and_b32 %s, %s, 1" % (sT1, sW)); su("s_lshl_b32 %s, %s, 1" % (sT1, sT1))
su("s_lshl_b32 %s, %s, 12" % (sHSRC, sCH)); su("s_add_u32 %s, %s, 8" % (sHSRC, sHSRC)); su("s_sub_u32 %s, %s, %s" % (sHSRC, sHSRC, sT1))
su("s_mul_i32 %s, %s, %d" % (sHC, sW, HC_SZ)); su("s_add_u32 %s, %s, %d" % (sHC, sHC, L_HC))
su("s_mul_i32 %s, %s, %d" % (tCB[0], sROT, 2 * CBS))
for j in range(1, 14):
    su.begin()
    su("s_add_u32 %s, %s, %d" % (tCB[j], tCB[j - 1], CBS)); su("s_cmp_ge_u32 %s, %d" % (tCB[j], 14 * CBS)); su("s_cselect_b32 %s, 0, %s" % (tCB[j], tCB[j]))
    su.end()
vW2V = [va.get() for _ in range(4)]
su("v_mul_u32_u24 v%d, 896, v%d" % (vT[0], vLd8))
su("s_lshl_b32 %s, %s, 7" % (sT1, sC)); su("s_mul_i32 %s, %s, %d" % (sT2, sW, 16 * 896)); su("s_add_u32 %s, %s, %s" % (sT1, sT1, sT2))
su("v_add3_u32 v%d, v%d, v%d, %s" % (vW2V[0], vT[0], vSWZ, sT1))
su("v_add_u32 v%d, %d, v%d" % (vW2V[1], 8 * 896 - 1024, vW2V[0]))
su("v_add_u32 v%d, %d, v%d" % (vW2V[2], 64 * 896, vW2V[0]))
su("v_add_u32 v%d, %d, v%d" % (vW2V[3], 64 * 896, vW2V[1]))
c_ = math.sqrt(2.0 / math.pi) * 2.0 * math.log2(math.e)
su("s_mov_b32 s64, 0x%x" % f2u(-c_ * 0.044715)); su("s_mov_b32 s65, 0x%x" % f2u(-c_ * 0.044715))
vC0 = va.get(2, 2)
su("v_mov_b32 v%d, 0x%x" % (vC0, f2u(-c_))); su("v_mov_b32 v%d, 0x%x" % (vC0 + 1, f2u(-c_)))
su("s_mul_i32 %s, %s, 43" % (sT1, sRB128)); su("s_lshr_b32 %s, %s, 7" % (sT1, sT1))
su("s_mul_i32 %s, %s, 3" % (sT2, sT1)); su("s_sub_u32 %s, %s, %s" % (sT2, sRB128, sT2))
su("s_mul_i32 %s, %s, %d" % (sHB, sT1, 14 * CBS)); su("s_lshl_b32 %s, %s, 15" % (sT2, sT2)); su("s_add_u32 %s, %s, %s" % (sHB, sHB, sT2))
su("s_mul_i32 %s, %s, %d" % (sT2, sCB128, CBS)); su("s_add_u32 %s, %s, %s" % (sHB, sHB, sT2))
su("s_lshl_b32 %s, %s, 13" % (sT2, sW)); su("s_add_u32 %s, %s, %s" % (sHB, sHB, sT2)); su("s_add_u32 %s, %s, 0x%x" % (sHB, sHB, WS_H))
vFHA = va.get(); vFUA = va.get(); vPA = va.get(); vPD = va.get(2, 2)
su("s_lshl_b32 %s, %s, 1" % (sT1, sRB128)); su("s_lshr_b32 %s, %s, 1" % (sT2, sW)); su("s_add_u32 %s, %s, %s" % (sT1, sT1, sT2)); su("s_lshl_b32 %s, %s, 7" % (sT1, sT1))
su("s_lshl_b32 %s, %s, 3" % (sT2, sCB128)); su("s_add_u32 %s, %s, %s" % (sT1, sT1, sT2))
su("s_and_b32 %s, %s, 1" % (sT2, sW)); su("s_lshl_b32 %s, %s, 2" % (sT2, sT2)); su("s_add_u32 %s, %s, %s" % (sT1, sT1, sT2)); su("s_add_u32 %s, %s, 0x%x" % (sT1, sT1, WS_FH))
su("v_mov_b32 v%d, %s" % (vFHA, sT1))
su("s_lshl_b32 %s, %s, 2" % (sT1, sC)); su("s_add_u32 %s, %s, %s" % (sT1, sT1, sW)); su("s_lshl_b32 %s, %s, 7" % (sT1, sT1))
su("s_lshl_b32 %s, %s, 2" % (sT2, sRB64)); su("s_add_u32 %s, %s, %s" % (sT1, sT1, sT2)); su("s_add_u32 %s, %s, 0x%x" % (sT1, sT1, WS_FU))
su("v_mov_b32 v%d, %s" % (vFUA, sT1))
su("s_lshl_b32 %s, %s, 2" % (sT1, sC)); su("s_lshr_b32 %s, %s, 3" % (sT2, sRB64)); su("s_add_u32 %s, %s, %s" % (sT1, sT1, sT2))
su("s_lshl_b32 %s, %s, 7" % (sT1, sT1)); su("s_add_u32 %s, %s, 0x%x" % (sT1, sT1, WS_FU))
su("v_lshl_add_u32 v%d, v%d, 2, %s" % (vPA, vS32, sT1))
vP0W = vb.get(); vP0R = vb.get(); vP0S = vb.get()
su("v_lshrrev_b32 v%d, 3, v0" % vT[0])
su("v_mul_u32_u24 v%d, 288, v%d" % (vT[0], vT[0]))
su("v_lshl_add_u32 v%d, v%d, 4, v%d" % (vT[0], vL8, vT[0]))
su("v_add_u32 v%d, %d, v%d" % (vP0W, L_P0, vT[0]))
su("v_and_b32 v%d, 1, v%d" % (vT[1], vG4)); su("v_lshlrev_b32 v%d, 5, v%d" % (vT[1], vT[1]))
su("v_lshl_add_u32 v%d, v%d, 2, v%d" % (vT[1], vR4, vT[1]))
su("v_add_u32 v%d, v%d, v%d" % (vT[1], vT[1], vHH))
su("v_mul_u32_u24 v%d, 144, v%d" % (vT[1], vT[1]))
su("v_lshl_add_u32 v%d, v%d, 3, v%d" % (vT[1], vC4, vT[1]))
su("s_lshl_b32 %s, %s, 5" % (sT1, sW)); su("s_add_u32 %s, %s, %d" % (sT1, sT1, L_P0))
su("v_add_u32 v%d, %s, v%d" % (vP0R, sT1, vT[1]))
su("s_lshl_b32 %s, %s, 6" % (sT1, sC)); su("s_lshl_b32 %s, %s, 4" % (sT2, sW)); su("s_add_u32 %s, %s, %s" % (sT1, sT1, sT2))
su("v_and_b32 v%d, 15, v%d" % (vT[2], L)); su("v_add_u32 v%d, %s, v%d" % (vT[2], sT1, vT[2]))
su("v_lshlrev_b32 v%d, 12, v%d" % (vT[2], vT[2]))
su("v_lshl_add_u32 v%d, v%d, 4, v%d" % (vT[2], vG4, vT[2]))
su("s_lshl_b32 %s, %s, 7" % (sT2, sRB64)); su("s_add_u32 %s, %s, 0x%x" % (sT2, sT2, WS_U))
su("v_add_u32 v%d, %s, v%d" % (vP0S, sT2, vT[2]))
vCA = va.get(); vCB = va.get()
su("v_sub_u32 v%d, v%d, v%d" % (vT[0], vC4, vR4)); su("v_lshlrev_b32 v%d, 3, v%d" % (vT[0], vT[0]))
su("v_lshlrev_b32 v%d, 6, v%d" % (vT[1], vG4)); su("v_sub_u32 v%d, v%d, v%d" % (vT[0], vT[0], vT[1]))
su("s_lshr_b32 %s, %s, 1" % (sT1, sW)); su("s_mul_i32 %s, %s, %d" % (sT1, sT1, 2 * HC_SZ)); su("s_add_u32 %s, %s, %d" % (sT1, sT1, L_HC + 216))
su("v_add_u32 v%d, %s, v%d" % (vCA, sT1, vT[0]))
su("v_and_b32 v%d, 15, v%d" % (vT[0], L)); su("v_lshlrev_b32 v%d, 3, v%d" % (vT[1], vT[0]))
su("v_lshl_add_u32 v%d, v%d, 4, v%d" % (vT[1], vG4, vT[1]))
su("v_and_b32 v%d, 1, v%d" % (vT[0], L)); su("v_xor_b32 v%d, 1, v%d" % (vT[0], vT[0]))
su("v_mul_u32_u24 v%d, %d, v%d" % (vT[0], UP + 8, vT[0]))
su("v_add3_u32 v%d, v%d, v%d, %s" % (vCB, vT[0], vT[1], sUW))
su("v_add_u32 v%d, 8, v%d" % (vCB, vCB))
s1 = Stream(); st_issue(s1, 1)
m.extend(spread(su, s1, 0.0, 1.0, unit="any"))

m.wait_vm("b1a")
stamp(m)
m("v_add_u32 v%d, 0x%x, v%d" % (vTAG, TAG_INC, vTAG))
for i in range(2):
    for ft in range(2):
        m("v_mfma_f32_32x32x16_bf16 %s, %s, %s, 0" % (vr(vACC[2 * i + ft], 16), vr(vB1, 4), vr(vONE + 4 * ft, 4)))

p0 = Stream()
vKS = vb.get(16, 4); vPR = vb.get(8, 4)
for e in range(8):
    sel_ = sSELLO if e % 2 == 0 else sSELHI
    dw = e // 2
    pr = vPR + 4 * (e % 2)
    p0("v_perm_b32 v%d, v%d, v%d, %s" % (pr + 0, vKR[2] + dw, vKR[3] + dw, sel_))
    p0("v_perm_b32 v%d, v%d, v%d, %s" % (pr + 1, vKR[0] + dw, vKR[1] + dw, sel_))
    p0("v_perm_b32 v%d, v%d, v%d, %s" % (pr + 2, vKR[3] + dw, vKR[4] + dw, sel_))
    p0("v_perm_b32 v%d, v%d, v%d, %s" % (pr + 3, vKR[1] + dw, vKR[2] + dw, sel_))
    p0("v_dot2_f32_bf16 v%d, v%d, v%d, 0" % (vKS + e, pr + 0, vTP + 2 * e))
    p0("v_dot2_f32_bf16 v%d, v%d, v%d, 0" % (vKS + 8 + e, pr + 2, vTP + 2 * e))
    p0("v_dot2_f32_bf16 v%d, v%d, v%d, v%d" % (vKS + e, pr + 1, vTP + 2 * e + 1, vKS + e))
    p0("v_dot2_f32_bf16 v%d, v%d, v%d, v%d" % (vKS + 8 + e, pr + 3, vTP + 2 * e + 1, vKS + 8 + e))
for row in range(2):
    for dw in range(4):
        p0("v_lshlrev_b32 v%d, 16, v%d" % (vKR[row] + 0 + 0, vVR[row] + dw) if False else "v_lshlrev_b32 v%d, 16, v%d" % (vTP + 8 * row + 2 * dw, vVR[row] + dw))
        p0("v_and_b32 v%d, 0xffff0000, v%d" % (vTP + 8 * row + 2 * dw + 1, vVR[row] + dw))
for row in range(2):
    for dw in range(4):
        p0("v_pk_mul_f32 %s, %s, %s" % (vr(vKS + 8 * row + 2 * dw, 2), vr(vTP + 8 * row + 2 * dw, 2), vr(vKS + 8 * row + 2 * dw, 2)))
for row in range(2):
    for dw in range(4):
        p0("v_cvt_pk_bf16_f32 v%d, v%d, v%d" % (vVR[row] + dw, vKS + 8 * row + 2 * dw, vKS + 8 * row + 2 * dw + 1))
p0("ds_write_b128 v%d, %s" % (vP0W, vr(vVR[0], 4)), tag="p0w")
p0("ds_write_b128 v%d, %s offset:144" % (vP0W, vr(vVR[1], 4)), tag="p0w")
s2 = Stream(); st_issue(s2, 2)
m.extend(spread(p0, s2, 0.0, 1.0, unit="any"))
stamp(m)

aF = 0
def g1_reads(s, kap):
    t, ks = kap // 4, kap % 4
    slot = (t % 4) * SLOT
    b = aF + 16 * (kap % 2)
    hi = slot >= 65536
    so = slot - (65536 if hi else 0)
    for ft in range(2):
        s("ds_read_b64_tr_b16 %s, v%d offset:%d" % (ar(b + 8 + 4 * ft, 2), vWA[ft], so + ks * 4096), tag="f%d" % kap)
        s("ds_read_b64_tr_b16 %s, v%d offset:%d" % (ar(b + 8 + 4 * ft + 2, 2), vWA[ft], so + ks * 4096 + 512), tag="f%d" % kap)
        s("ds_read_b128 %s, v%d offset:%d" % (ar(b + 4 * ft, 4), vXA[ks], so + 4096 * ft), tag="f%d" % kap)
def addr_shift(s, delta):
    for r in vXA + vWA:
        s("v_add_u32 v%d, 0x%x, v%d" % (r, delta & 0xffffffff, r))
def g1_mfma(s, kap):
    b = aF + 16 * (kap % 2)
    for i in range(2):
        for ft in range(2):
            s("v_mfma_f32_32x32x16_bf16 %s, %s, %s, %s" % (vr(vACC[2 * i + ft], 16), ar(b + 8 + 4 * ft, 4), ar(b + 4 * i, 4), vr(vACC[2 * i + ft], 16)))

def w2_issue_groups(half, j):
    gs = []
    for q in range(2):
        s = Stream(); s.begin()
        if q == 0: s("s_add_u32 m0, %s, %d" % (sW2L, 2048 * j))
        s("buffer_load_dwordx4 v%d, %s, %s offen offset:%d lds" % (vW2V[2 * half + q], W2, tCB[j], 1024 * q), tag="w2_%d_%d" % (half, j))
        s.end(); gs.append(s)
    return gs
def w2_issue(s, half, j):
    for g_ in w2_issue_groups(half, j): s.extend(g_)
aW2 = [128, 0]
def w2_reads(s, half, j):
    for t in range(2):
        b = aW2[half] + 8 * j + 4 * t
        s("ds_read_b64_tr_b16 %s, v%d offset:%d" % (ar(b, 2), vW2R[t], 2048 * j), tag="w2r%d_%d" % (half, j))
        s("ds_read_b64_tr_b16 %s, v%d offset:%d" % (ar(b + 2, 2), vW2R[t], 2048 * j + 1024), tag="w2r%d_%d" % (half, j))

hc = Stream()
for q in range(4):
    hc.begin()
    if q == 0: hc("s_add_u32 m0, %s, 32" % sHC)
    hc("buffer_load_dwordx4 v%d, %s, %s offen offset:%d lds" % (vL16, SSM, sHSRC, 1024 * q), tag="hc")
    hc.end()
hc("v_lshlrev_b32 v%d, 16, v%d" % (vT[0], vHP)); hc("v_lshlrev_b32 v%d, 16, v%d" % (vT[1], vDP))
hc("v_add_f32 v%d, v%d, v%d" % (vT[0], vT[0], vT[1]))
hc("v_and_b32 v%d, 0xffff0000, v%d" % (vT[1], vHP))
hc("v_cvt_pk_bf16_f32 v%d, v%d, v%d" % (vHP, vT[0], vT[1]))
hc("s_and_b32 %s, %s, 1" % (sT0, sW)); hc("s_lshl_b32 %s, %s, 4" % (sT0, sT0))
hc("v_lshlrev_b64 %s, %s, %s" % (vr(vT[2], 2), sT0, vr(vHP, 2)))
hc("v_mov_b32 v%d, 0" % vT[0]); hc("v_mov_b32 v%d, 0" % vT[1])
hc("v_mov_b32 v%d, %s" % (vT[4], sHC))
hc.begin()
hc("s_mov_b64 exec, 1")
hc("ds_write_b128 v%d, %s" % (vT[4], vr(vZ4, 4)), tag="z0")
hc("ds_write_b128 v%d, %s offset:16" % (vT[4], vr(vT[0], 4)), tag="z0")
hc("s_mov_b64 exec, -1")
hc.end()

p0b = Stream()
for rho in range(2):
    p0b("ds_read_b64_tr_b16 %s, v%d offset:%d" % (vr(vKS + 4 * rho, 2), vP0R, 288 * rho), tag="p0r")
    p0b("ds_read_b64_tr_b16 %s, v%d offset:%d" % (vr(vKS + 4 * rho + 2, 2), vP0R, 288 * rho + 2304), tag="p0r")
p0c = Stream()
p0c.wait_lgkm("p0r")
for rho in range(2):
    p0c("buffer_store_dwordx4 %s, v%d, %s, 0 offen offset:%d sc1" % (vr(vKS + 4 * rho, 4), vP0S, WS, 64 * rho), tag="ust")

fill = {t: Stream() for t in range(7)}
fill[0].extend(p0c); st_issue(fill[0], 3)
st_issue(fill[1], 4)
st_issue(fill[2], 5); flag_store(fill[2], vFUA, "ust")
st_issue(fill[3], 6)
fill[4].extend(hc)
poll_issue(fill[6], vPD, vPA, "pu")
for t in range(7):
    s = Stream()
    if t > 0: s.wait_lgkm("f%d" % (4 * t - 1))
    else: s.wait_lgkm("p0w")
    s.wait_vm("st%d" % t)
    s("s_barrier")
    if t in (2, 4, 6): addr_shift(s, 65536 if t in (2, 6) else -65536)
    g1_reads(s, 4 * t)
    if t == 0: s.extend(p0b)
    if t > 0: g1_mfma(s, 4 * t - 1)
    for ks in range(3):
        g1_reads(s, 4 * t + ks + 1)
        s.wait_lgkm("f%d" % (4 * t + ks))
        g1_mfma(s, 4 * t + ks)
    m.extend(spread(s, fill[t], 0.0, 1.0))
m.wait_lgkm("f27")
m.wait_vm("hc")
m("s_barrier")
g1_mfma(m, 27)
stamp(m)

vb = VA(128, 256)
vGT = vb.get(16, 4); vHO = vb.get(8, 4); vUL = vb.get(8, 4)
ge = Stream()
n = 0
for i in range(2):
    for ft in range(2):
        for hf in range(2):
            x0 = vACC[2 * i + ft] + 8 * hf
            T = vGT + 8 * (n % 2); ho = vHO + 4 * (n % 2); n += 1
            for j in range(4): ge("v_pk_mul_f32 %s, %s, %s" % (vr(T + 2 * j, 2), vr(x0 + 2 * j, 2), vr(x0 + 2 * j, 2)))
            for j in range(4): ge("v_pk_fma_f32 %s, %s, %s, %s" % (vr(T + 2 * j, 2), vr(T + 2 * j, 2), sC1, vr(vC0, 2)))
            for j in range(4): ge("v_pk_mul_f32 %s, %s, %s" % (vr(T + 2 * j, 2), vr(T + 2 * j, 2), vr(x0 + 2 * j, 2)))
            for j in range(8): ge("v_exp_f32 v%d, v%d" % (T + j, T + j))
            for j in range(4): ge("v_pk_add_f32 %s, %s, 1.0 op_sel_hi:[1,0]" % (vr(T + 2 * j, 2), vr(T + 2 * j, 2)))
            for j in range(8): ge("v_rcp_f32 v%d, v%d" % (T + j, T + j))
            for j in range(4): ge("v_pk_mul_f32 %s, %s, %s" % (vr(T + 2 * j, 2), vr(T + 2 * j, 2), vr(x0 + 2 * j, 2)))
            for j in range(4): ge("v_cvt_pk_bf16_f32 v%d, v%d, v%d" % (ho + j, T + 2 * j, T + 2 * j + 1))
            ge("buffer_store_dwordx4 %s, v%d, %s, %s offen offset:%d sc1" % (vr(ho, 4), vL16, WS, sHB, 1024 * (2 * ft + hf)), tag="hst")
    if i == 0: ge("s_add_u32 %s, %s, 4096" % (sHB, sHB))
gf = Stream()
for j in range(4): w2_issue(gf, 0, j)
poll_check(gf, vPD, vPA, "pu")
gf("v_lshrrev_b32 v%d, 2, v%d" % (vT[0], L))
gf("v_lshlrev_b32 v%d, 7, v%d" % (vT[1], vT[0]))
gf("v_lshl_add_u32 v%d, v%d, 4, v%d" % (vT[1], vC4, vT[1]))
gf("s_lshl_b32 %s, %s, 12" % (sT0, sCH)); gf("s_and_b32 %s, %s, 1" % (sT1, sW)); gf("s_lshl_b32 %s, %s, 6" % (sT1, sT1))
gf("s_add_u32 %s, %s, %s" % (sT0, sT0, sT1)); gf("s_add_u32 %s, %s, 0x%x" % (sT0, sT0, WS_U))
for q in range(2):
    gf("buffer_load_dwordx4 %s, v%d, %s, %s offen offset:%d sc1" % (vr(vUL + 4 * q, 4), vT[1], WS, sT0, 2048 * q), tag="ul")
for j in range(4, 14): w2_issue(gf, 0, j)
gf("v_lshrrev_b32 v%d, 1, v%d" % (vT[2], vC4)); gf("v_mul_u32_u24 v%d, %d, v%d" % (vT[2], 2 * UP, vT[2]))
gf("v_lshl_add_u32 v%d, v%d, 5, v%d" % (vT[2], vT[0], vT[2]))
gf("v_and_b32 v%d, 1, v%d" % (vT[0], L)); gf("v_lshl_add_u32 v%d, v%d, 4, v%d" % (vT[2], vT[0], vT[2]))
gf("v_add_u32 v%d, %s, v%d" % (vT[2], sUW, vT[2]))
gf("v_add_u32 v%d, %d, v%d" % (vT[3], 128 + UP + 8, vT[2]))
gf.wait_vm("ul")
for q in range(2):
    gf("ds_write_b128 v%d, %s offset:%d" % (vT[2], vr(vUL + 4 * q, 4), 128 + 512 * q), tag="uw")
    gf("ds_write2_b64 v%d, %s, %s offset0:%d offset1:%d" % (vT[3], vr(vUL + 4 * q, 2), vr(vUL + 4 * q + 2, 2), 64 * q, 64 * q + 1), tag="uw")
m.extend(spread(ge, gf, 0.0, 0.92, unit="any"))
stamp(m)

vCACC = vACC[0]
aCF = 0
def conv_reads(bi):
    s = Stream()
    e2, r = bi >> 1, bi & 1
    base = aCF + 64 * (bi & 1)
    for a in range(8):
        off = e2 * HC_SZ + 256 * (2 * a + r)
        s("ds_read_b64_tr_b16 %s, v%d offset:%d" % (ar(base + 8 * a, 2), vCA, off + 32), tag="c%d_%d" % (bi, a))
        s("ds_read_b64_tr_b16 %s, v%d offset:%d" % (ar(base + 8 * a + 2, 2), vCA, off), tag="c%d_%d" % (bi, a))
        s("ds_read_b128 %s, v%d offset:%d" % (ar(base + 8 * a + 4, 4), vCB, e2 * 2 * UP + 64 * (2 * a - r + 1)), tag="c%d_%d" % (bi, a))
    return s
def conv_mfma(bi):
    s = Stream()
    base = aCF + 64 * (bi & 1)
    first = set()
    if bi > 0: s.wait_lgkm("c%d_7" % bi)
    for mx in range(8):
        if bi == 0: s.wait_lgkm("c%d_%d" % (bi, mx))
        prs = [(mx, i) for i in range(mx + 1)] + [(a, mx) for a in range(mx)]
        for a, i in prs:
            if a + i > 7: continue
            j = a + i
            c = vr(vCACC + 4 * j, 4)
            if bi == 0 and j not in first:
                first.add(j); c = "0"
            s("v_mfma_f32_16x16x32_bf16 %s, %s, %s, %s" % (vr(vCACC + 4 * j, 4), ar(base + 8 * a, 4), ar(base + 8 * i + 4, 4), c))
    return s
vb = VA(128 + 24, 256)
vb = VA(128, 256)
vEPB = vb.get(32, 4)
vQ = [vb.get(4, 4) for _ in range(2)]; vG = [vb.get(2, 2) for _ in range(2)]; vB2 = vb.get(4, 4)
ring = [vb.get(4, 4) for _ in range(20)]
RING = [("v", r) for r in ring] + [("a", 240 + 4 * i) for i in range(4)] + [("a", 112 + 4 * i) for i in range(4)]
NR = len(RING)
def rr(i): f, b = RING[i % NR]; return ("%s[%d:%d]" % (f, b, b + 3))
vHV = vXV
def h_issue(s, n):
    sg, k = n // 28, n % 28
    half, j = k // 14, k % 14
    s("buffer_load_dwordx4 %s, v%d, %s, %s offen sc1" % (rr(n), vHV[2 * sg + half], WS, tCB[j]), tag="h%d" % n)
vQO = vWV[0]; vGA = vWV[1]; vPW = vWV[2]; vPRD = vWV[3]; vZR = vXA[0]; vGA2 = vXA[1]; vB2A = vXA[2]; vYA0 = vXA[3]; vYA1 = vWA[0]; vYR = vWA[1]
vFZA = vFUA
sPB0 = "s5"; sZB = sHB
cs = Stream()
cs("s_lshr_b32 %s, %s, 1" % (sT0, sRB64)); cs("s_mul_i32 %s, %s, 43" % (sT1, sT0)); cs("s_lshr_b32 %s, %s, 7" % (sT1, sT1))
cs("s_mul_i32 %s, %s, 3" % (sT2, sT1)); cs("s_sub_u32 %s, %s, %s" % (sT2, sT0, sT2))
cs("s_mul_i32 %s, %s, %d" % (sT1, sT1, 14 * CBS)); cs("s_lshl_b32 %s, %s, 15" % (sT2, sT2)); cs("s_add_u32 %s, %s, %s" % (sT1, sT1, sT2))
cs("s_and_b32 %s, %s, 1" % (sT2, sRB64)); cs("s_lshl_b32 %s, %s, 14" % (sT2, sT2)); cs("s_add_u32 %s, %s, %s" % (sT1, sT1, sT2))
cs("s_lshl_b32 %s, %s, 10" % (sT2, sW)); cs("s_add_u32 %s, %s, %s" % (sT1, sT1, sT2)); cs("s_add_u32 %s, %s, 0x%x" % (sT1, sT1, WS_H))
cs("v_add_u32 v%d, %s, v%d" % (vHV[0], sT1, vL16))
cs("v_add_u32 v%d, 8192, v%d" % (vHV[1], vHV[0])); cs("v_add_u32 v%d, 4096, v%d" % (vHV[2], vHV[0])); cs("v_add_u32 v%d, 12288, v%d" % (vHV[3], vHV[0]))
cs("s_lshl_b32 %s, %s, 7" % (sT0, sRB64)); cs("s_add_u32 %s, %s, 0x%x" % (sT0, sT0, WS_FH))
cs("v_min_u32 v%d, 27, v%d" % (vT[0], L))
cs("v_lshl_add_u32 v%d, v%d, 2, %s" % (vPA, vT[0], sT0))
cs("v_and_b32 v%d, 15, v%d" % (vT[0], L)); cs("v_mul_u32_u24 v%d, 80, v%d" % (vT[0], vT[0]))
cs("v_lshl_add_u32 v%d, v%d, 4, v%d" % (vT[0], vG4, vT[0]))
cs("s_mul_i32 %s, %s, %d" % (sT0, sW, Y_SZ)); cs("s_and_b32 %s, %s, 1" % (sT1, sW)); cs("s_lshl_b32 %s, %s, 3" % (sT2, sT1))
cs("s_add_u32 %s, %s, %d" % (sT0, sT0, L_Y)); cs("s_add_u32 %s, %s, %s" % (sT2, sT2, sT0))
cs("v_add_u32 v%d, %s, v%d" % (vYA0, sT2, vT[0]))
cs("s_lshl_b32 %s, %s, 4" % (sT1, sT1))
cs("v_mov_b32 v%d, %s" % (vT[2], sT1))
cs.begin()
cs("v_cmp_eq_u32 vcc, 3, v%d" % vG4)
cs("v_cndmask_b32 v%d, 0, v%d, vcc" % (vT[2], vT[2]))
cs.end()
cs("v_add3_u32 v%d, v%d, v%d, 8" % (vYA1, vYA0, vT[2]))
cs("v_mov_b32 v%d, %s" % (vT[6], sT0))
cs("v_lshrrev_b32 v%d, 1, v%d" % (vT[2], L)); cs("v_mul_u32_u24 v%d, 80, v%d" % (vT[2], vT[2]))
cs("v_and_b32 v%d, 1, v%d" % (vT[3], L)); cs("v_lshl_add_u32 v%d, v%d, 5, v%d" % (vT[2], vT[3], vT[2]))
cs("s_lshr_b32 %s, %s, 1" % (sT0, sW)); cs("s_mul_i32 %s, %s, %d" % (sT0, sT0, 2 * Y_SZ))
cs("s_and_b32 %s, %s, 1" % (sT1, sW)); cs("s_mul_i32 %s, %s, %d" % (sT2, sT1, 64 * 80))
cs("s_add_u32 %s, %s, %s" % (sT0, sT0, sT2)); cs("s_add_u32 %s, %s, %d" % (sT0, sT0, L_Y))
cs("v_add_u32 v%d, %s, v%d" % (vYR, sT0, vT[2]))
cs("s_lshl_b32 %s, %s, 12" % (sT0, sCH)); cs("s_lshl_b32 %s, %s, 11" % (sT1, sT1)); cs("s_add_u32 %s, %s, %s" % (sT0, sT0, sT1)); cs("s_add_u32 %s, %s, 0x%x" % (sZB, sT0, WS_Z))
cs("s_lshl_b32 %s, %s, 1" % (sT0, sC)); cs("s_and_b32 %s, %s, 1" % (sT1, sW)); cs("s_add_u32 %s, %s, %s" % (sT0, sT0, sT1)); cs("s_lshl_b32 %s, %s, 8" % (sT0, sT0))
cs("s_and_b32 %s, %s, 63" % (sT1, sCH)); cs("s_lshl_b32 %s, %s, 2" % (sT1, sT1)); cs("s_add_u32 %s, %s, %s" % (sT0, sT0, sT1)); cs("s_add_u32 %s, %s, 0x%x" % (sT0, sT0, WS_FZ))
cs("v_mov_b32 v%d, %s" % (vFZA, sT0))

m.wait_lgkm("uw")
m.extend(conv_reads(0))
PRE = opt("pre", 12)
cf = [Stream() for _ in range(4)]
def w2_swap(s, j):
    s.wait_vm("w2_0_%d" % j); w2_reads(s, 0, j)
def w2_refill(s, j):
    s.wait_lgkm("w2r0_%d" % j); w2_issue(s, 1, j)
order = []
for j in range(14):
    order.append(("r", j))
    if j >= 1: order.append(("f", j - 1))
order.append(("f", 13))
per = [order[0:8], order[8:16], order[16:24], order[24:28]]
for bi in range(4):
    for kind, j in per[bi]:
        (w2_swap if kind == "r" else w2_refill)(cf[bi], j)
flag_store(cf[1], vFHA, "hst")
cf[0].extend(cs)
poll_issue(cf[3], vPD, vPA, "ph")
for bi in range(4):
    mf = conv_mfma(bi)
    if bi < 3: mf = spread(mf, conv_reads(bi + 1), 0.0, 0.8)
    mf = spread(mf, cf[bi], 0.0, 1.0)
    m.extend(mf)
stamp(m)
m("s_barrier")
m.begin()
m("s_mov_b64 exec, 1")
m("ds_write_b64 v%d, %s" % (vT[6], vr(vZ4, 2)), tag="yw")
m("s_mov_b64 exec, -1")
m.end()
for j in range(8):
    m("ds_write_b64 v%d, %s offset:%d" % (vYA0, vr(vCACC + 4 * j, 2), 1280 * j), tag="yw")
    m("ds_write_b64 v%d, %s offset:%d" % (vYA1, vr(vCACC + 4 * j + 2, 2), 1280 * j), tag="yw")
poll_check(m, vPD, vPA, "ph")
for n in range(4): h_issue(m, n)
m.wait_lgkm("yw")
m("s_barrier")
for q in range(2):
    for y in range(2):
        for hf in range(2):
            m("ds_read_b128 %s, v%d offset:%d" % (vr(vEPB + 16 * q + 8 * y + 4 * hf, 4), vYR, 2560 * q + Y_SZ * y + 16 * hf), tag="yr%d" % q)
for n in range(4, 6): h_issue(m, n)
for q in range(2):
    m.wait_lgkm("yr%d" % q)
    b = vEPB + 16 * q
    for j in range(4): m("v_pk_add_f32 %s, %s, %s" % (vr(b + 2 * j, 2), vr(b + 2 * j, 2), vr(b + 8 + 2 * j, 2)))
    for j in range(4): m("v_cvt_pk_bf16_f32 v%d, v%d, v%d" % (b + 8 + j, b + 2 * j, b + 2 * j + 1))
    m("buffer_store_dwordx4 %s, v%d, %s, %s offen offset:%d sc1" % (vr(b + 8, 4), vL16, WS, sZB, 1024 * q), tag="zst")
for n in range(6, PRE): h_issue(m, n)
m("s_barrier")
stamp(m)

vA2 = vACC
es = Stream()
es("s_lshl_b32 %s, %s, 6" % (sT0, sRB64)); es("s_lshl_b32 %s, %s, 3" % (sT1, sW)); es("s_add_u32 %s, %s, %s" % (sT0, sT0, sT1))
es("v_add_u32 v%d, %s, v%d" % (vT[0], sT0, vLd8))
es("v_lshlrev_b32 v%d, 3, v%d" % (vGA, vT[0])); es("v_add_u32 v%d, 0x%x, v%d" % (vGA, WS_G, vGA))
es("v_add_u32 v%d, 256, v%d" % (vGA2, vGA))
es("v_mul_u32_u24 v%d, 896, v%d" % (vT[0], vT[0]))
es("s_lshl_b32 %s, %s, 7" % (sT0, sC))
es("v_lshl_add_u32 v%d, v%d, 4, %s" % (vB2A, vL8, sT0))
es("v_add_u32 v%d, v%d, v%d" % (vQO, vT[0], vB2A))
es("v_mul_u32_u24 v%d, 272, v%d" % (vT[0], vS32)); es("v_lshl_add_u32 v%d, v%d, 4, v%d" % (vPW, vHH, vT[0]))
es("s_lshl_b32 %s, %s, 3" % (sT0, sW))
es("v_add_u32 v%d, %s, v%d" % (vT[0], sT0, vLd8))
es("v_mul_u32_u24 v%d, 272, v%d" % (vT[1], vT[0])); es("v_lshl_add_u32 v%d, v%d, 5, v%d" % (vPRD, vL8, vT[1]))
es("v_mul_u32_u24 v%d, 144, v%d" % (vT[1], vT[0])); es("v_lshl_add_u32 v%d, v%d, 4, v%d" % (vZR, vL8, vT[1]))
es("v_add_u32 v%d, %d, v%d" % (vZR, L_ZT, vZR))
es("s_mul_i32 %s, %s, %d" % (sPB0, sW, PB_SZ)); es("s_add_u32 %s, %s, %d" % (sPB0, sPB0, L_PB0))
es("s_mov_b32 %s, %d" % (sT3, 32 * 896))
es("global_load_dwordx4 %s, v%d, %s" % (vr(vB2, 4), vB2A, P_B2), tag="q")
es("buffer_load_dwordx4 %s, v%d, %s, 0 offen" % (vr(vQ[0], 4), vQO, Q), tag="q")
es("buffer_load_dwordx4 %s, v%d, %s, %s offen" % (vr(vQ[1], 4), vQO, Q, sT3), tag="q")
flag_store(es, vFZA, "zst")
vZL = vEPB; vEP = vEPB
def z_poll(s):
    s("s_lshl_b32 %s, %s, 1" % (sT1, sC)); s("s_lshr_b32 %s, %s, 4" % (sT2, sRB64)); s("s_add_u32 %s, %s, %s" % (sT1, sT1, sT2)); s("s_lshl_b32 %s, %s, 8" % (sT1, sT1))
    s("s_lshl_b32 %s, %s, 6" % (sT2, sW)); s("s_add_u32 %s, %s, %s" % (sT1, sT1, sT2)); s("s_add_u32 %s, %s, 0x%x" % (sT1, sT1, WS_FZ))
    s("v_and_b32 v%d, 15, v%d" % (vT[0], L))
    s("v_lshl_add_u32 v%d, v%d, 2, %s" % (vPA, vT[0], sT1))
    poll_issue(s, vG[0], vGA, "pg0", wide=True)
    poll_issue(s, vG[1], vGA2, "pg1", wide=True)
    poll_issue(s, vPD, vPA, "pz")
def z_load(s):
    s("s_lshl_b32 %s, %s, 6" % (sT1, sC)); s("s_lshl_b32 %s, %s, 4" % (sT2, sW)); s("s_add_u32 %s, %s, %s" % (sT1, sT1, sT2)); s("s_lshl_b32 %s, %s, 12" % (sT1, sT1))
    s("s_lshl_b32 %s, %s, 7" % (sT2, sRB64)); s("s_add_u32 %s, %s, %s" % (sT1, sT1, sT2)); s("s_add_u32 %s, %s, 0x%x" % (sT1, sT1, WS_Z))
    s("s_add_u32 %s, %s, 32768" % (sT2, sT1))
    s("v_lshlrev_b32 v%d, 12, v%d" % (vT[0], vLd8)); s("v_lshl_add_u32 v%d, v%d, 4, v%d" % (vT[0], vL8, vT[0]))
    poll_check(s, vG[0], vGA, "pg0", wide=True)
    poll_check(s, vG[1], vGA2, "pg1", wide=True)
    poll_check(s, vPD, vPA, "pz")
    s("buffer_load_dwordx4 %s, v%d, %s, %s offen sc1" % (vr(vZL, 4), vT[0], WS, sT1), tag="zl")
    s("buffer_load_dwordx4 %s, v%d, %s, %s offen sc1" % (vr(vZL + 4, 4), vT[0], WS, sT2), tag="zl")
def z_xpose(s):
    s("v_add_u32 v%d, %s, v%d" % (vT[0], sW2L, vL16))
    s("v_lshlrev_b32 v%d, 7, v%d" % (vT[1], vR4)); s("v_lshl_add_u32 v%d, v%d, 5, v%d" % (vT[1], vG4, vT[1])); s("v_lshl_add_u32 v%d, v%d, 3, v%d" % (vT[1], vC4, vT[1]))
    s("v_add_u32 v%d, %s, v%d" % (vT[1], sW2L, vT[1]))
    s("v_mul_u32_u24 v%d, 144, v%d" % (vT[2], L)); s("s_lshl_b32 %s, %s, 5" % (sT1, sW)); s("s_add_u32 %s, %s, %d" % (sT1, sT1, L_ZT))
    s("v_add_u32 v%d, %s, v%d" % (vT[2], sT1, vT[2]))
    s.wait_vm("zl")
    s("ds_write_b128 v%d, %s offset:16384" % (vT[0], vr(vZL, 4)), tag="zw")
    s("ds_write_b128 v%d, %s offset:17408" % (vT[0], vr(vZL + 4, 4)), tag="zw")
    s.wait_lgkm("zw")
    for i in range(4):
        s("ds_read_b64_tr_b16 %s, v%d offset:%d" % (vr(vZL + 8 + 2 * i, 2), vT[1], 16384 + 512 * i), tag="zr")
    s.wait_lgkm("zr")
    s("ds_write_b128 v%d, %s" % (vT[2], vr(vZL + 8, 4)), tag="zw2")
    s("ds_write_b128 v%d, %s offset:16" % (vT[2], vr(vZL + 12, 4)), tag="zw2")
def part_write(s, sg):
    s("v_add_u32 v%d, %s, v%d" % (vT[3], sPB0 if sg == 0 else sW2L, vPW))
    for t in range(2):
        for a in range(4):
            s("ds_write_b128 v%d, %s offset:%d" % (vT[3], vr(vA2[2 * sg + t] + 4 * a, 4), 128 * t + 32 * a), tag="pw%d" % sg)
def epilogue(s, sg, pk):
    base = L_PB0 if sg == 0 else 0
    stride = PB_SZ if sg == 0 else W2L
    s("v_add_u32 v%d, %d, v%d" % (vT[0], base, vPRD))
    s("v_add_u32 v%d, %d, v%d" % (vT[1], base + 2 * stride, vPRD))
    for w in range(4):
        for hf in range(2):
            s("ds_read_b128 %s, v%d offset:%d" % (vr(vEP + 8 * w + 4 * hf, 4), vT[w >> 1], stride * (w & 1) + 16 * hf), tag="pr%d" % sg)
    s("ds_read_b128 %s, v%d offset:%d" % (vr(vT[4], 4), vZR, 32 * 144 * sg), tag="pr%d" % sg)
    s.wait_vm("q")
    s.wait_lgkm("pr%d" % sg)
    def add(d, a, b):
        if pk: s("v_pk_add_f32 %s, %s, %s" % (vr(d, 2), vr(a, 2), vr(b, 2)))
        else:
            s("v_add_f32 v%d, v%d, v%d" % (d, a, b)); s("v_add_f32 v%d, v%d, v%d" % (d + 1, a + 1, b + 1))
    for j in range(4):
        add(vEP + 2 * j, vEP + 2 * j, vEP + 8 + 2 * j)
        add(vEP + 16 + 2 * j, vEP + 16 + 2 * j, vEP + 24 + 2 * j)
    for j in range(4):
        s("v_lshlrev_b32 v%d, 16, v%d" % (vEP + 8 + 2 * j, vB2 + j)); s("v_and_b32 v%d, 0xffff0000, v%d" % (vEP + 9 + 2 * j, vB2 + j))
        add(vEP + 2 * j, vEP + 2 * j, vEP + 16 + 2 * j)
    for j in range(4):
        add(vEP + 2 * j, vEP + 2 * j, vEP + 8 + 2 * j)
        s("v_lshlrev_b32 v%d, 16, v%d" % (vEP + 16 + 2 * j, vQ[sg] + j)); s("v_and_b32 v%d, 0xffff0000, v%d" % (vEP + 17 + 2 * j, vQ[sg] + j))
        s("v_lshlrev_b32 v%d, 16, v%d" % (vEP + 24 + 2 * j, vT[4] + j)); s("v_and_b32 v%d, 0xffff0000, v%d" % (vEP + 25 + 2 * j, vT[4] + j))
    for j in range(4):
        if pk: s("v_pk_fma_f32 %s, %s, %s, %s neg_lo:[0,0,1] neg_hi:[0,0,1]" % (vr(vEP + 16 + 2 * j, 2), vr(vEP + 16 + 2 * j, 2), vr(vEP + 24 + 2 * j, 2), vr(vEP + 2 * j, 2)))
        else:
            for e in range(2): s("v_fma_f32 v%d, v%d, v%d, -v%d" % (vEP + 16 + 2 * j + e, vEP + 16 + 2 * j + e, vEP + 24 + 2 * j + e, vEP + 2 * j + e))
    for j in range(4):
        if pk: s("v_pk_fma_f32 %s, %s, %s, %s op_sel_hi:[1,0,1]" % (vr(vEP + 2 * j, 2), vr(vEP + 16 + 2 * j, 2), vr(vG[sg], 2), vr(vEP + 2 * j, 2)))
        else:
            for e in range(2): s("v_fmac_f32 v%d, v%d, v%d" % (vEP + 2 * j + e, vEP + 16 + 2 * j + e, vG[sg]))
    for j in range(4):
        s("v_cvt_pk_bf16_f32 v%d, v%d, v%d" % (vEP + 8 + j, vEP + 2 * j, vEP + 2 * j + 1))
    s("buffer_store_dwordx4 %s, v%d, %s, %s offen %s" % (vr(vEP + 8, 4), vQO, OUT, "0" if sg == 0 else sT3, OPT.get("ost", "").replace("_", " ")), tag="ost")

def g2_seg(n0, n1):
    s = Stream()
    for n in range(n0, n1):
        sg, k = n // 28, n % 28
        half, j = k // 14, k % 14
        if n + PRE < 56: h_issue(s, n + PRE)
        if n < 14:
            s.wait_vm("w2_1_%d" % n); w2_reads(s, 1, n)
        s.wait_vm("h%d" % n)
        if n == 0: s.wait_lgkm("w2r0_13")
        if 14 <= n < 28: s.wait_lgkm("w2r1_%d" % j)
        for t in range(2):
            c = "0" if k == 0 else vr(vA2[2 * sg + t], 16)
            s("v_mfma_f32_32x32x16_bf16 %s, %s, %s, %s" % (vr(vA2[2 * sg + t], 16), ar(aW2[half] + 8 * j + 4 * t, 4), rr(n), c))
    return s
m.extend(spread(g2_seg(0, 14), es, 0.0, 1.0))
f = Stream(); z_poll(f)
m.extend(spread(g2_seg(14, 28), f, 0.6, 1.0))
stamp(m)
f = Stream(); part_write(f, 0); z_load(f)
m.extend(spread(g2_seg(28, 36), f, 0.15, 1.0))
f = Stream(); z_xpose(f); f.wait_lgkm("zw2"); f("s_barrier")
m.extend(spread(g2_seg(36, 46), f, 0.5, 1.0))
f = Stream(); epilogue(f, 0, False)
m.extend(spread(g2_seg(46, 56), f, 0.0, 1.0))
stamp(m)
part_write(m, 1)
m.wait_lgkm("pw1")
m("s_barrier")
epilogue(m, 1, True)
stamp(m)
print("vgprs used:", va.n, file=sys.stderr)

def stamp_out(s):
    if not STAMP: return
    s("s_waitcnt vmcnt(0)")
    stamp(s)
    nstamp[0] = 40
    stamp(s, rt=True)
    s("s_lshl_b32 %s, s2, 2" % sT0); s("s_add_u32 %s, %s, %s" % (sT0, sT0, sW)); s("s_lshl_b32 %s, %s, 8" % (sT0, sT0)); s("s_add_u32 %s, %s, 0x%x" % (sT0, sT0, WS_STAMP))
    s("v_lshlrev_b32 v%d, 2, v%d" % (vT[0], vLANE))
    s("buffer_store_dword v%d, v%d, %s, %s offen" % (vSTA, vT[0], WS, sT0))
stamp_out(m)
m("s_endpgm")

g = Stream()
g("L_spare:")
nstamp[0] = 2
sJ = sA
g("s_sub_u32 %s, %s, 28" % (sJ, sI)); g("s_lshl_b32 %s, %s, 3" % (sJ, sJ)); g("s_add_u32 %s, %s, %s" % (sJ, sJ, sX))
g("s_lshl_b32 %s, %s, 6" % (sT0, sJ)); g("s_lshl_b32 %s, %s, 4" % (sT1, sW)); g("s_add_u32 %s, %s, %s" % (sT0, sT0, sT1))
g("v_lshrrev_b32 v12, 2, v%d" % vLANE); g("v_add_u32 v12, %s, v12" % sT0)
g("v_and_b32 v13, 3, v%d" % vLANE); g("v_lshlrev_b32 v13, 4, v13")
g("v_mul_u32_u24 v14, 896, v12"); g("v_add_u32 v14, v14, v13")
for i in range(14):
    g("buffer_load_dwordx4 v[%d:%d], v14, %s, 0 offen offset:%d" % (16 + 4 * i, 19 + 4 * i, Q, 64 * i), tag="gq")
for i in range(14):
    g("global_load_dwordx4 v[%d:%d], v13, %s offset:%d" % (80 + 4 * i, 83 + 4 * i, P_GATE, 64 * i), tag="gq")
g("s_waitcnt vmcnt(0)")
g("v_add_u32 v%d, 0x%x, v%d" % (vTAG, TAG_INC, vTAG))
for i in range(56):
    acc = 140 + (i % 4)
    g("v_dot2_f32_bf16 v%d, v%d, v%d, %s" % (acc, 16 + i, 80 + i, "0" if i < 4 else "v%d" % acc))
g("v_add_f32 v140, v140, v141"); g("v_add_f32 v142, v142, v143"); g("v_add_f32 v140, v140, v142")
g("v_add_f32_dpp v140, v140, v140 quad_perm:[1,0,3,2] row_mask:0xf bank_mask:0xf")
g("v_add_f32_dpp v140, v140, v140 quad_perm:[2,3,0,1] row_mask:0xf bank_mask:0xf")
g("v_mul_f32 v140, 0x%x, v140" % f2u(-math.log2(math.e)))
g("v_exp_f32 v140, v140"); g("v_add_f32 v140, 1.0, v140"); g("v_rcp_f32 v140, v140")
g("v_mov_b32 v141, v%d" % vTAG)
g("v_lshlrev_b32 v12, 3, v12"); g("v_add_u32 v12, 0x%x, v12" % WS_G)
g("s_mov_b32 exec_lo, 0x11111111"); g("s_mov_b32 exec_hi, 0x11111111")
g("buffer_store_dwordx2 v[140:141], v12, %s, 0 offen sc1" % WS)
g("s_mov_b64 exec, -1")
g("s_cmp_lg_u32 s2, 255"); g("s_cbranch_scc1 L_spare_done")
g("s_cmp_lg_u32 %s, 0" % sW); g("s_cbranch_scc1 L_spare_done")
g("v_lshlrev_b32 v12, 4, v%d" % vLANE); g("v_add_u32 v12, 0x%x, v12" % WS_FU)
g("v_min_u32 v15, 31, v%d" % vLANE); g("v_lshlrev_b32 v15, 4, v15"); g("v_add_u32 v15, 0x%x, v15" % (WS_FU + 3072))
g("v_lshlrev_b32 v13, 7, v%d" % vLANE); g("v_add_u32 v13, 0x%x, v13" % (WS_G + 4))
g("v_add_u32 v14, 8192, v13")
g("s_mov_b32 %s, 0" % sSPIN)
g("L_upd:")
g("s_sleep 32")
for i in range(3):
    g("buffer_load_dwordx4 v[%d:%d], v12, %s, 0 offen offset:%d sc1" % (16 + 4 * i, 19 + 4 * i, WS, 1024 * i))
g("buffer_load_dwordx4 v[28:31], v15, %s, 0 offen sc1" % WS)
g("buffer_load_dword v32, v13, %s, 0 offen sc1" % WS)
g("buffer_load_dword v33, v14, %s, 0 offen sc1" % WS)
g("s_add_u32 %s, %s, 1" % (sSPIN, sSPIN))
g("s_waitcnt vmcnt(0)")
for i in range(18): g("v_xor_b32 v%d, v%d, v%d" % (16 + i, 16 + i, vTAG))
for i in range(1, 18): g("v_or_b32 v16, v16, v%d" % (16 + i))
g("v_cmp_ne_u32 vcc, 0, v16")
g("s_cmp_gt_u32 %s, 0x40000" % sSPIN)
g("s_cbranch_scc1 L_upd_go")
g("s_cbranch_vccnz L_upd")
g("L_upd_go:")
g("v_mov_b32 v12, 0")
g("s_mov_b64 exec, 1")
g("buffer_store_dword v%d, v12, %s, 0 offen sc1" % (vTAG, WS))
g("s_mov_b64 exec, -1")
g("L_spare_done:")
stamp_out(g)
g("L_end:")
g("s_endpgm")

nts = [d for d in OPT.get("nt", "").split(",") if d]
for o in m.ops:
    if o.kind in VMEMK and o.tag and any(o.tag.startswith(d) for d in nts) and "global_" not in o.text:
        o.text = o.text.replace(" lds", " nt lds") if o.text.endswith(" lds") else o.text + " nt"
drops = [d for d in OPT.get("drop", "").split(",") if d]
if drops:
    keep = []
    dropped = set()
    for o in m.ops:
        if o.kind in VMEMK and o.tag and any(o.tag.startswith(d) for d in drops):
            dropped.add(o.tag); continue
        if o.kind == "waitvm" and o.waitfor in dropped: continue
        keep.append(o)
    m.ops = keep
body = render(finalize(m)) + "\n" + render(insert_nops(spins.ops)) + "\n" + render(insert_nops(resolve_waits(g.ops)))
hdr = open("cdna_kernels/%s.s.ref" % NAME).read().split("; Override launch")[0]
out = hdr + "; @launch grid=(256,1,1) block=(256,1,1) lds=%d\n" % LDS_TOTAL
out += '.amdgcn_target "amdgcn-amd-amdhsa--gfx950"\n.text\n.globl %s_kernel\n.p2align 8\n.type %s_kernel,@function\n%s_kernel:\n' % (NAME, NAME, NAME)
out += body + "\nL_code_end:\n"
out = out.replace("CODE_BYTES", "L_code_end-%s_kernel-64" % NAME)
out += '.section .rodata,"a"\n.p2align 6\n.amdhsa_kernel %s_kernel\n' % NAME
out += "  .amdhsa_next_free_vgpr 512\n  .amdhsa_next_free_sgpr 102\n  .amdhsa_accum_offset 256\n  .amdhsa_group_segment_fixed_size 0\n"
out += "  .amdhsa_kernarg_size 120\n  .amdhsa_user_sgpr_count 2\n  .amdhsa_user_sgpr_kernarg_segment_ptr 1\n  .amdhsa_system_sgpr_workgroup_id_x 1\n.end_amdhsa_kernel\n"
open(sys.argv[1], "w").write(out)
```

```python
import sys, math, struct
sys.path.insert(0, "gen")
from asmlib import *

NAME = "gated_mix__ssm_conv_h3__dense_activation_gelu__prompt"
STAMP = int(sys.argv[2]) if len(sys.argv) > 2 else 0
OPT = dict(a.split("=") for a in sys.argv[3:])
def opt(k, d): return type(d)(OPT.get(k, d))
f2u = lambda f: struct.unpack("<I", struct.pack("<f", f))[0]

WS_FU = 0x1000
WS_FZ = 0x2000
WS_FH = 0x3000
WS_G  = 0x8000
WS_STAMP = 0x10000
WS_U  = 0x100000
WS_Z  = 0x300000
CP = 4224
WS_H  = 0x500000
CBS = 128 * 896
WS_SIZE = 0x1000000
TAG_INC = 0x9E3779B9
SLOT = 32768
L_HC = 114688; HC_SZ = 4128
L_UW = 131200; UW_SZ = 4624; UP = 1152
L_KS = 131200
L_VS = L_KS + 72 * 128
L_P0 = 149696
L_Y = 114688; Y_SZ = 10256
L_PB0 = 114688; PB_SZ = 8704
L_PB1 = 0
L_ZT = 149696
LDS_TOTAL = 163840
W2POS = [12, 13, 0, 1, 2, 3, 4, 5, 6, 7, 8, 9, 10, 11]

Q, K, V, SSM, W1, W2, OUT, WS = ["s[%d:%d]" % (b, b + 3) for b in range(8, 40, 4)]
WSP = "s[36:37]"
P_SHIFT, P_D, P_B1, P_B2, P_GATE = "s[46:47]", "s[50:51]", "s[56:57]", "s[60:61]", "s[62:63]"
sW, sX, sI, sA, sC, sRB128, sCB128, sRB64 = "s70", "s71", "s72", "s73", "s74", "s75", "s76", "s77"
sT0, sT1, sT2, sT3 = "s78", "s79", "s80", "s81"
sTAG = "s[82:83]"
sROT, sSPIN, sCH, sHB = "s84", "s85", "s86", "s87"
sXL, sWL, sW2L, sUW, sPO, sHC, sHSRC = "s88", "s89", "s3", "s4", "s5", "s6", "s7"
sC1 = "s[64:65]"
sST = "s[66:67]"
tXO = ["s40", "s41", "s42", "s43", "s44", "s45", "s48"]
tWO = ["s49", "s52", "s53", "s54", "s55", "s58", "s59"]
tCB = ["s%d" % i for i in range(90, 102)] + ["s68", "s69"]
sPOLL = 40

class VA:
    def __init__(self, lo, hi): self.n = lo; self.hi = hi
    def get(self, k=1, align=1):
        self.n = (self.n + align - 1) // align * align
        r = self.n; self.n += k
        assert self.n <= self.hi, "out of regs"
        return r
def vr(b, k=1): return "v%d" % b if k == 1 else "v[%d:%d]" % (b, b + k - 1)
def ar(b, k=1): return "a%d" % b if k == 1 else "a[%d:%d]" % (b, b + k - 1)

spins = Stream()
nstamp = [0]
g_stream = [None]
va = VA(0, 64); vb = VA(128, 254)
vTID = va.get(); vLANE = va.get(); vTAG = va.get(); vSTA = va.get()
vT = [va.get() for _ in range(8)]
L = vLANE

def stamp(s, rt=False):
    if not STAMP: return
    i = nstamp[0]; nstamp[0] += 1
    s.begin()
    s("%s %s" % ("s_memrealtime" if (rt or STAMP == 2) else "s_memtime", sST))
    s("s_waitcnt lgkmcnt(0)")
    s("v_writelane_b32 v%d, s66, %s" % (vSTA, "STAMPIDX" if i < 40 and s is not g_stream[0] else str(i)))
    s.end()

def slin(s, dst, terms, const=0, tmp=None):
    tmp = tmp or sT3
    first = True
    for reg, mult in terms:
        d = dst if first else tmp
        if mult == 1: src = reg
        else:
            if mult & (mult - 1) == 0: s("s_lshl_b32 %s, %s, %d" % (d, reg, mult.bit_length() - 1))
            else: s("s_mul_i32 %s, %s, %d" % (d, reg, mult))
            src = d
        if first:
            if src != dst: s("s_mov_b32 %s, %s" % (dst, src))
        else: s("s_add_u32 %s, %s, %s" % (dst, dst, src))
        first = False
    if const: s("s_add_u32 %s, %s, 0x%x" % (dst, dst, const))

def flag_store(s, vaddr, tagwait, off=0):
    s.wait_vm(tagwait)
    s.begin()
    s("s_mov_b64 exec, 1")
    s("buffer_store_dword v%d, v%d, %s, 0 offen offset:%d sc1" % (vTAG, vaddr, WS, off), tag="flag")
    s("s_mov_b64 exec, -1")
    s.end()

npoll = [0]
def spoll_issue(s, n, soff):
    s("s_load_dwordx%d s[%d:%d], %s, %s glc" % (n, sPOLL, sPOLL + n - 1, WSP, soff))
def spoll_check(s, n, soff, tag):
    s.begin()
    s("s_waitcnt lgkmcnt(0)")
    for i in range(0, n, 2):
        s("s_cmp_lg_u64 s[%d:%d], %s" % (sPOLL + i, sPOLL + i + 1, sTAG))
        s("s_cbranch_scc1 L_spin_%s" % tag)
    s("L_ok_%s:" % tag)
    s.end()
    t = spins
    t("L_spin_%s:" % tag)
    t("s_mov_b32 %s, 0" % sSPIN)
    t("v_min_u32 v254, %d, v%d" % (n - 1, L))
    t("v_lshl_add_u32 v254, v254, 2, %s" % soff)
    t("L_spin2_%s:" % tag)
    t("buffer_load_dword v255, v254, %s, 0 offen sc1" % WS)
    t("s_add_u32 %s, %s, 1" % (sSPIN, sSPIN))
    t("s_waitcnt vmcnt(0)")
    t("v_cmp_ne_u32 vcc, v255, v%d" % vTAG)
    if STAMP: t("v_writelane_b32 v%d, %s, %d" % (vSTA, sSPIN, 48 + npoll[0]))
    npoll[0] += 1
    t("s_cmp_gt_u32 %s, 0x40000" % sSPIN)
    t("s_cbranch_scc1 L_ok_%s" % tag)
    t("s_cbranch_vccz L_ok_%s" % tag)
    t("s_sleep 1")
    t("s_branch L_spin2_%s" % tag)
def gran_issue(s, vdst, vaddr, tag):
    s("buffer_load_dwordx2 %s, v%d, %s, 0 offen sc1" % (vr(vdst, 2), vaddr, WS), tag=tag)
def gran_check(s, vdst, vaddr, tag):
    s.wait_vm(tag)
    s.begin()
    s("v_cmp_ne_u32 vcc, v%d, v%d" % (vdst + 1, vTAG))
    s("s_cbranch_vccnz L_spin_%s" % tag)
    s("L_ok_%s:" % tag)
    s.end()
    t = spins
    t("L_spin_%s:" % tag)
    t("s_mov_b32 %s, 0" % sSPIN)
    t("L_spin2_%s:" % tag)
    t("s_sleep 1")
    gran_issue(t, vdst, vaddr, tag)
    t("s_add_u32 %s, %s, 1" % (sSPIN, sSPIN))
    t("s_waitcnt vmcnt(0)")
    t("v_cmp_ne_u32 vcc, v%d, v%d" % (vdst + 1, vTAG))
    if STAMP: t("v_writelane_b32 v%d, %s, %d" % (vSTA, sSPIN, 48 + npoll[0]))
    npoll[0] += 1
    t("s_cmp_gt_u32 %s, 0x40000" % sSPIN)
    t("s_cbranch_scc1 L_ok_%s" % tag)
    t("s_cbranch_vccnz L_spin2_%s" % tag)
    t("s_branch L_ok_%s" % tag)

def srd(s, name, lo, nbytes):
    b = int(name[2:].split(":")[0])
    s("s_mov_b32 s%d, s%d" % (b, lo)); s("s_mov_b32 s%d, s%d" % (b + 1, lo + 1))
    s("s_mov_b32 s%d, 0x%x" % (b + 2, nbytes)); s("s_mov_b32 s%d, 0x20000" % (b + 3))

m = Stream()
if STAMP: m("s_memrealtime s[6:7]")
m("s_load_dwordx16 s[40:55], s[0:1], 0")
m("s_load_dwordx8 s[56:63], s[0:1], 64")
m("s_load_dwordx4 s[64:67], s[0:1], 96")
m("s_load_dwordx2 s[68:69], s[0:1], 112")
m("s_cmp_ge_u32 s2, 256")
m("s_cbranch_scc1 L_end")
m("s_getpc_b64 s[4:5]")
m("v_lshlrev_b32 v%d, 7, v0" % vT[0])
m("v_min_u32 v%d, CODE_BYTES, v%d" % (vT[0], vT[0]))
m("global_load_dword v255, v%d, s[4:5]" % vT[0], tag="cpf")
m("v_mov_b32 v%d, 0" % vSTA)
m("v_and_b32 v%d, 63, v0" % vLANE)
m("v_lshrrev_b32 v%d, 6, v0" % vT[2])
m("v_readfirstlane_b32 %s, v%d" % (sW, vT[2]))
m("s_and_b32 %s, s2, 7" % sX)
m("s_lshr_b32 %s, s2, 3" % sI)
m("s_mul_i32 %s, %s, 37" % (sA, sI)); m("s_lshr_b32 %s, %s, 8" % (sA, sA))
m("s_mul_i32 %s, %s, 7" % (sC, sA)); m("s_sub_u32 %s, %s, %s" % (sC, sI, sC))
m("s_lshr_b32 %s, %s, 1" % (sT0, sX)); slin(m, sRB128, [(sT0, 4), (sA, 1)])
m("s_and_b32 %s, %s, 1" % (sT0, sX)); slin(m, sCB128, [(sT0, 7), (sC, 1)])
slin(m, sRB64, [(sX, 4), (sA, 1)])
slin(m, sROT, [(sA, 2), (sC, 1)])
m("s_cmp_ge_u32 %s, 7" % sROT); m("s_cselect_b32 %s, 7, 0" % sT0); m("s_sub_u32 %s, %s, %s" % (sROT, sROT, sT0))
vL8 = va.get(); vLd8 = va.get()
m("v_and_b32 v%d, 7, v%d" % (vL8, L)); m("v_lshrrev_b32 v%d, 3, v%d" % (vLd8, L))
vXV = [va.get() for _ in range(4)]
vWV = [va.get() for _ in range(4)]
slin(m, sT0, [(sRB128, 128), (sW, 32)])
m("v_add_u32 v%d, %s, v%d" % (vT[0], sT0, vLd8))
m("v_mul_u32_u24 v%d, 896, v%d" % (vT[0], vT[0]))
vG4 = va.get()
m("v_lshrrev_b32 v%d, 4, v%d" % (vG4, L))
m("v_xor_b32 v%d, v%d, v%d" % (vT[3], vL8, vG4))
m("v_lshl_add_u32 v%d, v%d, 4, v%d" % (vXV[0], vT[3], vT[0]))
m("v_xor_b32 v%d, 4, v%d" % (vT[3], vT[3]))
m("v_lshl_add_u32 v%d, v%d, 4, v%d" % (vXV[1], vT[3], vT[0]))
m("v_add_u32 v%d, %d, v%d" % (vXV[2], 2 * 6144, vXV[0]))
m("v_add_u32 v%d, %d, v%d" % (vXV[3], 3 * 6144, vXV[1]))
m("v_add_u32 v%d, %d, v%d" % (vXV[1], 6144, vXV[1]))
vSWZ = va.get()
m("v_and_b32 v%d, 1, v%d" % (vT[3], vG4)); m("v_lshlrev_b32 v%d, 2, v%d" % (vT[3], vT[3]))
m("v_xor_b32 v%d, v%d, v%d" % (vT[3], vL8, vT[3])); m("v_lshlrev_b32 v%d, 4, v%d" % (vSWZ, vT[3]))
m("s_lshl_b32 %s, %s, 4" % (sT0, sW))
m("v_add_u32 v%d, %s, v%d" % (vT[0], sT0, vLd8))
m("v_mul_u32_u24 v%d, 3584, v%d" % (vT[0], vT[0]))
m("s_lshl_b32 %s, %s, 8" % (sT0, sCB128))
m("v_add3_u32 v%d, v%d, v%d, %s" % (vWV[0], vT[0], vSWZ, sT0))
m("v_add_u32 v%d, %d, v%d" % (vWV[1], 8 * 3584 - 1024, vWV[0]))
m("v_add_u32 v%d, 128, v%d" % (vWV[2], vWV[0]))
m("v_add_u32 v%d, 128, v%d" % (vWV[3], vWV[1]))
m("s_lshl_b32 %s, %s, 12" % (sXL, sW))
m("s_add_u32 %s, %s, 16384" % (sWL, sXL))
m("s_waitcnt lgkmcnt(0)")
NB = 2048 * 448 * 2
srd(m, Q, 40, NB); srd(m, W1, 54, 448 * 1792 * 2); srd(m, WS, 68, WS_SIZE); srd(m, W2, 58, 448 * 1792 * 2)
stamp(m, rt=True)
stamp(m)
if STAMP: m("v_writelane_b32 v%d, s6, 41" % vSTA)
m("s_cmp_ge_u32 %s, 28" % sI)
m("s_cbranch_scc1 L_spare")
m("s_lshl_b32 %s, %s, 7" % (sT1, sROT)); m("s_mul_i32 %s, %s, %d" % (sT2, sROT, 64 * 3584))

def st_groups(t, xo=None, wo=None):
    gs = []
    slot = (t % 4) * SLOT
    for q in range(4):
        s = Stream(); s.begin()
        if q == 0: s("s_add_u32 m0, %s, %d" % (sXL, slot))
        s("buffer_load_dwordx4 v%d, %s, %s offen offset:%d lds" % (vXV[q], Q, xo or tXO[t], 1024 * q), tag="st%d" % t)
        s.end(); gs.append(s)
    for q in range(4):
        s = Stream(); s.begin()
        if q in (0, 2): s("s_add_u32 m0, %s, %d" % (sWL, slot + (2048 if q == 2 else 0)))
        s("buffer_load_dwordx4 v%d, %s, %s offen offset:%d lds" % (vWV[q], W1, wo or tWO[t], 1024 * (q & 1)), tag="st%d" % t)
        s.end(); gs.append(s)
    return gs
def st_issue(s, t, part="xw", **kw):
    gs = st_groups(t, **kw)
    for p_ in part:
        for g_ in (gs[:4] if p_ == "x" else gs[4:]): s.extend(g_)
st_issue(m, 0, xo=sT1, wo=sT2)
srd(m, K, 42, NB); srd(m, V, 44, NB); srd(m, SSM, 48, NB); srd(m, OUT, 64, NB)
m("s_mov_b32 %s, %s" % (tXO[0], sT1)); m("s_mov_b32 %s, %s" % (tWO[0], sT2))
for t in range(1, 7):
    if t < 4:
        m("s_add_u32 %s, %s, %d" % (sT0, sA, t)); m("s_and_b32 %s, %s, 3" % (sT0, sT0)); add = 0
    else:
        m("s_add_u32 %s, %s, %d" % (sT0, sA, t - 4)); m("s_cmp_ge_u32 %s, 3" % sT0); m("s_cselect_b32 %s, 3, 0" % sT1); m("s_sub_u32 %s, %s, %s" % (sT0, sT0, sT1)); add = 1
    m("s_lshl_b32 %s, %s, 1" % (sT0, sT0)); m("s_add_u32 %s, %s, %s" % (sT0, sT0, sC))
    if add: m("s_add_u32 %s, %s, 1" % (sT0, sT0))
    m("s_cmp_ge_u32 %s, 7" % sT0); m("s_cselect_b32 %s, 7, 0" % sT1); m("s_sub_u32 %s, %s, %s" % (sT0, sT0, sT1))
    m("s_lshl_b32 %s, %s, 7" % (tXO[t], sT0)); m("s_mul_i32 %s, %s, %d" % (tWO[t], sT0, 64 * 3584))
m("v_mov_b32 v%d, 0" % vT[0])
m("buffer_load_dword v%d, v%d, %s, 0 offen sc1" % (vTAG, vT[0], WS), tag="sm")
if opt("tlb", 0):
    m("v_min_u32 v%d, 11, v%d" % (vT[1], L))
    m("v_mul_u32_u24 v%d, %d, v%d" % (vT[1], 8 * CBS, vT[1]))
    m("v_add_u32 v%d, 0x%x, v%d" % (vT[1], WS_H + 98304, vT[1]))
    m("v_writelane_b32 v%d, 0x2f0000, 63" % vT[1] if False else "s_mov_b32 %s, 0x2f0000" % sT0)
    m("v_writelane_b32 v%d, %s, 63" % (vT[1], sT0))
    m("buffer_load_dword v254, v%d, %s, 0 offen" % (vT[1], WS), tag="sm")
    m("buffer_load_dword v254, v%d, %s, 0 offen" % (vT[0], W2), tag="sm")
    m("buffer_load_dword v254, v%d, %s, 0 offen" % (vT[0], OUT), tag="sm")
    m("global_load_dword v254, v%d, %s" % (vT[0], P_B2), tag="sm")
vB1 = vb.get(4, 4); vTP = vb.get(2, 2)
vS32 = va.get(); vHH = va.get(); vL15 = va.get()
m("v_and_b32 v%d, 31, v%d" % (vS32, L)); m("v_lshrrev_b32 v%d, 5, v%d" % (vHH, L)); m("v_and_b32 v%d, 15, v%d" % (vL15, L))
m("s_and_b32 %s, %s, 1" % (sT1, sW)); slin(m, sT0, [(sCB128, 256), (sT1, 128)])
m("v_lshl_add_u32 v%d, v%d, 1, %s" % (vT[1], vS32, sT0))
m("global_load_ushort v%d, v%d, %s" % (vB1, vT[1], P_B1), tag="sm")
m("global_load_ushort v%d, v%d, %s offset:64" % (vB1 + 2, vT[1], P_B1), tag="sm")
slin(m, sT0, [(sC, 512), (sW, 128)])
m("v_lshl_add_u32 v%d, v%d, 3, %s" % (vT[1], vL15, sT0))
m("global_load_dwordx2 %s, v%d, %s" % (vr(vTP, 2), vT[1], P_SHIFT), tag="sm")
vHP = va.get(2, 2); vDP = va.get()
m("s_lshr_b32 %s, %s, 1" % (sT0, sW)); slin(m, sCH, [(sC, 64), (sRB64, 2), (sT0, 1)])
m("s_lshl_b32 %s, %s, 1" % (sT0, sCH))
m("v_mov_b32 v%d, %s" % (vT[1], sT0))
m("global_load_ushort v%d, v%d, %s" % (vDP, vT[1], P_D), tag="sm")
r2 = Stream()
vKV = vb.get(); vKH = vb.get()
slin(m, sT0, [(sRB64, 64), (sW, 16)])
m("v_add_u32 v%d, %s, v%d" % (vT[0], sT0, vLd8))
m("v_mul_u32_u24 v%d, 896, v%d" % (vT[0], vT[0]))
m("s_lshl_b32 %s, %s, 7" % (sT1, sC))
m("v_lshl_add_u32 v%d, v%d, 4, %s" % (vT[1], vL8, sT1))
m("v_add_u32 v%d, v%d, v%d" % (vKV, vT[0], vT[1]))
m("s_mul_i32 %s, %s, %d" % (sT0, sW, 16 * 896)); m("s_add_u32 %s, %s, %d" % (sT0, sT0, 8 * 896))
m("v_subrev_u32 v%d, %s, v%d" % (vKH, sT0, vKV))
m("s_mov_b32 %s, %d" % (sPO, 8 * 896 - 1024))
m("s_lshl_b32 %s, %s, 11" % (sW2L, sW))
for src, base in ((K, L_KS + 1024), (V, L_VS)):
    r2.begin(); r2("s_add_u32 m0, %s, %d" % (sW2L, base))
    r2("buffer_load_dwordx4 v%d, %s, 0 offen lds" % (vKV, src), tag="kv"); r2.end()
    r2("buffer_load_dwordx4 v%d, %s, %s offen offset:1024 lds" % (vKV, src, sPO), tag="kv")
r2.begin()
r2("s_mov_b32 m0, %d" % L_KS)
r2("s_mov_b32 exec_lo, 0")
r2("buffer_load_dwordx4 v%d, %s, 0 offen lds" % (vKH, K), tag="kv")
r2("s_mov_b32 exec_lo, -1")
r2.end()
r2b = Stream()
st_issue(r2b, 4, "w")
r2b("s_lshl_b32 %s, %s, 12" % (sHSRC, sCH))
r2b("v_lshl_add_u32 v%d, v%d, 7, %s" % (vT[7], vS32, sHSRC))
r2b("buffer_load_dwordx2 %s, v%d, %s, 0 offen" % (vr(vHP, 2), vT[7], SSM), tag="hp")

su = Stream()
su("v_mov_b32 v%d, 0" % (vB1 + 1)); su("v_mov_b32 v%d, 0" % (vB1 + 3))
vXA = [va.get() for _ in range(4)]
vWA = [va.get() for _ in range(2)]
vW2R = [va.get() for _ in range(4)]
su("v_bfe_u32 v%d, v%d, 1, 3" % (vT[0], L))
su("v_xor_b32 v%d, v%d, v%d" % (vT[0], vT[0], vHH))
su("v_lshlrev_b32 v%d, 4, v%d" % (vT[0], vT[0]))
su("v_lshl_add_u32 v%d, v%d, 7, v%d" % (vT[0], vS32, vT[0]))
su("s_lshr_b32 %s, %s, 1" % (sT1, sW)); su("s_lshl_b32 %s, %s, 13" % (sT1, sT1))
for ks in range(4):
    su("v_xor_b32 v%d, %d, v%d" % (vXA[ks], 32 * ks, vT[0]))
    su("v_add_u32 v%d, %s, v%d" % (vXA[ks], sT1, vXA[ks]))
vC4 = va.get(); vR4 = va.get()
su("v_and_b32 v%d, 3, v%d" % (vC4, L)); su("v_bfe_u32 v%d, v%d, 2, 2" % (vR4, L))
su("v_bfe_u32 v%d, v%d, 4, 1" % (vT[0], L))
su("v_lshlrev_b32 v%d, 5, v%d" % (vT[0], vT[0]))
su("v_lshl_add_u32 v%d, v%d, 3, v%d" % (vT[0], vC4, vT[0]))
su("v_lshl_add_u32 v%d, v%d, 7, v%d" % (vT[0], vR4, vT[0]))
su("v_bfe_u32 v%d, v%d, 3, 1" % (vT[1], L))
su("v_lshl_add_u32 v%d, v%d, 6, v%d" % (vT[0], vT[1], vT[0]))
su("v_lshl_add_u32 v%d, v%d, 10, v%d" % (vWA[0], vHH, vT[0]))
su("s_and_b32 %s, %s, 1" % (sT1, sW)); slin(su, sT1, [(sT1, 2048)], 16384)
su("v_add_u32 v%d, %s, v%d" % (vWA[0], sT1, vWA[0]))
su("v_xor_b32 v%d, 64, v%d" % (vWA[1], vWA[0]))
su("v_lshl_add_u32 v%d, v%d, 9, v%d" % (vW2R[0], vHH, vT[0]))
su("v_add_u32 v%d, %s, v%d" % (vW2R[0], sW2L, vW2R[0]))
su("v_xor_b32 v%d, 64, v%d" % (vW2R[1], vW2R[0]))
su("v_add_u32 v%d, 0x10000, v%d" % (vW2R[2], vW2R[0])); su("v_add_u32 v%d, 0x10000, v%d" % (vW2R[3], vW2R[1]))
vZ4 = va.get(4, 4)
for i in range(4): su("v_mov_b32 v%d, 0" % (vZ4 + i))
slin(su, sUW, [(sW, UW_SZ)], L_UW)
vACC = [64 + 16 * i for i in range(4)]
vONE = vb.get(8, 4)
for i in range(8): su("v_mov_b32 v%d, 0" % (vONE + i))
su.begin()
su("v_cmp_gt_u32 vcc, 32, v%d" % L)
su("v_mov_b32 v%d, 0x3f80" % vT[0])
su("v_cndmask_b32 v%d, 0, v%d, vcc" % (vONE, vT[0]))
su.end()
su("v_mov_b32 v%d, v%d" % (vONE + 6, vONE))
vL16 = va.get()
su("v_lshlrev_b32 v%d, 4, v%d" % (vL16, L))
slin(su, sHC, [(sW, HC_SZ)], L_HC)
su("s_mul_i32 %s, %s, %d" % (tCB[0], sROT, 2 * CBS))
for j in range(1, 14):
    su.begin()
    su("s_add_u32 %s, %s, %d" % (tCB[j], tCB[j - 1], CBS)); su("s_cmp_ge_u32 %s, %d" % (tCB[j], 14 * CBS)); su("s_cselect_b32 %s, 0, %s" % (tCB[j], tCB[j]))
    su.end()
vW2V = [va.get() for _ in range(4)]
su("v_mul_u32_u24 v%d, 896, v%d" % (vT[0], vLd8))
slin(su, sT1, [(sC, 128), (sW, 16 * 896)])
su("v_add3_u32 v%d, v%d, v%d, %s" % (vW2V[0], vT[0], vSWZ, sT1))
su("v_add_u32 v%d, %d, v%d" % (vW2V[1], 8 * 896 - 1024, vW2V[0]))
su("v_add_u32 v%d, %d, v%d" % (vW2V[2], 64 * 896, vW2V[0]))
su("v_add_u32 v%d, %d, v%d" % (vW2V[3], 64 * 896, vW2V[1]))
c_ = math.sqrt(2.0 / math.pi) * 2.0 * math.log2(math.e)
su("s_mov_b32 s64, 0x%x" % f2u(-c_ * 0.044715)); su("s_mov_b32 s65, 0x%x" % f2u(-c_ * 0.044715))
vC0 = va.get(2, 2)
su("v_mov_b32 v%d, 0x%x" % (vC0, f2u(-c_))); su("v_mov_b32 v%d, 0x%x" % (vC0 + 1, f2u(-c_)))
su("s_mul_i32 %s, %s, 43" % (sT1, sRB128)); su("s_lshr_b32 %s, %s, 7" % (sT1, sT1))
slin(su, sHB, [(sT1, 14 * CBS - 3 * 32768), (sRB128, 32768), (sCB128, CBS), (sW, 8192)], WS_H)
vFHA = va.get(); vFUA = va.get()
su("s_lshr_b32 %s, %s, 1" % (sT1, sW)); su("s_and_b32 %s, %s, 1" % (sT2, sW))
slin(su, sT0, [(sRB128, 512), (sT1, 256), (sCB128, 8), (sT2, 4)], WS_FH)
su("v_mov_b32 v%d, %s" % (vFHA, sT0))
slin(su, sT0, [(sC, 512), (sW, 128), (sRB64, 4)], WS_FU)
su("v_mov_b32 v%d, %s" % (vFUA, sT0))
vP0R = vb.get(); vP0W = vb.get(); vP0B = vb.get(); vP0S = vb.get()
su("v_lshl_add_u32 v%d, v%d, 4, v%d" % (vT[0], vG4, vR4))
su("v_lshlrev_b32 v%d, 7, v%d" % (vT[0], vT[0]))
su("v_lshl_add_u32 v%d, v%d, 3, v%d" % (vT[0], vC4, vT[0]))
slin(su, sT0, [(sW, 32)], L_KS + 512)
su("v_add_u32 v%d, %s, v%d" % (vP0R, sT0, vT[0]))
slin(su, sT0, [(sW, 2304)], L_P0)
su("v_mul_u32_u24 v%d, 144, v%d" % (vT[0], vL15)); su("v_lshl_add_u32 v%d, v%d, 5, v%d" % (vT[0], vG4, vT[0]))
su("v_add_u32 v%d, %s, v%d" % (vP0W, sT0, vT[0]))
su("v_mul_u32_u24 v%d, 144, v%d" % (vT[0], vLd8)); su("v_lshl_add_u32 v%d, v%d, 4, v%d" % (vT[0], vL8, vT[0]))
su("v_add_u32 v%d, %s, v%d" % (vP0B, sT0, vT[0]))
slin(su, sT0, [(sC, 64 * CP), (sW, 16 * CP), (sRB64, 128)], WS_U)
su("v_mul_u32_u24 v%d, %d, v%d" % (vT[0], CP, vLd8)); su("v_lshl_add_u32 v%d, v%d, 4, v%d" % (vT[0], vL8, vT[0]))
su("v_add_u32 v%d, %s, v%d" % (vP0S, sT0, vT[0]))
vCA = va.get(); vCB = va.get()
su("v_sub_u32 v%d, v%d, v%d" % (vT[0], vC4, vR4)); su("v_lshlrev_b32 v%d, 3, v%d" % (vT[0], vT[0]))
su("v_lshlrev_b32 v%d, 6, v%d" % (vT[1], vG4)); su("v_sub_u32 v%d, v%d, v%d" % (vT[0], vT[0], vT[1]))
su("s_lshr_b32 %s, %s, 1" % (sT1, sW)); slin(su, sT1, [(sT1, 2 * HC_SZ)], L_HC + 216)
su("v_add_u32 v%d, %s, v%d" % (vCA, sT1, vT[0]))
su("v_lshlrev_b32 v%d, 3, v%d" % (vT[1], vL15))
su("v_lshl_add_u32 v%d, v%d, 4, v%d" % (vT[1], vG4, vT[1]))
su("v_and_b32 v%d, 1, v%d" % (vT[0], L)); su("v_xor_b32 v%d, 1, v%d" % (vT[0], vT[0]))
su("v_mul_u32_u24 v%d, %d, v%d" % (vT[0], UP + 8, vT[0]))
su("v_add3_u32 v%d, v%d, v%d, %s" % (vCB, vT[0], vT[1], sUW))
su("v_add_u32 v%d, 8, v%d" % (vCB, vCB))
m.extend(su)
stamp(m)
st_issue(m, 1)
stamp(m)

vKD = vb.get(10, 2)
vVD = vb.get(8, 2)
vKO = vb.get(10, 2)
vKS = vb.get(16, 4); vVF = vb.get(16, 4); vTR = vb.get(2, 2); vUO = vb.get(8, 4)
p0r = Stream()
for i in range(5): p0r("ds_read_b64_tr_b16 %s, v%d offset:%d" % (vr(vKD + 2 * i, 2), vP0R, 512 * i), tag="p0r")
for i in range(4): p0r("ds_read_b64_tr_b16 %s, v%d offset:%d" % (vr(vVD + 2 * i, 2), vP0R, L_VS - L_KS - 512 + 512 * i), tag="p0r")
p0 = Stream()
p0("v_alignbit_b32 v%d, v%d, v%d, 16" % (vTR, vTP, vTP))
p0("v_alignbit_b32 v%d, v%d, v%d, 16" % (vTR + 1, vTP + 1, vTP + 1))
p0.wait_lgkm("p0r")
for j in range(9): p0("v_alignbit_b32 v%d, v%d, v%d, 16" % (vKO + j, vKD + j + 1, vKD + j))
for j in range(8):
    p0("v_lshlrev_b32 v%d, 16, v%d" % (vVF + 2 * j, vVD + j)); p0("v_and_b32 v%d, 0xffff0000, v%d" % (vVF + 2 * j + 1, vVD + j))
for s_ in range(16):
    hi = (vKD + (s_ + 3) // 2) if s_ % 2 else (vKO + (s_ + 2) // 2)
    p0("v_dot2_f32_bf16 v%d, v%d, v%d, 0" % (vKS + s_, hi, vTR))
for s_ in range(16):
    lo = (vKD + (s_ + 1) // 2) if s_ % 2 else (vKO + s_ // 2)
    p0("v_dot2_f32_bf16 v%d, v%d, v%d, v%d" % (vKS + s_, lo, vTR + 1, vKS + s_))
for j in range(8): p0("v_pk_mul_f32 %s, %s, %s" % (vr(vKS + 2 * j, 2), vr(vKS + 2 * j, 2), vr(vVF + 2 * j, 2)))
for p_ in range(4):
    for hf in range(2): p0("v_cvt_pk_bf16_f32 v%d, v%d, v%d" % (vUO + 2 * p_ + hf, vKS + p_ + 8 * hf, vKS + p_ + 8 * hf + 4))
p0("ds_write_b128 v%d, %s" % (vP0W, vr(vUO, 4)), tag="p0w")
p0("ds_write_b128 v%d, %s offset:16" % (vP0W, vr(vUO + 4, 4)), tag="p0w")
p0b = Stream()
p0b.wait_lgkm("p0w")
p0b("ds_read_b128 %s, v%d" % (vr(vKS, 4), vP0B), tag="p0b")
p0b("ds_read_b128 %s, v%d offset:1152" % (vr(vKS + 4, 4), vP0B), tag="p0b")
p0b("s_mov_b32 %s, %d" % (sPO, 8 * CP))
p0c = Stream()
p0c.wait_lgkm("p0b")
p0c("buffer_store_dwordx4 %s, v%d, %s, 0 offen sc1" % (vr(vKS, 4), vP0S, WS), tag="ust")
p0c("buffer_store_dwordx4 %s, v%d, %s, %s offen sc1" % (vr(vKS + 4, 4), vP0S, WS, sPO), tag="ust")

aF = 0
def g1_reads(kap):
    t, ks = kap // 4, kap % 4
    slot = (t % 4) * SLOT
    b = aF + 16 * (kap % 2)
    so = slot - (65536 if slot >= 65536 else 0)
    gs = [Stream(), Stream(), Stream()]
    for ft in range(2):
        g_ = gs[2 * ft]
        g_("ds_read_b64_tr_b16 %s, v%d offset:%d" % (ar(b + 8 + 4 * ft, 2), vWA[ft], so + ks * 4096), tag="f%d_%d" % (kap, ft))
        g_("ds_read_b64_tr_b16 %s, v%d offset:%d" % (ar(b + 8 + 4 * ft + 2, 2), vWA[ft], so + ks * 4096 + 512), tag="f%d_%d" % (kap, ft))
        gs[1]("ds_read_b128 %s, v%d offset:%d" % (ar(b + 4 * ft, 4), vXA[ks], so + 4096 * ft), tag="f%d_0" % kap)
    return gs
def addr_shift(s, delta):
    for r in vXA + vWA:
        s("v_add_u32 v%d, 0x%x, v%d" % (r, delta & 0xffffffff, r))
def g1_mf(s, kap, i, ft):
    b = aF + 16 * (kap % 2)
    c = "0" if kap == 0 else vr(vACC[2 * i + ft], 16)
    s("v_mfma_f32_32x32x16_bf16 %s, %s, %s, %s" % (vr(vACC[2 * i + ft], 16), ar(b + 8 + 4 * ft, 4), ar(b + 4 * i, 4), c))
def g1_kstep(s, kap, pre=None):
    rd = g1_reads(kap + 1) if kap + 1 < 28 else [Stream(), Stream(), Stream()]
    if pre is not None: s.wait_lgkm("f%d_1" % kap)
    else: s.wait_lgkm("f%d_0" % kap)
    g1_mf(s, kap, 0, 0)
    if pre is not None: s.extend(pre)
    s.extend(rd[0])
    g1_mf(s, kap, 1, 0)
    s.extend(rd[1])
    s.wait_lgkm("f%d_1" % kap)
    g1_mf(s, kap, 0, 1)
    s.extend(rd[2])
    g1_mf(s, kap, 1, 1)

def w2_issue(s, half, j):
    for q in range(2):
        s.begin()
        if q == 0: s("s_add_u32 m0, %s, %d" % (sW2L, 8192 * W2POS[j]))
        s("buffer_load_dwordx4 v%d, %s, %s offen offset:%d lds" % (vW2V[2 * half + q], W2, tCB[j], 1024 * q), tag="w2_%d_%d" % (half, j))
        s.end()
aW2 = [128, 0]
def w2_reads(s, half, j):
    off = 8192 * W2POS[j]; hi = off >= 65536; off -= 65536 * hi
    for t in range(2):
        b = aW2[half] + 8 * j + 4 * t
        s("ds_read_b64_tr_b16 %s, v%d offset:%d" % (ar(b, 2), vW2R[2 * hi + t], off), tag="w2r%d_%d" % (half, j))
        s("ds_read_b64_tr_b16 %s, v%d offset:%d" % (ar(b + 2, 2), vW2R[2 * hi + t], off + 1024), tag="w2r%d_%d" % (half, j))

hc = Stream()
hc("s_and_b32 %s, %s, 1" % (sT0, sW)); hc("s_lshl_b32 %s, %s, 1" % (sT1, sT0))
hc("s_add_u32 %s, %s, 8" % (sHSRC, sHSRC)); hc("s_sub_u32 %s, %s, %s" % (sHSRC, sHSRC, sT1))
for q in range(4):
    hc.begin()
    if q == 0: hc("s_add_u32 m0, %s, 32" % sHC)
    hc("buffer_load_dwordx4 v%d, %s, %s offen offset:%d lds" % (vL16, SSM, sHSRC, 1024 * q), tag="hc")
    hc.end()
hc("v_lshlrev_b32 v%d, 16, v%d" % (vT[0], vHP)); hc("v_lshlrev_b32 v%d, 16, v%d" % (vT[1], vDP))
hc("v_add_f32 v%d, v%d, v%d" % (vT[0], vT[0], vT[1]))
hc("v_and_b32 v%d, 0xffff0000, v%d" % (vT[1], vHP))
hc("v_cvt_pk_bf16_f32 v%d, v%d, v%d" % (vHP, vT[0], vT[1]))
hc("s_lshl_b32 %s, %s, 4" % (sT0, sT0))
hc("v_lshlrev_b64 %s, %s, %s" % (vr(vT[2], 2), sT0, vr(vHP, 2)))
hc("v_mov_b32 v%d, 0" % vT[0]); hc("v_mov_b32 v%d, 0" % vT[1])
hc("v_mov_b32 v%d, %s" % (vT[4], sHC))
hc.begin()
hc("s_mov_b64 exec, 1")
hc("ds_write_b128 v%d, %s" % (vT[4], vr(vZ4, 4)), tag="z0")
hc("ds_write_b128 v%d, %s offset:16" % (vT[4], vr(vT[0], 4)), tag="z0")
hc("s_mov_b64 exec, -1")
hc.end()
uz = Stream()
uz("v_mul_u32_u24 v%d, 57, v%d" % (vT[5], L)); uz("v_lshrrev_b32 v%d, 9, v%d" % (vT[5], vT[5]))
uz("v_mul_u32_u24 v%d, %d, v%d" % (vT[5], UP - 144, vT[5]))
uz("v_add3_u32 v%d, v%d, v%d, %s" % (vT[5], vT[5], vL16, sUW))
uz.begin()
uz("s_mov_b32 exec_hi, 15")
uz("ds_write_b128 v%d, %s" % (vT[5], vr(vZ4, 4)), tag="z0")
uz("s_mov_b64 exec, -1")
uz.end()

fill = {t: Stream() for t in range(7)}
st_issue(fill[0], 2)
fill[1].extend(r2); st_issue(fill[1], 3, "x")
st_issue(fill[2], 3, "w"); fill[2].extend(r2b)
st_issue(fill[3], 4, "x"); st_issue(fill[3], 5)
st_issue(fill[4], 6); fill[4].extend(uz); flag_store(fill[4], vFUA, "ust")
fill[5].extend(hc); w2_issue(fill[5], 0, 0); w2_issue(fill[5], 0, 1)
for j in range(2, 6): w2_issue(fill[6], 0, j)
p0pre = Stream()
for i in range(2):
    for ft in range(2):
        p0pre("v_mfma_f32_32x32x16_bf16 %s, %s, %s, %s" % (vr(vACC[2 * i + ft], 16), vr(vB1, 4), vr(vONE + 4 * ft, 4), vr(vACC[2 * i + ft], 16)))
p0pre("v_add_u32 v%d, 0x%x, v%d" % (vTAG, TAG_INC, vTAG))
stamp(p0pre)
p0pre.wait_vm("kv")
p0pre("s_barrier")
stamp(p0pre)
p0pre.extend(p0r)
p0pre("v_readfirstlane_b32 s82, v%d" % vTAG); p0pre("v_readfirstlane_b32 s83, v%d" % vTAG)
p0pre.extend(p0); p0pre.extend(p0b); p0pre.extend(p0c)
stamp(p0pre)
def bar(t):
    b_ = Stream()
    if opt("fine", 0): stamp(b_)
    if t < 7: b_.wait_vm("st%d" % t)
    else: b_.wait_vm("hc")
    if opt("fine", 0): stamp(b_)
    b_("s_barrier")
    if opt("fine", 0): stamp(b_)
    if t in (2, 4, 6): addr_shift(b_, 65536 if t in (2, 6) else -65536)
    return b_
m.extend(bar(0))
for g_ in g1_reads(0): m.extend(g_)
for t in range(7):
    s = Stream()
    if t > 0: g1_kstep(s, 4 * t - 1, bar(t))
    for ks in range(3): g1_kstep(s, 4 * t + ks)
    m.extend(spread(s, fill[t], 0.1 if t > 0 else 0.0, 1.0))
    if t == 2: m.extend(p0pre)
g1_kstep(m, 27, bar(7))
stamp(m)

vb = VA(128, 254)
vGT = vb.get(16, 4); vHO = vb.get(8, 4); vUL = vb.get(8, 4)
def gelu(i):
    ge = Stream()
    n = 0
    for ft in range(2):
        for hf in range(2):
            x0 = vACC[2 * i + ft] + 8 * hf
            T = vGT + 8 * (n % 2); ho = vHO + 4 * (n % 2); n += 1
            for j in range(4): ge("v_pk_mul_f32 %s, %s, %s" % (vr(T + 2 * j, 2), vr(x0 + 2 * j, 2), vr(x0 + 2 * j, 2)))
            for j in range(4): ge("v_pk_fma_f32 %s, %s, %s, %s" % (vr(T + 2 * j, 2), vr(T + 2 * j, 2), sC1, vr(vC0, 2)))
            for j in range(4): ge("v_pk_mul_f32 %s, %s, %s" % (vr(T + 2 * j, 2), vr(T + 2 * j, 2), vr(x0 + 2 * j, 2)))
            for j in range(8): ge("v_exp_f32 v%d, v%d" % (T + j, T + j))
            for j in range(4): ge("v_pk_add_f32 %s, %s, 1.0 op_sel_hi:[1,0]" % (vr(T + 2 * j, 2), vr(T + 2 * j, 2)))
            for j in range(8): ge("v_rcp_f32 v%d, v%d" % (T + j, T + j))
            for j in range(4): ge("v_pk_mul_f32 %s, %s, %s" % (vr(T + 2 * j, 2), vr(T + 2 * j, 2), vr(x0 + 2 * j, 2)))
            for j in range(4): ge("v_cvt_pk_bf16_f32 v%d, v%d, v%d" % (ho + j, T + 2 * j, T + 2 * j + 1))
            ge("buffer_store_dwordx4 %s, v%d, %s, %s offen offset:%d sc1" % (vr(ho, 4), vL16, WS, sHB, 1024 * (2 * ft + hf)), tag="hst%d" % i)
    if i == 0: ge("s_add_u32 %s, %s, 4096" % (sHB, sHB))
    return ge
gf = Stream()
gf("s_lshr_b32 %s, %s, 3" % (sT0, sRB64)); slin(gf, sPO, [(sC, 512), (sT0, 128), (sW, 32)], WS_FU)
spoll_issue(gf, 8, sPO)
for j in range(6, 14): w2_issue(gf, 0, j)
gf("v_lshlrev_b32 v%d, 5, v%d" % (vT[1], L))
gf("s_and_b32 %s, %s, 1" % (sT1, sW)); slin(gf, sT0, [(sCH, CP), (sT1, 16)], WS_U)
m.extend(spread(gelu(0), gf, 0.0, 0.9, unit="any"))
spoll_check(m, 8, sPO, "pu")
m("s_barrier")
for q in range(2):
    m("buffer_load_dwordx4 %s, v%d, %s, %s offen offset:%d sc1" % (vr(vUL + 4 * q, 4), vT[1], WS, sT0, 2048 * q), tag="ul")
gf = Stream()
def w2_swap(s, j):
    s.wait_vm("w2_0_%d" % j); w2_reads(s, 0, j)
def w2_refill(s, j):
    s.wait_lgkm("w2r0_%d" % j); w2_issue(s, 1, j)
NSW = opt("nsw", 6); NRF = opt("nrf", 0)
order = [("r", j) for j in range(NSW)] + [("f", j) for j in range(NRF)]
NG = len(order)
jr, jf = NSW, NRF
while jr < 14 or jf < 14:
    if jr < 14: order.append(("r", jr)); jr += 1
    if jf < jr - 1 or (jr == 14 and jf < 14): order.append(("f", jf)); jf += 1
    if jr == 14 and jf < 14 and False: pass
def do_order(s, lst):
    for kind, j in lst: (w2_swap if kind == "r" else w2_refill)(s, j)
do_order(gf, order[:NG])
gf("v_lshl_add_u32 v%d, v%d, 3, %s" % (vT[2], L, sUW))
gf("v_add_u32 v%d, %d, v%d" % (vT[3], 2 * UP, vT[2]))
gf.wait_vm("ul")
for q in range(2):
    for e2 in range(2):
        d_ = vr(vUL + 4 * q + 2 * e2, 2)
        gf("ds_write2_b64 v%d, %s, %s offset0:%d offset1:%d" % (vT[2 + e2], d_, d_, 16 + 64 * q, 16 + 64 * q + 145), tag="uw")
flag_store(gf, vFHA, "hst0")
m.extend(spread(gelu(1), gf, 0.0, 0.95, unit="any"))
stamp(m)

vCACC = vACC[0]
aCF = 0
def conv_reads(bi):
    s = Stream()
    e2, r = bi >> 1, bi & 1
    base = aCF + 64 * (bi & 1)
    for a in range(8):
        off = e2 * HC_SZ + 256 * (2 * a + r)
        s("ds_read_b64_tr_b16 %s, v%d offset:%d" % (ar(base + 8 * a, 2), vCA, off + 32), tag="c%d_%d" % (bi, a))
        s("ds_read_b64_tr_b16 %s, v%d offset:%d" % (ar(base + 8 * a + 2, 2), vCA, off), tag="c%d_%d" % (bi, a))
        s("ds_read_b128 %s, v%d offset:%d" % (ar(base + 8 * a + 4, 4), vCB, e2 * 2 * UP + 64 * (2 * a - r + 1)), tag="c%d_%d" % (bi, a))
    return s
def conv_mfma(bi):
    s = Stream()
    base = aCF + 64 * (bi & 1)
    first = set()
    if bi > 0: s.wait_lgkm("c%d_7" % bi)
    for mx in range(8):
        if bi == 0: s.wait_lgkm("c%d_%d" % (bi, mx))
        prs = [(mx, i) for i in range(mx + 1)] + [(a, mx) for a in range(mx)]
        for a, i in prs:
            if a + i > 7: continue
            j = a + i
            c = vr(vCACC + 4 * j, 4)
            if bi == 0 and j not in first:
                first.add(j); c = "0"
            s("v_mfma_f32_16x16x32_bf16 %s, %s, %s, %s" % (vr(vCACC + 4 * j, 4), ar(base + 8 * a, 4), ar(base + 8 * i + 4, 4), c))
    return s
vb = VA(128, 254)
vEPB = vb.get(32, 4)
vQ = [vb.get(4, 4) for _ in range(2)]; vG = [vb.get(2, 2) for _ in range(2)]; vB2 = vb.get(4, 4)
ring = [vb.get(4, 4) for _ in range(19)]
RING = [("v", r) for r in ring] + [("a", 240 + 4 * i) for i in range(4)] + [("a", 112 + 4 * i) for i in range(4)]
NR = len(RING)
def rr(i): f, b = RING[i % NR]; return ("%s[%d:%d]" % (f, b, b + 3))
vHV = vXV
def h_issue(s, n):
    sg, k = n // 28, n % 28
    half, j = k // 14, k % 14
    s("buffer_load_dwordx4 %s, v%d, %s, %s offen sc1" % (rr(n), vHV[2 * sg + half], WS, tCB[j]), tag="h%d" % n)
vQO = vWV[0]; vGA = vWV[1]; vPW = vWV[2]; vPRD = vWV[3]; vZR = vXA[0]; vGA2 = vXA[1]; vB2A = vXA[2]; vYA0 = vXA[3]; vYA1 = vWA[0]; vYR = vWA[1]
vFZA = vFUA
sPB0 = sHC; sZB = sHB; sQ1 = sHSRC
cs = Stream()
cs("s_lshr_b32 %s, %s, 1" % (sT0, sRB64)); cs("s_mul_i32 %s, %s, 43" % (sT1, sT0)); cs("s_lshr_b32 %s, %s, 7" % (sT1, sT1))
slin(cs, sT2, [(sT1, 14 * CBS - 3 * 32768), (sRB64, 16384), (sW, 1024)], WS_H)
cs("v_add_u32 v%d, %s, v%d" % (vHV[0], sT2, vL16))
cs("v_add_u32 v%d, 8192, v%d" % (vHV[1], vHV[0])); cs("v_add_u32 v%d, 4096, v%d" % (vHV[2], vHV[0])); cs("v_add_u32 v%d, 12288, v%d" % (vHV[3], vHV[0]))
cs("s_mul_i32 %s, %s, 28" % (sT0, sW)); cs("s_min_u32 %s, %s, 80" % (sT0, sT0)); slin(cs, sPO, [(sRB64, 256), (sT0, 1)], WS_FH)
cs("v_mul_u32_u24 v%d, 80, v%d" % (vT[0], vL15))
cs("v_lshl_add_u32 v%d, v%d, 4, v%d" % (vT[0], vG4, vT[0]))
cs("s_and_b32 %s, %s, 1" % (sT1, sW)); slin(cs, sT0, [(sW, Y_SZ)], L_Y); slin(cs, sT2, [(sT1, 8), (sT0, 1)])
cs("v_add_u32 v%d, %s, v%d" % (vYA0, sT2, vT[0]))
cs("s_lshl_b32 %s, %s, 4" % (sT2, sT1))
cs("v_mov_b32 v%d, %s" % (vT[2], sT2))
cs.begin()
cs("v_cmp_eq_u32 vcc, 3, v%d" % vG4)
cs("v_cndmask_b32 v%d, 0, v%d, vcc" % (vT[2], vT[2]))
cs.end()
cs("v_add3_u32 v%d, v%d, v%d, 8" % (vYA1, vYA0, vT[2]))
cs("v_mov_b32 v%d, %s" % (vT[6], sT0))
cs("v_lshrrev_b32 v%d, 1, v%d" % (vT[2], L)); cs("v_mul_u32_u24 v%d, 80, v%d" % (vT[2], vT[2]))
cs("v_and_b32 v%d, 1, v%d" % (vT[3], L)); cs("v_lshl_add_u32 v%d, v%d, 5, v%d" % (vT[2], vT[3], vT[2]))
cs("s_lshr_b32 %s, %s, 1" % (sT0, sW)); slin(cs, sT0, [(sT0, 2 * Y_SZ), (sT1, 64 * 80)], L_Y)
cs("v_add_u32 v%d, %s, v%d" % (vYR, sT0, vT[2]))
slin(cs, sZB, [(sCH, CP), (sT1, 2048)], WS_Z)
cs("s_and_b32 %s, %s, 63" % (sT2, sCH)); slin(cs, sT0, [(sC, 512), (sT1, 256), (sT2, 4)], WS_FZ)
cs("v_mov_b32 v%d, %s" % (vFZA, sT0))
es = Stream()
slin(es, sT0, [(sRB64, 64), (sW, 8)])
es("v_add_u32 v%d, %s, v%d" % (vT[0], sT0, vLd8))
es("v_lshlrev_b32 v%d, 3, v%d" % (vGA, vT[0])); es("v_add_u32 v%d, 0x%x, v%d" % (vGA, WS_G, vGA))
es("v_add_u32 v%d, 256, v%d" % (vGA2, vGA))
es("v_mul_u32_u24 v%d, 896, v%d" % (vT[0], vT[0]))
es("s_lshl_b32 %s, %s, 7" % (sT0, sC))
es("v_lshl_add_u32 v%d, v%d, 4, %s" % (vB2A, vL8, sT0))
es("v_add_u32 v%d, v%d, v%d" % (vQO, vT[0], vB2A))
es("v_mul_u32_u24 v%d, 272, v%d" % (vT[0], vS32)); es("v_lshl_add_u32 v%d, v%d, 4, v%d" % (vPW, vHH, vT[0]))
es("s_mul_i32 %s, %s, %d" % (sT0, sW, PB_SZ))
es("v_add_u32 v%d, %s, v%d" % (vPW, sT0, vPW))
es("s_lshl_b32 %s, %s, 3" % (sT0, sW))
es("v_add_u32 v%d, %s, v%d" % (vT[0], sT0, vLd8))
es("v_mul_u32_u24 v%d, 272, v%d" % (vT[1], vT[0])); es("v_lshl_add_u32 v%d, v%d, 5, v%d" % (vPRD, vL8, vT[1]))
es("v_mul_u32_u24 v%d, 144, v%d" % (vT[1], vT[0])); es("v_lshl_add_u32 v%d, v%d, 4, v%d" % (vZR, vL8, vT[1]))
es("v_add_u32 v%d, %d, v%d" % (vZR, L_ZT, vZR))
es("s_mov_b32 %s, %d" % (sQ1, 32 * 896))

m.wait_lgkm("uw")
m.extend(conv_reads(0))
cf = [Stream() for _ in range(4)]
rest = order[NG:]
NB3 = opt("nb3", 3)
h_ = (len(rest) + NB3 - 1) // NB3
cf[0].extend(cs)
spoll_issue(cf[2], 8, sPO)
for b_ in range(NB3): do_order(cf[b_], rest[b_ * h_:(b_ + 1) * h_])
flag_store(cf[1], vFHA, "hst1", off=128)
cf[2].extend(es)
HC3 = opt("hc3", 11)
for n in range(HC3): h_issue(cf[3], n)
for bi in range(4):
    mf = conv_mfma(bi)
    if bi < 3: mf = spread(mf, conv_reads(bi + 1), 0.0, 0.8)
    if bi == 3:
        spoll_check(m, 8, sPO, "ph0")
        m("s_barrier")
        m("s_add_u32 %s, %s, 128" % (sPO, sPO))
    mf = spread(mf, cf[bi], 0.0, 1.0)
    m.extend(mf)
stamp(m)
m.begin()
m("s_mov_b64 exec, 1")
m("ds_write_b64 v%d, %s" % (vT[6], vr(vZ4, 2)), tag="yw")
m("s_mov_b64 exec, -1")
m.end()
yw = Stream()
for j in range(8):
    yw("ds_write_b64 v%d, %s offset:%d" % (vYA0, vr(vCACC + 4 * j, 2), 1280 * j), tag="yw")
    yw("ds_write_b64 v%d, %s offset:%d" % (vYA1, vr(vCACC + 4 * j + 2, 2), 1280 * j), tag="yw")
f = Stream()
for n in range(HC3, HC3 + 6): h_issue(f, n)
m.extend(spread(yw, f, 0.0, 1.0, unit="any"))
m.wait_lgkm("yw")
m("s_barrier")
for q in range(2):
    for y in range(2):
        for hf in range(2):
            m("ds_read_b128 %s, v%d offset:%d" % (vr(vEPB + 16 * q + 8 * y + 4 * hf, 4), vYR, 2560 * q + Y_SZ * y + 16 * hf), tag="yr%d" % q)
for q in range(2):
    m.wait_lgkm("yr%d" % q)
    b = vEPB + 16 * q
    for j in range(4): m("v_pk_add_f32 %s, %s, %s" % (vr(b + 2 * j, 2), vr(b + 2 * j, 2), vr(b + 8 + 2 * j, 2)))
    for j in range(4): m("v_cvt_pk_bf16_f32 v%d, v%d, v%d" % (b + 8 + j, b + 2 * j, b + 2 * j + 1))
    m("buffer_store_dwordx4 %s, v%d, %s, %s offen offset:%d sc1" % (vr(b + 8, 4), vL16, WS, sZB, 1024 * q), tag="zst")
stamp(m)
spoll_issue(m, 8, sPO)

vA2 = vACC
vZL = vEPB + 16; vEP = vEPB
vBS = vT[0]
def z_load(s):
    slin(s, sT1, [(sC, 64 * CP), (sW, 16 * CP), (sRB64, 128)], WS_Z)
    s("s_add_u32 %s, %s, %d" % (sT2, sT1, 8 * CP))
    s("v_mul_u32_u24 v%d, %d, v%d" % (vT[0], CP, vLd8)); s("v_lshl_add_u32 v%d, v%d, 4, v%d" % (vT[0], vL8, vT[0]))
    spoll_check(s, 16, sPO, "pz")
    s("buffer_load_dwordx4 %s, v%d, %s, %s offen sc1" % (vr(vZL, 4), vT[0], WS, sT1), tag="zl")
    s("buffer_load_dwordx4 %s, v%d, %s, %s offen sc1" % (vr(vZL + 4, 4), vT[0], WS, sT2), tag="zl")
ZST = 65536
def z_xpose(s):
    s("v_add_u32 v%d, %s, v%d" % (vT[0], sW2L, vL16))
    s("v_add_u32 v%d, %d, v%d" % (vT[0], ZST, vT[0]))
    s("v_lshlrev_b32 v%d, 7, v%d" % (vT[1], vR4)); s("v_lshl_add_u32 v%d, v%d, 5, v%d" % (vT[1], vG4, vT[1])); s("v_lshl_add_u32 v%d, v%d, 3, v%d" % (vT[1], vC4, vT[1]))
    s("s_add_u32 %s, %s, %d" % (sT1, sW2L, ZST))
    s("v_add_u32 v%d, %s, v%d" % (vT[1], sT1, vT[1]))
    s("v_mul_u32_u24 v%d, 144, v%d" % (vT[2], L)); slin(s, sT1, [(sW, 32)], L_ZT)
    s("v_add_u32 v%d, %s, v%d" % (vT[2], sT1, vT[2]))
    s.wait_vm("zl")
    s("ds_write_b128 v%d, %s" % (vT[0], vr(vZL, 4)), tag="zw")
    s("ds_write_b128 v%d, %s offset:1024" % (vT[0], vr(vZL + 4, 4)), tag="zw")
    s.wait_lgkm("zw")
    for i in range(4):
        s("ds_read_b64_tr_b16 %s, v%d offset:%d" % (vr(vZL + 8 + 2 * i, 2), vT[1], 512 * i), tag="zr")
    s.wait_lgkm("zr")
    s("ds_write_b128 v%d, %s" % (vT[2], vr(vZL + 8, 4)), tag="zw2")
    s("ds_write_b128 v%d, %s offset:16" % (vT[2], vr(vZL + 12, 4)), tag="zw2")
def part_write(s, sg):
    s("v_add_u32 v%d, %d, v%d" % (vT[3], L_PB0 if sg == 0 else L_PB1, vPW))
    for t in range(2):
        for a in range(4):
            s("ds_write_b128 v%d, %s offset:%d" % (vT[3], vr(vA2[2 * sg + t] + 4 * a, 4), 128 * t + 32 * a), tag="pw%d" % sg)
def red(s, sg, E, pk):
    s("v_add_u32 v%d, %d, v%d" % (vT[3], L_PB0 if sg == 0 else L_PB1, vPRD))
    for w in range(4):
        for hf in range(2):
            s("ds_read_b128 %s, v%d offset:%d" % (vr(E + 8 * w + 4 * hf, 4), vT[3], PB_SZ * w + 16 * hf), tag="pr%d" % sg)
    s.wait_vm("q")
    s.wait_lgkm("pr%d" % sg)
    def add(d, a, b):
        if pk: s("v_pk_add_f32 %s, %s, %s" % (vr(d, 2), vr(a, 2), vr(b, 2)))
        else:
            s("v_add_f32 v%d, v%d, v%d" % (d, a, b)); s("v_add_f32 v%d, v%d, v%d" % (d + 1, a + 1, b + 1))
    for j in range(4):
        add(E + 2 * j, E + 2 * j, E + 8 + 2 * j)
        add(E + 16 + 2 * j, E + 16 + 2 * j, E + 24 + 2 * j)
    for j in range(4):
        s("v_lshlrev_b32 v%d, 16, v%d" % (E + 8 + 2 * j, vB2 + j)); s("v_and_b32 v%d, 0xffff0000, v%d" % (E + 9 + 2 * j, vB2 + j))
        add(E + 2 * j, E + 2 * j, E + 16 + 2 * j)
    for j in range(4): add(E + 2 * j, E + 2 * j, E + 8 + 2 * j)
def fin(s, sg, E, Zr):
    for j in range(4):
        s("v_lshlrev_b32 v%d, 16, v%d" % (E + 16 + 2 * j, vQ[sg] + j)); s("v_and_b32 v%d, 0xffff0000, v%d" % (E + 17 + 2 * j, vQ[sg] + j))
        s("v_lshlrev_b32 v%d, 16, v%d" % (E + 24 + 2 * j, Zr + j)); s("v_and_b32 v%d, 0xffff0000, v%d" % (E + 25 + 2 * j, Zr + j))
    for j in range(4):
        s("v_pk_fma_f32 %s, %s, %s, %s neg_lo:[0,0,1] neg_hi:[0,0,1]" % (vr(E + 16 + 2 * j, 2), vr(E + 16 + 2 * j, 2), vr(E + 24 + 2 * j, 2), vr(E + 2 * j, 2)))
    for j in range(4):
        s("v_pk_fma_f32 %s, %s, %s, %s op_sel_hi:[1,0,1]" % (vr(E + 2 * j, 2), vr(E + 16 + 2 * j, 2), vr(vG[sg], 2), vr(E + 2 * j, 2)))
    for j in range(4):
        s("v_cvt_pk_bf16_f32 v%d, v%d, v%d" % (E + 8 + j, E + 2 * j, E + 2 * j + 1))
    s("buffer_store_dwordx4 %s, v%d, %s, %s offen %s" % (vr(E + 8, 4), vQO, OUT, "0" if sg == 0 else sQ1, OPT.get("ost", "").replace("_", " ")), tag="ost")

hnext = [HC3 + 6]
def g2_seg(n0, n1, lim):
    s = Stream()
    for n in range(n0, n1):
        sg, k = n // 28, n % 28
        half, j = k // 14, k % 14
        s.wait_vm("h%d" % n)
        if n == 0: s.wait_lgkm("w2r0_13")
        if 14 <= n < 28: s.wait_lgkm("w2r1_%d" % j)
        rd = Stream()
        if n < 14:
            rd.wait_vm("w2_1_%d" % n); w2_reads(rd, 1, n)
        for t in range(2):
            c = "0" if k == 0 else vr(vA2[2 * sg + t], 16)
            s("v_mfma_f32_32x32x16_bf16 %s, %s, %s, %s" % (vr(vA2[2 * sg + t], 16), ar(aW2[half] + 8 * j + 4 * t, 4), rr(n), c))
            if t == 0:
                if hnext[0] < lim and hnext[0] < n + NR:
                    h_issue(s, hnext[0]); hnext[0] += 1
                s.ops.extend(rd.ops[:3])
            else:
                s.ops.extend(rd.ops[3:])
    return s
PH1 = opt("ph1", 10)
m.extend(g2_seg(0, PH1, 28))
spoll_check(m, 8, sPO, "ph1")
m("s_barrier")
f = Stream()
flag_store(f, vFZA, "zst")
f("global_load_dwordx4 %s, v%d, %s" % (vr(vB2, 4), vB2A, P_B2), tag="q")
f("buffer_load_dwordx4 %s, v%d, %s, 0 offen" % (vr(vQ[0], 4), vQO, Q), tag="q")
f("buffer_load_dwordx4 %s, v%d, %s, %s offen" % (vr(vQ[1], 4), vQO, Q, sQ1), tag="q")
gran_issue(f, vG[0], vGA, "pg0"); gran_issue(f, vG[1], vGA2, "pg1")
f("s_lshr_b32 %s, %s, 4" % (sT0, sRB64)); slin(f, sPO, [(sC, 512), (sT0, 256), (sW, 64)], WS_FZ)
m.extend(spread(g2_seg(PH1, 28, 56), f, 0.0, 0.5))
stamp(m)
f = Stream(); part_write(f, 0); f.wait_lgkm("pw0"); f("s_barrier")
m.extend(spread(g2_seg(28, 38, 56), f, 0.1, 1.0))
f = Stream(); red(f, 0, vA2[0], False); spoll_issue(f, 16, sPO)
m.extend(spread(g2_seg(38, 46, 56), f, 0.0, 1.0))
f = Stream(); gran_check(f, vG[0], vGA, "pg0"); gran_check(f, vG[1], vGA2, "pg1"); z_load(f)
m.extend(spread(g2_seg(46, 56, 56), f, 0.3, 0.9))
stamp(m)
part_write(m, 1)
z_xpose(m)
m.wait_lgkm("zw2")
m("s_barrier")
stamp(m)
m("ds_read_b128 %s, v%d" % (vr(vT[4], 4), vZR), tag="zt")
m("ds_read_b128 %s, v%d offset:%d" % (vr(ring[0], 4), vZR, 32 * 144), tag="zt")
r1 = Stream(); red(r1, 1, vEPB, True)
m.ops.extend(r1.ops[:9])
m.wait_lgkm("zt")
fin(m, 0, vA2[0], vT[4])
m.ops.extend(r1.ops[9:])
fin(m, 1, vEPB, ring[0])
stamp(m)
print("vgprs used:", va.n, file=sys.stderr)

def stamp_out(s):
    if not STAMP: return
    s("s_waitcnt vmcnt(0)")
    stamp(s)
    nstamp[0] = 40
    stamp(s, rt=True)
    slin(s, sT0, [("s2", 1024), (sW, 256)], WS_STAMP)
    s("v_lshlrev_b32 v%d, 2, v%d" % (vT[0], vLANE))
    s("buffer_store_dword v%d, v%d, %s, %s offen" % (vSTA, vT[0], WS, sT0))
stamp_out(m)
m("s_endpgm")

g = Stream(); g_stream[0] = g
g("L_spare:")
nstamp[0] = 2
g("v_mov_b32 v12, 0")
g("buffer_load_dword v%d, v12, %s, 0 offen sc1" % (vTAG, WS))
sJ = sA
if opt("pf", 1):
    g("s_sub_u32 %s, %s, 28" % (sT0, sI)); g("s_lshl_b32 %s, %s, 2" % (sT0, sT0)); g("s_add_u32 %s, %s, %s" % (sT0, sT0, sW))
    g("v_lshlrev_b32 v12, 7, v%d" % vLANE)
    g("L_pf:")
    g("s_cmp_ge_u32 %s, 98" % sT0); g("s_cselect_b32 %s, 98, 0" % sT1); g("s_cselect_b32 %s, 57344, 0" % sT3)
    g("s_sub_u32 %s, %s, %s" % (sT1, sT0, sT1))
    g("s_mul_i32 %s, %s, 147" % (sT2, sT1)); g("s_lshr_b32 %s, %s, 10" % (sT2, sT2))
    g("s_mul_i32 %s, %s, 57344" % (sT2, sT2)); g("s_lshl_b32 %s, %s, 13" % (sT1, sT1))
    g("s_add_u32 %s, %s, %s" % (sT1, sT1, sT2)); g("s_add_u32 %s, %s, %s" % (sT1, sT1, sT3))
    g("buffer_load_dword v13, v12, %s, %s offen" % (W2, sT1))
    g("s_add_u32 %s, %s, 16" % (sT0, sT0))
    g("s_cmp_lt_u32 %s, 196" % sT0)
    g("s_cbranch_scc1 L_pf")
g("s_sub_u32 %s, %s, 28" % (sJ, sI)); g("s_lshl_b32 %s, %s, 2" % (sT0, sX)); g("s_add_u32 %s, %s, %s" % (sJ, sJ, sT0))
g("s_waitcnt vmcnt(0)")
slin(g, sT0, [(sJ, 64), (sW, 16)])
g("v_lshrrev_b32 v12, 2, v%d" % vLANE); g("v_add_u32 v12, %s, v12" % sT0)
g("v_and_b32 v13, 3, v%d" % vLANE); g("v_lshlrev_b32 v13, 4, v13")
g("v_mul_u32_u24 v14, 896, v12"); g("v_add_u32 v14, v14, v13")
for i in range(14):
    g("buffer_load_dwordx4 v[%d:%d], v14, %s, 0 offen offset:%d" % (16 + 4 * i, 19 + 4 * i, Q, 64 * i), tag="gq")
for i in range(14):
    g("global_load_dwordx4 v[%d:%d], v13, %s offset:%d" % (80 + 4 * i, 83 + 4 * i, P_GATE, 64 * i), tag="gq")
g("s_waitcnt vmcnt(0)")
g("v_add_u32 v%d, 0x%x, v%d" % (vTAG, TAG_INC, vTAG))
for i in range(56):
    acc = 140 + (i % 4)
    g("v_dot2_f32_bf16 v%d, v%d, v%d, %s" % (acc, 16 + i, 80 + i, "0" if i < 4 else "v%d" % acc))
g("v_add_f32 v140, v140, v141"); g("v_add_f32 v142, v142, v143"); g("v_add_f32 v140, v140, v142")
g("v_add_f32_dpp v140, v140, v140 quad_perm:[1,0,3,2] row_mask:0xf bank_mask:0xf")
g("v_add_f32_dpp v140, v140, v140 quad_perm:[2,3,0,1] row_mask:0xf bank_mask:0xf")
g("v_mul_f32 v140, 0x%x, v140" % f2u(-math.log2(math.e)))
g("v_exp_f32 v140, v140"); g("v_add_f32 v140, 1.0, v140"); g("v_rcp_f32 v140, v140")
g("v_mov_b32 v141, v%d" % vTAG)
g("v_lshlrev_b32 v12, 3, v12"); g("v_add_u32 v12, 0x%x, v12" % WS_G)
g("s_mov_b32 exec_lo, 0x11111111"); g("s_mov_b32 exec_hi, 0x11111111")
g("buffer_store_dwordx2 v[140:141], v12, %s, 0 offen sc1" % WS)
g("s_mov_b64 exec, -1")
g("s_cmp_lg_u32 s2, 255"); g("s_cbranch_scc1 L_spare_done")
g("s_cmp_lg_u32 %s, 0" % sW); g("s_cbranch_scc1 L_spare_done")
g("v_lshlrev_b32 v12, 4, v%d" % vLANE); g("v_add_u32 v12, 0x%x, v12" % WS_FU)
g("v_min_u32 v15, 31, v%d" % vLANE); g("v_lshlrev_b32 v15, 4, v15"); g("v_add_u32 v15, 0x%x, v15" % (WS_FU + 3072))
g("v_lshlrev_b32 v13, 7, v%d" % vLANE); g("v_add_u32 v13, 0x%x, v13" % (WS_G + 4))
g("v_add_u32 v14, 8192, v13")
g("s_mov_b32 %s, 0" % sSPIN)
g("L_upd:")
g("s_sleep 32")
for i in range(3):
    g("buffer_load_dwordx4 v[%d:%d], v12, %s, 0 offen offset:%d sc1" % (16 + 4 * i, 19 + 4 * i, WS, 1024 * i))
g("buffer_load_dwordx4 v[28:31], v15, %s, 0 offen sc1" % WS)
g("buffer_load_dword v32, v13, %s, 0 offen sc1" % WS)
g("buffer_load_dword v33, v14, %s, 0 offen sc1" % WS)
g("s_add_u32 %s, %s, 1" % (sSPIN, sSPIN))
g("s_waitcnt vmcnt(0)")
for i in range(18): g("v_xor_b32 v%d, v%d, v%d" % (16 + i, 16 + i, vTAG))
for i in range(1, 18): g("v_or_b32 v16, v16, v%d" % (16 + i))
g("v_cmp_ne_u32 vcc, 0, v16")
g("s_cmp_gt_u32 %s, 0x40000" % sSPIN)
g("s_cbranch_scc1 L_upd_go")
g("s_cbranch_vccnz L_upd")
g("L_upd_go:")
g("v_mov_b32 v12, 0")
g("s_mov_b64 exec, 1")
g("buffer_store_dword v%d, v12, %s, 0 offen sc1" % (vTAG, WS))
g("s_mov_b64 exec, -1")
g("L_spare_done:")
stamp_out(g)
g("L_end:")
g("s_endpgm")

k_ = 0
for o in m.ops:
    if "STAMPIDX" in o.text:
        o.text = o.text.replace("STAMPIDX", str(k_)); k_ += 1
assert k_ <= 40
nts = [d for d in OPT.get("nt", "").split(",") if d]
for o in m.ops:
    if o.kind in VMEMK and o.tag and any(o.tag.startswith(d) for d in nts) and "global_" not in o.text:
        o.text = o.text.replace(" lds", " nt lds") if o.text.endswith(" lds") else o.text + " nt"
drops = [d for d in OPT.get("drop", "").split(",") if d]
if drops:
    keep = []; dropped = set()
    for o in m.ops:
        if o.kind in VMEMK and o.tag and any(o.tag.startswith(d) for d in drops):
            dropped.add(o.tag); continue
        if o.kind == "waitvm" and o.waitfor in dropped: continue
        keep.append(o)
    m.ops = keep
body = render(finalize(m)) + "\n" + render(insert_nops(spins.ops)) + "\n" + render(insert_nops(resolve_waits(g.ops)))
hdr = open("cdna_kernels/%s.s.ref" % NAME).read().split("; Override launch")[0]
out = hdr + "; @launch grid=(256,1,1) block=(256,1,1) lds=%d\n" % LDS_TOTAL
out += '.amdgcn_target "amdgcn-amd-amdhsa--gfx950"\n.text\n.globl %s_kernel\n.p2align 8\n.type %s_kernel,@function\n%s_kernel:\n' % (NAME, NAME, NAME)
out += body + "\nL_code_end:\n"
out = out.replace("CODE_BYTES", "L_code_end-%s_kernel-64" % NAME)
out += '.section .rodata,"a"\n.p2align 6\n.amdhsa_kernel %s_kernel\n' % NAME
out += "  .amdhsa_next_free_vgpr 512\n  .amdhsa_next_free_sgpr 102\n  .amdhsa_accum_offset 256\n  .amdhsa_group_segment_fixed_size 0\n"
out += "  .amdhsa_kernarg_size 120\n  .amdhsa_user_sgpr_count 2\n  .amdhsa_user_sgpr_kernarg_segment_ptr 1\n  .amdhsa_system_sgpr_workgroup_id_x 1\n.end_amdhsa_kernel\n"
open(sys.argv[1], "w").write(out)
```

```python
import re

TRANS = ("v_exp_f32", "v_log_f32", "v_rcp_f32", "v_rsq_f32", "v_sqrt_f32", "v_sin_f32", "v_cos_f32")

class Op:
    __slots__ = ("text", "kind", "tag", "waitfor", "reads", "writes", "srcc", "passes", "ab", "cost", "glue")
    def __init__(self, text, kind, tag=None):
        self.text = text; self.kind = kind; self.tag = tag
        self.waitfor = None
        self.reads = set(); self.writes = set(); self.srcc = (); self.passes = 0; self.ab = set()
        self.cost = 1; self.glue = False

_reg_re = re.compile(r"^(-|abs\()?\|?([vas])(\d+|\[(\d+):(\d+)\])\|?\)?$")

def regs_of(tok):
    tok = tok.strip()
    if tok in ("vcc",): return [("s", 106), ("s", 107)]
    if tok in ("vcc_lo",): return [("s", 106)]
    if tok in ("exec",): return [("s", 126), ("s", 127)]
    if tok == "m0": return [("s", 124)]
    m = _reg_re.match(tok)
    if not m: return []
    f = m.group(2)
    if m.group(4) is not None:
        return [(f, i) for i in range(int(m.group(4)), int(m.group(5)) + 1)]
    return [(f, int(m.group(3)))]

def split_ops(rest):
    out = []; cur = ""; depth = 0
    for ch in rest:
        if ch in "[(": depth += 1
        if ch in "])": depth -= 1
        if ch == "," and depth == 0:
            out.append(cur.strip()); cur = ""
        else:
            cur += ch
    if cur.strip(): out.append(cur.strip())
    if out:
        last = out[-1].split()
        out[-1] = last[0]
        mods = last[1:]
    else:
        mods = []
    return out, mods

def analyze(op):
    t = op.text.split(";")[0].strip()
    if not t or t.endswith(":") or t.startswith("."):
        op.kind = "label"; return
    parts = t.split(None, 1)
    mn = parts[0]; rest = parts[1] if len(parts) > 1 else ""
    ops, mods = split_ops(rest)
    R = lambda i: regs_of(ops[i]) if i < len(ops) else []
    if mn.startswith("v_mfma"):
        op.kind = "mfma"
        op.passes = 8 if "32x32x16" in mn else 4
        op.writes = set(R(0)); op.ab = set(R(1)) | set(R(2)); op.srcc = tuple(R(3))
        op.reads = op.ab | set(op.srcc)
        op.cost = 2
    elif mn.startswith("v_"):
        op.kind = "trans" if mn.split("_e")[0] in TRANS or mn in TRANS else "valu"
        if op.kind == "trans": op.cost = 2
        if mn.startswith("v_dot2"):
            op.kind = "dot"; op.ab = set(R(1)) | set(R(2))
        op.writes = set(R(0))
        for i in range(1, len(ops)): op.reads |= set(R(i))
        if mn.startswith(("v_fmac", "v_dot2c", "v_pk_fmac")): op.reads |= set(R(0))
        if mn.startswith("v_permlane"):
            op.reads |= set(R(0)); op.writes |= set(R(1)); op.kind = "permlane"
        if mn.startswith(("v_add_co", "v_sub_co", "v_addc_co", "v_subb_co")):
            op.writes |= set(R(1))
        if "dpp" in mn or any(m.startswith(("row_", "quad_perm", "wave_")) for m in mods):
            op.kind = "dpp"
            op.reads |= set(R(0))
        if mn.startswith(("v_readfirstlane", "v_readlane")): op.kind = "readlane"
    elif mn.startswith(("buffer_", "global_")):
        op.kind = "vmem"
        if mn.startswith(("buffer_wbl2", "buffer_inv")): return
        lds = "lds" in mods or "_lds_" in mn
        if "store" in mn:
            op.kind = "vstore"
            for i in range(len(ops)): op.reads |= set(R(i))
            if mn.endswith(("x3", "x4")):
                op.srcc = tuple(R(0) if mn.startswith("buffer_") else R(1))
        elif lds:
            op.kind = "vdma"
            for i in range(len(ops)): op.reads |= set(R(i))
            op.reads.add(("s", 124))
        else:
            op.writes = set(R(0))
            for i in range(1, len(ops)): op.reads |= set(R(i))
            if "d16" in mn: op.reads |= set(R(0))
    elif mn.startswith("ds_"):
        op.kind = "ds"
        if "write" in mn or "add" in mn:
            for i in range(len(ops)): op.reads |= set(R(i))
        else:
            op.writes = set(R(0))
            for i in range(1, len(ops)): op.reads |= set(R(i))
    elif mn.startswith("s_"):
        op.kind = "salu"
        if mn == "s_nop":
            op.kind = "nop"; op.cost = int(ops[0], 0) + 1
        elif mn.startswith(("s_waitcnt", "s_barrier", "s_branch", "s_cbranch", "s_endpgm", "s_sleep", "s_setprio")):
            op.kind = "ctl"
        elif mn.startswith(("s_cmp", "s_bitcmp")):
            for i in range(len(ops)): op.reads |= set(R(i))
        elif mn.startswith("s_atomic"):
            op.kind = "smem"
            for i in range(len(ops)): op.reads |= set(R(i))
        elif mn.startswith(("s_load", "s_memtime", "s_memrealtime", "s_buffer_load")):
            op.kind = "smem"; op.writes = set(R(0))
            for i in range(1, len(ops)): op.reads |= set(R(i))
        else:
            op.writes = set(R(0))
            for i in range(1, len(ops)): op.reads |= set(R(i))
            if "saveexec" in mn: op.writes |= {("s", 126), ("s", 127)}
    else:
        raise ValueError("unknown instr: " + t)

VALUK = ("valu", "trans", "dot", "dpp", "permlane", "readlane")
VMEMK = ("vmem", "vstore", "vdma")

class Stream:
    def __init__(self):
        self.ops = []
        self._g = None
    def begin(self): self._g = len(self.ops)
    def end(self):
        for o in self.ops[self._g + 1:]: o.glue = True
        self._g = None
    def __call__(self, text, tag=None):
        for line in text.split("\n"):
            line = line.strip()
            if not line: continue
            op = Op(line, None, tag)
            analyze(op)
            self.ops.append(op)
        return self
    def wait_vm(self, tag):
        op = Op("WAITVM", "waitvm"); op.waitfor = tag; self.ops.append(op)
    def wait_lgkm(self, tag):
        op = Op("WAITLGKM", "waitlgkm"); op.waitfor = tag; self.ops.append(op)
    def smem_done(self):
        op = Op("SMEMDONE", "smemdone"); op.cost = 0; self.ops.append(op)
    def extend(self, other):
        self.ops.extend(other.ops)
    def cost(self):
        return sum(o.cost for o in self.ops if o.kind != "label")

def merge(primary, secondary, start=0.0, end=1.0):
    out = Stream()
    P = primary.ops; S = secondary.ops
    pc = sum(o.cost for o in P); sc = sum(o.cost for o in S)
    if sc == 0:
        out.ops = list(P); return out
    acc_p = 0; acc_s = 0; j = 0
    for pi, o in enumerate(P):
        out.ops.append(o); acc_p += o.cost
        if pi + 1 < len(P) and P[pi + 1].glue: continue
        frac = (acc_p / pc - start) / max(end - start, 1e-9)
        while j < len(S) and (acc_s < frac * sc or S[j].glue):
            out.ops.append(S[j]); acc_s += S[j].cost; j += 1
    out.ops.extend(S[j:])
    return out

DUMMY_DS = [None]
def resolve_waits(ops):
    res = []
    vm_list = []
    lg_list = []
    vm_done = 0
    lg_done = 0
    pend = 0
    for o in ops:
        if o.kind == "waitvm":
            idx = [i for i, t in enumerate(vm_list) if t == o.waitfor]
            assert idx, "waitvm: no op tagged %r" % (o.waitfor,)
            last = idx[-1]
            if last < vm_done: continue
            n = len(vm_list) - 1 - last
            n = min(n, 63)
            w = Op("s_waitcnt vmcnt(%d)" % n, "ctl"); res.append(w)
            vm_done = max(vm_done, len(vm_list) - n)
        elif o.kind == "waitlgkm":
            idx = [i for i, t in enumerate(lg_list) if t == o.waitfor]
            assert idx, "waitlgkm: no op tagged %r" % (o.waitfor,)
            last = idx[-1]
            if last < lg_done: continue
            n = len(lg_list) - 1 - last
            while n < pend and DUMMY_DS[0]:
                d = Op(DUMMY_DS[0], None); analyze(d); res.append(d); lg_list.append("dummy"); n += 1
            n = min(n, 15)
            w = Op("s_waitcnt lgkmcnt(%d)" % n, "ctl"); res.append(w)
            lg_done = max(lg_done, len(lg_list) - n)
        else:
            if o.kind in VMEMK: vm_list.append(o.tag)
            if o.kind == "ds": lg_list.append(o.tag)
            if o.kind == "smem": pend += 1 if ("atomic" in o.text or o.text.startswith("s_load_dword ")) else 2
            if o.kind == "smemdone": pend = 0; continue
            if o.kind == "ctl" and o.text.startswith("s_waitcnt"):
                m = re.search(r"vmcnt\((\d+)\)", o.text)
                if m: vm_done = max(vm_done, len(vm_list) - int(m.group(1)))
                m = re.search(r"lgkmcnt\((\d+)\)", o.text)
                if m:
                    lg_done = max(lg_done, len(lg_list) - int(m.group(1)))
                    if int(m.group(1)) == 0: pend = 0
            res.append(o)
    return res

def need_dist(p, c):
    d = 0
    if p.kind in VALUK:
        wv = {r for r in p.writes if r[0] in "va"}
        ws = {r for r in p.writes if r[0] == "s"}
        if c.kind == "mfma" and wv & c.reads: d = max(d, 2)
        if p.kind == "trans" and c.kind in VALUK and c.kind != "trans" and wv & c.reads: d = max(d, 1)
        if p.kind == "dot" and (c.kind in VALUK or c.kind in VMEMK or c.kind == "ds") and wv & (c.reads | c.writes):
            same_c = c.kind == "dot" and c.text.split()[0] == p.text.split()[0] and not (wv & c.ab)
            if not same_c: d = max(d, 3)
        if c.kind == "readlane" and wv & c.reads: d = max(d, 1)
        if c.kind in ("dpp", "permlane") and wv & c.reads: d = max(d, 2)
        if ws:
            if (c.kind in VMEMK or c.kind == "smem") and ws & c.reads: d = max(d, 5)
            if c.kind in VALUK and ws & c.reads: d = max(d, 4 if c.kind == "readlane" else 2)
            if c.kind == "ctl" and "vcc" in c.text and ("s", 106) in ws: d = max(d, 1)
    if p.kind == "mfma":
        big = 12 if p.passes == 8 else 8
        mid = 10 if p.passes == 8 else 6
        if c.kind == "mfma":
            if p.writes & c.ab: d = max(d, big)
            if p.writes & set(c.srcc):
                if not (set(c.srcc) == p.writes and c.passes == p.passes): d = max(d, mid)
            elif p.writes & c.writes: d = max(d, mid)
        elif c.kind in VALUK or c.kind in VMEMK or c.kind == "ds":
            if p.writes & (c.reads | c.writes): d = max(d, big)
            if c.kind in VALUK and set(p.srcc) & c.writes: d = max(d, 7 if p.passes == 8 else 3)
    if p.kind == "salu" and ("s", 124) in p.writes and c.kind == "vdma": d = max(d, 1)
    if p.kind == "vstore" and p.srcc and set(p.srcc) & c.writes:
        d = max(d, 2 if c.kind in VALUK else 1)
    return d

def insert_nops(ops):
    res = []
    for o in ops:
        if o.kind == "label":
            res.append(o); continue
        dist = 0; need = 0
        for p in reversed(res):
            if p.kind == "label": continue
            nd = need_dist(p, o)
            if nd > dist: need = max(need, nd - dist)
            dist += p.cost if p.kind == "nop" else 1
            if dist >= 14: break
        while need > 0:
            k = min(need, 16)
            n = Op("s_nop %d" % (k - 1), "nop"); n.cost = k
            res.append(n); need -= k
        res.append(o)
    return res

def finalize(stream):
    ops = resolve_waits(stream.ops)
    ops = insert_nops(ops)
    return ops

def render(ops):
    out = []
    for o in ops:
        out.append(o.text if o.kind == "label" else "  " + o.text)
    return "\n".join(out)

def groups(ops):
    out = []
    for o in ops:
        if o.glue and out: out[-1].append(o)
        else: out.append([o])
    return out

def gcost(g):
    c = 0
    for o in g:
        if o.kind in VMEMK: c += 3
        elif o.kind == "label": c += 0
        else: c += o.cost
    return c

def spread(primary, secondary, lo=0.0, hi=1.0, unit="mfma"):
    P = groups(primary.ops); S = groups(secondary.ops)
    isanchor = (lambda g: any(o.kind == "mfma" for o in g)) if unit == "mfma" else (lambda g: g[0].kind not in ("label", "waitvm", "waitlgkm", "smemdone"))
    wts = [(sum((o.passes for o in g if o.kind == "mfma")) if unit == "mfma" else gcost(g)) if isanchor(g) else 0 for g in P]
    tot = float(sum(wts)); sc = float(sum(gcost(g) for g in S))
    out = Stream(); acc = 0; accs = 0; j = 0
    for g, w in zip(P, wts):
        out.ops.extend(g); acc += w
        if w == 0: continue
        frac = (acc / tot - lo) / max(hi - lo, 1e-9)
        while j < len(S) and accs + 0.5 * gcost(S[j]) <= frac * sc:
            out.ops.extend(S[j]); accs += gcost(S[j]); j += 1
    for g in S[j:]: out.ops.extend(g)
    return out
```

```python
import sys, math, struct
sys.path.insert(0, "gen")
from asmlib import *

NAME = "gated_mix__ssm_conv_h3__dense_activation_gelu__prompt"
STAMP = int(sys.argv[2]) if len(sys.argv) > 2 else 0
DBG = STAMP >= 3
if DBG: STAMP -= 2
OPT = dict(a.split("=") for a in sys.argv[3:])
def opt(k, d): return type(d)(OPT.get(k, d))
f2u = lambda f: struct.unpack("<I", struct.pack("<f", f))[0]

WS_FU = 0x1000
WS_FZ = 0x2000
WS_FH = 0x3000
WS_G  = 0x8000
WS_STAMP = 0x10000
WS_U  = 0x100000
WS_Z  = 0x300000
CP = 4224
WS_H  = 0x500000
CBS = 128 * 896
WS_SIZE = 0x1000000
TAG_INC = 0x9E3779B9
SLOT = 32768
L_HC = 114688; HC_SZ = 4128
L_UW = 131200; UW_SZ = 4624; UP = 1152
L_KS = 131200
L_VS = L_KS + 72 * 128
L_P0 = 149696
L_Y = 114688; Y_SZ = 10256
L_PB0 = 114688; PB_SZ = 8704
L_PB1 = 0
L_ZT = 149696
LDS_TOTAL = 163840
W2POS = [12, 13, 0, 1, 2, 3, 4, 5, 6, 7, 8, 9, 10, 11]

Q, K, V, SSM, W1, W2, OUT, WS = ["s[%d:%d]" % (b, b + 3) for b in range(8, 40, 4)]
WSP = "s[36:37]"
P_SHIFT, P_D, P_B1, P_B2, P_GATE = "s[46:47]", "s[50:51]", "s[56:57]", "s[60:61]", "s[62:63]"
sW, sX, sI, sA, sC, sRB128, sCB128, sRB64 = "s70", "s71", "s72", "s73", "s74", "s75", "s76", "s77"
sT0, sT1, sT2, sT3 = "s78", "s79", "s80", "s81"
sTAG = "s[82:83]"
sROT, sSPIN, sCH, sHB = "s84", "s85", "s86", "s87"
sXL, sWL, sW2L, sUW, sPO, sHC, sHSRC = "s88", "s89", "s3", "s4", "s5", "s6", "s7"
sC1 = "s[64:65]"
sST = "s[66:67]"
tXO = ["s40", "s41", "s42", "s43", "s44", "s45", "s48"]
tWO = ["s49", "s52", "s53", "s54", "s55", "s58", "s59"]
tCB = ["s%d" % i for i in range(90, 102)] + ["s68", "s69"]
sPOLL = 40

class VA:
    def __init__(self, lo, hi): self.n = lo; self.hi = hi
    def get(self, k=1, align=1):
        self.n = (self.n + align - 1) // align * align
        r = self.n; self.n += k
        assert self.n <= self.hi, "out of regs"
        return r
def vr(b, k=1): return "v%d" % b if k == 1 else "v[%d:%d]" % (b, b + k - 1)
def ar(b, k=1): return "a%d" % b if k == 1 else "a[%d:%d]" % (b, b + k - 1)

spins = Stream()
nstamp = [0]
g_stream = [None]
va = VA(0, 64); vb = VA(128, 254)
vTID = va.get(); vLANE = va.get(); vTAG = va.get(); vSTA = va.get()
vT = [va.get() for _ in range(8)]
L = vLANE

def stamp(s, rt=False):
    if not STAMP: return
    i = nstamp[0]; nstamp[0] += 1
    s.begin()
    s("%s %s" % ("s_memrealtime" if (rt or STAMP == 2) else "s_memtime", sST))
    s("s_waitcnt lgkmcnt(0)")
    s("v_writelane_b32 v%d, s66, %s" % (vSTA, "STAMPIDX" if i < 40 and s is not g_stream[0] else str(i)))
    s.end()

def slin(s, dst, terms, const=0, tmp=None):
    tmp = tmp or sT3
    first = True
    for reg, mult in terms:
        d = dst if first else tmp
        if mult == 1: src = reg
        else:
            if mult & (mult - 1) == 0: s("s_lshl_b32 %s, %s, %d" % (d, reg, mult.bit_length() - 1))
            else: s("s_mul_i32 %s, %s, %d" % (d, reg, mult))
            src = d
        if first:
            if src != dst: s("s_mov_b32 %s, %s" % (dst, src))
        else: s("s_add_u32 %s, %s, %s" % (dst, dst, src))
        first = False
    if const: s("s_add_u32 %s, %s, 0x%x" % (dst, dst, const))

def flag_store(s, vaddr, tagwait, off=0):
    s.wait_vm(tagwait)
    s.begin()
    s("s_mov_b64 exec, 1")
    s("buffer_store_dword v%d, v%d, %s, 0 offen offset:%d sc1" % (vTAG, vaddr, WS, off), tag="flag")
    s("s_mov_b64 exec, -1")
    s.end()

npoll = [0]
def spoll_issue(s, n, soff):
    s("s_load_dwordx%d s[%d:%d], %s, %s glc" % (n, sPOLL, sPOLL + n - 1, WSP, soff))
def spoll_check(s, n, soff, tag):
    s.begin()
    s("s_waitcnt lgkmcnt(0)")
    for i in range(0, n, 2):
        s("s_cmp_lg_u64 s[%d:%d], %s" % (sPOLL + i, sPOLL + i + 1, sTAG))
        s("s_cbranch_scc1 L_spin_%s" % tag)
    s("L_ok_%s:" % tag)
    s.end()
    t = spins
    t("L_spin_%s:" % tag)
    t("s_mov_b32 %s, 0" % sSPIN)
    t("v_min_u32 v254, %d, v%d" % (n - 1, L))
    t("v_lshl_add_u32 v254, v254, 2, %s" % soff)
    t("L_spin2_%s:" % tag)
    t("buffer_load_dword v255, v254, %s, 0 offen sc1" % WS)
    t("s_add_u32 %s, %s, 1" % (sSPIN, sSPIN))
    t("s_waitcnt vmcnt(0)")
    t("v_cmp_ne_u32 vcc, v255, v%d" % vTAG)
    if STAMP: t("v_writelane_b32 v%d, %s, %d" % (vSTA, sSPIN, 48 + npoll[0]))
    npoll[0] += 1
    t("s_cmp_gt_u32 %s, 0x40000" % sSPIN)
    t("s_cbranch_scc1 L_ok_%s" % tag)
    t("s_cbranch_vccz L_ok_%s" % tag)
    t("s_sleep 1")
    t("s_branch L_spin2_%s" % tag)
def gran_issue(s, vdst, vaddr, tag):
    s("buffer_load_dwordx2 %s, v%d, %s, 0 offen sc1" % (vr(vdst, 2), vaddr, WS), tag=tag)
def gran_check(s, vdst, vaddr, tag):
    s.wait_vm(tag)
    s.begin()
    s("v_cmp_ne_u32 vcc, v%d, v%d" % (vdst + 1, vTAG))
    s("s_cbranch_vccnz L_spin_%s" % tag)
    s("L_ok_%s:" % tag)
    s.end()
    t = spins
    t("L_spin_%s:" % tag)
    t("s_mov_b32 %s, 0" % sSPIN)
    t("L_spin2_%s:" % tag)
    t("s_sleep 1")
    gran_issue(t, vdst, vaddr, tag)
    t("s_add_u32 %s, %s, 1" % (sSPIN, sSPIN))
    t("s_waitcnt vmcnt(0)")
    t("v_cmp_ne_u32 vcc, v%d, v%d" % (vdst + 1, vTAG))
    if STAMP: t("v_writelane_b32 v%d, %s, %d" % (vSTA, sSPIN, 48 + npoll[0]))
    npoll[0] += 1
    t("s_cmp_gt_u32 %s, 0x40000" % sSPIN)
    t("s_cbranch_scc1 L_ok_%s" % tag)
    t("s_cbranch_vccnz L_spin2_%s" % tag)
    t("s_branch L_ok_%s" % tag)

def srd(s, name, lo, nbytes):
    b = int(name[2:].split(":")[0])
    s("s_mov_b32 s%d, s%d" % (b, lo)); s("s_mov_b32 s%d, s%d" % (b + 1, lo + 1))
    s("s_mov_b32 s%d, 0x%x" % (b + 2, nbytes)); s("s_mov_b32 s%d, 0x20000" % (b + 3))

m = Stream()
if STAMP: m("s_memrealtime s[6:7]")
m("s_load_dwordx16 s[40:55], s[0:1], 0")
m("s_load_dwordx8 s[56:63], s[0:1], 64")
m("s_load_dwordx4 s[64:67], s[0:1], 96")
m("s_load_dwordx2 s[68:69], s[0:1], 112")
m("s_cmp_ge_u32 s2, 256")
m("s_cbranch_scc1 L_end")
m("s_getpc_b64 s[4:5]")
m("v_lshlrev_b32 v%d, 7, v0" % vT[0])
m("v_min_u32 v%d, CODE_BYTES, v%d" % (vT[0], vT[0]))
m("global_load_dword v255, v%d, s[4:5]" % vT[0], tag="cpf")
m("v_mov_b32 v%d, 0" % vSTA)
m("v_and_b32 v%d, 63, v0" % vLANE)
m("v_lshrrev_b32 v%d, 6, v0" % vT[2])
m("v_readfirstlane_b32 %s, v%d" % (sW, vT[2]))
m("s_and_b32 %s, s2, 7" % sX)
m("s_lshr_b32 %s, s2, 3" % sI)
m("s_mul_i32 %s, %s, 37" % (sA, sI)); m("s_lshr_b32 %s, %s, 8" % (sA, sA))
m("s_mul_i32 %s, %s, 7" % (sC, sA)); m("s_sub_u32 %s, %s, %s" % (sC, sI, sC))
m("s_lshr_b32 %s, %s, 1" % (sT0, sX)); slin(m, sRB128, [(sT0, 4), (sA, 1)])
m("s_and_b32 %s, %s, 1" % (sT0, sX)); slin(m, sCB128, [(sT0, 7), (sC, 1)])
slin(m, sRB64, [(sX, 4), (sA, 1)])
slin(m, sROT, [(sA, 2), (sC, 1)])
m("s_cmp_ge_u32 %s, 7" % sROT); m("s_cselect_b32 %s, 7, 0" % sT0); m("s_sub_u32 %s, %s, %s" % (sROT, sROT, sT0))
vL8 = va.get(); vLd8 = va.get()
m("v_and_b32 v%d, 7, v%d" % (vL8, L)); m("v_lshrrev_b32 v%d, 3, v%d" % (vLd8, L))
vXV = [va.get() for _ in range(4)]
vWV = [va.get() for _ in range(4)]
slin(m, sT0, [(sRB128, 128), (sW, 32)])
m("v_add_u32 v%d, %s, v%d" % (vT[0], sT0, vLd8))
m("v_mul_u32_u24 v%d, 896, v%d" % (vT[0], vT[0]))
vG4 = va.get()
m("v_lshrrev_b32 v%d, 4, v%d" % (vG4, L))
m("v_xor_b32 v%d, v%d, v%d" % (vT[3], vL8, vG4))
m("v_lshl_add_u32 v%d, v%d, 4, v%d" % (vXV[0], vT[3], vT[0]))
m("v_xor_b32 v%d, 4, v%d" % (vT[3], vT[3]))
m("v_lshl_add_u32 v%d, v%d, 4, v%d" % (vXV[1], vT[3], vT[0]))
m("v_add_u32 v%d, %d, v%d" % (vXV[2], 2 * 6144, vXV[0]))
m("v_add_u32 v%d, %d, v%d" % (vXV[3], 3 * 6144, vXV[1]))
m("v_add_u32 v%d, %d, v%d" % (vXV[1], 6144, vXV[1]))
vSWZ = va.get()
m("v_and_b32 v%d, 1, v%d" % (vT[3], vG4)); m("v_lshlrev_b32 v%d, 2, v%d" % (vT[3], vT[3]))
m("v_xor_b32 v%d, v%d, v%d" % (vT[3], vL8, vT[3])); m("v_lshlrev_b32 v%d, 4, v%d" % (vSWZ, vT[3]))
m("s_lshl_b32 %s, %s, 4" % (sT0, sW))
m("v_add_u32 v%d, %s, v%d" % (vT[0], sT0, vLd8))
m("v_mul_u32_u24 v%d, 3584, v%d" % (vT[0], vT[0]))
m("s_lshl_b32 %s, %s, 8" % (sT0, sCB128))
m("v_add3_u32 v%d, v%d, v%d, %s" % (vWV[0], vT[0], vSWZ, sT0))
m("v_add_u32 v%d, %d, v%d" % (vWV[1], 8 * 3584 - 1024, vWV[0]))
m("v_add_u32 v%d, 128, v%d" % (vWV[2], vWV[0]))
m("v_add_u32 v%d, 128, v%d" % (vWV[3], vWV[1]))
m("s_lshl_b32 %s, %s, 12" % (sXL, sW))
m("s_add_u32 %s, %s, 16384" % (sWL, sXL))
m("s_waitcnt lgkmcnt(0)")
NB = 2048 * 448 * 2
srd(m, Q, 40, NB); srd(m, W1, 54, 448 * 1792 * 2); srd(m, WS, 68, WS_SIZE); srd(m, W2, 58, 448 * 1792 * 2)
if DBG: m("v_mov_b32 v62, s66"); m("v_mov_b32 v63, s67")
stamp(m, rt=True)
stamp(m)
if STAMP: m("v_writelane_b32 v%d, s6, 41" % vSTA)
m("s_cmp_ge_u32 %s, 28" % sI)
m("s_cbranch_scc1 L_spare")
m("s_lshl_b32 %s, %s, 7" % (sT1, sROT)); m("s_mul_i32 %s, %s, %d" % (sT2, sROT, 64 * 3584))

def st_groups(t, xo=None, wo=None):
    gs = []
    slot = (t % 4) * SLOT
    for q in range(4):
        s = Stream(); s.begin()
        if q == 0: s("s_add_u32 m0, %s, %d" % (sXL, slot))
        s("buffer_load_dwordx4 v%d, %s, %s offen offset:%d lds" % (vXV[q], Q, xo or tXO[t], 1024 * q), tag="st%d" % t)
        s.end(); gs.append(s)
    for q in range(4):
        s = Stream(); s.begin()
        if q in (0, 2): s("s_add_u32 m0, %s, %d" % (sWL, slot + (2048 if q == 2 else 0)))
        s("buffer_load_dwordx4 v%d, %s, %s offen offset:%d lds" % (vWV[q], W1, wo or tWO[t], 1024 * (q & 1)), tag="st%d" % t)
        s.end(); gs.append(s)
    return gs
def st_issue(s, t, part="xw", **kw):
    gs = st_groups(t, **kw)
    for p_ in part:
        for g_ in (gs[:4] if p_ == "x" else gs[4:]): s.extend(g_)
st_issue(m, 0, xo=sT1, wo=sT2)
srd(m, K, 42, NB); srd(m, V, 44, NB); srd(m, SSM, 48, NB); srd(m, OUT, 64, NB)
m("s_mov_b32 %s, %s" % (tXO[0], sT1)); m("s_mov_b32 %s, %s" % (tWO[0], sT2))
for t in range(1, 7):
    if t < 4:
        m("s_add_u32 %s, %s, %d" % (sT0, sA, t)); m("s_and_b32 %s, %s, 3" % (sT0, sT0)); add = 0
    else:
        m("s_add_u32 %s, %s, %d" % (sT0, sA, t - 4)); m("s_cmp_ge_u32 %s, 3" % sT0); m("s_cselect_b32 %s, 3, 0" % sT1); m("s_sub_u32 %s, %s, %s" % (sT0, sT0, sT1)); add = 1
    m("s_lshl_b32 %s, %s, 1" % (sT0, sT0)); m("s_add_u32 %s, %s, %s" % (sT0, sT0, sC))
    if add: m("s_add_u32 %s, %s, 1" % (sT0, sT0))
    m("s_cmp_ge_u32 %s, 7" % sT0); m("s_cselect_b32 %s, 7, 0" % sT1); m("s_sub_u32 %s, %s, %s" % (sT0, sT0, sT1))
    m("s_lshl_b32 %s, %s, 7" % (tXO[t], sT0)); m("s_mul_i32 %s, %s, %d" % (tWO[t], sT0, 64 * 3584))
m("v_mov_b32 v%d, 0" % vT[0])
m("buffer_load_dword v%d, v%d, %s, 0 offen sc1" % (vTAG, vT[0], WS), tag="sm")
if opt("tlb", 0):
    m("v_min_u32 v%d, 11, v%d" % (vT[1], L))
    m("v_mul_u32_u24 v%d, %d, v%d" % (vT[1], 8 * CBS, vT[1]))
    m("v_add_u32 v%d, 0x%x, v%d" % (vT[1], WS_H + 98304, vT[1]))
    m("v_writelane_b32 v%d, 0x2f0000, 63" % vT[1] if False else "s_mov_b32 %s, 0x2f0000" % sT0)
    m("v_writelane_b32 v%d, %s, 63" % (vT[1], sT0))
    m("buffer_load_dword v254, v%d, %s, 0 offen" % (vT[1], WS), tag="sm")
    m("buffer_load_dword v254, v%d, %s, 0 offen" % (vT[0], W2), tag="sm")
    m("buffer_load_dword v254, v%d, %s, 0 offen" % (vT[0], OUT), tag="sm")
    m("global_load_dword v254, v%d, %s" % (vT[0], P_B2), tag="sm")
vB1 = vb.get(4, 4); vTP = vb.get(2, 2)
vS32 = va.get(); vHH = va.get(); vL15 = va.get()
m("v_and_b32 v%d, 31, v%d" % (vS32, L)); m("v_lshrrev_b32 v%d, 5, v%d" % (vHH, L)); m("v_and_b32 v%d, 15, v%d" % (vL15, L))
m("s_and_b32 %s, %s, 1" % (sT1, sW)); slin(m, sT0, [(sCB128, 256), (sT1, 128)])
m("v_lshl_add_u32 v%d, v%d, 1, %s" % (vT[1], vS32, sT0))
m("global_load_ushort v%d, v%d, %s" % (vB1, vT[1], P_B1), tag="sm")
m("global_load_ushort v%d, v%d, %s offset:64" % (vB1 + 2, vT[1], P_B1), tag="sm")
slin(m, sT0, [(sC, 512), (sW, 128)])
m("v_lshl_add_u32 v%d, v%d, 3, %s" % (vT[1], vL15, sT0))
m("global_load_dwordx2 %s, v%d, %s" % (vr(vTP, 2), vT[1], P_SHIFT), tag="sm")
vHP = va.get(2, 2); vDP = va.get()
m("s_lshr_b32 %s, %s, 1" % (sT0, sW)); slin(m, sCH, [(sC, 64), (sRB64, 2), (sT0, 1)])
m("s_lshl_b32 %s, %s, 1" % (sT0, sCH))
m("v_mov_b32 v%d, %s" % (vT[1], sT0))
m("global_load_ushort v%d, v%d, %s" % (vDP, vT[1], P_D), tag="sm")
r2 = Stream()
vKV = vb.get(); vKH = vb.get()
slin(m, sT0, [(sRB64, 64), (sW, 16)])
m("v_add_u32 v%d, %s, v%d" % (vT[0], sT0, vLd8))
m("v_mul_u32_u24 v%d, 896, v%d" % (vT[0], vT[0]))
m("s_lshl_b32 %s, %s, 7" % (sT1, sC))
m("v_lshl_add_u32 v%d, v%d, 4, %s" % (vT[1], vL8, sT1))
m("v_add_u32 v%d, v%d, v%d" % (vKV, vT[0], vT[1]))
m("s_mul_i32 %s, %s, %d" % (sT0, sW, 16 * 896)); m("s_add_u32 %s, %s, %d" % (sT0, sT0, 8 * 896))
m("v_subrev_u32 v%d, %s, v%d" % (vKH, sT0, vKV))
m("s_mov_b32 %s, %d" % (sPO, 8 * 896 - 1024))
m("s_lshl_b32 %s, %s, 11" % (sW2L, sW))
for src, base in ((K, L_KS + 1024), (V, L_VS)):
    r2.begin(); r2("s_add_u32 m0, %s, %d" % (sW2L, base))
    r2("buffer_load_dwordx4 v%d, %s, 0 offen lds" % (vKV, src), tag="kv"); r2.end()
    r2("buffer_load_dwordx4 v%d, %s, %s offen offset:1024 lds" % (vKV, src, sPO), tag="kv")
r2.begin()
r2("s_mov_b32 m0, %d" % L_KS)
r2("s_mov_b32 exec_lo, 0")
r2("buffer_load_dwordx4 v%d, %s, 0 offen lds" % (vKH, K), tag="kv")
r2("s_mov_b32 exec_lo, -1")
r2.end()
r2b = Stream()
st_issue(r2b, 4, "w")
r2b("s_lshl_b32 %s, %s, 12" % (sHSRC, sCH))
r2b("v_lshl_add_u32 v%d, v%d, 7, %s" % (vT[7], vS32, sHSRC))
r2b("buffer_load_dwordx2 %s, v%d, %s, 0 offen" % (vr(vHP, 2), vT[7], SSM), tag="hp")

su = Stream()
su("v_mov_b32 v%d, 0" % (vB1 + 1)); su("v_mov_b32 v%d, 0" % (vB1 + 3))
vXA = [va.get() for _ in range(4)]
vWA = [va.get() for _ in range(2)]
vW2R = [va.get() for _ in range(4)]
su("v_bfe_u32 v%d, v%d, 1, 3" % (vT[0], L))
su("v_xor_b32 v%d, v%d, v%d" % (vT[0], vT[0], vHH))
su("v_lshlrev_b32 v%d, 4, v%d" % (vT[0], vT[0]))
su("v_lshl_add_u32 v%d, v%d, 7, v%d" % (vT[0], vS32, vT[0]))
su("s_lshr_b32 %s, %s, 1" % (sT1, sW)); su("s_lshl_b32 %s, %s, 13" % (sT1, sT1))
for ks in range(4):
    su("v_xor_b32 v%d, %d, v%d" % (vXA[ks], 32 * ks, vT[0]))
    su("v_add_u32 v%d, %s, v%d" % (vXA[ks], sT1, vXA[ks]))
vC4 = va.get(); vR4 = va.get()
su("v_and_b32 v%d, 3, v%d" % (vC4, L)); su("v_bfe_u32 v%d, v%d, 2, 2" % (vR4, L))
su("v_bfe_u32 v%d, v%d, 4, 1" % (vT[0], L))
su("v_lshlrev_b32 v%d, 5, v%d" % (vT[0], vT[0]))
su("v_lshl_add_u32 v%d, v%d, 3, v%d" % (vT[0], vC4, vT[0]))
su("v_lshl_add_u32 v%d, v%d, 7, v%d" % (vT[0], vR4, vT[0]))
su("v_bfe_u32 v%d, v%d, 3, 1" % (vT[1], L))
su("v_lshl_add_u32 v%d, v%d, 6, v%d" % (vT[0], vT[1], vT[0]))
su("v_lshl_add_u32 v%d, v%d, 10, v%d" % (vWA[0], vHH, vT[0]))
su("s_and_b32 %s, %s, 1" % (sT1, sW)); slin(su, sT1, [(sT1, 2048)], 16384)
su("v_add_u32 v%d, %s, v%d" % (vWA[0], sT1, vWA[0]))
su("v_xor_b32 v%d, 64, v%d" % (vWA[1], vWA[0]))
su("v_lshl_add_u32 v%d, v%d, 9, v%d" % (vW2R[0], vHH, vT[0]))
su("v_add_u32 v%d, %s, v%d" % (vW2R[0], sW2L, vW2R[0]))
su("v_xor_b32 v%d, 64, v%d" % (vW2R[1], vW2R[0]))
su("v_add_u32 v%d, 0x10000, v%d" % (vW2R[2], vW2R[0])); su("v_add_u32 v%d, 0x10000, v%d" % (vW2R[3], vW2R[1]))
vZ4 = va.get(4, 4)
for i in range(4): su("v_mov_b32 v%d, 0" % (vZ4 + i))
slin(su, sUW, [(sW, UW_SZ)], L_UW)
vACC = [64 + 16 * i for i in range(4)]
vONE = vb.get(8, 4)
for i in range(8): su("v_mov_b32 v%d, 0" % (vONE + i))
su.begin()
su("v_cmp_gt_u32 vcc, 32, v%d" % L)
su("v_mov_b32 v%d, 0x3f80" % vT[0])
su("v_cndmask_b32 v%d, 0, v%d, vcc" % (vONE, vT[0]))
su.end()
su("v_mov_b32 v%d, v%d" % (vONE + 6, vONE))
vL16 = va.get()
su("v_lshlrev_b32 v%d, 4, v%d" % (vL16, L))
slin(su, sHC, [(sW, HC_SZ)], L_HC)
su("s_mul_i32 %s, %s, %d" % (tCB[0], sROT, 2 * CBS))
for j in range(1, 14):
    su.begin()
    su("s_add_u32 %s, %s, %d" % (tCB[j], tCB[j - 1], CBS)); su("s_cmp_ge_u32 %s, %d" % (tCB[j], 14 * CBS)); su("s_cselect_b32 %s, 0, %s" % (tCB[j], tCB[j]))
    su.end()
vW2V = [va.get() for _ in range(4)]
su("v_mul_u32_u24 v%d, 896, v%d" % (vT[0], vLd8))
slin(su, sT1, [(sC, 128), (sW, 16 * 896)])
su("v_add3_u32 v%d, v%d, v%d, %s" % (vW2V[0], vT[0], vSWZ, sT1))
su("v_add_u32 v%d, %d, v%d" % (vW2V[1], 8 * 896 - 1024, vW2V[0]))
su("v_add_u32 v%d, %d, v%d" % (vW2V[2], 64 * 896, vW2V[0]))
su("v_add_u32 v%d, %d, v%d" % (vW2V[3], 64 * 896, vW2V[1]))
c_ = math.sqrt(2.0 / math.pi) * 2.0 * math.log2(math.e)
su("s_mov_b32 s64, 0x%x" % f2u(-c_ * 0.044715)); su("s_mov_b32 s65, 0x%x" % f2u(-c_ * 0.044715))
vC0 = va.get(2, 2)
su("v_mov_b32 v%d, 0x%x" % (vC0, f2u(-c_))); su("v_mov_b32 v%d, 0x%x" % (vC0 + 1, f2u(-c_)))
su("s_mul_i32 %s, %s, 43" % (sT1, sRB128)); su("s_lshr_b32 %s, %s, 7" % (sT1, sT1))
slin(su, sHB, [(sT1, 14 * CBS - 3 * 32768), (sRB128, 32768), (sCB128, CBS), (sW, 8192)], WS_H)
vFHA = va.get(); vFUA = va.get()
su("s_lshr_b32 %s, %s, 1" % (sT1, sW)); su("s_and_b32 %s, %s, 1" % (sT2, sW))
slin(su, sT0, [(sRB128, 512), (sT1, 256), (sCB128, 8), (sT2, 4)], WS_FH)
su("v_mov_b32 v%d, %s" % (vFHA, sT0))
slin(su, sT0, [(sC, 512), (sW, 128), (sRB64, 4)], WS_FU)
su("v_mov_b32 v%d, %s" % (vFUA, sT0))
vP0R = vb.get(); vP0W = vb.get(); vP0B = vb.get(); vP0S = vb.get()
su("v_lshl_add_u32 v%d, v%d, 4, v%d" % (vT[0], vG4, vR4))
su("v_lshlrev_b32 v%d, 7, v%d" % (vT[0], vT[0]))
su("v_lshl_add_u32 v%d, v%d, 3, v%d" % (vT[0], vC4, vT[0]))
slin(su, sT0, [(sW, 32)], L_KS + 512)
su("v_add_u32 v%d, %s, v%d" % (vP0R, sT0, vT[0]))
slin(su, sT0, [(sW, 2304)], L_P0)
su("v_mul_u32_u24 v%d, 144, v%d" % (vT[0], vL15)); su("v_lshl_add_u32 v%d, v%d, 5, v%d" % (vT[0], vG4, vT[0]))
su("v_add_u32 v%d, %s, v%d" % (vP0W, sT0, vT[0]))
su("v_mul_u32_u24 v%d, 144, v%d" % (vT[0], vLd8)); su("v_lshl_add_u32 v%d, v%d, 4, v%d" % (vT[0], vL8, vT[0]))
su("v_add_u32 v%d, %s, v%d" % (vP0B, sT0, vT[0]))
slin(su, sT0, [(sC, 64 * CP), (sW, 16 * CP), (sRB64, 128)], WS_U)
su("v_mul_u32_u24 v%d, %d, v%d" % (vT[0], CP, vLd8)); su("v_lshl_add_u32 v%d, v%d, 4, v%d" % (vT[0], vL8, vT[0]))
su("v_add_u32 v%d, %s, v%d" % (vP0S, sT0, vT[0]))
vCA = va.get(); vCB = va.get()
su("v_sub_u32 v%d, v%d, v%d" % (vT[0], vC4, vR4)); su("v_lshlrev_b32 v%d, 3, v%d" % (vT[0], vT[0]))
su("v_lshlrev_b32 v%d, 6, v%d" % (vT[1], vG4)); su("v_sub_u32 v%d, v%d, v%d" % (vT[0], vT[0], vT[1]))
su("s_lshr_b32 %s, %s, 1" % (sT1, sW)); slin(su, sT1, [(sT1, 2 * HC_SZ)], L_HC + 216)
su("v_add_u32 v%d, %s, v%d" % (vCA, sT1, vT[0]))
su("v_lshlrev_b32 v%d, 3, v%d" % (vT[1], vL15))
su("v_lshl_add_u32 v%d, v%d, 4, v%d" % (vT[1], vG4, vT[1]))
su("v_and_b32 v%d, 1, v%d" % (vT[0], L)); su("v_xor_b32 v%d, 1, v%d" % (vT[0], vT[0]))
su("v_mul_u32_u24 v%d, %d, v%d" % (vT[0], UP + 8, vT[0]))
su("v_add3_u32 v%d, v%d, v%d, %s" % (vCB, vT[0], vT[1], sUW))
su("v_add_u32 v%d, 8, v%d" % (vCB, vCB))
m.extend(su)
stamp(m)
st_issue(m, 1)
stamp(m)

vKD = vb.get(10, 2)
vVD = vb.get(8, 2)
vKO = vb.get(10, 2)
vKS = vb.get(16, 4); vVF = vb.get(16, 4); vTR = vb.get(2, 2); vUO = vb.get(8, 4)
p0r = Stream()
for i in range(5): p0r("ds_read_b64_tr_b16 %s, v%d offset:%d" % (vr(vKD + 2 * i, 2), vP0R, 512 * i), tag="p0r")
for i in range(4): p0r("ds_read_b64_tr_b16 %s, v%d offset:%d" % (vr(vVD + 2 * i, 2), vP0R, L_VS - L_KS - 512 + 512 * i), tag="p0r")
p0 = Stream()
p0("v_alignbit_b32 v%d, v%d, v%d, 16" % (vTR, vTP, vTP))
p0("v_alignbit_b32 v%d, v%d, v%d, 16" % (vTR + 1, vTP + 1, vTP + 1))
p0.wait_lgkm("p0r")
for j in range(9): p0("v_alignbit_b32 v%d, v%d, v%d, 16" % (vKO + j, vKD + j + 1, vKD + j))
for j in range(8):
    p0("v_lshlrev_b32 v%d, 16, v%d" % (vVF + 2 * j, vVD + j)); p0("v_and_b32 v%d, 0xffff0000, v%d" % (vVF + 2 * j + 1, vVD + j))
for s_ in range(16):
    hi = (vKD + (s_ + 3) // 2) if s_ % 2 else (vKO + (s_ + 2) // 2)
    p0("v_dot2_f32_bf16 v%d, v%d, v%d, 0" % (vKS + s_, hi, vTR))
for s_ in range(16):
    lo = (vKD + (s_ + 1) // 2) if s_ % 2 else (vKO + s_ // 2)
    p0("v_dot2_f32_bf16 v%d, v%d, v%d, v%d" % (vKS + s_, lo, vTR + 1, vKS + s_))
for j in range(8): p0("v_pk_mul_f32 %s, %s, %s" % (vr(vKS + 2 * j, 2), vr(vKS + 2 * j, 2), vr(vVF + 2 * j, 2)))
for p_ in range(4):
    for hf in range(2): p0("v_cvt_pk_bf16_f32 v%d, v%d, v%d" % (vUO + 2 * p_ + hf, vKS + p_ + 8 * hf, vKS + p_ + 8 * hf + 4))
p0("ds_write_b128 v%d, %s" % (vP0W, vr(vUO, 4)), tag="p0w")
p0("ds_write_b128 v%d, %s offset:16" % (vP0W, vr(vUO + 4, 4)), tag="p0w")
p0b = Stream()
p0b.wait_lgkm("p0w")
p0b("ds_read_b128 %s, v%d" % (vr(vKS, 4), vP0B), tag="p0b")
p0b("ds_read_b128 %s, v%d offset:1152" % (vr(vKS + 4, 4), vP0B), tag="p0b")
p0b("s_mov_b32 %s, %d" % (sPO, 8 * CP))
p0c = Stream()
p0c.wait_lgkm("p0b")
p0c("buffer_store_dwordx4 %s, v%d, %s, 0 offen sc1" % (vr(vKS, 4), vP0S, WS), tag="ust")
p0c("buffer_store_dwordx4 %s, v%d, %s, %s offen sc1" % (vr(vKS + 4, 4), vP0S, WS, sPO), tag="ust")

aF = 0
def g1_reads(kap):
    t, ks = kap // 4, kap % 4
    slot = (t % 4) * SLOT
    b = aF + 16 * (kap % 2)
    so = slot - (65536 if slot >= 65536 else 0)
    gs = [Stream(), Stream(), Stream()]
    for ft in range(2):
        g_ = gs[2 * ft]
        g_("ds_read_b64_tr_b16 %s, v%d offset:%d" % (ar(b + 8 + 4 * ft, 2), vWA[ft], so + ks * 4096), tag="f%d_%d" % (kap, ft))
        g_("ds_read_b64_tr_b16 %s, v%d offset:%d" % (ar(b + 8 + 4 * ft + 2, 2), vWA[ft], so + ks * 4096 + 512), tag="f%d_%d" % (kap, ft))
        gs[1]("ds_read_b128 %s, v%d offset:%d" % (ar(b + 4 * ft, 4), vXA[ks], so + 4096 * ft), tag="f%d_0" % kap)
    return gs
def addr_shift(s, delta):
    for r in vXA + vWA:
        s("v_add_u32 v%d, 0x%x, v%d" % (r, delta & 0xffffffff, r))
def g1_mf(s, kap, i, ft):
    b = aF + 16 * (kap % 2)
    c = "0" if kap == 0 else vr(vACC[2 * i + ft], 16)
    s("v_mfma_f32_32x32x16_bf16 %s, %s, %s, %s" % (vr(vACC[2 * i + ft], 16), ar(b + 8 + 4 * ft, 4), ar(b + 4 * i, 4), c))
def g1_kstep(s, kap, pre=None):
    rd = g1_reads(kap + 1) if kap + 1 < 28 else [Stream(), Stream(), Stream()]
    if pre is not None: s.wait_lgkm("f%d_1" % kap)
    else: s.wait_lgkm("f%d_0" % kap)
    g1_mf(s, kap, 0, 0)
    if pre is not None: s.extend(pre)
    s.extend(rd[0])
    g1_mf(s, kap, 1, 0)
    s.extend(rd[1])
    s.wait_lgkm("f%d_1" % kap)
    g1_mf(s, kap, 0, 1)
    s.extend(rd[2])
    g1_mf(s, kap, 1, 1)

def w2_issue(s, half, j):
    for q in range(2):
        s.begin()
        if q == 0: s("s_add_u32 m0, %s, %d" % (sW2L, 8192 * W2POS[j]))
        s("buffer_load_dwordx4 v%d, %s, %s offen offset:%d lds" % (vW2V[2 * half + q], W2, tCB[j], 1024 * q), tag="w2_%d_%d" % (half, j))
        s.end()
aW2 = [128, 0]
def w2_reads(s, half, j):
    off = 8192 * W2POS[j]; hi = off >= 65536; off -= 65536 * hi
    for t in range(2):
        b = aW2[half] + 8 * j + 4 * t
        s("ds_read_b64_tr_b16 %s, v%d offset:%d" % (ar(b, 2), vW2R[2 * hi + t], off), tag="w2r%d_%d" % (half, j))
        s("ds_read_b64_tr_b16 %s, v%d offset:%d" % (ar(b + 2, 2), vW2R[2 * hi + t], off + 1024), tag="w2r%d_%d" % (half, j))

hc = Stream()
hc("s_and_b32 %s, %s, 1" % (sT0, sW)); hc("s_lshl_b32 %s, %s, 1" % (sT1, sT0))
hc("s_add_u32 %s, %s, 8" % (sHSRC, sHSRC)); hc("s_sub_u32 %s, %s, %s" % (sHSRC, sHSRC, sT1))
for q in range(4):
    hc.begin()
    if q == 0: hc("s_add_u32 m0, %s, 32" % sHC)
    hc("buffer_load_dwordx4 v%d, %s, %s offen offset:%d lds" % (vL16, SSM, sHSRC, 1024 * q), tag="hc")
    hc.end()
hc("v_lshlrev_b32 v%d, 16, v%d" % (vT[0], vHP)); hc("v_lshlrev_b32 v%d, 16, v%d" % (vT[1], vDP))
hc("v_add_f32 v%d, v%d, v%d" % (vT[0], vT[0], vT[1]))
hc("v_and_b32 v%d, 0xffff0000, v%d" % (vT[1], vHP))
hc("v_cvt_pk_bf16_f32 v%d, v%d, v%d" % (vHP, vT[0], vT[1]))
hc("s_lshl_b32 %s, %s, 4" % (sT0, sT0))
hc("v_lshlrev_b64 %s, %s, %s" % (vr(vT[2], 2), sT0, vr(vHP, 2)))
hc("v_mov_b32 v%d, 0" % vT[0]); hc("v_mov_b32 v%d, 0" % vT[1])
hc("v_mov_b32 v%d, %s" % (vT[4], sHC))
hc.begin()
hc("s_mov_b64 exec, 1")
hc("ds_write_b128 v%d, %s" % (vT[4], vr(vZ4, 4)), tag="z0")
hc("ds_write_b128 v%d, %s offset:16" % (vT[4], vr(vT[0], 4)), tag="z0")
hc("s_mov_b64 exec, -1")
hc.end()
uz = Stream()
uz("v_mul_u32_u24 v%d, 57, v%d" % (vT[5], L)); uz("v_lshrrev_b32 v%d, 9, v%d" % (vT[5], vT[5]))
uz("v_mul_u32_u24 v%d, %d, v%d" % (vT[5], UP - 144, vT[5]))
uz("v_add3_u32 v%d, v%d, v%d, %s" % (vT[5], vT[5], vL16, sUW))
uz.begin()
uz("s_mov_b32 exec_hi, 15")
uz("ds_write_b128 v%d, %s" % (vT[5], vr(vZ4, 4)), tag="z0")
uz("s_mov_b64 exec, -1")
uz.end()

fill = {t: Stream() for t in range(7)}
st_issue(fill[0], 2)
fill[1].extend(r2); st_issue(fill[1], 3, "x")
st_issue(fill[2], 3, "w"); fill[2].extend(r2b)
st_issue(fill[3], 4, "x"); st_issue(fill[3], 5)
st_issue(fill[4], 6); fill[4].extend(uz); flag_store(fill[4], vFUA, "ust")
fill[5].extend(hc); w2_issue(fill[5], 0, 0); w2_issue(fill[5], 0, 1)
for j in range(2, 6): w2_issue(fill[6], 0, j)
p0pre = Stream()
for i in range(2):
    for ft in range(2):
        p0pre("v_mfma_f32_32x32x16_bf16 %s, %s, %s, %s" % (vr(vACC[2 * i + ft], 16), vr(vB1, 4), vr(vONE + 4 * ft, 4), vr(vACC[2 * i + ft], 16)))
p0pre("v_add_u32 v%d, 0x%x, v%d" % (vTAG, TAG_INC, vTAG))
stamp(p0pre)
p0pre.wait_vm("kv")
p0pre("s_barrier")
stamp(p0pre)
p0pre.extend(p0r)
p0pre("v_readfirstlane_b32 s82, v%d" % vTAG); p0pre("v_readfirstlane_b32 s83, v%d" % vTAG)
p0pre.extend(p0); p0pre.extend(p0b); p0pre.extend(p0c)
stamp(p0pre)
def bar(t):
    b_ = Stream()
    if opt("fine", 0): stamp(b_)
    if t < 7: b_.wait_vm("st%d" % t)
    else: b_.wait_vm("hc")
    if opt("fine", 0): stamp(b_)
    b_("s_barrier")
    if opt("fine", 0): stamp(b_)
    if t in (2, 4, 6): addr_shift(b_, 65536 if t in (2, 6) else -65536)
    return b_
m.extend(bar(0))
for g_ in g1_reads(0): m.extend(g_)
for t in range(7):
    s = Stream()
    if t > 0: g1_kstep(s, 4 * t - 1, bar(t))
    for ks in range(3): g1_kstep(s, 4 * t + ks)
    m.extend(spread(s, fill[t], 0.1 if t > 0 else 0.0, 1.0))
    if t == 2: m.extend(p0pre)
g1_kstep(m, 27, bar(7))
stamp(m)

vb = VA(128, 254)
vGT = vb.get(16, 4); vHO = vb.get(8, 4); vUL = vb.get(8, 4)
def gelu(i):
    ge = Stream()
    n = 0
    for ft in range(2):
        for hf in range(2):
            x0 = vACC[2 * i + ft] + 8 * hf
            T = vGT + 8 * (n % 2); ho = vHO + 4 * (n % 2); n += 1
            for j in range(4): ge("v_pk_mul_f32 %s, %s, %s" % (vr(T + 2 * j, 2), vr(x0 + 2 * j, 2), vr(x0 + 2 * j, 2)))
            for j in range(4): ge("v_pk_fma_f32 %s, %s, %s, %s" % (vr(T + 2 * j, 2), vr(T + 2 * j, 2), sC1, vr(vC0, 2)))
            for j in range(4): ge("v_pk_mul_f32 %s, %s, %s" % (vr(T + 2 * j, 2), vr(T + 2 * j, 2), vr(x0 + 2 * j, 2)))
            for j in range(8): ge("v_exp_f32 v%d, v%d" % (T + j, T + j))
            for j in range(4): ge("v_pk_add_f32 %s, %s, 1.0 op_sel_hi:[1,0]" % (vr(T + 2 * j, 2), vr(T + 2 * j, 2)))
            for j in range(8): ge("v_rcp_f32 v%d, v%d" % (T + j, T + j))
            for j in range(4): ge("v_pk_mul_f32 %s, %s, %s" % (vr(T + 2 * j, 2), vr(T + 2 * j, 2), vr(x0 + 2 * j, 2)))
            for j in range(4): ge("v_cvt_pk_bf16_f32 v%d, v%d, v%d" % (ho + j, T + 2 * j, T + 2 * j + 1))
            ge("buffer_store_dwordx4 %s, v%d, %s, %s offen offset:%d sc1" % (vr(ho, 4), vL16, WS, sHB, 1024 * (2 * ft + hf)), tag="hst%d" % i)
    if i == 0: ge("s_add_u32 %s, %s, 4096" % (sHB, sHB))
    return ge
gf = Stream()
gf("s_lshr_b32 %s, %s, 3" % (sT0, sRB64)); slin(gf, sPO, [(sC, 512), (sT0, 128), (sW, 32)], WS_FU)
spoll_issue(gf, 8, sPO)
for j in range(6, 14): w2_issue(gf, 0, j)
gf("v_lshlrev_b32 v%d, 5, v%d" % (vT[1], L))
gf("s_and_b32 %s, %s, 1" % (sT1, sW)); slin(gf, sT0, [(sCH, CP), (sT1, 16)], WS_U)
m.extend(spread(gelu(0), gf, 0.0, 0.9, unit="any"))
spoll_check(m, 8, sPO, "pu")
m("s_barrier")
for q in range(2):
    m("buffer_load_dwordx4 %s, v%d, %s, %s offen offset:%d sc1" % (vr(vUL + 4 * q, 4), vT[1], WS, sT0, 2048 * q), tag="ul")
gf = Stream()
def w2_swap(s, j):
    s.wait_vm("w2_0_%d" % j); w2_reads(s, 0, j)
def w2_refill(s, j):
    s.wait_lgkm("w2r0_%d" % j); w2_issue(s, 1, j)
NSW = opt("nsw", 6); NRF = opt("nrf", 0)
order = [("r", j) for j in range(NSW)] + [("f", j) for j in range(NRF)]
NG = len(order)
jr, jf = NSW, NRF
while jr < 14 or jf < 14:
    if jr < 14: order.append(("r", jr)); jr += 1
    if jf < jr - 1 or (jr == 14 and jf < 14): order.append(("f", jf)); jf += 1
    if jr == 14 and jf < 14 and False: pass
def do_order(s, lst):
    for kind, j in lst: (w2_swap if kind == "r" else w2_refill)(s, j)
do_order(gf, order[:NG])
gf("v_lshl_add_u32 v%d, v%d, 3, %s" % (vT[2], L, sUW))
gf("v_add_u32 v%d, %d, v%d" % (vT[3], 2 * UP, vT[2]))
gf.wait_vm("ul")
for q in range(2):
    for e2 in range(2):
        d_ = vr(vUL + 4 * q + 2 * e2, 2)
        gf("ds_write2_b64 v%d, %s, %s offset0:%d offset1:%d" % (vT[2 + e2], d_, d_, 16 + 64 * q, 16 + 64 * q + 145), tag="uw")
flag_store(gf, vFHA, "hst0")
m.extend(spread(gelu(1), gf, 0.0, 0.95, unit="any"))
stamp(m)

vCACC = vACC[0]
aCF = 0
def conv_reads(bi):
    s = Stream()
    e2, r = bi >> 1, bi & 1
    base = aCF + 64 * (bi & 1)
    for a in range(8):
        off = e2 * HC_SZ + 256 * (2 * a + r)
        s("ds_read_b64_tr_b16 %s, v%d offset:%d" % (ar(base + 8 * a, 2), vCA, off + 32), tag="c%d_%d" % (bi, a))
        s("ds_read_b64_tr_b16 %s, v%d offset:%d" % (ar(base + 8 * a + 2, 2), vCA, off), tag="c%d_%d" % (bi, a))
        s("ds_read_b128 %s, v%d offset:%d" % (ar(base + 8 * a + 4, 4), vCB, e2 * 2 * UP + 64 * (2 * a - r + 1)), tag="c%d_%d" % (bi, a))
    return s
def conv_mfma(bi):
    s = Stream()
    base = aCF + 64 * (bi & 1)
    first = set()
    if bi > 0: s.wait_lgkm("c%d_7" % bi)
    for mx in range(8):
        if bi == 0: s.wait_lgkm("c%d_%d" % (bi, mx))
        prs = [(mx, i) for i in range(mx + 1)] + [(a, mx) for a in range(mx)]
        for a, i in prs:
            if a + i > 7: continue
            j = a + i
            c = vr(vCACC + 4 * j, 4)
            if bi == 0 and j not in first:
                first.add(j); c = "0"
            s("v_mfma_f32_16x16x32_bf16 %s, %s, %s, %s" % (vr(vCACC + 4 * j, 4), ar(base + 8 * a, 4), ar(base + 8 * i + 4, 4), c))
    return s
vb = VA(128, 254)
vEPB = vb.get(32, 4)
vQ = [vb.get(4, 4) for _ in range(2)]; vG = [vb.get(2, 2) for _ in range(2)]; vB2 = vb.get(4, 4)
ring = [vb.get(4, 4) for _ in range(19)]
RING = [("v", r) for r in ring] + [("a", 240 + 4 * i) for i in range(4)] + [("a", 112 + 4 * i) for i in range(4)]
NR = len(RING)
def rr(i): f, b = RING[i % NR]; return ("%s[%d:%d]" % (f, b, b + 3))
vHV = vXV
def h_issue(s, n):
    sg, k = n // 28, n % 28
    half, j = k // 14, k % 14
    s("buffer_load_dwordx4 %s, v%d, %s, %s offen sc1" % (rr(n), vHV[2 * sg + half], WS, tCB[j]), tag="h%d" % n)
vQO = vWV[0]; vGA = vWV[1]; vPW = vWV[2]; vPRD = vWV[3]; vZR = vXA[0]; vGA2 = vXA[1]; vB2A = vXA[2]; vYA0 = vXA[3]; vYA1 = vWA[0]; vYR = vWA[1]
vFZA = vFUA
sPB0 = sHC; sZB = sHB; sQ1 = sHSRC
cs = Stream()
cs("s_lshr_b32 %s, %s, 1" % (sT0, sRB64)); cs("s_mul_i32 %s, %s, 43" % (sT1, sT0)); cs("s_lshr_b32 %s, %s, 7" % (sT1, sT1))
slin(cs, sT2, [(sT1, 14 * CBS - 3 * 32768), (sRB64, 16384), (sW, 1024)], WS_H)
cs("v_add_u32 v%d, %s, v%d" % (vHV[0], sT2, vL16))
cs("v_add_u32 v%d, 8192, v%d" % (vHV[1], vHV[0])); cs("v_add_u32 v%d, 4096, v%d" % (vHV[2], vHV[0])); cs("v_add_u32 v%d, 12288, v%d" % (vHV[3], vHV[0]))
cs("s_mul_i32 %s, %s, 28" % (sT0, sW)); cs("s_min_u32 %s, %s, 80" % (sT0, sT0)); slin(cs, sPO, [(sRB64, 256), (sT0, 1)], WS_FH)
cs("v_mul_u32_u24 v%d, 80, v%d" % (vT[0], vL15))
cs("v_lshl_add_u32 v%d, v%d, 4, v%d" % (vT[0], vG4, vT[0]))
cs("s_and_b32 %s, %s, 1" % (sT1, sW)); slin(cs, sT0, [(sW, Y_SZ)], L_Y); slin(cs, sT2, [(sT1, 8), (sT0, 1)])
cs("v_add_u32 v%d, %s, v%d" % (vYA0, sT2, vT[0]))
cs("s_lshl_b32 %s, %s, 4" % (sT2, sT1))
cs("v_mov_b32 v%d, %s" % (vT[2], sT2))
cs.begin()
cs("v_cmp_eq_u32 vcc, 3, v%d" % vG4)
cs("v_cndmask_b32 v%d, 0, v%d, vcc" % (vT[2], vT[2]))
cs.end()
cs("v_add3_u32 v%d, v%d, v%d, 8" % (vYA1, vYA0, vT[2]))
cs("v_mov_b32 v%d, %s" % (vT[6], sT0))
cs("v_lshrrev_b32 v%d, 1, v%d" % (vT[2], L)); cs("v_mul_u32_u24 v%d, 80, v%d" % (vT[2], vT[2]))
cs("v_and_b32 v%d, 1, v%d" % (vT[3], L)); cs("v_lshl_add_u32 v%d, v%d, 5, v%d" % (vT[2], vT[3], vT[2]))
cs("s_lshr_b32 %s, %s, 1" % (sT0, sW)); slin(cs, sT0, [(sT0, 2 * Y_SZ), (sT1, 64 * 80)], L_Y)
cs("v_add_u32 v%d, %s, v%d" % (vYR, sT0, vT[2]))
slin(cs, sZB, [(sCH, CP), (sT1, 2048)], WS_Z)
cs("s_and_b32 %s, %s, 63" % (sT2, sCH)); slin(cs, sT0, [(sC, 512), (sT1, 256), (sT2, 4)], WS_FZ)
cs("v_mov_b32 v%d, %s" % (vFZA, sT0))
es = Stream()
slin(es, sT0, [(sRB64, 64), (sW, 8)])
es("v_add_u32 v%d, %s, v%d" % (vT[0], sT0, vLd8))
es("v_lshlrev_b32 v%d, 3, v%d" % (vGA, vT[0])); es("v_add_u32 v%d, 0x%x, v%d" % (vGA, WS_G, vGA))
es("v_add_u32 v%d, 256, v%d" % (vGA2, vGA))
es("v_mul_u32_u24 v%d, 896, v%d" % (vT[0], vT[0]))
es("s_lshl_b32 %s, %s, 7" % (sT0, sC))
es("v_lshl_add_u32 v%d, v%d, 4, %s" % (vB2A, vL8, sT0))
es("v_add_u32 v%d, v%d, v%d" % (vQO, vT[0], vB2A))
es("v_mul_u32_u24 v%d, 272, v%d" % (vT[0], vS32)); es("v_lshl_add_u32 v%d, v%d, 4, v%d" % (vPW, vHH, vT[0]))
es("s_mul_i32 %s, %s, %d" % (sT0, sW, PB_SZ))
es("v_add_u32 v%d, %s, v%d" % (vPW, sT0, vPW))
es("s_lshl_b32 %s, %s, 3" % (sT0, sW))
es("v_add_u32 v%d, %s, v%d" % (vT[0], sT0, vLd8))
es("v_mul_u32_u24 v%d, 272, v%d" % (vT[1], vT[0])); es("v_lshl_add_u32 v%d, v%d, 5, v%d" % (vPRD, vL8, vT[1]))
es("v_mul_u32_u24 v%d, 144, v%d" % (vT[1], vT[0])); es("v_lshl_add_u32 v%d, v%d, 4, v%d" % (vZR, vL8, vT[1]))
es("v_add_u32 v%d, %d, v%d" % (vZR, L_ZT, vZR))
es("s_mov_b32 %s, %d" % (sQ1, 32 * 896))

m.wait_lgkm("uw")
m.extend(conv_reads(0))
cf = [Stream() for _ in range(4)]
rest = order[NG:]
NB3 = opt("nb3", 3)
h_ = (len(rest) + NB3 - 1) // NB3
cf[0].extend(cs)
spoll_issue(cf[2], 8, sPO)
for b_ in range(NB3): do_order(cf[b_], rest[b_ * h_:(b_ + 1) * h_])
flag_store(cf[1], vFHA, "hst1", off=128)
cf[2].extend(es)
HC3 = opt("hc3", 11)
for n in range(HC3): h_issue(cf[3], n)
for bi in range(4):
    mf = conv_mfma(bi)
    if bi < 3: mf = spread(mf, conv_reads(bi + 1), 0.0, 0.8)
    if bi == 3:
        spoll_check(m, 8, sPO, "ph0")
        m("s_barrier")
        m("s_add_u32 %s, %s, 128" % (sPO, sPO))
    mf = spread(mf, cf[bi], 0.0, 1.0)
    m.extend(mf)
stamp(m)
m.begin()
m("s_mov_b64 exec, 1")
m("ds_write_b64 v%d, %s" % (vT[6], vr(vZ4, 2)), tag="yw")
m("s_mov_b64 exec, -1")
m.end()
yw = Stream()
for j in range(8):
    yw("ds_write_b64 v%d, %s offset:%d" % (vYA0, vr(vCACC + 4 * j, 2), 1280 * j), tag="yw")
    yw("ds_write_b64 v%d, %s offset:%d" % (vYA1, vr(vCACC + 4 * j + 2, 2), 1280 * j), tag="yw")
f = Stream()
for n in range(HC3, HC3 + 6): h_issue(f, n)
m.extend(spread(yw, f, 0.0, 1.0, unit="any"))
m.wait_lgkm("yw")
m("s_barrier")
for q in range(2):
    for y in range(2):
        for hf in range(2):
            m("ds_read_b128 %s, v%d offset:%d" % (vr(vEPB + 16 * q + 8 * y + 4 * hf, 4), vYR, 2560 * q + Y_SZ * y + 16 * hf), tag="yr%d" % q)
for q in range(2):
    m.wait_lgkm("yr%d" % q)
    b = vEPB + 16 * q
    for j in range(4): m("v_pk_add_f32 %s, %s, %s" % (vr(b + 2 * j, 2), vr(b + 2 * j, 2), vr(b + 8 + 2 * j, 2)))
    for j in range(4): m("v_cvt_pk_bf16_f32 v%d, v%d, v%d" % (b + 8 + j, b + 2 * j, b + 2 * j + 1))
    m("buffer_store_dwordx4 %s, v%d, %s, %s offen offset:%d sc1" % (vr(b + 8, 4), vL16, WS, sZB, 1024 * q), tag="zst")
stamp(m)
spoll_issue(m, 8, sPO)

vA2 = vACC
vZL = vEPB + 16; vEP = vEPB
vBS = vT[0]
def z_load(s):
    slin(s, sT1, [(sC, 64 * CP), (sW, 16 * CP), (sRB64, 128)], WS_Z)
    s("s_add_u32 %s, %s, %d" % (sT2, sT1, 8 * CP))
    s("v_mul_u32_u24 v%d, %d, v%d" % (vT[0], CP, vLd8)); s("v_lshl_add_u32 v%d, v%d, 4, v%d" % (vT[0], vL8, vT[0]))
    spoll_check(s, 16, sPO, "pz")
    s("buffer_load_dwordx4 %s, v%d, %s, %s offen sc1" % (vr(vZL, 4), vT[0], WS, sT1), tag="zl")
    s("buffer_load_dwordx4 %s, v%d, %s, %s offen sc1" % (vr(vZL + 4, 4), vT[0], WS, sT2), tag="zl")
ZST = 65536
def z_xpose(s):
    s("v_add_u32 v%d, %s, v%d" % (vT[0], sW2L, vL16))
    s("v_add_u32 v%d, %d, v%d" % (vT[0], ZST, vT[0]))
    s("v_lshlrev_b32 v%d, 7, v%d" % (vT[1], vR4)); s("v_lshl_add_u32 v%d, v%d, 5, v%d" % (vT[1], vG4, vT[1])); s("v_lshl_add_u32 v%d, v%d, 3, v%d" % (vT[1], vC4, vT[1]))
    s("s_add_u32 %s, %s, %d" % (sT1, sW2L, ZST))
    s("v_add_u32 v%d, %s, v%d" % (vT[1], sT1, vT[1]))
    s("v_mul_u32_u24 v%d, 144, v%d" % (vT[2], L)); slin(s, sT1, [(sW, 32)], L_ZT)
    s("v_add_u32 v%d, %s, v%d" % (vT[2], sT1, vT[2]))
    s.wait_vm("zl")
    s("ds_write_b128 v%d, %s" % (vT[0], vr(vZL, 4)), tag="zw")
    s("ds_write_b128 v%d, %s offset:1024" % (vT[0], vr(vZL + 4, 4)), tag="zw")
    s.wait_lgkm("zw")
    for i in range(4):
        s("ds_read_b64_tr_b16 %s, v%d offset:%d" % (vr(vZL + 8 + 2 * i, 2), vT[1], 512 * i), tag="zr")
    s.wait_lgkm("zr")
    s("ds_write_b128 v%d, %s" % (vT[2], vr(vZL + 8, 4)), tag="zw2")
    s("ds_write_b128 v%d, %s offset:16" % (vT[2], vr(vZL + 12, 4)), tag="zw2")
def part_write(s, sg):
    s("v_add_u32 v%d, %d, v%d" % (vT[3], L_PB0 if sg == 0 else L_PB1, vPW))
    for t in range(2):
        for a in range(4):
            s("ds_write_b128 v%d, %s offset:%d" % (vT[3], vr(vA2[2 * sg + t] + 4 * a, 4), 128 * t + 32 * a), tag="pw%d" % sg)
def red(s, sg, E, pk):
    s("v_add_u32 v%d, %d, v%d" % (vT[3], L_PB0 if sg == 0 else L_PB1, vPRD))
    for w in range(4):
        for hf in range(2):
            s("ds_read_b128 %s, v%d offset:%d" % (vr(E + 8 * w + 4 * hf, 4), vT[3], PB_SZ * w + 16 * hf), tag="pr%d" % sg)
    s.wait_vm("q")
    s.wait_lgkm("pr%d" % sg)
    def add(d, a, b):
        if pk: s("v_pk_add_f32 %s, %s, %s" % (vr(d, 2), vr(a, 2), vr(b, 2)))
        else:
            s("v_add_f32 v%d, v%d, v%d" % (d, a, b)); s("v_add_f32 v%d, v%d, v%d" % (d + 1, a + 1, b + 1))
    for j in range(4):
        add(E + 2 * j, E + 2 * j, E + 8 + 2 * j)
        add(E + 16 + 2 * j, E + 16 + 2 * j, E + 24 + 2 * j)
    for j in range(4):
        s("v_lshlrev_b32 v%d, 16, v%d" % (E + 8 + 2 * j, vB2 + j)); s("v_and_b32 v%d, 0xffff0000, v%d" % (E + 9 + 2 * j, vB2 + j))
        add(E + 2 * j, E + 2 * j, E + 16 + 2 * j)
    for j in range(4): add(E + 2 * j, E + 2 * j, E + 8 + 2 * j)
def fin(s, sg, E, Zr):
    for j in range(4):
        s("v_lshlrev_b32 v%d, 16, v%d" % (E + 16 + 2 * j, vQ[sg] + j)); s("v_and_b32 v%d, 0xffff0000, v%d" % (E + 17 + 2 * j, vQ[sg] + j))
        s("v_lshlrev_b32 v%d, 16, v%d" % (E + 24 + 2 * j, Zr + j)); s("v_and_b32 v%d, 0xffff0000, v%d" % (E + 25 + 2 * j, Zr + j))
    for j in range(4):
        s("v_pk_fma_f32 %s, %s, %s, %s neg_lo:[0,0,1] neg_hi:[0,0,1]" % (vr(E + 16 + 2 * j, 2), vr(E + 16 + 2 * j, 2), vr(E + 24 + 2 * j, 2), vr(E + 2 * j, 2)))
    for j in range(4):
        s("v_pk_fma_f32 %s, %s, %s, %s op_sel_hi:[1,0,1]" % (vr(E + 2 * j, 2), vr(E + 16 + 2 * j, 2), vr(vG[sg], 2), vr(E + 2 * j, 2)))
    for j in range(4):
        s("v_cvt_pk_bf16_f32 v%d, v%d, v%d" % (E + 8 + j, E + 2 * j, E + 2 * j + 1))
    s("buffer_store_dwordx4 %s, v%d, %s, %s offen %s" % (vr(E + 8, 4), vQO, OUT, "0" if sg == 0 else sQ1, OPT.get("ost", "").replace("_", " ")), tag="ost")

hnext = [HC3 + 6]
def g2_seg(n0, n1, lim):
    s = Stream()
    for n in range(n0, n1):
        sg, k = n // 28, n % 28
        half, j = k // 14, k % 14
        s.wait_vm("h%d" % n)
        if n == 0: s.wait_lgkm("w2r0_13")
        if 14 <= n < 28: s.wait_lgkm("w2r1_%d" % j)
        rd = Stream()
        if n < 14:
            rd.wait_vm("w2_1_%d" % n); w2_reads(rd, 1, n)
        for t in range(2):
            c = "0" if k == 0 else vr(vA2[2 * sg + t], 16)
            s("v_mfma_f32_32x32x16_bf16 %s, %s, %s, %s" % (vr(vA2[2 * sg + t], 16), ar(aW2[half] + 8 * j + 4 * t, 4), rr(n), c))
            if t == 0:
                if hnext[0] < lim and hnext[0] < n + NR:
                    h_issue(s, hnext[0]); hnext[0] += 1
                s.ops.extend(rd.ops[:3])
            else:
                s.ops.extend(rd.ops[3:])
    return s
PH1 = opt("ph1", 10)
m.extend(g2_seg(0, PH1, 28))
spoll_check(m, 8, sPO, "ph1")
m("s_barrier")
f = Stream()
flag_store(f, vFZA, "zst")
f("global_load_dwordx4 %s, v%d, %s" % (vr(vB2, 4), vB2A, P_B2), tag="q")
f("buffer_load_dwordx4 %s, v%d, %s, 0 offen" % (vr(vQ[0], 4), vQO, Q), tag="q")
f("buffer_load_dwordx4 %s, v%d, %s, %s offen" % (vr(vQ[1], 4), vQO, Q, sQ1), tag="q")
gran_issue(f, vG[0], vGA, "pg0"); gran_issue(f, vG[1], vGA2, "pg1")
f("s_lshr_b32 %s, %s, 4" % (sT0, sRB64)); slin(f, sPO, [(sC, 512), (sT0, 256), (sW, 64)], WS_FZ)
m.extend(spread(g2_seg(PH1, 28, 56), f, 0.0, 0.5))
stamp(m)
f = Stream(); part_write(f, 0); f.wait_lgkm("pw0"); f("s_barrier")
m.extend(spread(g2_seg(28, 38, 56), f, 0.1, 1.0))
f = Stream(); red(f, 0, vA2[0], False); spoll_issue(f, 16, sPO)
m.extend(spread(g2_seg(38, 46, 56), f, 0.0, 1.0))
f = Stream(); gran_check(f, vG[0], vGA, "pg0"); gran_check(f, vG[1], vGA2, "pg1"); z_load(f)
m.extend(spread(g2_seg(46, 56, 56), f, 0.3, 0.9))
stamp(m)
part_write(m, 1)
z_xpose(m)
m.wait_lgkm("zw2")
m("s_barrier")
stamp(m)
m("ds_read_b128 %s, v%d" % (vr(vT[4], 4), vZR), tag="zt")
m("ds_read_b128 %s, v%d offset:%d" % (vr(ring[0], 4), vZR, 32 * 144), tag="zt")
r1 = Stream(); red(r1, 1, vEPB, True)
m.ops.extend(r1.ops[:9])
m.wait_lgkm("zt")
fin(m, 0, vA2[0], vT[4])
m.ops.extend(r1.ops[9:])
fin(m, 1, vEPB, ring[0])
stamp(m)
print("vgprs used:", va.n, file=sys.stderr)

def stamp_out(s):
    if not STAMP: return
    s("s_waitcnt vmcnt(0)")
    stamp(s)
    nstamp[0] = 40
    stamp(s, rt=True)
    if DBG:
        if s is not m: return
        sel = [int(x) for x in OPT.get("sel", "2,4,6,7,8,9,10,11,12,13,14,15").split(",")]
        s("v_readlane_b32 s40, v%d, 1" % vSTA)
        for k, idx in enumerate(sel):
            s("v_readlane_b32 s41, v%d, %d" % (vSTA, idx))
            s("s_sub_u32 s41, s41, s40")
            s("v_writelane_b32 v%d, s41, %d" % (vT[0], k))
        s("v_readlane_b32 s41, v%d, 40" % vSTA); s("v_writelane_b32 v%d, s41, 13" % vT[0])
        s("v_readlane_b32 s41, v%d, 41" % vSTA); s("v_writelane_b32 v%d, s41, 14" % vT[0])
        s("s_not_b32 s41, s41"); s("v_writelane_b32 v%d, s41, 15" % vT[0])
        s("v_lshlrev_b32 v%d, 2, v%d" % (vT[1], vLANE))
        s("v_add_co_u32 v62, vcc, v62, v%d" % vT[1])
        s("v_addc_co_u32 v63, vcc, 0, v63, vcc")
        s("s_mov_b64 exec, 0x%x" % ((1 << len(sel)) - 1))
        s("global_atomic_add v[62:63], v%d, off sc1" % vT[0])
        s("s_mov_b64 exec, 0xe000")
        s("global_atomic_umax v[62:63], v%d, off sc1" % vT[0])
        return
    slin(s, sT0, [("s2", 1024), (sW, 256)], WS_STAMP)
    s("v_lshlrev_b32 v%d, 2, v%d" % (vT[0], vLANE))
    s("buffer_store_dword v%d, v%d, %s, %s offen" % (vSTA, vT[0], WS, sT0))
stamp_out(m)
m("s_endpgm")

g = Stream(); g_stream[0] = g
g("L_spare:")
nstamp[0] = 2
g("v_mov_b32 v12, 0")
g("buffer_load_dword v%d, v12, %s, 0 offen sc1" % (vTAG, WS))
sJ = sA
if opt("pf", 1):
    g("s_sub_u32 %s, %s, 28" % (sT0, sI)); g("s_lshl_b32 %s, %s, 2" % (sT0, sT0)); g("s_add_u32 %s, %s, %s" % (sT0, sT0, sW))
    g("v_lshlrev_b32 v12, 7, v%d" % vLANE)
    g("L_pf:")
    g("s_cmp_ge_u32 %s, 98" % sT0); g("s_cselect_b32 %s, 98, 0" % sT1); g("s_cselect_b32 %s, 57344, 0" % sT3)
    g("s_sub_u32 %s, %s, %s" % (sT1, sT0, sT1))
    g("s_mul_i32 %s, %s, 147" % (sT2, sT1)); g("s_lshr_b32 %s, %s, 10" % (sT2, sT2))
    g("s_mul_i32 %s, %s, 57344" % (sT2, sT2)); g("s_lshl_b32 %s, %s, 13" % (sT1, sT1))
    g("s_add_u32 %s, %s, %s" % (sT1, sT1, sT2)); g("s_add_u32 %s, %s, %s" % (sT1, sT1, sT3))
    g("buffer_load_dword v13, v12, %s, %s offen" % (W2, sT1))
    g("s_add_u32 %s, %s, 16" % (sT0, sT0))
    g("s_cmp_lt_u32 %s, 196" % sT0)
    g("s_cbranch_scc1 L_pf")
g("s_sub_u32 %s, %s, 28" % (sJ, sI)); g("s_lshl_b32 %s, %s, 2" % (sT0, sX)); g("s_add_u32 %s, %s, %s" % (sJ, sJ, sT0))
g("s_waitcnt vmcnt(0)")
slin(g, sT0, [(sJ, 64), (sW, 16)])
g("v_lshrrev_b32 v12, 2, v%d" % vLANE); g("v_add_u32 v12, %s, v12" % sT0)
g("v_and_b32 v13, 3, v%d" % vLANE); g("v_lshlrev_b32 v13, 4, v13")
g("v_mul_u32_u24 v14, 896, v12"); g("v_add_u32 v14, v14, v13")
for i in range(14):
    g("buffer_load_dwordx4 v[%d:%d], v14, %s, 0 offen offset:%d" % (16 + 4 * i, 19 + 4 * i, Q, 64 * i), tag="gq")
for i in range(14):
    g("global_load_dwordx4 v[%d:%d], v13, %s offset:%d" % (80 + 4 * i, 83 + 4 * i, P_GATE, 64 * i), tag="gq")
g("s_waitcnt vmcnt(0)")
g("v_add_u32 v%d, 0x%x, v%d" % (vTAG, TAG_INC, vTAG))
for i in range(56):
    acc = 140 + (i % 4)
    g("v_dot2_f32_bf16 v%d, v%d, v%d, %s" % (acc, 16 + i, 80 + i, "0" if i < 4 else "v%d" % acc))
g("v_add_f32 v140, v140, v141"); g("v_add_f32 v142, v142, v143"); g("v_add_f32 v140, v140, v142")
g("v_add_f32_dpp v140, v140, v140 quad_perm:[1,0,3,2] row_mask:0xf bank_mask:0xf")
g("v_add_f32_dpp v140, v140, v140 quad_perm:[2,3,0,1] row_mask:0xf bank_mask:0xf")
g("v_mul_f32 v140, 0x%x, v140" % f2u(-math.log2(math.e)))
g("v_exp_f32 v140, v140"); g("v_add_f32 v140, 1.0, v140"); g("v_rcp_f32 v140, v140")
g("v_mov_b32 v141, v%d" % vTAG)
g("v_lshlrev_b32 v12, 3, v12"); g("v_add_u32 v12, 0x%x, v12" % WS_G)
g("s_mov_b32 exec_lo, 0x11111111"); g("s_mov_b32 exec_hi, 0x11111111")
g("buffer_store_dwordx2 v[140:141], v12, %s, 0 offen sc1" % WS)
g("s_mov_b64 exec, -1")
g("s_cmp_lg_u32 s2, 255"); g("s_cbranch_scc1 L_spare_done")
g("s_cmp_lg_u32 %s, 0" % sW); g("s_cbranch_scc1 L_spare_done")
g("v_lshlrev_b32 v12, 4, v%d" % vLANE); g("v_add_u32 v12, 0x%x, v12" % WS_FU)
g("v_min_u32 v15, 31, v%d" % vLANE); g("v_lshlrev_b32 v15, 4, v15"); g("v_add_u32 v15, 0x%x, v15" % (WS_FU + 3072))
g("v_lshlrev_b32 v13, 7, v%d" % vLANE); g("v_add_u32 v13, 0x%x, v13" % (WS_G + 4))
g("v_add_u32 v14, 8192, v13")
g("s_mov_b32 %s, 0" % sSPIN)
g("L_upd:")
g("s_sleep 32")
for i in range(3):
    g("buffer_load_dwordx4 v[%d:%d], v12, %s, 0 offen offset:%d sc1" % (16 + 4 * i, 19 + 4 * i, WS, 1024 * i))
g("buffer_load_dwordx4 v[28:31], v15, %s, 0 offen sc1" % WS)
g("buffer_load_dword v32, v13, %s, 0 offen sc1" % WS)
g("buffer_load_dword v33, v14, %s, 0 offen sc1" % WS)
g("s_add_u32 %s, %s, 1" % (sSPIN, sSPIN))
g("s_waitcnt vmcnt(0)")
for i in range(18): g("v_xor_b32 v%d, v%d, v%d" % (16 + i, 16 + i, vTAG))
for i in range(1, 18): g("v_or_b32 v16, v16, v%d" % (16 + i))
g("v_cmp_ne_u32 vcc, 0, v16")
g("s_cmp_gt_u32 %s, 0x40000" % sSPIN)
g("s_cbranch_scc1 L_upd_go")
g("s_cbranch_vccnz L_upd")
g("L_upd_go:")
g("v_mov_b32 v12, 0")
g("s_mov_b64 exec, 1")
g("buffer_store_dword v%d, v12, %s, 0 offen sc1" % (vTAG, WS))
g("s_mov_b64 exec, -1")
g("L_spare_done:")
stamp_out(g)
g("L_end:")
g("s_endpgm")

k_ = 0
for o in m.ops:
    if "STAMPIDX" in o.text:
        o.text = o.text.replace("STAMPIDX", str(k_)); k_ += 1
assert k_ <= 40
nts = [d for d in OPT.get("nt", "").split(",") if d]
for o in m.ops:
    if o.kind in VMEMK and o.tag and any(o.tag.startswith(d) for d in nts) and "global_" not in o.text:
        o.text = o.text.replace(" lds", " nt lds") if o.text.endswith(" lds") else o.text + " nt"
drops = [d for d in OPT.get("drop", "").split(",") if d]
if drops:
    keep = []; dropped = set()
    for o in m.ops:
        if o.kind in VMEMK and o.tag and any(o.tag.startswith(d) for d in drops):
            dropped.add(o.tag); continue
        if o.kind == "waitvm" and o.waitfor in dropped: continue
        keep.append(o)
    m.ops = keep
body = render(finalize(m)) + "\n" + render(insert_nops(spins.ops)) + "\n" + render(insert_nops(resolve_waits(g.ops)))
hdr = open("cdna_kernels/%s.s.ref" % NAME).read().split("; Override launch")[0]
out = hdr + "; @launch grid=(256,1,1) block=(256,1,1) lds=%d\n" % LDS_TOTAL
out += '.amdgcn_target "amdgcn-amd-amdhsa--gfx950"\n.text\n.globl %s_kernel\n.p2align 8\n.type %s_kernel,@function\n%s_kernel:\n' % (NAME, NAME, NAME)
out += body + "\nL_code_end:\n"
out = out.replace("CODE_BYTES", "L_code_end-%s_kernel-64" % NAME)
out += '.section .rodata,"a"\n.p2align 6\n.amdhsa_kernel %s_kernel\n' % NAME
out += "  .amdhsa_next_free_vgpr 512\n  .amdhsa_next_free_sgpr 102\n  .amdhsa_accum_offset 256\n  .amdhsa_group_segment_fixed_size 0\n"
out += "  .amdhsa_kernarg_size 120\n  .amdhsa_user_sgpr_count 2\n  .amdhsa_user_sgpr_kernarg_segment_ptr 1\n  .amdhsa_system_sgpr_workgroup_id_x 1\n.end_amdhsa_kernel\n"
open(sys.argv[1], "w").write(out)
```

```python
import sys, math, struct
sys.path.insert(0, "gen")
from asmlib import *

NAME = "gated_mix__ssm_conv_h3__dense_activation_gelu__prompt"
STAMP = int(sys.argv[2]) if len(sys.argv) > 2 else 0
DBG = STAMP >= 3
if DBG: STAMP -= 2
AT = -1
if STAMP == 3: STAMP = 2; DBG = False; AT = int(dict(a.split("=") for a in sys.argv[3:])["at"])
OPT = dict(a.split("=") for a in sys.argv[3:])
def opt(k, d): return type(d)(OPT.get(k, d))
f2u = lambda f: struct.unpack("<I", struct.pack("<f", f))[0]

WS_FU = 0x1000
WS_FZ = 0x2000
WS_FH = 0x3000
WS_G  = 0x8000
WS_STAMP = 0x10000
WS_U  = 0x100000
WS_Z  = 0x300000
CP = 4224
WS_H  = 0x500000
CBS = 128 * 896
WS_SIZE = 0x1000000
TAG_INC = 0x9E3779B9
SLOT = 32768
L_R = 114688; RSZ = 11280
R_UW = 4160; UP = 1280; R_CY = 9216
L_KS = 131072
L_VS = L_KS + 72 * 128
L_P0 = L_VS + 64 * 128
L_PB0 = 114688; PB_SZ = 8704
L_PB1 = 0
L_ZT = 149696
ZST = 65536
LDS_TOTAL = 163840
W2POS = [12, 13, 0, 1, 2, 3, 4, 5, 6, 7, 8, 9, 10, 11]

Q, K, V, SSM, W1, W2, OUT, WS = ["s[%d:%d]" % (b, b + 3) for b in range(8, 40, 4)]
WSP = "s[36:37]"
P_SHIFT, P_D, P_B1, P_B2, P_GATE = "s[46:47]", "s[50:51]", "s[56:57]", "s[60:61]", "s[62:63]"
sW, sX, sI, sA, sC, sRB128, sCB128, sRB64 = "s70", "s71", "s72", "s73", "s74", "s75", "s76", "s77"
sT0, sT1, sT2, sT3 = "s78", "s79", "s80", "s81"
sTAG = "s[82:83]"
sROT, sSPIN, sCH, sHB = "s84", "s85", "s86", "s87"
sXL, sWL, sW2L, sRW, sPO, sE2, sHSRC = "s88", "s89", "s3", "s4", "s5", "s6", "s7"
sC1 = "s[64:65]"
sST = "s[66:67]"
sFU, sFH, sFZ = "s0", "s1", "s62"
sPU, sPH, sPZ = "s63", sX, sI
sHB2, sZB, sQ1, sZ8 = sROT, sRB128, sCB128, sA
tXO = ["s40", "s41", "s42", "s43", "s44", "s45", "s48"]
tWO = ["s49", "s52", "s53", "s54", "s55", "s58", "s59"]
tCB = ["s%d" % i for i in range(90, 102)] + ["s68", "s69"]
sPOLL = 40

class VA:
    def __init__(self, lo, hi): self.n = lo; self.hi = hi
    def get(self, k=1, align=1):
        self.n = (self.n + align - 1) // align * align
        r = self.n; self.n += k
        assert self.n <= self.hi, "out of regs"
        return r
def vr(b, k=1): return "v%d" % b if k == 1 else "v[%d:%d]" % (b, b + k - 1)
def ar(b, k=1): return "a%d" % b if k == 1 else "a[%d:%d]" % (b, b + k - 1)

spins = Stream()
nstamp = [0]; g_stream = [None]
VB_HI = 236
va = VA(0, 64); vb = VA(128, VB_HI); vc = VA(VB_HI, 252)
vTID = va.get(); vLANE = va.get(); vTAG = va.get(); vSTA = va.get()
vT = [va.get() for _ in range(8)]
L = vLANE

def stamp(s, rt=False):
    if not STAMP: return
    i = nstamp[0]; nstamp[0] += 1
    s.begin()
    s("%s %s" % ("s_memrealtime" if (rt or STAMP == 2) else "s_memtime", sST))
    s("s_waitcnt lgkmcnt(0)")
    s("v_writelane_b32 v%d, s66, %s" % (vSTA, "STAMPIDX" if i < 40 and s is not g_stream[0] else str(i)))
    s.end()
def fstamp(s, lvl=2):
    if opt("fine", 0) == lvl: stamp(s)

def slin(s, dst, terms, const=0):
    tmp = sT3; first = True
    for reg, mult in terms:
        d = dst if first else tmp
        if mult == 1: src = reg
        else:
            if mult & (mult - 1) == 0: s("s_lshl_b32 %s, %s, %d" % (d, reg, mult.bit_length() - 1))
            else: s("s_mul_i32 %s, %s, %d" % (d, reg, mult))
            src = d
        if first:
            if src != dst: s("s_mov_b32 %s, %s" % (dst, src))
        else: s("s_add_u32 %s, %s, %s" % (dst, dst, src))
        first = False
    if const: s("s_add_u32 %s, %s, 0x%x" % (dst, dst, const))
def vlin(s, dst, terms, base=None):
    acc = None
    terms = sorted(terms, key=lambda t: t[1] & (t[1] - 1) == 0)
    for reg, mult in terms:
        p2 = mult & (mult - 1) == 0
        if acc is None:
            if p2 and isinstance(base, str):
                s("v_lshl_add_u32 v%d, v%d, %d, %s" % (dst, reg, mult.bit_length() - 1, base)); base = None
            elif p2: s("v_lshlrev_b32 v%d, %d, v%d" % (dst, mult.bit_length() - 1, reg))
            else: s("v_mul_u32_u24 v%d, %d, v%d" % (dst, mult, reg))
            acc = dst
        else:
            assert p2
            s("v_lshl_add_u32 v%d, v%d, %d, v%d" % (dst, reg, mult.bit_length() - 1, dst))
    if base is not None:
        s("v_add_u32 v%d, %s, v%d" % (dst, base if isinstance(base, str) else "0x%x" % base, dst))

def flag_store(s, sreg, tagwait):
    s.wait_vm(tagwait)
    s.begin()
    s("s_mov_b64 exec, 1")
    s("buffer_store_dword v%d, off, %s, %s sc1" % (vTAG, WS, sreg), tag="flag")
    s("s_mov_b64 exec, -1")
    s.end()

npoll = [0]
def spoll_issue(s, n, soff):
    s("s_load_dwordx%d s[%d:%d], %s, %s glc" % (n, sPOLL, sPOLL + n - 1, WSP, soff))
def spin_tail(t, tag):
    if STAMP: t("v_writelane_b32 v%d, %s, %d" % (vSTA, sSPIN, 48 + npoll[0]))
    npoll[0] += 1
    t("s_cmp_gt_u32 %s, 0x40000" % sSPIN)
    t("s_cbranch_scc1 L_ok_%s" % tag)
    t("s_cbranch_vccz L_ok_%s" % tag)
    t("s_sleep 1")
    t("s_branch L_spin2_%s" % tag)
def spoll_check(s, n, soff, tag):
    s.begin()
    s("s_waitcnt lgkmcnt(0)")
    for i in range(0, n, 2):
        s("s_cmp_lg_u64 s[%d:%d], %s" % (sPOLL + i, sPOLL + i + 1, sTAG))
        s("s_cbranch_scc1 L_spin_%s" % tag)
    s("L_ok_%s:" % tag)
    s.end()
    t = spins
    t("L_spin_%s:" % tag)
    t("s_mov_b32 %s, 0" % sSPIN)
    t("v_min_u32 v254, %d, v%d" % (n - 1, L))
    t("v_lshl_add_u32 v254, v254, 2, %s" % soff)
    t("L_spin2_%s:" % tag)
    t("buffer_load_dword v255, v254, %s, 0 offen sc1" % WS)
    t("s_add_u32 %s, %s, 1" % (sSPIN, sSPIN))
    t("s_waitcnt vmcnt(0)")
    t("v_cmp_ne_u32 vcc, v255, v%d" % vTAG)
    spin_tail(t, tag)
def gran_issue(s, vdst, vaddr, off, tag):
    s("buffer_load_dwordx2 %s, v%d, %s, 0 offen offset:%d sc1" % (vr(vdst, 2), vaddr, WS, off), tag=tag)
def gran_check(s, vdst, vaddr, off, tag):
    s.wait_vm(tag)
    s.begin()
    s("v_cmp_ne_u32 vcc, v%d, v%d" % (vdst + 1, vTAG))
    s("s_cbranch_vccnz L_spin_%s" % tag)
    s("L_ok_%s:" % tag)
    s.end()
    t = spins
    t("L_spin_%s:" % tag)
    t("s_mov_b32 %s, 0" % sSPIN)
    t("L_spin2_%s:" % tag)
    gran_issue(t, vdst, vaddr, off, tag)
    t("s_add_u32 %s, %s, 1" % (sSPIN, sSPIN))
    t("s_waitcnt vmcnt(0)")
    t("v_cmp_ne_u32 vcc, v%d, v%d" % (vdst + 1, vTAG))
    spin_tail(t, tag)

def srd(s, name, lo, nbytes):
    b = int(name[2:].split(":")[0])
    s("s_mov_b64 s[%d:%d], s[%d:%d]" % (b, b + 1, lo, lo + 1))
    s("s_mov_b32 s%d, 0x%x" % (b + 2, nbytes)); s("s_mov_b32 s%d, 0x20000" % (b + 3))

m = Stream()
if STAMP: m("s_memrealtime s[6:7]")
m("s_load_dwordx16 s[40:55], s[0:1], 0")
m("s_load_dwordx8 s[56:63], s[0:1], 64")
m("s_load_dwordx4 s[64:67], s[0:1], 96")
m("s_load_dwordx2 s[68:69], s[0:1], 112")
m("s_cmp_ge_u32 s2, 256")
m("s_cbranch_scc1 L_end")
m("s_cmp_lt_u32 s2, 224")
m("s_cbranch_scc1 L_nopf")
m("s_getpc_b64 s[4:5]")
m("v_lshlrev_b32 v%d, 7, v0" % vT[0])
m("v_min_u32 v%d, CODE_BYTES, v%d" % (vT[0], vT[0]))
m("global_load_dword v255, v%d, s[4:5]" % vT[0], tag="cpf")
m("L_nopf:")
m("v_mov_b32 v%d, 0" % vSTA)
m("v_and_b32 v%d, 63, v0" % vLANE)
m("v_lshrrev_b32 v%d, 6, v0" % vT[2])
m("v_readfirstlane_b32 %s, v%d" % (sW, vT[2]))
m("s_and_b32 %s, s2, 7" % sX)
m("s_lshr_b32 %s, s2, 3" % sI)
m("s_mul_i32 %s, %s, 37" % (sA, sI)); m("s_lshr_b32 %s, %s, 8" % (sA, sA))
m("s_mul_i32 %s, %s, 7" % (sC, sA)); m("s_sub_u32 %s, %s, %s" % (sC, sI, sC))
m("s_lshr_b32 %s, %s, 1" % (sT0, sX)); slin(m, sRB128, [(sT0, 4), (sA, 1)])
m("s_and_b32 %s, %s, 1" % (sT0, sX)); slin(m, sCB128, [(sT0, 7), (sC, 1)])
slin(m, sROT, [(sA, 2), (sC, 1)])
m("s_cmp_ge_u32 %s, 7" % sROT); m("s_cselect_b32 %s, 7, 0" % sT0); m("s_sub_u32 %s, %s, %s" % (sROT, sROT, sT0))
vL8 = va.get(); vLd8 = va.get(); vG4 = va.get()
m("v_and_b32 v%d, 7, v%d" % (vL8, L)); m("v_lshrrev_b32 v%d, 3, v%d" % (vLd8, L)); m("v_lshrrev_b32 v%d, 4, v%d" % (vG4, L))
vXV = [va.get() for _ in range(4)]
vWV = [va.get() for _ in range(4)]
slin(m, sT0, [(sRB128, 128 * 896), (sW, 32 * 896)])
vlin(m, vT[0], [(vLd8, 896)], sT0)
m("v_xor_b32 v%d, v%d, v%d" % (vT[3], vL8, vG4))
m("v_lshl_add_u32 v%d, v%d, 4, v%d" % (vXV[0], vT[3], vT[0]))
m("v_xor_b32 v%d, 4, v%d" % (vT[3], vT[3]))
m("v_lshl_add_u32 v%d, v%d, 4, v%d" % (vXV[1], vT[3], vT[0]))
m("v_add_u32 v%d, %d, v%d" % (vXV[2], 2 * 6144, vXV[0]))
m("v_add_u32 v%d, %d, v%d" % (vXV[3], 3 * 6144, vXV[1]))
m("v_add_u32 v%d, %d, v%d" % (vXV[1], 6144, vXV[1]))
vSWZ = vT[7]
m("v_and_b32 v%d, 1, v%d" % (vT[3], vG4)); m("v_lshlrev_b32 v%d, 2, v%d" % (vT[3], vT[3]))
m("v_xor_b32 v%d, v%d, v%d" % (vSWZ, vL8, vT[3]))
slin(m, sT0, [(sW, 16 * 3584), (sCB128, 256)])
vlin(m, vWV[0], [(vLd8, 3584), (vSWZ, 16)], sT0)
m("v_add_u32 v%d, %d, v%d" % (vWV[1], 8 * 3584 - 1024, vWV[0]))
m("v_add_u32 v%d, 128, v%d" % (vWV[2], vWV[0]))
m("v_add_u32 v%d, 128, v%d" % (vWV[3], vWV[1]))
m("s_lshl_b32 %s, %s, 12" % (sXL, sW))
m("s_add_u32 %s, %s, 16384" % (sWL, sXL))
m("s_lshl_b32 %s, %s, 7" % (sT1, sROT)); m("s_mul_i32 %s, %s, %d" % (sT2, sROT, 64 * 3584))
NB = 2048 * 448 * 2
for nm, nb in ((Q, NB), (W1, 448 * 1792 * 2), (WS, WS_SIZE), (W2, 448 * 1792 * 2)):
    b = int(nm[2:].split(":")[0])
    m("s_mov_b32 s%d, 0x%x" % (b + 2, nb)); m("s_mov_b32 s%d, 0x20000" % (b + 3))
m("s_waitcnt lgkmcnt(0)")
m("s_mov_b64 s[8:9], s[40:41]"); m("s_mov_b64 s[24:25], s[54:55]")
m("s_cmp_ge_u32 %s, 28" % sI)
m("s_cbranch_scc1 L_spare")

def st_groups(t, xo=None, wo=None):
    gs = []
    slot = (t % 4) * SLOT
    for q in range(4):
        s = Stream(); s.begin()
        if q == 0: s("s_add_u32 m0, %s, %d" % (sXL, slot))
        s("buffer_load_dwordx4 v%d, %s, %s offen offset:%d lds" % (vXV[q], Q, xo or tXO[t], 1024 * q), tag="st%d" % t)
        s.end(); gs.append(s)
    for q in range(4):
        s = Stream(); s.begin()
        if q in (0, 2): s("s_add_u32 m0, %s, %d" % (sWL, slot + (2048 if q == 2 else 0)))
        s("buffer_load_dwordx4 v%d, %s, %s offen offset:%d lds" % (vWV[q], W1, wo or tWO[t], 1024 * (q & 1)), tag="st%d" % t)
        s.end(); gs.append(s)
    return gs
def st_issue(s, t, part="xw", **kw):
    gs = st_groups(t, **kw)
    for p_ in part:
        for g_ in (gs[:4] if p_ == "x" else gs[4:]): s.extend(g_)
st_issue(m, 0, xo=sT1, wo=sT2)
m("s_mov_b64 s[36:37], s[68:69]"); m("s_mov_b64 s[28:29], s[58:59]")
if DBG: m("v_mov_b32 v62, s66"); m("v_mov_b32 v63, s67")
stamp(m, rt=True)
stamp(m)
if STAMP: m("v_writelane_b32 v%d, s6, 41" % vSTA)
srd(m, K, 42, NB); srd(m, V, 44, NB); srd(m, SSM, 48, NB); srd(m, OUT, 64, NB)
slin(m, sRB64, [(sX, 4), (sA, 1)])
m("s_and_b32 %s, %s, 1" % (sE2, sW))
m("v_mov_b32 v%d, 0" % vT[0])
m("buffer_load_dword v%d, v%d, %s, 0 offen sc1" % (vTAG, vT[0], WS), tag="sm")
vB1 = vb.get(4, 4); vTP = vb.get(2, 2)
vS32 = va.get(); vHH = va.get(); vL15 = va.get()
m("v_and_b32 v%d, 31, v%d" % (vS32, L)); m("v_lshrrev_b32 v%d, 5, v%d" % (vHH, L)); m("v_and_b32 v%d, 15, v%d" % (vL15, L))
slin(m, sT0, [(sCB128, 256), (sE2, 128)])
vlin(m, vT[1], [(vS32, 2)], sT0)
m("global_load_ushort v%d, v%d, %s" % (vB1, vT[1], P_B1), tag="sm")
m("global_load_ushort v%d, v%d, %s offset:64" % (vB1 + 2, vT[1], P_B1), tag="sm")
slin(m, sT0, [(sC, 512), (sW, 128)])
vlin(m, vT[1], [(vL15, 8)], sT0)
m("global_load_dwordx2 %s, v%d, %s" % (vr(vTP, 2), vT[1], P_SHIFT), tag="sm")
vHP = vb.get(2, 2); vDP = vb.get()
m("s_lshr_b32 %s, %s, 1" % (sT0, sW)); slin(m, sCH, [(sC, 64), (sRB64, 2), (sT0, 1)])
m("s_lshl_b32 %s, %s, 1" % (sT0, sCH))
m("v_mov_b32 v%d, %s" % (vT[1], sT0))
m("global_load_ushort v%d, v%d, %s" % (vDP, vT[1], P_D), tag="sm")
m("s_lshl_b32 %s, %s, 12" % (sHSRC, sCH))
m("buffer_load_dwordx2 %s, v%d, %s, %s offen" % (vr(vHP, 2), vT[0], SSM, sHSRC), tag="sm")
vB2 = vc.get(4, 4)
m("s_lshl_b32 %s, %s, 7" % (sT0, sC))
vlin(m, vT[6], [(vL8, 16)], sT0)
m("global_load_dwordx4 %s, v%d, %s" % (vr(vB2, 4), vT[6], P_B2), tag="sm")
m("s_mov_b32 %s, %s" % (tXO[0], sT1)); m("s_mov_b32 %s, %s" % (tWO[0], sT2))
for t in range(1, 7):
    if t < 4:
        m("s_add_u32 %s, %s, %d" % (sT0, sA, t)); m("s_and_b32 %s, %s, 3" % (sT0, sT0))
        m("s_lshl_b32 %s, %s, 1" % (sT0, sT0)); m("s_add_u32 %s, %s, %s" % (sT0, sT0, sC))
    else:
        m("s_add_u32 %s, %s, %d" % (sT0, sC, 2 * (t - 4) + 1))
    m("s_cmp_ge_u32 %s, 7" % sT0); m("s_cselect_b32 %s, 7, 0" % sT1); m("s_sub_u32 %s, %s, %s" % (sT0, sT0, sT1))
    m("s_lshl_b32 %s, %s, 7" % (tXO[t], sT0)); m("s_mul_i32 %s, %s, %d" % (tWO[t], sT0, 64 * 3584))

su = m
r2 = Stream()
vKV = vb.get(); vKH = vb.get()
slin(su, sT0, [(sRB64, 64 * 896), (sW, 16 * 896)])
vlin(su, vT[0], [(vLd8, 896)], sT0)
su("v_add_u32 v%d, v%d, v%d" % (vKV, vT[0], vT[6]))
slin(su, sT0, [(sW, 16 * 896)], 8 * 896)
su("v_subrev_u32 v%d, %s, v%d" % (vKH, sT0, vKV))
su("s_mov_b32 %s, %d" % (sPO, 8 * 896 - 1024))
su("s_lshl_b32 %s, %s, 11" % (sW2L, sW))
for src, base in ((K, L_KS + 1024), (V, L_VS)):
    r2.begin(); r2("s_add_u32 m0, %s, %d" % (sW2L, base))
    r2("buffer_load_dwordx4 v%d, %s, 0 offen lds" % (vKV, src), tag="kv"); r2.end()
    r2("buffer_load_dwordx4 v%d, %s, %s offen offset:1024 lds" % (vKV, src, sPO), tag="kv")
r2.begin()
r2("s_mov_b32 m0, %d" % L_KS)
r2("s_mov_b32 exec_lo, 0")
r2("buffer_load_dwordx4 v%d, %s, 0 offen lds" % (vKH, K), tag="kv")
r2("s_mov_b32 exec_lo, -1")
r2.end()
su("v_mov_b32 v%d, 0" % (vB1 + 1)); su("v_mov_b32 v%d, 0" % (vB1 + 3))
vXA = [va.get() for _ in range(4)]
vWA = [va.get() for _ in range(2)]
vW2R = [va.get() for _ in range(4)]
su("v_bfe_u32 v%d, v%d, 1, 3" % (vT[0], L))
su("v_xor_b32 v%d, v%d, v%d" % (vT[0], vT[0], vHH))
su("s_lshr_b32 %s, %s, 1" % (sT1, sW)); su("s_lshl_b32 %s, %s, 13" % (sT1, sT1))
vlin(su, vXA[0], [(vT[0], 16), (vS32, 128)], sT1)
for ks in range(1, 4): su("v_xor_b32 v%d, %d, v%d" % (vXA[ks], 32 * ks, vXA[0]))
vC4 = vT[4]; vR4 = vT[5]; vMH = vT[3]
su("v_and_b32 v%d, 3, v%d" % (vC4, L)); su("v_bfe_u32 v%d, v%d, 2, 2" % (vR4, L)); su("v_bfe_u32 v%d, v%d, 4, 1" % (vMH, L))
su("v_bfe_u32 v%d, v%d, 3, 1" % (vT[1], L))
vlin(su, vT[0], [(vMH, 32), (vC4, 8), (vR4, 128), (vT[1], 64)])
slin(su, sT1, [(sE2, 2048)], 16384)
vlin(su, vWA[0], [(vHH, 1024), (vT[0], 1)], sT1)
su("v_xor_b32 v%d, 64, v%d" % (vWA[1], vWA[0]))
vlin(su, vW2R[0], [(vHH, 512), (vT[0], 1)], sW2L)
su("v_xor_b32 v%d, 64, v%d" % (vW2R[1], vW2R[0]))
su("v_add_u32 v%d, 0x10000, v%d" % (vW2R[2], vW2R[0])); su("v_add_u32 v%d, 0x10000, v%d" % (vW2R[3], vW2R[1]))
vZ4 = va.get(4, 4)
for i in range(4): su("v_mov_b32 v%d, 0" % (vZ4 + i))
slin(su, sRW, [(sW, RSZ)], L_R)
vACC = [64 + 16 * i for i in range(4)]
vONE = vb.get(8, 4)
for i in range(8): su("v_mov_b32 v%d, 0" % (vONE + i))
su("v_cmp_gt_u32 vcc, 32, v%d" % L)
su("v_mov_b32 v%d, 0x3f80" % vT[0])
su("v_cndmask_b32 v%d, 0, v%d, vcc" % (vONE, vT[0]))
su("v_mov_b32 v%d, v%d" % (vONE + 6, vONE))
vL16 = va.get()
DUMMY_DS[0] = "ds_read_b32 v253, v%d" % vL16
su("v_lshlrev_b32 v%d, 4, v%d" % (vL16, L))
su("s_mul_i32 %s, %s, %d" % (tCB[0], sC, 2 * CBS))
for j in range(1, 14):
    su("s_add_u32 %s, %s, %d" % (tCB[j], tCB[j - 1], CBS)); su("s_cmp_ge_u32 %s, %d" % (tCB[j], 14 * CBS)); su("s_cselect_b32 %s, 0, %s" % (tCB[j], tCB[j]))
vW2V = [va.get() for _ in range(4)]
slin(su, sT1, [(sC, 128), (sW, 16 * 896)])
vlin(su, vW2V[0], [(vLd8, 896), (vSWZ, 16)], sT1)
su("v_add_u32 v%d, %d, v%d" % (vW2V[1], 8 * 896 - 1024, vW2V[0]))
su("v_add_u32 v%d, %d, v%d" % (vW2V[2], 64 * 896, vW2V[0]))
su("v_add_u32 v%d, %d, v%d" % (vW2V[3], 64 * 896, vW2V[1]))
c_ = math.sqrt(2.0 / math.pi) * 2.0 * math.log2(math.e)
su("s_mov_b32 s64, 0x%x" % f2u(-c_ * 0.044715)); su("s_mov_b32 s65, 0x%x" % f2u(-c_ * 0.044715))
vC0 = va.get(2, 2)
su("v_mov_b32 v%d, 0x%x" % (vC0, f2u(-c_))); su("v_mov_b32 v%d, 0x%x" % (vC0 + 1, f2u(-c_)))
vP0R = vb.get(); vP0W = vb.get(); vP0B = vb.get(); vP0S = vc.get()
slin(su, sT0, [(sW, 32)], L_KS + 512)
vlin(su, vP0R, [(vG4, 2048), (vR4, 128), (vC4, 8)], sT0)
slin(su, sT0, [(sW, 2304)], L_P0)
vlin(su, vP0W, [(vL15, 144), (vG4, 32)], sT0)
vlin(su, vP0B, [(vLd8, 144), (vL8, 16)], sT0)
slin(su, sT0, [(sC, 64 * CP), (sW, 16 * CP), (sRB64, 128)], WS_U)
vlin(su, vP0S, [(vLd8, CP), (vL8, 16)], sT0)
vCA = va.get(); vCB = va.get(); vUA = va.get(); vUWA = va.get(); vPADA = vb.get()
su("v_and_b32 v%d, 1, v%d" % (vT[0], L)); su("v_bfe_u32 v%d, v%d, 1, 1" % (vT[1], L))
su("s_add_u32 %s, %s, %d" % (sT0, sRW, 64 + 56 - 32))
vlin(su, vCA, [(vT[0], 32), (vMH, 16), (vT[1], 8)], sT0)
vlin(su, vT[0], [(vHH, 64), (vR4, 8)])
su("v_sub_u32 v%d, v%d, v%d" % (vCA, vCA, vT[0]))
su("s_add_u32 %s, %s, %d" % (sT0, sRW, R_UW + 16))
vlin(su, vCB, [(vMH, UP), (vL15, 16), (vHH, 16)], sT0)
slin(su, sT0, [(sCH, CP), (sE2, 16)], WS_U)
vlin(su, vUA, [(L, 32)], sT0)
su("s_add_u32 %s, %s, %d" % (sT0, sRW, R_UW + 256))
vlin(su, vUWA, [(L, 8)], sT0)
su("s_add_u32 %s, %s, %d" % (sT0, sRW, R_UW))
vlin(su, vPADA, [(vMH, UP), (vL15, 16)], sT0)
su("v_min_u32 v%d, 2, v%d" % (vT[0], vS32))
vlin(su, vT[0], [(vT[0], 16)], sRW)
su("v_cndmask_b32 v%d, v%d, v%d, vcc" % (vPADA, vT[0], vPADA))
vYM = va.get(); vYC = va.get(); vYR = va.get(); vYRC = va.get()
vlin(su, vYM, [(vL15, 144), (vHH, 64), (vMH, 32)], sRW)
su("s_add_u32 %s, %s, %d" % (sT0, sRW, R_CY + 8))
vlin(su, vYC, [(vL15, 32), (vHH, 16), (vMH, 8)], sT0)
su("s_lshr_b32 %s, %s, 1" % (sT1, sW)); slin(su, sT2, [(sT1, 2 * RSZ)], L_R)
slin(su, sT0, [(sE2, 2 * 2304), (sT2, 1)])
su("v_lshrrev_b32 v%d, 2, v%d" % (vT[0], L))
vlin(su, vYR, [(L, 32), (vT[0], 16)], sT0)
slin(su, sT0, [(sE2, 1024), (sT2, 1)], R_CY)
vlin(su, vYRC, [(L, 8)], sT0)
vHV0 = vc.get(); vQO = vc.get(); vGA = vc.get(); vPW = vc.get(); vPRD = vc.get(); vZR = vc.get(); vZW = vc.get(); vZT = vc.get(); vZTW = vc.get()
su("s_lshr_b32 %s, %s, 1" % (sT0, sRB64)); su("s_mul_i32 %s, %s, 43" % (sT1, sT0)); su("s_lshr_b32 %s, %s, 7" % (sT1, sT1))
slin(su, sT2, [(sT1, 14 * CBS - 3 * 32768), (sRB64, 16384), (sW, 1024)], WS_H)
su("v_add_u32 v%d, %s, v%d" % (vHV0, sT2, vL16))
slin(su, sT0, [(sRB64, 64 * 8), (sW, 64)], WS_G)
vlin(su, vGA, [(vLd8, 8)], sT0)
slin(su, sT0, [(sRB64, 64 * 896), (sW, 8 * 896)])
vlin(su, vQO, [(vLd8, 896), (vT[6], 1)], sT0)
su("s_mul_i32 %s, %s, %d" % (sT0, sW, PB_SZ))
vlin(su, vPW, [(vS32, 272), (vHH, 16)], sT0)
su("s_mul_i32 %s, %s, %d" % (sT0, sW, 8 * 272))
vlin(su, vPRD, [(vLd8, 272), (vL8, 32)], sT0)
slin(su, sT0, [(sW, 8 * 144)], L_ZT)
vlin(su, vZR, [(vLd8, 144), (vL8, 16)], sT0)
su("s_add_u32 %s, %s, %d" % (sT0, sW2L, ZST))
su("v_add_u32 v%d, %s, v%d" % (vZW, sT0, vL16))
vlin(su, vZT, [(vR4, 128), (vG4, 32), (vC4, 8)], sT0)
slin(su, sT0, [(sW, 32)], L_ZT)
vlin(su, vZTW, [(L, 144)], sT0)
JT = opt("jt", 14)
vH2T = vc.get()
su("v_lshrrev_b32 v%d, 2, v%d" % (vT[0], L)); su("v_min_u32 v%d, %d, v%d" % (vT[0], max(13 - JT, 0), vT[0]))
slin(su, sT0, [(sC, 2)], JT)
su("v_add_u32 v%d, %s, v%d" % (vT[0], sT0, vT[0]))
su("v_subrev_u32 v%d, 14, v%d" % (vT[1], vT[0])); su("v_min_u32 v%d, v%d, v%d" % (vT[0], vT[0], vT[1]))
slin(su, sT0, [(sA, 16 * 896), (sW, 4 * 896), (sC, 128)], 64 * 896)
vlin(su, vH2T, [(vC4, 896)], sT0)
su("v_mul_u32_u24 v%d, %d, v%d" % (vT[0], CBS, vT[0]))
su("v_add_u32 v%d, v%d, v%d" % (vH2T, vH2T, vT[0]))
su("s_mul_i32 %s, %s, 43" % (sT1, sRB128)); su("s_lshr_b32 %s, %s, 7" % (sT1, sT1))
slin(su, sHB, [(sT1, 14 * CBS - 3 * 32768), (sRB128, 32768), (sCB128, CBS), (sW, 8192)], WS_H)
su("s_lshr_b32 %s, %s, 1" % (sT1, sW))
slin(su, sFH, [(sRB128, 512), (sT1, 256), (sCB128, 8), (sE2, 4)], WS_FH)
slin(su, sFU, [(sC, 512), (sW, 128), (sRB64, 4)], WS_FU)
su("s_and_b32 %s, %s, 63" % (sT2, sCH)); slin(su, sFZ, [(sC, 512), (sE2, 256), (sT2, 4)], WS_FZ)
su("s_lshr_b32 %s, %s, 3" % (sT0, sRB64)); slin(su, sPU, [(sC, 512), (sT0, 128), (sW, 32)], WS_FU)
su("s_mul_i32 %s, %s, 28" % (sT0, sW)); su("s_min_u32 %s, %s, 80" % (sT0, sT0)); slin(su, sPH, [(sRB64, 256), (sT0, 1)], WS_FH)
su("s_lshr_b32 %s, %s, 4" % (sT0, sRB64)); slin(su, sPZ, [(sC, 512), (sT0, 256), (sW, 64)], WS_FZ)
su("s_add_u32 %s, %s, 4096" % (sHB2, sHB))
slin(su, sZB, [(sCH, CP), (sE2, 2048)], WS_Z)
su("s_mov_b32 %s, %d" % (sQ1, 32 * 896))
su("s_mov_b32 %s, %d" % (sZ8, 8 * CP))
su("s_lshl_b32 %s, %s, 1" % (sT1, sE2)); su("s_add_u32 %s, %s, 8" % (sHSRC, sHSRC)); su("s_sub_u32 %s, %s, %s" % (sHSRC, sHSRC, sT1))
stamp(m)
st_issue(m, 1)
stamp(m)

vKD = vb.get(10, 2); vVD = vb.get(8, 2); vKO = vb.get(10, 2)
vKS = vb.get(16, 4); vVF = vb.get(16, 4); vTR = vb.get(2, 2); vUO = vb.get(8, 4)
p0r = Stream()
for i in range(5): p0r("ds_read_b64_tr_b16 %s, v%d offset:%d" % (vr(vKD + 2 * i, 2), vP0R, 512 * i), tag="p0r")
for i in range(4): p0r("ds_read_b64_tr_b16 %s, v%d offset:%d" % (vr(vVD + 2 * i, 2), vP0R, L_VS - L_KS - 512 + 512 * i), tag="p0v")
p0 = Stream()
p0.wait_lgkm("p0r")
for j in range(9): p0("v_alignbit_b32 v%d, v%d, v%d, 16" % (vKO + j, vKD + j + 1, vKD + j))
for s_ in range(16):
    hi = (vKD + (s_ + 3) // 2) if s_ % 2 else (vKO + (s_ + 2) // 2)
    p0("v_dot2_f32_bf16 v%d, v%d, v%d, 0" % (vKS + s_, hi, vTR))
p0.wait_lgkm("p0v")
for s_ in range(16):
    lo = (vKD + (s_ + 1) // 2) if s_ % 2 else (vKO + s_ // 2)
    p0("v_dot2_f32_bf16 v%d, v%d, v%d, v%d" % (vKS + s_, lo, vTR + 1, vKS + s_))
    j = s_ // 2
    p0("v_lshlrev_b32 v%d, 16, v%d" % (vVF + 2 * j, vVD + j) if s_ % 2 == 0 else "v_and_b32 v%d, 0xffff0000, v%d" % (vVF + 2 * j + 1, vVD + j))
for j in range(8): p0("v_pk_mul_f32 %s, %s, %s" % (vr(vKS + 2 * j, 2), vr(vKS + 2 * j, 2), vr(vVF + 2 * j, 2)))
for k_, p_ in enumerate((0, 2, 1, 3)):
    for hf in range(2): p0("v_cvt_pk_bf16_f32 v%d, v%d, v%d" % (vUO + 2 * k_ + hf, vKS + p_ + 8 * hf, vKS + p_ + 8 * hf + 4))
p0b = Stream()
p0b("ds_write_b128 v%d, %s" % (vP0W, vr(vUO, 4)), tag="p0w")
p0b("ds_write_b128 v%d, %s offset:16" % (vP0W, vr(vUO + 4, 4)), tag="p0w")
p0b("ds_read_b128 %s, v%d" % (vr(vKS, 4), vP0B), tag="p0b")
p0b("ds_read_b128 %s, v%d offset:1152" % (vr(vKS + 4, 4), vP0B), tag="p0b")
p0c = Stream()
p0c.wait_lgkm("p0b")
p0c("buffer_store_dwordx4 %s, v%d, %s, 0 offen sc1" % (vr(vKS, 4), vP0S, WS), tag="ust")
p0c("buffer_store_dwordx4 %s, v%d, %s, %s offen sc1" % (vr(vKS + 4, 4), vP0S, WS, sZ8), tag="ust")
p0c("v_add_u32 v%d, 0x%x, v%d" % (vP0S, WS_Z - WS_U, vP0S))

aF = 0
def g1_reads(kap):
    t, ks = kap // 4, kap % 4
    slot = (t % 4) * SLOT
    b = aF + 16 * (kap % 2)
    so = slot - (65536 if slot >= 65536 else 0)
    gs = [Stream(), Stream(), Stream()]
    for ft in range(2):
        g_ = gs[2 * ft]
        g_("ds_read_b64_tr_b16 %s, v%d offset:%d" % (ar(b + 8 + 4 * ft, 2), vWA[ft], so + ks * 4096), tag="f%d_%d" % (kap, ft))
        g_("ds_read_b64_tr_b16 %s, v%d offset:%d" % (ar(b + 8 + 4 * ft + 2, 2), vWA[ft], so + ks * 4096 + 512), tag="f%d_%d" % (kap, ft))
        gs[1]("ds_read_b128 %s, v%d offset:%d" % (ar(b + 4 * ft, 4), vXA[ks], so + 4096 * ft), tag="f%d_0" % kap)
    return gs
def g1_mf(s, kap, i, ft):
    b = aF + 16 * (kap % 2)
    c = "0" if kap == 0 else vr(vACC[2 * i + ft], 16)
    s("v_mfma_f32_32x32x16_bf16 %s, %s, %s, %s" % (vr(vACC[2 * i + ft], 16), ar(b + 8 + 4 * ft, 4), ar(b + 4 * i, 4), c))
def g1_kstep(s, kap, pre=None):
    rd = g1_reads(kap + 1) if kap + 1 < 28 else [Stream(), Stream(), Stream()]
    if pre is not None: s.wait_lgkm("f%d_1" % kap)
    else: s.wait_lgkm("f%d_0" % kap)
    g1_mf(s, kap, 0, 0)
    if pre is not None: s.extend(pre)
    s.extend(rd[0])
    g1_mf(s, kap, 1, 0)
    s.extend(rd[1])
    s.wait_lgkm("f%d_1" % kap)
    g1_mf(s, kap, 0, 1)
    s.extend(rd[2])
    g1_mf(s, kap, 1, 1)
    if kap % 8 == 6 and kap < 24:
        delta = 65536 if kap in (6, 22) else -65536
        for r in vXA + vWA: s("v_add_u32 v%d, 0x%x, v%d" % (r, delta & 0xffffffff, r))

def w2_issue(s, half, j):
    for q in range(2):
        s.begin()
        if q == 0: s("s_add_u32 m0, %s, %d" % (sW2L, 8192 * W2POS[j]))
        s("buffer_load_dwordx4 v%d, %s, %s offen offset:%d lds" % (vW2V[2 * half + q], W2, tCB[j], 1024 * q), tag="w2_%d_%d" % (half, j))
        s.end()
aW2 = [128, 0]
def w2_reads(s, half, j):
    off = 8192 * W2POS[j]; hi = off >= 65536; off -= 65536 * hi
    for t in range(2):
        b = aW2[half] + 8 * j + 4 * t
        s("ds_read_b64_tr_b16 %s, v%d offset:%d" % (ar(b, 2), vW2R[2 * hi + t], off), tag="w2r%d_%d" % (half, j))
        s("ds_read_b64_tr_b16 %s, v%d offset:%d" % (ar(b + 2, 2), vW2R[2 * hi + t], off + 1024), tag="w2r%d_%d" % (half, j))

hc = Stream()
for q in range(4):
    hc.begin()
    if q == 0: hc("s_add_u32 m0, %s, 64" % sRW)
    hc("buffer_load_dwordx4 v%d, %s, %s offen offset:%d lds" % (vL16, SSM, sHSRC, 1024 * q), tag="hc")
    hc.end()
hp = Stream()
hp("v_lshlrev_b32 v%d, 16, v%d" % (vT[0], vHP)); hp("v_lshlrev_b32 v%d, 16, v%d" % (vT[1], vDP))
hp("v_add_f32 v%d, v%d, v%d" % (vT[0], vT[0], vT[1]))
hp("v_and_b32 v%d, 0xffff0000, v%d" % (vT[1], vHP))
hp("v_cvt_pk_bf16_f32 v%d, v%d, v%d" % (vHP, vT[0], vT[1]))
hp("s_lshl_b32 %s, %s, 4" % (sT0, sE2))
hp("v_lshlrev_b64 %s, %s, %s" % (vr(vT[2], 2), sT0, vr(vHP, 2)))
hp("v_mov_b32 v%d, 0" % vT[0]); hp("v_mov_b32 v%d, 0" % vT[1])
hp("v_mov_b32 v%d, %s" % (vT[4], sRW))
hp("ds_write_b128 v%d, %s" % (vPADA, vr(vZ4, 4)), tag="z0")
hp("ds_write_b128 v%d, %s offset:48" % (vT[4], vr(vT[0], 4)), tag="z0")

fill = {t: Stream() for t in range(7)}
st_issue(fill[0], 2)
fill[1].extend(r2); st_issue(fill[1], 3, "x")
st_issue(fill[2], 3, "w"); st_issue(fill[2], 4)
fill[3].extend(p0b); fill[3].extend(p0c); st_issue(fill[3], 6)
E4, E5, E6, EG = opt("e4", 2), opt("e5", 6), opt("e6", 10), opt("eg", 14)
fill[4].extend(hc)
for j in range(0, E4): w2_issue(fill[4], 0, j)
flag_store(fill[4], sFU, "ust")
fill[5].extend(hp)
for j in range(E4, E5): w2_issue(fill[5], 0, j)
for j in range(E5, E6): w2_issue(fill[6], 0, j)
s5 = Stream(); st_issue(s5, 5)
p0pre = Stream()
p0pre("v_add_u32 v%d, 0x%x, v%d" % (vTAG, TAG_INC, vTAG))
p0pre("v_alignbit_b32 v%d, v%d, v%d, 16" % (vTR, vTP, vTP))
p0pre("v_alignbit_b32 v%d, v%d, v%d, 16" % (vTR + 1, vTP + 1, vTP + 1))
stamp(p0pre)
p0pre.wait_vm("kv")
p0pre("s_barrier")
stamp(p0pre)
bm = Stream()
for i in range(2):
    for ft in range(2):
        bm("v_mfma_f32_32x32x16_bf16 %s, %s, %s, %s" % (vr(vACC[2 * i + ft], 16), vr(vB1, 4), vr(vONE + 4 * ft, 4), vr(vACC[2 * i + ft], 16)))
p0pre.extend(spread(bm, p0r, 0.0, 0.75))
p0pre("v_readfirstlane_b32 s82, v%d" % vTAG); p0pre("v_readfirstlane_b32 s83, v%d" % vTAG)
p0pre.extend(spread(p0, s5, 0.0, 1.0, unit="any"))
stamp(p0pre)
def bar(t):
    b_ = Stream()
    fstamp(b_, 1)
    if t < 7: b_.wait_vm("st%d" % t)
    fstamp(b_, 1)
    b_("s_barrier")
    fstamp(b_, 1)
    return b_
m.extend(bar(0))
for g_ in g1_reads(0): m.extend(g_)
for t in range(7):
    s = Stream()
    if t > 0: g1_kstep(s, 4 * t - 1, bar(t))
    for ks in range(3): g1_kstep(s, 4 * t + ks)
    m.extend(spread(s, fill[t], 0.1 if t > 0 else 0.0, 1.0))
    if t == 2: m.extend(p0pre)
g1_kstep(m, 27, bar(7))
stamp(m)

vb = VA(128, VB_HI)
vGT = vb.get(16, 4); vUL = vb.get(8, 4); vHO = vb.get(8, 4)
def gelu(n0, n1):
    ge = Stream()
    for n in range(n0, n1):
        i, ft, hf = n // 4, (n // 2) % 2, n % 2
        x0 = vACC[2 * i + ft] + 8 * hf
        T = vGT + 8 * (n % 2); ho = vHO + 4 * (n % 2)
        for j in range(4): ge("v_pk_mul_f32 %s, %s, %s" % (vr(T + 2 * j, 2), vr(x0 + 2 * j, 2), vr(x0 + 2 * j, 2)))
        for j in range(4): ge("v_pk_fma_f32 %s, %s, %s, %s" % (vr(T + 2 * j, 2), vr(T + 2 * j, 2), sC1, vr(vC0, 2)))
        for j in range(4): ge("v_pk_mul_f32 %s, %s, %s" % (vr(T + 2 * j, 2), vr(T + 2 * j, 2), vr(x0 + 2 * j, 2)))
        for j in range(8): ge("v_exp_f32 v%d, v%d" % (T + j, T + j))
        for j in range(4): ge("v_pk_add_f32 %s, %s, 1.0 op_sel_hi:[1,0]" % (vr(T + 2 * j, 2), vr(T + 2 * j, 2)))
        for j in range(8): ge("v_rcp_f32 v%d, v%d" % (T + j, T + j))
        for j in range(4): ge("v_pk_mul_f32 %s, %s, %s" % (vr(T + 2 * j, 2), vr(T + 2 * j, 2), vr(x0 + 2 * j, 2)))
        for j in range(4): ge("v_cvt_pk_bf16_f32 v%d, v%d, v%d" % (ho + j, T + 2 * j, T + 2 * j + 1))
        ge("buffer_store_dwordx4 %s, v%d, %s, %s offen offset:%d sc1" % (vr(ho, 4), vL16, WS, sHB if i == 0 else sHB2, 1024 * (n % 4)), tag="hst%d" % i)
        if n == opt("fg", 6): flag_store(ge, sFH, "hst0"); ge("s_add_u32 %s, %s, 128" % (sFH, sFH))
    return ge
PUF = opt("puf", 3)
spoll_issue(m, 8, sPU)
gf = Stream()
for j in range(E6, EG): w2_issue(gf, 0, j)
m.extend(spread(gelu(0, PUF), gf, 0.0, 0.9, unit="any"))
spoll_check(m, 8, sPU, "pu")
fstamp(m)
m("s_barrier")
for q in range(2):
    m("buffer_load_dwordx4 %s, v%d, %s, 0 offen offset:%d sc1" % (vr(vUL + 4 * q, 4), vUA, WS, 2048 * q), tag="ul")
if JT < 14: m("buffer_load_dword v252, v%d, %s, 0 offen" % (vH2T, W2), tag="h2t")
aCF = 0
def conv_readsA(r):
    s = Stream(); base = aCF + 32 * (r & 1)
    for a in range(4):
        off = 128 * (8 * a + r)
        s("ds_read_b64_tr_b16 %s, v%d offset:%d" % (ar(base + 8 * a, 2), vCA, off + 32), tag="c%d" % r)
        s("ds_read_b64_tr_b16 %s, v%d offset:%d" % (ar(base + 8 * a + 2, 2), vCA, off), tag="c%d" % r)
    return s
def conv_readsB(r):
    s = Stream(); base = aCF + 32 * (r & 1)
    for i in range(4):
        s("ds_read_b128 %s, v%d offset:%d" % (ar(base + 8 * i + 4, 4), vCB, 32 * (8 * i - r + 7)), tag="c%d" % r)
    return s
g1s = gelu(PUF, 8)
gf = Stream()
gf.wait_vm("hc"); gf.extend(conv_readsA(0))
gf.wait_vm("ul")
for q in range(2):
    gf("ds_write2_b64 v%d, %s, %s offset0:%d offset1:%d" % (vUWA, vr(vUL + 4 * q, 2), vr(vUL + 4 * q + 2, 2), 64 * q, 64 * q + 160), tag="uw")
gf.extend(conv_readsB(0))
m.extend(spread(g1s, gf, 0.8, 0.98, unit="any"))
stamp(m)

vb = VA(128, VB_HI)
vEPB = vb.get(32, 4)
vQ = [vb.get(4, 4) for _ in range(2)]; vG = [vb.get(2, 2) for _ in range(2)]
vHV = [vHV0] + vXV[1:4]
ring = [vb.get(4, 4) for _ in range((VB_HI - vb.n) // 4)]
RING = [("v", r) for r in ring] + [("a", 240 + 4 * i) for i in range(4)] + [("a", 112 + 4 * i) for i in range(4)]
NR = len(RING)
def rr(i): f, b = RING[i % NR]; return ("%s[%d:%d]" % (f, b, b + 3))
def h_issue(s, n):
    sg, k = n // 28, n % 28
    half, j = k // 14, k % 14
    s("buffer_load_dwordx4 %s, v%d, %s, %s offen sc1" % (rr(n), vHV[2 * sg + half], WS, tCB[j]), tag="h%d" % n)
def w2_swap(s, j):
    s.wait_vm("w2_0_%d" % j); w2_reads(s, 0, j)
def w2_refill(s, j):
    s.wait_lgkm("w2r0_%d" % j); w2_issue(s, 1, j)
order = [("l", j) for j in range(EG, 14)]
for j in range(14):
    order.append(("r", j))
    if j >= 1: order.append(("f", j - 1))
order.append(("f", 13))
def do_order(s, lst):
    for kind, j in lst:
        if kind == "l": w2_issue(s, 0, j)
        else: (w2_swap if kind == "r" else w2_refill)(s, j)
def conv_mf(s, r, a, i):
    base = aCF + 32 * (r & 1); j = a + i
    c = "0" if (r == 0 and a == 0) else vr(vACC[j], 16)
    s("v_mfma_f32_32x32x16_bf16 %s, %s, %s, %s" % (vr(vACC[j], 16), ar(base + 8 * a, 4), ar(base + 8 * i + 4, 4), c))
def y_out(j):
    s = Stream(); R = vACC[j]
    for v in range(8): s("v_permlane16_swap_b32 v%d, v%d" % (R + v, R + v + 8))
    for v in range(2, 8): s("v_add_f32 v%d, v%d, v%d" % (R + v, R + v, R + 6 + v))
    s("ds_write_b64 v%d, %s offset:%d" % (vYC, vr(R + 14, 2), 512 * j), tag="yw")
    s("ds_write_b128 v%d, %s offset:%d" % (vYM, vr(R, 4), 2304 * j), tag="yw")
    s("ds_write_b128 v%d, %s offset:%d" % (vYM, vr(R + 4, 4), 2304 * j + 16), tag="yw")
    return s
NBW = opt("nbw", 6)
F0, F1, PB, HB = opt("f0", -1), opt("f1", 2), opt("pb", 3), opt("hb", 6)
per = (len(order) + NBW - 1) // NBW
hnext = [0]
HPB = opt("hpb", 5)
for r in range(8):
    s = Stream()
    s.wait_lgkm("c%d" % r)
    if r < 7:
        for a in range(4):
            for i in range(4 - a): conv_mf(s, r, a, i)
        rd = conv_readsA(r + 1); rd.extend(conv_readsB(r + 1))
        s = spread(s, rd, 0.0, 0.7)
    else:
        for j in range(4):
            for a in range(j + 1): conv_mf(s, r, a, j - a)
    f = Stream()
    if r == 0:
        f("v_add_u32 v%d, 8192, v%d" % (vHV[1], vHV[0])); f("v_add_u32 v%d, 4096, v%d" % (vHV[2], vHV[0])); f("v_add_u32 v%d, 12288, v%d" % (vHV[3], vHV[0]))
    if r == PB: spoll_issue(f, 8, sPH)
    do_order(f, order[r * per:(r + 1) * per])
    if r == F0: flag_store(f, sFH, "hst0"); f("s_add_u32 %s, %s, 128" % (sFH, sFH))
    if r == F1: flag_store(f, sFH, "hst1")
    if r == HB:
        spoll_check(m, 8, sPH, "ph0")
        m("s_barrier")
        m("s_add_u32 %s, %s, 128" % (sPH, sPH))
    if r >= HB:
        for _ in range(HPB): h_issue(f, hnext[0]); hnext[0] += 1
    if r < 7:
        s = spread(s, f, 0.0, 1.0)
    else:
        ops = s.ops; s = Stream()
        mf = [o for o in ops if o.kind == "mfma"]; s.ops.extend([o for o in ops if o.kind != "mfma"])
        zc = Stream(); zc("v_mov_b32 v%d, %s" % (vT[4], sRW)); zc("ds_write_b64 v%d, %s offset:%d" % (vT[4], vr(vZ4, 2), R_CY), tag="yw")
        fg = groups(f.ops)
        y0, y1, y2 = y_out(0).ops, y_out(1).ops, y_out(2).ops
        plan = {0: zc.ops + sum(fg[:2], []), 1: sum(fg[2:4], []), 2: y0[:6], 3: y0[6:12], 4: y0[12:] + y1[:3], 5: y1[3:9], 6: y1[9:15], 7: y1[15:] + y2[:4], 8: y2[4:10], 9: y2[10:] + sum(fg[4:], [])}
        for k_, o in enumerate(mf):
            s.ops.append(o); s.ops.extend(plan[k_])
    if r in (2, 4, 6): fstamp(m)
    m.extend(s)
stamp(m)
m.extend(y_out(3))
for _ in range(2): h_issue(m, hnext[0]); hnext[0] += 1
m.wait_lgkm("yw")
m("s_barrier")
for q in range(2):
    b = vEPB + 16 * q
    for y in range(2):
        m("ds_read_b64 %s, v%d offset:%d" % (vr(vT[4 * q + 2 * y], 2), vYRC, 512 * q + RSZ * y), tag="yr%d" % q)
        for hf in range(2):
            m("ds_read_b128 %s, v%d offset:%d" % (vr(b + 8 * y + 4 * hf, 4), vYR, 2304 * q + RSZ * y + 16 * hf), tag="yr%d" % q)
for _ in range(2): h_issue(m, hnext[0]); hnext[0] += 1
for q in range(2):
    m.wait_lgkm("yr%d" % q)
    b = vEPB + 16 * q
    m("v_pk_add_f32 %s, %s, %s" % (vr(vT[4 * q], 2), vr(vT[4 * q], 2), vr(vT[4 * q + 2], 2)))
    for j in range(4): m("v_pk_add_f32 %s, %s, %s" % (vr(b + 2 * j, 2), vr(b + 2 * j, 2), vr(b + 8 + 2 * j, 2)))
    m("v_pk_add_f32 %s, %s, %s" % (vr(b, 2), vr(b, 2), vr(vT[4 * q], 2)))
    for j in (1, 2, 3, 0): m("v_cvt_pk_bf16_f32 v%d, v%d, v%d" % (b + 8 + j, b + 2 * j, b + 2 * j + 1))
    m("buffer_store_dwordx4 %s, v%d, %s, %s offen offset:%d sc1" % (vr(b + 8, 4), vL16, WS, sZB, 1024 * q), tag="zst")
stamp(m)
spoll_issue(m, 8, sPH)

vA2 = vACC
vZL = vEPB + 16
def z_load(s):
    spoll_check(s, 16, sPZ, "pz")
    s("buffer_load_dwordx4 %s, v%d, %s, 0 offen sc1" % (vr(vZL, 4), vP0S, WS), tag="zl")
    s("buffer_load_dwordx4 %s, v%d, %s, %s offen sc1" % (vr(vZL + 4, 4), vP0S, WS, sZ8), tag="zl")
def z_xpose(s):
    s.wait_vm("zl")
    s("ds_write_b128 v%d, %s" % (vZW, vr(vZL, 4)), tag="zw")
    s("ds_write_b128 v%d, %s offset:1024" % (vZW, vr(vZL + 4, 4)), tag="zw")
    for i in range(4):
        s("ds_read_b64_tr_b16 %s, v%d offset:%d" % (vr(vZL + 8 + 2 * i, 2), vZT, 512 * i), tag="zr")
def z_xpose2(s):
    s.wait_lgkm("zr")
    s("ds_write_b128 v%d, %s" % (vZTW, vr(vZL + 8, 4)), tag="zw2")
    s("ds_write_b128 v%d, %s offset:16" % (vZTW, vr(vZL + 12, 4)), tag="zw2")
def part_write(s, sg, ts=(0, 1)):
    for t in ts:
        for a in range(4):
            s("ds_write_b128 v%d, %s offset:%d" % (vT[3] if sg == 0 else vPW, vr(vA2[2 * sg + t] + 4 * a, 4), 128 * t + 32 * a), tag="pw%d" % sg)
def red_reads(s, sg, E):
    for w in range(4):
        for hf in range(2):
            s("ds_read_b128 %s, v%d offset:%d" % (vr(E + 8 * w + 4 * hf, 4), vT[2] if sg == 0 else vPRD, PB_SZ * w + 16 * hf), tag="pr%d" % sg)
vB2F = vXA + vWA + vWV[0:2]
vB2F = vb.n if False else None
def red(s, sg, E, pk, b2f):
    s.wait_lgkm("pr%d" % sg)
    def add(d, a, b):
        if pk: s("v_pk_add_f32 %s, %s, %s" % (vr(d, 2), vr(a, 2), vr(b, 2)))
        else:
            s("v_add_f32 v%d, v%d, v%d" % (d, a, b)); s("v_add_f32 v%d, v%d, v%d" % (d + 1, a + 1, b + 1))
    for j in range(4):
        add(E + 2 * j, E + 2 * j, E + 8 + 2 * j)
        add(E + 16 + 2 * j, E + 16 + 2 * j, E + 24 + 2 * j)
    for j in range(4): add(E + 2 * j, E + 2 * j, b2f + 2 * j)
    for j in range(4): add(E + 2 * j, E + 2 * j, E + 16 + 2 * j)
def unpack(s, dst, src):
    for j in range(4):
        s("v_lshlrev_b32 v%d, 16, v%d" % (dst + 2 * j, src + j)); s("v_and_b32 v%d, 0xffff0000, v%d" % (dst + 2 * j + 1, src + j))
def fin(s, sg, B, QF, Zr, T):
    unpack(s, T, Zr)
    for j in range(4):
        s("v_pk_fma_f32 %s, %s, %s, %s neg_lo:[0,0,1] neg_hi:[0,0,1]" % (vr(QF + 2 * j, 2), vr(QF + 2 * j, 2), vr(T + 2 * j, 2), vr(B + 2 * j, 2)))
    for j in range(4):
        s("v_pk_fma_f32 %s, %s, %s, %s op_sel_hi:[1,0,1]" % (vr(B + 2 * j, 2), vr(QF + 2 * j, 2), vr(vG[sg], 2), vr(B + 2 * j, 2)))
    for j in range(4):
        s("v_cvt_pk_bf16_f32 v%d, v%d, v%d" % (T + j, B + 2 * j, B + 2 * j + 1))
    s("buffer_store_dwordx4 %s, v%d, %s, %s offen %s" % (vr(T, 4), vQO, OUT, "0" if sg == 0 else sQ1, OPT.get("ost", "").replace("_", " ")), tag="ost")

def g2_mf(s, n, t):
    sg, k = n // 28, n % 28
    half, j = k // 14, k % 14
    c = "0" if k == 0 else vr(vA2[2 * sg + t], 16)
    s("v_mfma_f32_32x32x16_bf16 %s, %s, %s, %s" % (vr(vA2[2 * sg + t], 16), ar(aW2[half] + 8 * j + 4 * t, 4), rr(n), c))
def g2_seg(n0, n1, lim):
    s = Stream()
    for n in range(n0, n1):
        s.wait_vm("h%d" % n)
        if n == 0: s.wait_lgkm("w2r0_13")
        if 14 <= n < 28: s.wait_lgkm("w2r1_%d" % (n - 14))
        rd = Stream()
        if n < 14:
            rd.wait_vm("w2_1_%d" % n); w2_reads(rd, 1, n)
        for t in range(2):
            g2_mf(s, n, t)
            if t == 0:
                if hnext[0] < lim and hnext[0] < n + NR:
                    h_issue(s, hnext[0]); hnext[0] += 1
                s.ops.extend(rd.ops[:3])
            else:
                s.ops.extend(rd.ops[3:])
    return s
PH1 = opt("ph1", 10)
m.extend(g2_seg(0, PH1, 28))
spoll_check(m, 8, sPH, "ph1")
fstamp(m)
m("s_barrier")
f = Stream()
flag_store(f, sFZ, "zst")
f("buffer_load_dwordx4 %s, v%d, %s, 0 offen" % (vr(vQ[0], 4), vQO, Q), tag="q")
f("buffer_load_dwordx4 %s, v%d, %s, %s offen" % (vr(vQ[1], 4), vQO, Q, sQ1), tag="q")
gran_issue(f, vG[0], vGA, 0, "pg0"); gran_issue(f, vG[1], vGA, 256, "pg1")
f("v_add_u32 v%d, %d, v%d" % (vT[3], L_PB0, vPW)); f("v_add_u32 v%d, %d, v%d" % (vT[2], L_PB0, vPRD))
unpack(f, vEPB, vB2)
m.extend(spread(g2_seg(PH1, 28, 56), f, 0.0, 0.6))
m.smem_done()
stamp(m)
f = Stream(); part_write(f, 0); f.wait_lgkm("pw0"); f("s_barrier")
m.extend(spread(g2_seg(28, 38, 56), f, 0.1, 1.0))
fstamp(m)
ZP = opt("zp", 40)
f = Stream(); red_reads(f, 0, vA2[0]); red(f, 0, vA2[0], False, vEPB); spoll_issue(f, 16, sPZ)
f.wait_vm("q"); unpack(f, vA2[0] + 8, vQ[0]); unpack(f, vA2[0] + 16, vQ[1])
m.extend(spread(g2_seg(38, 48, 56), f, 0.0, 1.0))
s = Stream()
for n in range(48, 56):
    s.wait_vm("h%d" % n); g2_mf(s, n, 0)
f = Stream(); gran_check(f, vG[0], vGA, 0, "pg0"); gran_check(f, vG[1], vGA, 256, "pg1"); z_load(f)
m.extend(spread(s, f, 0.0, 0.6))
s = Stream()
for n in range(48, 56): g2_mf(s, n, 1)
f = Stream(); part_write(f, 1, (0,))
m.extend(spread(s, f, 0.2, 1.0))
stamp(m)
z_xpose(m)
part_write(m, 1, (1,))
z_xpose2(m)
m.wait_lgkm("zw2")
m("s_barrier")
stamp(m)
m("ds_read_b128 %s, v%d" % (vr(vT[4], 4), vZR), tag="zt")
m("ds_read_b128 %s, v%d offset:%d" % (vr(vT[0], 4), vZR, 32 * 144), tag="zt")
red_reads(m, 1, vA2[2])
m.wait_lgkm("zt")
fin(m, 0, vA2[0], vA2[0] + 8, vT[4], vEPB + 8)
red(m, 1, vA2[2], True, vEPB)
fin(m, 1, vA2[2], vA2[0] + 16, vT[0], vEPB + 16)
stamp(m)
print("vgprs used:", va.n, vc.n, "ring", NR, file=sys.stderr)

def stamp_out(s):
    if not STAMP: return
    s("s_waitcnt vmcnt(0)")
    stamp(s)
    nstamp[0] = 40
    stamp(s, rt=True)
    if AT >= 0:
        if s is not m: return
        s("v_readlane_b32 s40, v%d, %d" % (vSTA, AT))
        s("s_add_u32 s40, s40, 1600")
        s("L_cal:")
        s("s_memrealtime s[42:43]")
        s("s_waitcnt lgkmcnt(0)")
        s("s_sub_u32 s41, s42, s40")
        s("s_cmp_lt_i32 s41, 0")
        s("s_cbranch_scc1 L_cal")
        return
    if DBG:
        if s is not m: return
        sel = [int(x) for x in OPT.get("sel", "2,4,6,7,8,9,10,11,12,13,14,15").split(",")]
        s("v_readlane_b32 s40, v%d, 1" % vSTA)
        for k, idx in enumerate(sel):
            s("v_readlane_b32 s41, v%d, %d" % (vSTA, idx))
            s("s_sub_u32 s41, s41, s40")
            s("v_writelane_b32 v%d, s41, %d" % (vT[0], k))
        s("v_readlane_b32 s41, v%d, 40" % vSTA); s("v_writelane_b32 v%d, s41, 13" % vT[0])
        s("v_readlane_b32 s41, v%d, 41" % vSTA); s("v_writelane_b32 v%d, s41, 14" % vT[0])
        s("s_not_b32 s41, s41"); s("v_writelane_b32 v%d, s41, 15" % vT[0])
        s("v_lshlrev_b32 v%d, 2, v%d" % (vT[1], vLANE))
        s("v_add_co_u32 v62, vcc, v62, v%d" % vT[1])
        s("v_addc_co_u32 v63, vcc, 0, v63, vcc")
        s("s_mov_b64 exec, 0x%x" % ((1 << len(sel)) - 1))
        s("global_atomic_add v[62:63], v%d, off sc1" % vT[0])
        s("s_mov_b64 exec, 0xe000")
        s("global_atomic_umax v[62:63], v%d, off sc1" % vT[0])
        return
    slin(s, sT0, [("s2", 1024), (sW, 256)], WS_STAMP)
    s("v_lshlrev_b32 v%d, 2, v%d" % (vT[0], vLANE))
    s("buffer_store_dword v%d, v%d, %s, %s offen" % (vSTA, vT[0], WS, sT0))
stamp_out(m)
m("s_endpgm")

g = Stream(); g_stream[0] = g
g("L_spare:")
g("s_mov_b64 s[36:37], s[68:69]"); g("s_mov_b64 s[28:29], s[58:59]")
nstamp[0] = 0
stamp(g, rt=True); stamp(g)
if STAMP: g("v_writelane_b32 v%d, s6, 41" % vSTA)
g("v_mov_b32 v12, 0")
g("buffer_load_dword v%d, v12, %s, 0 offen sc1" % (vTAG, WS))
sJ = sA
if opt("pf", 1):
    g("s_sub_u32 %s, %s, 28" % (sT0, sI)); g("s_lshl_b32 %s, %s, 2" % (sT0, sT0)); g("s_add_u32 %s, %s, %s" % (sT0, sT0, sW))
    g("v_lshrrev_b32 v12, 1, v%d" % vLANE); g("v_mul_u32_u24 v12, 3584, v12")
    g("v_and_b32 v13, 1, v%d" % vLANE); g("v_lshl_add_u32 v12, v13, 7, v12")
    g("s_and_b32 %s, %s, 1" % (sCH, sX)); g("s_mul_i32 %s, %s, %d" % (sCH, sCH, 7 * 256))
    g("L_pf1:")
    g("s_lshr_b32 %s, %s, 1" % (sT1, sT0))
    g("s_mul_i32 %s, %s, 147" % (sT2, sT1)); g("s_lshr_b32 %s, %s, 10" % (sT2, sT2))
    g("s_mul_i32 %s, %s, 7" % (sT3, sT2)); g("s_sub_u32 %s, %s, %s" % (sT1, sT1, sT3))
    g("s_lshl_b32 %s, %s, 1" % (sT2, sT2)); g("s_add_u32 %s, %s, %s" % (sT2, sT2, sT1)); g("s_add_u32 %s, %s, 1" % (sT2, sT2))
    g("s_cmp_ge_u32 %s, 7" % sT2); g("s_cselect_b32 %s, 7, 0" % sT3); g("s_sub_u32 %s, %s, %s" % (sT2, sT2, sT3))
    g("s_lshl_b32 %s, %s, 1" % (sT2, sT2)); g("s_and_b32 %s, %s, 1" % (sT3, sT0)); g("s_add_u32 %s, %s, %s" % (sT2, sT2, sT3))
    g("s_mul_i32 %s, %s, %d" % (sT2, sT2, 32 * 3584))
    g("s_lshl_b32 %s, %s, 8" % (sT1, sT1)); g("s_add_u32 %s, %s, %s" % (sT2, sT2, sT1)); g("s_add_u32 %s, %s, %s" % (sT2, sT2, sCH))
    g("buffer_load_dword v13, v12, %s, %s offen" % (W1, sT2))
    g("s_add_u32 %s, %s, 16" % (sT0, sT0))
    g("s_cmp_lt_u32 %s, 42" % sT0)
    g("s_cbranch_scc1 L_pf1")
    g("s_sub_u32 %s, %s, 42" % (sT0, sT0))
    g("v_mul_u32_u24 v12, 896, v%d" % vLANE)
    g("L_pf:")
    g("s_cmp_ge_u32 %s, 98" % sT0); g("s_cselect_b32 %s, 98, 0" % sT1); g("s_cselect_b32 %s, 57344, 0" % sCH)
    g("s_sub_u32 %s, %s, %s" % (sT1, sT0, sT1))
    g("s_mul_i32 %s, %s, 147" % (sT2, sT1)); g("s_lshr_b32 %s, %s, 10" % (sT2, sT2))
    g("s_mul_i32 %s, %s, 7" % (sT3, sT2)); g("s_sub_u32 %s, %s, %s" % (sT1, sT1, sT3))
    g("s_lshl_b32 %s, %s, 1" % (sT3, sT1)); g("s_add_u32 %s, %s, %s" % (sT2, sT2, sT3))
    g("s_cmp_ge_u32 %s, 14" % sT2); g("s_cselect_b32 %s, 14, 0" % sT3); g("s_sub_u32 %s, %s, %s" % (sT2, sT2, sT3))
    g("s_mul_i32 %s, %s, %d" % (sT2, sT2, CBS)); g("s_lshl_b32 %s, %s, 7" % (sT1, sT1))
    g("s_add_u32 %s, %s, %s" % (sT1, sT1, sT2)); g("s_add_u32 %s, %s, %s" % (sT1, sT1, sCH))
    g("buffer_load_dword v13, v12, %s, %s offen" % (W2, sT1))
    g("s_add_u32 %s, %s, 16" % (sT0, sT0))
    g("s_cmp_lt_u32 %s, %d" % (sT0, 98 + 7 * JT))
    g("s_cbranch_scc1 L_pf")
g("s_sub_u32 %s, %s, 28" % (sJ, sI)); g("s_lshl_b32 %s, %s, 2" % (sT0, sX)); g("s_add_u32 %s, %s, %s" % (sJ, sJ, sT0))
slin(g, sT0, [(sJ, 64), (sW, 16)])
g("v_lshrrev_b32 v12, 2, v%d" % vLANE); g("v_add_u32 v12, %s, v12" % sT0)
g("v_and_b32 v15, 3, v%d" % vLANE); g("v_lshlrev_b32 v15, 4, v15")
g("v_mul_u32_u24 v14, 896, v12"); g("v_add_u32 v14, v14, v15")
for i in range(14):
    g("buffer_load_dwordx4 v[%d:%d], v14, %s, 0 offen offset:%d" % (16 + 4 * i, 19 + 4 * i, Q, 64 * i), tag="gq")
for i in range(14):
    g("global_load_dwordx4 v[%d:%d], v15, %s offset:%d" % (80 + 4 * i, 83 + 4 * i, P_GATE, 64 * i), tag="gq")
g("s_waitcnt vmcnt(0)")
g("v_add_u32 v%d, 0x%x, v%d" % (vTAG, TAG_INC, vTAG))
for i in range(56):
    acc = 140 + (i % 4)
    g("v_dot2_f32_bf16 v%d, v%d, v%d, %s" % (acc, 16 + i, 80 + i, "0" if i < 4 else "v%d" % acc))
g("v_add_f32 v140, v140, v141"); g("v_add_f32 v142, v142, v143"); g("v_add_f32 v140, v140, v142")
g("v_add_f32_dpp v140, v140, v140 quad_perm:[1,0,3,2] row_mask:0xf bank_mask:0xf")
g("v_add_f32_dpp v140, v140, v140 quad_perm:[2,3,0,1] row_mask:0xf bank_mask:0xf")
g("v_mul_f32 v140, 0x%x, v140" % f2u(-math.log2(math.e)))
g("v_exp_f32 v140, v140"); g("v_add_f32 v140, 1.0, v140"); g("v_rcp_f32 v140, v140")
g("v_mov_b32 v141, v%d" % vTAG)
g("v_lshlrev_b32 v12, 3, v12"); g("v_add_u32 v12, 0x%x, v12" % WS_G)
g("s_mov_b32 exec_lo, 0x11111111"); g("s_mov_b32 exec_hi, 0x11111111")
g("buffer_store_dwordx2 v[140:141], v12, %s, 0 offen sc1" % WS)
g("s_mov_b64 exec, -1")
g("s_cmp_lg_u32 s2, 255"); g("s_cbranch_scc1 L_spare_done")
g("s_cmp_lg_u32 %s, 0" % sW); g("s_cbranch_scc1 L_spare_done")
g("v_lshlrev_b32 v12, 4, v%d" % vLANE); g("v_add_u32 v12, 0x%x, v12" % WS_FU)
g("v_min_u32 v15, 31, v%d" % vLANE); g("v_lshlrev_b32 v15, 4, v15"); g("v_add_u32 v15, 0x%x, v15" % (WS_FU + 3072))
g("v_lshlrev_b32 v13, 7, v%d" % vLANE); g("v_add_u32 v13, 0x%x, v13" % (WS_G + 4))
g("v_add_u32 v14, 8192, v13")
g("s_mov_b32 %s, 0" % sSPIN)
g("L_upd:")
g("s_sleep 8")
for i in range(3):
    g("buffer_load_dwordx4 v[%d:%d], v12, %s, 0 offen offset:%d sc1" % (16 + 4 * i, 19 + 4 * i, WS, 1024 * i))
g("buffer_load_dwordx4 v[28:31], v15, %s, 0 offen sc1" % WS)
g("buffer_load_dword v32, v13, %s, 0 offen sc1" % WS)
g("buffer_load_dword v33, v14, %s, 0 offen sc1" % WS)
g("s_add_u32 %s, %s, 1" % (sSPIN, sSPIN))
g("s_waitcnt vmcnt(0)")
for i in range(18): g("v_xor_b32 v%d, v%d, v%d" % (16 + i, 16 + i, vTAG))
for i in range(1, 18): g("v_or_b32 v16, v16, v%d" % (16 + i))
g("v_cmp_ne_u32 vcc, 0, v16")
g("s_cmp_gt_u32 %s, 0x40000" % sSPIN)
g("s_cbranch_scc1 L_upd_go")
g("s_cbranch_vccnz L_upd")
g("L_upd_go:")
g("v_mov_b32 v12, 0")
g("s_mov_b64 exec, 1")
g("buffer_store_dword v%d, v12, %s, 0 offen sc1" % (vTAG, WS))
g("s_mov_b64 exec, -1")
g("L_spare_done:")
nstamp[0] = 2
stamp_out(g)
g("L_end:")
g("s_endpgm")

k_ = 0
for o in m.ops:
    if "STAMPIDX" in o.text:
        o.text = o.text.replace("STAMPIDX", str(k_)); k_ += 1
assert k_ <= 40
if AT >= 0:
    keep = []
    for o in m.ops:
        mm = re.match(r"v_writelane_b32 v%d, s66, (\d+)$" % vSTA, o.text)
        if mm and int(mm.group(1)) != AT:
            keep.pop(); keep.pop(); continue
        keep.append(o)
    m.ops = keep
nts = [d for d in OPT.get("nt", "").split(",") if d]
for o in m.ops:
    if o.kind in VMEMK and o.tag and any(o.tag.startswith(d) for d in nts) and "global_" not in o.text:
        o.text = o.text.replace(" lds", " nt lds") if o.text.endswith(" lds") else o.text + " nt"
drops = [d for d in OPT.get("drop", "").split(",") if d]
if drops:
    keep = []; dropped = set()
    for o in m.ops:
        if o.kind in VMEMK and o.tag and any(o.tag.startswith(d) for d in drops):
            dropped.add(o.tag); continue
        if o.kind == "waitvm" and o.waitfor in dropped: continue
        keep.append(o)
    m.ops = keep
body = render(finalize(m)) + "\n" + render(insert_nops(spins.ops)) + "\n" + render(insert_nops(resolve_waits(g.ops)))
hdr = open("cdna_kernels/%s.s.ref" % NAME).read().split("; Override launch")[0]
out = hdr + "; @launch grid=(256,1,1) block=(256,1,1) lds=%d\n" % LDS_TOTAL
out += '.amdgcn_target "amdgcn-amd-amdhsa--gfx950"\n.text\n.globl %s_kernel\n.p2align 8\n.type %s_kernel,@function\n%s_kernel:\n' % (NAME, NAME, NAME)
out += body + "\nL_code_end:\n"
out = out.replace("CODE_BYTES", "L_code_end-%s_kernel-64" % NAME)
out += '.section .rodata,"a"\n.p2align 6\n.amdhsa_kernel %s_kernel\n' % NAME
out += "  .amdhsa_next_free_vgpr 512\n  .amdhsa_next_free_sgpr 102\n  .amdhsa_accum_offset 256\n  .amdhsa_group_segment_fixed_size 0\n"
out += "  .amdhsa_kernarg_size 120\n  .amdhsa_user_sgpr_count 2\n  .amdhsa_user_sgpr_kernarg_segment_ptr 1\n  .amdhsa_system_sgpr_workgroup_id_x 1\n.end_amdhsa_kernel\n"
open(sys.argv[1], "w").write(out)
```

```python
import sys, math, struct
sys.path.insert(0, "gen")
from asmlib import *

NAME = "gated_mix__ssm_conv_h3__dense_activation_gelu__prompt"
STAMP = int(sys.argv[2]) if len(sys.argv) > 2 else 0
DBG = STAMP >= 3
if DBG: STAMP -= 2
AT = -1
if STAMP == 3: STAMP = 2; DBG = False; AT = int(dict(a.split("=") for a in sys.argv[3:])["at"])
OPT = dict(a.split("=") for a in sys.argv[3:])
def opt(k, d): return type(d)(OPT.get(k, d))
f2u = lambda f: struct.unpack("<I", struct.pack("<f", f))[0]

WS_FU = 0x1000
WS_FZ = 0x2000
WS_FH = 0x3000
WS_G  = 0x8000
WS_STAMP = 0x10000
WS_U  = 0x100000
WS_Z  = 0x300000
CP = 4224
WS_H  = 0x500000
CBS = 128 * 896
WS_SIZE = 0x1000000
TAG_INC = 0x9E3779B9
SLOT = 32768
L_R = 114688; RSZ = 11280
R_UW = 4160; UP = 1280; R_CY = 9216
L_KS = 131072
L_VS = L_KS + 72 * 128
L_P0 = L_VS + 64 * 128
L_PB0 = 114688; PB_SZ = 8704
L_PB1 = 0
L_ZT = 149696
ZST = 65536
LDS_TOTAL = 163840
W2POS = [12, 13, 0, 1, 2, 3, 4, 5, 6, 7, 8, 9, 10, 11]

Q, K, V, SSM, W1, W2, OUT, WS = ["s[%d:%d]" % (b, b + 3) for b in range(8, 40, 4)]
WSP = "s[36:37]"
P_SHIFT, P_D, P_B1, P_B2, P_GATE = "s[46:47]", "s[50:51]", "s[56:57]", "s[60:61]", "s[62:63]"
sW, sX, sI, sA, sC, sRB128, sCB128, sRB64 = "s70", "s71", "s72", "s73", "s74", "s75", "s76", "s77"
sT0, sT1, sT2, sT3 = "s78", "s79", "s80", "s81"
sTAG = "s[82:83]"
sROT, sSPIN, sCH, sHB = "s84", "s85", "s86", "s87"
sXL, sWL, sW2L, sRW, sPO, sE2, sHSRC = "s88", "s89", "s3", "s4", "s5", "s6", "s7"
sC1 = "s[64:65]"
sST = "s[66:67]"
sFU, sFH, sFZ = "s0", "s1", "s62"
sPU, sPH, sPZ = "s63", sX, sI
sHB2, sZB, sQ1, sZ8 = sROT, sRB128, sCB128, sA
tXO = ["s40", "s41", "s42", "s43", "s44", "s45", "s48"]
tWO = ["s49", "s52", "s53", "s54", "s55", "s58", "s59"]
tCB = ["s%d" % i for i in range(90, 102)] + ["s68", "s69"]
sPOLL = 40

class VA:
    def __init__(self, lo, hi): self.n = lo; self.hi = hi
    def get(self, k=1, align=1):
        self.n = (self.n + align - 1) // align * align
        r = self.n; self.n += k
        assert self.n <= self.hi, "out of regs"
        return r
def vr(b, k=1): return "v%d" % b if k == 1 else "v[%d:%d]" % (b, b + k - 1)
def ar(b, k=1): return "a%d" % b if k == 1 else "a[%d:%d]" % (b, b + k - 1)

spins = Stream()
nstamp = [0]; g_stream = [None]
VB_HI = 236
va = VA(0, 64); vb = VA(128, VB_HI); vc = VA(VB_HI, 252)
vTID = va.get(); vLANE = va.get(); vTAG = va.get(); vSTA = va.get()
vT = [va.get() for _ in range(8)]
L = vLANE

def stamp(s, rt=False):
    if not STAMP: return
    i = nstamp[0]; nstamp[0] += 1
    s.begin()
    s("%s %s" % ("s_memrealtime" if (rt or STAMP == 2) else "s_memtime", sST))
    s("s_waitcnt lgkmcnt(0)")
    s("v_writelane_b32 v%d, s66, %s" % (vSTA, "STAMPIDX" if i < 40 and s is not g_stream[0] else str(i)))
    s.end()
def fstamp(s, lvl=2):
    if opt("fine", 0) == lvl: stamp(s)

def slin(s, dst, terms, const=0):
    tmp = sT3; first = True
    for reg, mult in terms:
        d = dst if first else tmp
        if mult == 1: src = reg
        else:
            if mult & (mult - 1) == 0: s("s_lshl_b32 %s, %s, %d" % (d, reg, mult.bit_length() - 1))
            else: s("s_mul_i32 %s, %s, %d" % (d, reg, mult))
            src = d
        if first:
            if src != dst: s("s_mov_b32 %s, %s" % (dst, src))
        else: s("s_add_u32 %s, %s, %s" % (dst, dst, src))
        first = False
    if const: s("s_add_u32 %s, %s, 0x%x" % (dst, dst, const))
def vlin(s, dst, terms, base=None):
    acc = None
    terms = sorted(terms, key=lambda t: t[1] & (t[1] - 1) == 0)
    for reg, mult in terms:
        p2 = mult & (mult - 1) == 0
        if acc is None:
            if p2 and isinstance(base, str):
                s("v_lshl_add_u32 v%d, v%d, %d, %s" % (dst, reg, mult.bit_length() - 1, base)); base = None
            elif p2: s("v_lshlrev_b32 v%d, %d, v%d" % (dst, mult.bit_length() - 1, reg))
            else: s("v_mul_u32_u24 v%d, %d, v%d" % (dst, mult, reg))
            acc = dst
        else:
            assert p2
            s("v_lshl_add_u32 v%d, v%d, %d, v%d" % (dst, reg, mult.bit_length() - 1, dst))
    if base is not None:
        s("v_add_u32 v%d, %s, v%d" % (dst, base if isinstance(base, str) else "0x%x" % base, dst))

def flag_store(s, sreg, tagwait):
    s.wait_vm(tagwait)
    s.begin()
    s("s_mov_b64 exec, 1")
    s("buffer_store_dword v%d, off, %s, %s sc1" % (vTAG, WS, sreg), tag="flag")
    s("s_mov_b64 exec, -1")
    s.end()

npoll = [0]
def spoll_issue(s, n, soff):
    s("s_load_dwordx%d s[%d:%d], %s, %s glc" % (n, sPOLL, sPOLL + n - 1, WSP, soff))
def spin_tail(t, tag):
    if STAMP: t("v_writelane_b32 v%d, %s, %d" % (vSTA, sSPIN, 48 + npoll[0]))
    npoll[0] += 1
    t("s_cmp_gt_u32 %s, 0x40000" % sSPIN)
    t("s_cbranch_scc1 L_ok_%s" % tag)
    t("s_cbranch_vccz L_ok_%s" % tag)
    t("s_sleep 1")
    t("s_branch L_spin2_%s" % tag)
def spoll_check(s, n, soff, tag):
    s.begin()
    s("s_waitcnt lgkmcnt(0)")
    for i in range(0, n, 2):
        s("s_cmp_lg_u64 s[%d:%d], %s" % (sPOLL + i, sPOLL + i + 1, sTAG))
        s("s_cbranch_scc1 L_spin_%s" % tag)
    s("L_ok_%s:" % tag)
    s.end()
    t = spins
    t("L_spin_%s:" % tag)
    t("s_mov_b32 %s, 0" % sSPIN)
    t("v_min_u32 v254, %d, v%d" % (n - 1, L))
    t("v_lshl_add_u32 v254, v254, 2, %s" % soff)
    t("L_spin2_%s:" % tag)
    t("buffer_load_dword v255, v254, %s, 0 offen sc1" % WS)
    t("s_add_u32 %s, %s, 1" % (sSPIN, sSPIN))
    t("s_waitcnt vmcnt(0)")
    t("v_cmp_ne_u32 vcc, v255, v%d" % vTAG)
    spin_tail(t, tag)
def gran_issue(s, vdst, vaddr, off, tag):
    s("buffer_load_dwordx2 %s, v%d, %s, 0 offen offset:%d sc1" % (vr(vdst, 2), vaddr, WS, off), tag=tag)
def gran_check(s, vdst, vaddr, off, tag):
    s.wait_vm(tag)
    s.begin()
    s("v_cmp_ne_u32 vcc, v%d, v%d" % (vdst + 1, vTAG))
    s("s_cbranch_vccnz L_spin_%s" % tag)
    s("L_ok_%s:" % tag)
    s.end()
    t = spins
    t("L_spin_%s:" % tag)
    t("s_mov_b32 %s, 0" % sSPIN)
    t("L_spin2_%s:" % tag)
    gran_issue(t, vdst, vaddr, off, tag)
    t("s_add_u32 %s, %s, 1" % (sSPIN, sSPIN))
    t("s_waitcnt vmcnt(0)")
    t("v_cmp_ne_u32 vcc, v%d, v%d" % (vdst + 1, vTAG))
    spin_tail(t, tag)

def srd(s, name, lo, nbytes):
    b = int(name[2:].split(":")[0])
    s("s_mov_b64 s[%d:%d], s[%d:%d]" % (b, b + 1, lo, lo + 1))
    s("s_mov_b32 s%d, 0x%x" % (b + 2, nbytes)); s("s_mov_b32 s%d, 0x20000" % (b + 3))

m = Stream()
if STAMP: m("s_memrealtime s[6:7]")
m("s_load_dwordx16 s[40:55], s[0:1], 0")
m("s_load_dwordx8 s[56:63], s[0:1], 64")
m("s_load_dwordx4 s[64:67], s[0:1], 96")
m("s_load_dwordx2 s[68:69], s[0:1], 112")
m("s_cmp_ge_u32 s2, 256")
m("s_cbranch_scc1 L_end")
m("s_cmp_lt_u32 s2, 224")
m("s_cbranch_scc1 L_nopf")
m("s_getpc_b64 s[4:5]")
m("v_lshlrev_b32 v%d, 7, v0" % vT[0])
m("v_min_u32 v%d, CODE_BYTES, v%d" % (vT[0], vT[0]))
m("global_load_dword v255, v%d, s[4:5]" % vT[0], tag="cpf")
m("L_nopf:")
m("v_mov_b32 v%d, 0" % vSTA)
m("v_and_b32 v%d, 63, v0" % vLANE)
m("v_lshrrev_b32 v%d, 6, v0" % vT[2])
m("v_readfirstlane_b32 %s, v%d" % (sW, vT[2]))
m("s_and_b32 %s, s2, 7" % sX)
m("s_lshr_b32 %s, s2, 3" % sI)
m("s_mul_i32 %s, %s, 37" % (sA, sI)); m("s_lshr_b32 %s, %s, 8" % (sA, sA))
m("s_mul_i32 %s, %s, 7" % (sC, sA)); m("s_sub_u32 %s, %s, %s" % (sC, sI, sC))
m("s_lshr_b32 %s, %s, 1" % (sT0, sX)); slin(m, sRB128, [(sT0, 4), (sA, 1)])
m("s_and_b32 %s, %s, 1" % (sT0, sX)); slin(m, sCB128, [(sT0, 7), (sC, 1)])
slin(m, sROT, [(sA, 2), (sC, 1)])
m("s_cmp_ge_u32 %s, 7" % sROT); m("s_cselect_b32 %s, 7, 0" % sT0); m("s_sub_u32 %s, %s, %s" % (sROT, sROT, sT0))
vL8 = va.get(); vLd8 = va.get(); vG4 = va.get()
m("v_and_b32 v%d, 7, v%d" % (vL8, L)); m("v_lshrrev_b32 v%d, 3, v%d" % (vLd8, L)); m("v_lshrrev_b32 v%d, 4, v%d" % (vG4, L))
vXV = [va.get() for _ in range(4)]
vWV = [va.get() for _ in range(4)]
slin(m, sT0, [(sRB128, 128 * 896), (sW, 32 * 896)])
vlin(m, vT[0], [(vLd8, 896)], sT0)
m("v_xor_b32 v%d, v%d, v%d" % (vT[3], vL8, vG4))
m("v_lshl_add_u32 v%d, v%d, 4, v%d" % (vXV[0], vT[3], vT[0]))
m("v_xor_b32 v%d, 4, v%d" % (vT[3], vT[3]))
m("v_lshl_add_u32 v%d, v%d, 4, v%d" % (vXV[1], vT[3], vT[0]))
m("v_add_u32 v%d, %d, v%d" % (vXV[2], 2 * 6144, vXV[0]))
m("v_add_u32 v%d, %d, v%d" % (vXV[3], 3 * 6144, vXV[1]))
m("v_add_u32 v%d, %d, v%d" % (vXV[1], 6144, vXV[1]))
vSWZ = vT[7]
m("v_and_b32 v%d, 1, v%d" % (vT[3], vG4)); m("v_lshlrev_b32 v%d, 2, v%d" % (vT[3], vT[3]))
m("v_xor_b32 v%d, v%d, v%d" % (vSWZ, vL8, vT[3]))
slin(m, sT0, [(sW, 16 * 3584), (sCB128, 256)])
vlin(m, vWV[0], [(vLd8, 3584), (vSWZ, 16)], sT0)
m("v_add_u32 v%d, %d, v%d" % (vWV[1], 8 * 3584 - 1024, vWV[0]))
m("v_add_u32 v%d, 128, v%d" % (vWV[2], vWV[0]))
m("v_add_u32 v%d, 128, v%d" % (vWV[3], vWV[1]))
m("s_lshl_b32 %s, %s, 12" % (sXL, sW))
m("s_add_u32 %s, %s, 16384" % (sWL, sXL))
m("s_lshl_b32 %s, %s, 7" % (sT1, sROT)); m("s_mul_i32 %s, %s, %d" % (sT2, sROT, 64 * 3584))
NB = 2048 * 448 * 2
for nm, nb in ((Q, NB), (W1, 448 * 1792 * 2), (WS, WS_SIZE), (W2, 448 * 1792 * 2)):
    b = int(nm[2:].split(":")[0])
    m("s_mov_b32 s%d, 0x%x" % (b + 2, nb)); m("s_mov_b32 s%d, 0x20000" % (b + 3))
m("s_waitcnt lgkmcnt(0)")
m("s_mov_b64 s[8:9], s[40:41]"); m("s_mov_b64 s[24:25], s[54:55]")
m("s_cmp_ge_u32 %s, 28" % sI)
m("s_cbranch_scc1 L_spare")

def st_groups(t, xo=None, wo=None):
    gs = []
    slot = (t % 4) * SLOT
    for q in range(4):
        s = Stream(); s.begin()
        if q == 0: s("s_add_u32 m0, %s, %d" % (sXL, slot))
        s("buffer_load_dwordx4 v%d, %s, %s offen offset:%d lds" % (vXV[q], Q, xo or tXO[t], 1024 * q), tag="st%d" % t)
        s.end(); gs.append(s)
    for q in range(4):
        s = Stream(); s.begin()
        if q in (0, 2): s("s_add_u32 m0, %s, %d" % (sWL, slot + (2048 if q == 2 else 0)))
        s("buffer_load_dwordx4 v%d, %s, %s offen offset:%d lds" % (vWV[q], W1, wo or tWO[t], 1024 * (q & 1)), tag="st%d" % t)
        s.end(); gs.append(s)
    return gs
def st_issue(s, t, part="xw", **kw):
    gs = st_groups(t, **kw)
    for p_ in part:
        for g_ in (gs[:4] if p_ == "x" else gs[4:]): s.extend(g_)
st_issue(m, 0, xo=sT1, wo=sT2)
m("s_mov_b64 s[36:37], s[68:69]"); m("s_mov_b64 s[28:29], s[58:59]")
if DBG: m("v_mov_b32 v62, s66"); m("v_mov_b32 v63, s67")
stamp(m, rt=True)
stamp(m)
if STAMP: m("v_writelane_b32 v%d, s6, 41" % vSTA)
srd(m, K, 42, NB); srd(m, V, 44, NB); srd(m, SSM, 48, NB); srd(m, OUT, 64, NB)
slin(m, sRB64, [(sX, 4), (sA, 1)])
m("s_and_b32 %s, %s, 1" % (sE2, sW))
m("v_mov_b32 v%d, 0" % vT[0])
m("buffer_load_dword v%d, v%d, %s, 0 offen sc1" % (vTAG, vT[0], WS), tag="sm")
vB1 = vb.get(4, 4); vTP = vb.get(2, 2)
vS32 = va.get(); vHH = va.get(); vL15 = va.get()
m("v_and_b32 v%d, 31, v%d" % (vS32, L)); m("v_lshrrev_b32 v%d, 5, v%d" % (vHH, L)); m("v_and_b32 v%d, 15, v%d" % (vL15, L))
slin(m, sT0, [(sCB128, 256), (sE2, 128)])
vlin(m, vT[1], [(vS32, 2)], sT0)
m("global_load_ushort v%d, v%d, %s" % (vB1, vT[1], P_B1), tag="sm")
m("global_load_ushort v%d, v%d, %s offset:64" % (vB1 + 2, vT[1], P_B1), tag="sm")
slin(m, sT0, [(sC, 512), (sW, 128)])
vlin(m, vT[1], [(vL15, 8)], sT0)
m("global_load_dwordx2 %s, v%d, %s" % (vr(vTP, 2), vT[1], P_SHIFT), tag="sm")
vHP = vb.get(2, 2); vDP = vb.get()
m("s_lshr_b32 %s, %s, 1" % (sT0, sW)); slin(m, sCH, [(sC, 64), (sRB64, 2), (sT0, 1)])
m("s_lshl_b32 %s, %s, 1" % (sT0, sCH))
m("v_mov_b32 v%d, %s" % (vT[1], sT0))
m("global_load_ushort v%d, v%d, %s" % (vDP, vT[1], P_D), tag="sm")
m("s_lshl_b32 %s, %s, 12" % (sHSRC, sCH))
m("buffer_load_dwordx2 %s, v%d, %s, %s offen" % (vr(vHP, 2), vT[0], SSM, sHSRC), tag="sm")
vB2 = vc.get(4, 4)
m("s_lshl_b32 %s, %s, 7" % (sT0, sC))
vlin(m, vT[6], [(vL8, 16)], sT0)
m("global_load_dwordx4 %s, v%d, %s" % (vr(vB2, 4), vT[6], P_B2), tag="sm")
m("s_mov_b32 %s, %s" % (tXO[0], sT1)); m("s_mov_b32 %s, %s" % (tWO[0], sT2))
for t in range(1, 7):
    if t < 4:
        m("s_add_u32 %s, %s, %d" % (sT0, sA, t)); m("s_and_b32 %s, %s, 3" % (sT0, sT0))
        m("s_lshl_b32 %s, %s, 1" % (sT0, sT0)); m("s_add_u32 %s, %s, %s" % (sT0, sT0, sC))
    else:
        m("s_add_u32 %s, %s, %d" % (sT0, sC, 2 * (t - 4) + 1))
    m("s_cmp_ge_u32 %s, 7" % sT0); m("s_cselect_b32 %s, 7, 0" % sT1); m("s_sub_u32 %s, %s, %s" % (sT0, sT0, sT1))
    m("s_lshl_b32 %s, %s, 7" % (tXO[t], sT0)); m("s_mul_i32 %s, %s, %d" % (tWO[t], sT0, 64 * 3584))

su = m
r2 = Stream()
vKV = vb.get(); vKH = vb.get()
slin(su, sT0, [(sRB64, 64 * 896), (sW, 16 * 896)])
vlin(su, vT[0], [(vLd8, 896)], sT0)
su("v_add_u32 v%d, v%d, v%d" % (vKV, vT[0], vT[6]))
slin(su, sT0, [(sW, 16 * 896)], 8 * 896)
su("v_subrev_u32 v%d, %s, v%d" % (vKH, sT0, vKV))
su("s_mov_b32 %s, %d" % (sPO, 8 * 896 - 1024))
su("s_lshl_b32 %s, %s, 11" % (sW2L, sW))
for src, base in ((K, L_KS + 1024), (V, L_VS)):
    r2.begin(); r2("s_add_u32 m0, %s, %d" % (sW2L, base))
    r2("buffer_load_dwordx4 v%d, %s, 0 offen lds" % (vKV, src), tag="kv"); r2.end()
    r2("buffer_load_dwordx4 v%d, %s, %s offen offset:1024 lds" % (vKV, src, sPO), tag="kv")
r2.begin()
r2("s_mov_b32 m0, %d" % L_KS)
r2("s_mov_b32 exec_lo, 0")
r2("buffer_load_dwordx4 v%d, %s, 0 offen lds" % (vKH, K), tag="kv")
r2("s_mov_b32 exec_lo, -1")
r2.end()
tch = Stream()
if opt("tw2", 0):
    vTW = va.get()
    slin(su, sT0, [("s2", 56 * 128), (sW, 14 * 128)])
    su("v_min_u32 v%d, 13, v%d" % (vTW, L)); vlin(su, vTW, [(vTW, 128)], sT0)
    tch("buffer_load_dword v252, v%d, %s, 0 offen" % (vTW, W2), tag="tw2")
if opt("thc", 0):
    vTH = va.get()
    slin(su, sT0, [(sCH, 4096), (sE2, 2048)])
    vlin(su, vTH, [(vL15, 128)], sT0)
    tch("buffer_load_dword v252, v%d, %s, 0 offen" % (vTH, SSM), tag="thc")
if opt("tpos", 1) == 0: su.extend(tch)
elif opt("tpos", 1) == 1: r2.extend(tch)
su("v_mov_b32 v%d, 0" % (vB1 + 1)); su("v_mov_b32 v%d, 0" % (vB1 + 3))
vXA = [va.get() for _ in range(4)]
vWA = [va.get() for _ in range(2)]
vW2R = [va.get() for _ in range(4)]
su("v_bfe_u32 v%d, v%d, 1, 3" % (vT[0], L))
su("v_xor_b32 v%d, v%d, v%d" % (vT[0], vT[0], vHH))
su("s_lshr_b32 %s, %s, 1" % (sT1, sW)); su("s_lshl_b32 %s, %s, 13" % (sT1, sT1))
vlin(su, vXA[0], [(vT[0], 16), (vS32, 128)], sT1)
for ks in range(1, 4): su("v_xor_b32 v%d, %d, v%d" % (vXA[ks], 32 * ks, vXA[0]))
vC4 = vT[4]; vR4 = vT[5]; vMH = vT[3]
su("v_and_b32 v%d, 3, v%d" % (vC4, L)); su("v_bfe_u32 v%d, v%d, 2, 2" % (vR4, L)); su("v_bfe_u32 v%d, v%d, 4, 1" % (vMH, L))
su("v_bfe_u32 v%d, v%d, 3, 1" % (vT[1], L))
vlin(su, vT[0], [(vMH, 32), (vC4, 8), (vR4, 128), (vT[1], 64)])
slin(su, sT1, [(sE2, 2048)], 16384)
vlin(su, vWA[0], [(vHH, 1024), (vT[0], 1)], sT1)
su("v_xor_b32 v%d, 64, v%d" % (vWA[1], vWA[0]))
vlin(su, vW2R[0], [(vHH, 512), (vT[0], 1)], sW2L)
su("v_xor_b32 v%d, 64, v%d" % (vW2R[1], vW2R[0]))
su("v_add_u32 v%d, 0x10000, v%d" % (vW2R[2], vW2R[0])); su("v_add_u32 v%d, 0x10000, v%d" % (vW2R[3], vW2R[1]))
vZ4 = va.get(4, 4)
for i in range(4): su("v_mov_b32 v%d, 0" % (vZ4 + i))
slin(su, sRW, [(sW, RSZ)], L_R)
vACC = [64 + 16 * i for i in range(4)]
vONE = vb.get(8, 4)
for i in range(8): su("v_mov_b32 v%d, 0" % (vONE + i))
su("v_cmp_gt_u32 vcc, 32, v%d" % L)
su("v_mov_b32 v%d, 0x3f80" % vT[0])
su("v_cndmask_b32 v%d, 0, v%d, vcc" % (vONE, vT[0]))
su("v_mov_b32 v%d, v%d" % (vONE + 6, vONE))
vL16 = va.get()
DUMMY_DS[0] = "ds_read_b32 v253, v%d" % vL16
su("v_lshlrev_b32 v%d, 4, v%d" % (vL16, L))
su("s_mul_i32 %s, %s, %d" % (tCB[0], sC, 2 * CBS))
for j in range(1, 14):
    su("s_add_u32 %s, %s, %d" % (tCB[j], tCB[j - 1], CBS)); su("s_cmp_ge_u32 %s, %d" % (tCB[j], 14 * CBS)); su("s_cselect_b32 %s, 0, %s" % (tCB[j], tCB[j]))
vW2V = [va.get() for _ in range(4)]
slin(su, sT1, [(sC, 128), (sW, 16 * 896)])
vlin(su, vW2V[0], [(vLd8, 896), (vSWZ, 16)], sT1)
su("v_add_u32 v%d, %d, v%d" % (vW2V[1], 8 * 896 - 1024, vW2V[0]))
su("v_add_u32 v%d, %d, v%d" % (vW2V[2], 64 * 896, vW2V[0]))
su("v_add_u32 v%d, %d, v%d" % (vW2V[3], 64 * 896, vW2V[1]))
c_ = math.sqrt(2.0 / math.pi) * 2.0 * math.log2(math.e)
su("s_mov_b32 s64, 0x%x" % f2u(-c_ * 0.044715)); su("s_mov_b32 s65, 0x%x" % f2u(-c_ * 0.044715))
vC0 = va.get(2, 2)
su("v_mov_b32 v%d, 0x%x" % (vC0, f2u(-c_))); su("v_mov_b32 v%d, 0x%x" % (vC0 + 1, f2u(-c_)))
vP0R = vb.get(); vP0W = vb.get(); vP0B = vb.get(); vP0S = vc.get()
slin(su, sT0, [(sW, 32)], L_KS + 512)
vlin(su, vP0R, [(vG4, 2048), (vR4, 128), (vC4, 8)], sT0)
slin(su, sT0, [(sW, 2304)], L_P0)
vlin(su, vP0W, [(vL15, 144), (vG4, 32)], sT0)
vlin(su, vP0B, [(vLd8, 144), (vL8, 16)], sT0)
slin(su, sT0, [(sC, 64 * CP), (sW, 16 * CP), (sRB64, 128)], WS_U)
vlin(su, vP0S, [(vLd8, CP), (vL8, 16)], sT0)
vCA = va.get(); vCB = va.get(); vUA = va.get(); vUWA = va.get(); vPADA = vb.get()
su("v_and_b32 v%d, 1, v%d" % (vT[0], L)); su("v_bfe_u32 v%d, v%d, 1, 1" % (vT[1], L))
su("s_add_u32 %s, %s, %d" % (sT0, sRW, 64 + 56 - 32))
vlin(su, vCA, [(vT[0], 32), (vMH, 16), (vT[1], 8)], sT0)
vlin(su, vT[0], [(vHH, 64), (vR4, 8)])
su("v_sub_u32 v%d, v%d, v%d" % (vCA, vCA, vT[0]))
su("s_add_u32 %s, %s, %d" % (sT0, sRW, R_UW + 16))
vlin(su, vCB, [(vMH, UP), (vL15, 16), (vHH, 16)], sT0)
slin(su, sT0, [(sCH, CP), (sE2, 16)], WS_U)
vlin(su, vUA, [(L, 32)], sT0)
su("s_add_u32 %s, %s, %d" % (sT0, sRW, R_UW + 256))
vlin(su, vUWA, [(L, 8)], sT0)
su("s_add_u32 %s, %s, %d" % (sT0, sRW, R_UW))
vlin(su, vPADA, [(vMH, UP), (vL15, 16)], sT0)
su("v_min_u32 v%d, 2, v%d" % (vT[0], vS32))
vlin(su, vT[0], [(vT[0], 16)], sRW)
su("v_cndmask_b32 v%d, v%d, v%d, vcc" % (vPADA, vT[0], vPADA))
vYM = va.get(); vYC = va.get(); vYR = va.get(); vYRC = va.get()
vlin(su, vYM, [(vL15, 144), (vHH, 64), (vMH, 32)], sRW)
su("s_add_u32 %s, %s, %d" % (sT0, sRW, R_CY + 8))
vlin(su, vYC, [(vL15, 32), (vHH, 16), (vMH, 8)], sT0)
su("s_lshr_b32 %s, %s, 1" % (sT1, sW)); slin(su, sT2, [(sT1, 2 * RSZ)], L_R)
slin(su, sT0, [(sE2, 2 * 2304), (sT2, 1)])
su("v_lshrrev_b32 v%d, 2, v%d" % (vT[0], L))
vlin(su, vYR, [(L, 32), (vT[0], 16)], sT0)
slin(su, sT0, [(sE2, 1024), (sT2, 1)], R_CY)
vlin(su, vYRC, [(L, 8)], sT0)
vHV0 = vc.get(); vQO = vc.get(); vGA = vc.get(); vPW = vc.get(); vPRD = vc.get(); vZR = vc.get(); vZW = vc.get(); vZT = vc.get(); vZTW = vc.get()
su("s_lshr_b32 %s, %s, 1" % (sT0, sRB64)); su("s_mul_i32 %s, %s, 43" % (sT1, sT0)); su("s_lshr_b32 %s, %s, 7" % (sT1, sT1))
slin(su, sT2, [(sT1, 14 * CBS - 3 * 32768), (sRB64, 16384), (sW, 1024)], WS_H)
su("v_add_u32 v%d, %s, v%d" % (vHV0, sT2, vL16))
slin(su, sT0, [(sRB64, 64 * 8), (sW, 64)], WS_G)
vlin(su, vGA, [(vLd8, 8)], sT0)
slin(su, sT0, [(sRB64, 64 * 896), (sW, 8 * 896)])
vlin(su, vQO, [(vLd8, 896), (vT[6], 1)], sT0)
su("s_mul_i32 %s, %s, %d" % (sT0, sW, PB_SZ))
vlin(su, vPW, [(vS32, 272), (vHH, 16)], sT0)
su("s_mul_i32 %s, %s, %d" % (sT0, sW, 8 * 272))
vlin(su, vPRD, [(vLd8, 272), (vL8, 32)], sT0)
slin(su, sT0, [(sW, 8 * 144)], L_ZT)
vlin(su, vZR, [(vLd8, 144), (vL8, 16)], sT0)
su("s_add_u32 %s, %s, %d" % (sT0, sW2L, ZST))
su("v_add_u32 v%d, %s, v%d" % (vZW, sT0, vL16))
vlin(su, vZT, [(vR4, 128), (vG4, 32), (vC4, 8)], sT0)
slin(su, sT0, [(sW, 32)], L_ZT)
vlin(su, vZTW, [(L, 144)], sT0)
JT = opt("jt", 14)
vH2T = vc.get()
su("v_lshrrev_b32 v%d, 2, v%d" % (vT[0], L)); su("v_min_u32 v%d, %d, v%d" % (vT[0], max(13 - JT, 0), vT[0]))
slin(su, sT0, [(sC, 2)], JT)
su("v_add_u32 v%d, %s, v%d" % (vT[0], sT0, vT[0]))
su("v_subrev_u32 v%d, 14, v%d" % (vT[1], vT[0])); su("v_min_u32 v%d, v%d, v%d" % (vT[0], vT[0], vT[1]))
slin(su, sT0, [(sA, 16 * 896), (sW, 4 * 896), (sC, 128)], 64 * 896)
vlin(su, vH2T, [(vC4, 896)], sT0)
su("v_mul_u32_u24 v%d, %d, v%d" % (vT[0], CBS, vT[0]))
su("v_add_u32 v%d, v%d, v%d" % (vH2T, vH2T, vT[0]))
su("s_mul_i32 %s, %s, 43" % (sT1, sRB128)); su("s_lshr_b32 %s, %s, 7" % (sT1, sT1))
slin(su, sHB, [(sT1, 14 * CBS - 3 * 32768), (sRB128, 32768), (sCB128, CBS), (sW, 8192)], WS_H)
su("s_lshr_b32 %s, %s, 1" % (sT1, sW))
slin(su, sFH, [(sRB128, 512), (sT1, 256), (sCB128, 8), (sE2, 4)], WS_FH)
slin(su, sFU, [(sC, 512), (sW, 128), (sRB64, 4)], WS_FU)
su("s_and_b32 %s, %s, 63" % (sT2, sCH)); slin(su, sFZ, [(sC, 512), (sE2, 256), (sT2, 4)], WS_FZ)
su("s_lshr_b32 %s, %s, 3" % (sT0, sRB64)); slin(su, sPU, [(sC, 512), (sT0, 128), (sW, 32)], WS_FU)
su("s_mul_i32 %s, %s, 28" % (sT0, sW)); su("s_min_u32 %s, %s, 80" % (sT0, sT0)); slin(su, sPH, [(sRB64, 256), (sT0, 1)], WS_FH)
su("s_lshr_b32 %s, %s, 4" % (sT0, sRB64)); slin(su, sPZ, [(sC, 512), (sT0, 256), (sW, 64)], WS_FZ)
su("s_add_u32 %s, %s, 4096" % (sHB2, sHB))
slin(su, sZB, [(sCH, CP), (sE2, 2048)], WS_Z)
su("s_mov_b32 %s, %d" % (sQ1, 32 * 896))
su("s_mov_b32 %s, %d" % (sZ8, 8 * CP))
su("s_lshl_b32 %s, %s, 1" % (sT1, sE2)); su("s_add_u32 %s, %s, 8" % (sHSRC, sHSRC)); su("s_sub_u32 %s, %s, %s" % (sHSRC, sHSRC, sT1))
stamp(m)
st_issue(m, 1)
stamp(m)

vKD = vb.get(10, 2); vVD = vb.get(8, 2); vKO = vb.get(10, 2)
vKS = vb.get(16, 4); vVF = vb.get(16, 4); vTR = vb.get(2, 2); vUO = vb.get(8, 4)
p0r = Stream()
for i in range(5): p0r("ds_read_b64_tr_b16 %s, v%d offset:%d" % (vr(vKD + 2 * i, 2), vP0R, 512 * i), tag="p0r")
for i in range(4): p0r("ds_read_b64_tr_b16 %s, v%d offset:%d" % (vr(vVD + 2 * i, 2), vP0R, L_VS - L_KS - 512 + 512 * i), tag="p0v")
p0 = Stream()
p0.wait_lgkm("p0r")
for j in range(9): p0("v_alignbit_b32 v%d, v%d, v%d, 16" % (vKO + j, vKD + j + 1, vKD + j))
for s_ in range(16):
    hi = (vKD + (s_ + 3) // 2) if s_ % 2 else (vKO + (s_ + 2) // 2)
    p0("v_dot2_f32_bf16 v%d, v%d, v%d, 0" % (vKS + s_, hi, vTR))
p0.wait_lgkm("p0v")
for s_ in range(16):
    lo = (vKD + (s_ + 1) // 2) if s_ % 2 else (vKO + s_ // 2)
    p0("v_dot2_f32_bf16 v%d, v%d, v%d, v%d" % (vKS + s_, lo, vTR + 1, vKS + s_))
    j = s_ // 2
    p0("v_lshlrev_b32 v%d, 16, v%d" % (vVF + 2 * j, vVD + j) if s_ % 2 == 0 else "v_and_b32 v%d, 0xffff0000, v%d" % (vVF + 2 * j + 1, vVD + j))
for j in range(8): p0("v_pk_mul_f32 %s, %s, %s" % (vr(vKS + 2 * j, 2), vr(vKS + 2 * j, 2), vr(vVF + 2 * j, 2)))
for k_, p_ in enumerate((0, 2, 1, 3)):
    for hf in range(2): p0("v_cvt_pk_bf16_f32 v%d, v%d, v%d" % (vUO + 2 * k_ + hf, vKS + p_ + 8 * hf, vKS + p_ + 8 * hf + 4))
p0b = Stream()
p0b("ds_write_b128 v%d, %s" % (vP0W, vr(vUO, 4)), tag="p0w")
p0b("ds_write_b128 v%d, %s offset:16" % (vP0W, vr(vUO + 4, 4)), tag="p0w")
p0b("ds_read_b128 %s, v%d" % (vr(vKS, 4), vP0B), tag="p0b")
p0b("ds_read_b128 %s, v%d offset:1152" % (vr(vKS + 4, 4), vP0B), tag="p0b")
p0c = Stream()
p0c.wait_lgkm("p0b")
p0c("buffer_store_dwordx4 %s, v%d, %s, 0 offen sc1" % (vr(vKS, 4), vP0S, WS), tag="ust")
p0c("buffer_store_dwordx4 %s, v%d, %s, %s offen sc1" % (vr(vKS + 4, 4), vP0S, WS, sZ8), tag="ust")
p0c("v_add_u32 v%d, 0x%x, v%d" % (vP0S, WS_Z - WS_U, vP0S))

aF = 0
def g1_reads(kap):
    t, ks = kap // 4, kap % 4
    slot = (t % 4) * SLOT
    b = aF + 16 * (kap % 2)
    so = slot - (65536 if slot >= 65536 else 0)
    gs = [Stream(), Stream(), Stream()]
    for ft in range(2):
        g_ = gs[2 * ft]
        g_("ds_read_b64_tr_b16 %s, v%d offset:%d" % (ar(b + 8 + 4 * ft, 2), vWA[ft], so + ks * 4096), tag="f%d_%d" % (kap, ft))
        g_("ds_read_b64_tr_b16 %s, v%d offset:%d" % (ar(b + 8 + 4 * ft + 2, 2), vWA[ft], so + ks * 4096 + 512), tag="f%d_%d" % (kap, ft))
        gs[1]("ds_read_b128 %s, v%d offset:%d" % (ar(b + 4 * ft, 4), vXA[ks], so + 4096 * ft), tag="f%d_0" % kap)
    return gs
def g1_mf(s, kap, i, ft):
    b = aF + 16 * (kap % 2)
    c = "0" if kap == 0 else vr(vACC[2 * i + ft], 16)
    s("v_mfma_f32_32x32x16_bf16 %s, %s, %s, %s" % (vr(vACC[2 * i + ft], 16), ar(b + 8 + 4 * ft, 4), ar(b + 4 * i, 4), c))
def g1_kstep(s, kap, pre=None):
    rd = g1_reads(kap + 1) if kap + 1 < 28 else [Stream(), Stream(), Stream()]
    if pre is not None: s.wait_lgkm("f%d_1" % kap)
    else: s.wait_lgkm("f%d_0" % kap)
    g1_mf(s, kap, 0, 0)
    if pre is not None: s.extend(pre)
    s.extend(rd[0])
    g1_mf(s, kap, 1, 0)
    s.extend(rd[1])
    s.wait_lgkm("f%d_1" % kap)
    g1_mf(s, kap, 0, 1)
    s.extend(rd[2])
    g1_mf(s, kap, 1, 1)
    if kap % 8 == 6 and kap < 24:
        delta = 65536 if kap in (6, 22) else -65536
        for r in vXA + vWA: s("v_add_u32 v%d, 0x%x, v%d" % (r, delta & 0xffffffff, r))

def w2_issue(s, half, j):
    for q in range(2):
        s.begin()
        if q == 0: s("s_add_u32 m0, %s, %d" % (sW2L, 8192 * W2POS[j]))
        s("buffer_load_dwordx4 v%d, %s, %s offen offset:%d lds" % (vW2V[2 * half + q], W2, tCB[j], 1024 * q), tag="w2_%d_%d" % (half, j))
        s.end()
aW2 = [128, 0]
def w2_reads(s, half, j):
    off = 8192 * W2POS[j]; hi = off >= 65536; off -= 65536 * hi
    for t in range(2):
        b = aW2[half] + 8 * j + 4 * t
        s("ds_read_b64_tr_b16 %s, v%d offset:%d" % (ar(b, 2), vW2R[2 * hi + t], off), tag="w2r%d_%d" % (half, j))
        s("ds_read_b64_tr_b16 %s, v%d offset:%d" % (ar(b + 2, 2), vW2R[2 * hi + t], off + 1024), tag="w2r%d_%d" % (half, j))

hc = Stream()
for q in range(4):
    hc.begin()
    if q == 0: hc("s_add_u32 m0, %s, 64" % sRW)
    hc("buffer_load_dwordx4 v%d, %s, %s offen offset:%d lds" % (vL16, SSM, sHSRC, 1024 * q), tag="hc")
    hc.end()
hp = Stream()
hp("v_lshlrev_b32 v%d, 16, v%d" % (vT[0], vHP)); hp("v_lshlrev_b32 v%d, 16, v%d" % (vT[1], vDP))
hp("v_add_f32 v%d, v%d, v%d" % (vT[0], vT[0], vT[1]))
hp("v_and_b32 v%d, 0xffff0000, v%d" % (vT[1], vHP))
hp("v_cvt_pk_bf16_f32 v%d, v%d, v%d" % (vHP, vT[0], vT[1]))
hp("s_lshl_b32 %s, %s, 4" % (sT0, sE2))
hp("v_lshlrev_b64 %s, %s, %s" % (vr(vT[2], 2), sT0, vr(vHP, 2)))
hp("v_mov_b32 v%d, 0" % vT[0]); hp("v_mov_b32 v%d, 0" % vT[1])
hp("v_mov_b32 v%d, %s" % (vT[4], sRW))
hp("ds_write_b128 v%d, %s" % (vPADA, vr(vZ4, 4)), tag="z0")
hp("ds_write_b128 v%d, %s offset:48" % (vT[4], vr(vT[0], 4)), tag="z0")

fill = {t: Stream() for t in range(7)}
st_issue(fill[0], 2)
fill[1].extend(r2); st_issue(fill[1], 3, "x")
st_issue(fill[2], 3, "w"); st_issue(fill[2], 4)
fill[3].extend(p0b); fill[3].extend(p0c); st_issue(fill[3], 6)
E4, E5, E6, EG = opt("e4", 2), opt("e5", 6), opt("e6", 10), opt("eg", 14)
fill[4].extend(hc)
for j in range(0, E4): w2_issue(fill[4], 0, j)
flag_store(fill[4], sFU, "ust")
fill[5].extend(hp)
for j in range(E4, E5): w2_issue(fill[5], 0, j)
for j in range(E5, E6): w2_issue(fill[6], 0, j)
s5 = Stream(); st_issue(s5, 5)
p0pre = Stream()
p0pre("v_add_u32 v%d, 0x%x, v%d" % (vTAG, TAG_INC, vTAG))
p0pre("v_alignbit_b32 v%d, v%d, v%d, 16" % (vTR, vTP, vTP))
p0pre("v_alignbit_b32 v%d, v%d, v%d, 16" % (vTR + 1, vTP + 1, vTP + 1))
stamp(p0pre)
p0pre.wait_vm("kv")
p0pre("s_barrier")
stamp(p0pre)
bm = Stream()
for i in range(2):
    for ft in range(2):
        bm("v_mfma_f32_32x32x16_bf16 %s, %s, %s, %s" % (vr(vACC[2 * i + ft], 16), vr(vB1, 4), vr(vONE + 4 * ft, 4), vr(vACC[2 * i + ft], 16)))
p0pre.extend(spread(bm, p0r, 0.0, 0.75))
p0pre("v_readfirstlane_b32 s82, v%d" % vTAG); p0pre("v_readfirstlane_b32 s83, v%d" % vTAG)
p0pre.extend(spread(p0, s5, 0.0, 1.0, unit="any"))
stamp(p0pre)
def bar(t):
    b_ = Stream()
    fstamp(b_, 1)
    if t < 7: b_.wait_vm("st%d" % t)
    fstamp(b_, 1)
    b_("s_barrier")
    fstamp(b_, 1)
    return b_
m.extend(bar(0))
for g_ in g1_reads(0): m.extend(g_)
for t in range(7):
    s = Stream()
    if t > 0: g1_kstep(s, 4 * t - 1, bar(t))
    for ks in range(3): g1_kstep(s, 4 * t + ks)
    m.extend(spread(s, fill[t], 0.1 if t > 0 else 0.0, 1.0))
    if t == 2: m.extend(p0pre)
g1_kstep(m, 27, bar(7))
stamp(m)

vb = VA(128, VB_HI)
vGT = vb.get(16, 4); vUL = vb.get(8, 4); vHO = vb.get(8, 4)
def gelu(n0, n1):
    ge = Stream()
    for n in range(n0, n1):
        i, ft, hf = n // 4, (n // 2) % 2, n % 2
        x0 = vACC[2 * i + ft] + 8 * hf
        T = vGT + 8 * (n % 2); ho = vHO + 4 * (n % 2)
        for j in range(4): ge("v_pk_mul_f32 %s, %s, %s" % (vr(T + 2 * j, 2), vr(x0 + 2 * j, 2), vr(x0 + 2 * j, 2)))
        for j in range(4): ge("v_pk_fma_f32 %s, %s, %s, %s" % (vr(T + 2 * j, 2), vr(T + 2 * j, 2), sC1, vr(vC0, 2)))
        for j in range(4): ge("v_pk_mul_f32 %s, %s, %s" % (vr(T + 2 * j, 2), vr(T + 2 * j, 2), vr(x0 + 2 * j, 2)))
        for j in range(8): ge("v_exp_f32 v%d, v%d" % (T + j, T + j))
        for j in range(4): ge("v_pk_add_f32 %s, %s, 1.0 op_sel_hi:[1,0]" % (vr(T + 2 * j, 2), vr(T + 2 * j, 2)))
        for j in range(8): ge("v_rcp_f32 v%d, v%d" % (T + j, T + j))
        for j in range(4): ge("v_pk_mul_f32 %s, %s, %s" % (vr(T + 2 * j, 2), vr(T + 2 * j, 2), vr(x0 + 2 * j, 2)))
        for j in range(4): ge("v_cvt_pk_bf16_f32 v%d, v%d, v%d" % (ho + j, T + 2 * j, T + 2 * j + 1))
        ge("buffer_store_dwordx4 %s, v%d, %s, %s offen offset:%d sc1" % (vr(ho, 4), vL16, WS, sHB if i == 0 else sHB2, 1024 * (n % 4)), tag="hst%d" % i)
        if opt("dbl", 0): ge("buffer_store_dwordx4 %s, v%d, %s, %s offen offset:%d" % (vr(ho, 4), vL16, WS, sHB if i == 0 else sHB2, 1024 * (n % 4)), tag="hsu%d" % i)
        if n == opt("fg", 6): flag_store(ge, sFH, "hst0"); ge("s_add_u32 %s, %s, 128" % (sFH, sFH))
    return ge
PUF = opt("puf", 3)
spoll_issue(m, 8, sPU)
gf = Stream()
for j in range(E6, EG): w2_issue(gf, 0, j)
m.extend(spread(gelu(0, PUF), gf, 0.0, 0.9, unit="any"))
spoll_check(m, 8, sPU, "pu")
fstamp(m)
m("s_barrier")
for q in range(2):
    m("buffer_load_dwordx4 %s, v%d, %s, 0 offen offset:%d sc1" % (vr(vUL + 4 * q, 4), vUA, WS, 2048 * q), tag="ul")
if JT < 14: m("buffer_load_dword v252, v%d, %s, 0 offen" % (vH2T, W2), tag="h2t")
aCF = 0
def conv_readsA(r):
    s = Stream(); base = aCF + 32 * (r & 1)
    for a in range(4):
        off = 128 * (8 * a + r)
        s("ds_read_b64_tr_b16 %s, v%d offset:%d" % (ar(base + 8 * a, 2), vCA, off + 32), tag="c%d" % r)
        s("ds_read_b64_tr_b16 %s, v%d offset:%d" % (ar(base + 8 * a + 2, 2), vCA, off), tag="c%d" % r)
    return s
def conv_readsB(r):
    s = Stream(); base = aCF + 32 * (r & 1)
    for i in range(4):
        s("ds_read_b128 %s, v%d offset:%d" % (ar(base + 8 * i + 4, 4), vCB, 32 * (8 * i - r + 7)), tag="c%d" % r)
    return s
g1s = gelu(PUF, 8)
gf = Stream()
gf.wait_vm("hc"); gf.extend(conv_readsA(0))
gf.wait_vm("ul")
for q in range(2):
    gf("ds_write2_b64 v%d, %s, %s offset0:%d offset1:%d" % (vUWA, vr(vUL + 4 * q, 2), vr(vUL + 4 * q + 2, 2), 64 * q, 64 * q + 160), tag="uw")
gf.extend(conv_readsB(0))
m.extend(spread(g1s, gf, 0.8, 0.98, unit="any"))
stamp(m)

vb = VA(128, VB_HI)
vEPB = vb.get(32, 4)
vQ = [vb.get(4, 4) for _ in range(2)]; vG = [vb.get(2, 2) for _ in range(2)]
vHV = [vHV0] + vXV[1:4]
ring = [vb.get(4, 4) for _ in range((VB_HI - vb.n) // 4)]
RING = [("v", r) for r in ring] + [("a", 240 + 4 * i) for i in range(4)] + [("a", 112 + 4 * i) for i in range(4)]
NR = len(RING)
def rr(i): f, b = RING[i % NR]; return ("%s[%d:%d]" % (f, b, b + 3))
def h_issue(s, n):
    sg, k = n // 28, n % 28
    half, j = k // 14, k % 14
    s("buffer_load_dwordx4 %s, v%d, %s, %s offen sc1" % (rr(n), vHV[2 * sg + half], WS, tCB[j]), tag="h%d" % n)
def w2_swap(s, j):
    s.wait_vm("w2_0_%d" % j); w2_reads(s, 0, j)
def w2_refill(s, j):
    s.wait_lgkm("w2r0_%d" % j); w2_issue(s, 1, j)
order = [("l", j) for j in range(EG, 14)]
for j in range(14):
    order.append(("r", j))
    if j >= 1: order.append(("f", j - 1))
order.append(("f", 13))
def do_order(s, lst):
    for kind, j in lst:
        if kind == "l": w2_issue(s, 0, j)
        else: (w2_swap if kind == "r" else w2_refill)(s, j)
def conv_mf(s, r, a, i):
    base = aCF + 32 * (r & 1); j = a + i
    c = "0" if (r == 0 and a == 0) else vr(vACC[j], 16)
    s("v_mfma_f32_32x32x16_bf16 %s, %s, %s, %s" % (vr(vACC[j], 16), ar(base + 8 * a, 4), ar(base + 8 * i + 4, 4), c))
def y_out(j):
    s = Stream(); R = vACC[j]
    for v in range(8): s("v_permlane16_swap_b32 v%d, v%d" % (R + v, R + v + 8))
    for v in range(2, 8): s("v_add_f32 v%d, v%d, v%d" % (R + v, R + v, R + 6 + v))
    s("ds_write_b64 v%d, %s offset:%d" % (vYC, vr(R + 14, 2), 512 * j), tag="yw")
    s("ds_write_b128 v%d, %s offset:%d" % (vYM, vr(R, 4), 2304 * j), tag="yw")
    s("ds_write_b128 v%d, %s offset:%d" % (vYM, vr(R + 4, 4), 2304 * j + 16), tag="yw")
    return s
NBW = opt("nbw", 6)
F0, F1, PB, HB = opt("f0", -1), opt("f1", 2), opt("pb", 3), opt("hb", 6)
per = (len(order) + NBW - 1) // NBW
hnext = [0]
HPB = opt("hpb", 5)
for r in range(8):
    s = Stream()
    s.wait_lgkm("c%d" % r)
    if r < 7:
        for a in range(4):
            for i in range(4 - a): conv_mf(s, r, a, i)
        rd = conv_readsA(r + 1); rd.extend(conv_readsB(r + 1))
        s = spread(s, rd, 0.0, 0.7)
    else:
        for j in range(4):
            for a in range(j + 1): conv_mf(s, r, a, j - a)
    f = Stream()
    if r == 0:
        f("v_add_u32 v%d, 8192, v%d" % (vHV[1], vHV[0])); f("v_add_u32 v%d, 4096, v%d" % (vHV[2], vHV[0])); f("v_add_u32 v%d, 12288, v%d" % (vHV[3], vHV[0]))
    if r == PB: spoll_issue(f, 8, sPH)
    do_order(f, order[r * per:(r + 1) * per])
    if r == F0: flag_store(f, sFH, "hst0"); f("s_add_u32 %s, %s, 128" % (sFH, sFH))
    if r == F1: flag_store(f, sFH, "hst1")
    if r == HB:
        spoll_check(m, 8, sPH, "ph0")
        m("s_barrier")
        m("s_add_u32 %s, %s, 128" % (sPH, sPH))
    if r >= HB:
        for _ in range(HPB): h_issue(f, hnext[0]); hnext[0] += 1
    if r < 7:
        s = spread(s, f, 0.0, 1.0)
    else:
        ops = s.ops; s = Stream()
        mf = [o for o in ops if o.kind == "mfma"]; s.ops.extend([o for o in ops if o.kind != "mfma"])
        zc = Stream(); zc("v_mov_b32 v%d, %s" % (vT[4], sRW)); zc("ds_write_b64 v%d, %s offset:%d" % (vT[4], vr(vZ4, 2), R_CY), tag="yw")
        fg = groups(f.ops)
        y0, y1, y2 = y_out(0).ops, y_out(1).ops, y_out(2).ops
        plan = {0: zc.ops + sum(fg[:2], []), 1: sum(fg[2:4], []), 2: y0[:6], 3: y0[6:12], 4: y0[12:] + y1[:3], 5: y1[3:9], 6: y1[9:15], 7: y1[15:] + y2[:4], 8: y2[4:10], 9: y2[10:] + sum(fg[4:], [])}
        for k_, o in enumerate(mf):
            s.ops.append(o); s.ops.extend(plan[k_])
    if r in (2, 4, 6): fstamp(m)
    m.extend(s)
stamp(m)
m.extend(y_out(3))
for _ in range(2): h_issue(m, hnext[0]); hnext[0] += 1
m.wait_lgkm("yw")
m("s_barrier")
for q in range(2):
    b = vEPB + 16 * q
    for y in range(2):
        m("ds_read_b64 %s, v%d offset:%d" % (vr(vT[4 * q + 2 * y], 2), vYRC, 512 * q + RSZ * y), tag="yr%d" % q)
        for hf in range(2):
            m("ds_read_b128 %s, v%d offset:%d" % (vr(b + 8 * y + 4 * hf, 4), vYR, 2304 * q + RSZ * y + 16 * hf), tag="yr%d" % q)
for _ in range(2): h_issue(m, hnext[0]); hnext[0] += 1
for q in range(2):
    m.wait_lgkm("yr%d" % q)
    b = vEPB + 16 * q
    m("v_pk_add_f32 %s, %s, %s" % (vr(vT[4 * q], 2), vr(vT[4 * q], 2), vr(vT[4 * q + 2], 2)))
    for j in range(4): m("v_pk_add_f32 %s, %s, %s" % (vr(b + 2 * j, 2), vr(b + 2 * j, 2), vr(b + 8 + 2 * j, 2)))
    m("v_pk_add_f32 %s, %s, %s" % (vr(b, 2), vr(b, 2), vr(vT[4 * q], 2)))
    for j in (1, 2, 3, 0): m("v_cvt_pk_bf16_f32 v%d, v%d, v%d" % (b + 8 + j, b + 2 * j, b + 2 * j + 1))
    m("buffer_store_dwordx4 %s, v%d, %s, %s offen offset:%d sc1" % (vr(b + 8, 4), vL16, WS, sZB, 1024 * q), tag="zst")
stamp(m)
spoll_issue(m, 8, sPH)

vA2 = vACC
vZL = vEPB + 16
def z_load(s):
    spoll_check(s, 16, sPZ, "pz")
    s("buffer_load_dwordx4 %s, v%d, %s, 0 offen sc1" % (vr(vZL, 4), vP0S, WS), tag="zl")
    s("buffer_load_dwordx4 %s, v%d, %s, %s offen sc1" % (vr(vZL + 4, 4), vP0S, WS, sZ8), tag="zl")
def z_xpose(s):
    s.wait_vm("zl")
    s("ds_write_b128 v%d, %s" % (vZW, vr(vZL, 4)), tag="zw")
    s("ds_write_b128 v%d, %s offset:1024" % (vZW, vr(vZL + 4, 4)), tag="zw")
    for i in range(4):
        s("ds_read_b64_tr_b16 %s, v%d offset:%d" % (vr(vZL + 8 + 2 * i, 2), vZT, 512 * i), tag="zr")
def z_xpose2(s):
    s.wait_lgkm("zr")
    s("ds_write_b128 v%d, %s" % (vZTW, vr(vZL + 8, 4)), tag="zw2")
    s("ds_write_b128 v%d, %s offset:16" % (vZTW, vr(vZL + 12, 4)), tag="zw2")
def part_write(s, sg, ts=(0, 1)):
    for t in ts:
        for a in range(4):
            s("ds_write_b128 v%d, %s offset:%d" % (vT[3] if sg == 0 else vPW, vr(vA2[2 * sg + t] + 4 * a, 4), 128 * t + 32 * a), tag="pw%d" % sg)
def red_reads(s, sg, E):
    for w in range(4):
        for hf in range(2):
            s("ds_read_b128 %s, v%d offset:%d" % (vr(E + 8 * w + 4 * hf, 4), vT[2] if sg == 0 else vPRD, PB_SZ * w + 16 * hf), tag="pr%d" % sg)
vB2F = vXA + vWA + vWV[0:2]
vB2F = vb.n if False else None
def red(s, sg, E, pk, b2f):
    s.wait_lgkm("pr%d" % sg)
    def add(d, a, b):
        if pk: s("v_pk_add_f32 %s, %s, %s" % (vr(d, 2), vr(a, 2), vr(b, 2)))
        else:
            s("v_add_f32 v%d, v%d, v%d" % (d, a, b)); s("v_add_f32 v%d, v%d, v%d" % (d + 1, a + 1, b + 1))
    for j in range(4):
        add(E + 2 * j, E + 2 * j, E + 8 + 2 * j)
        add(E + 16 + 2 * j, E + 16 + 2 * j, E + 24 + 2 * j)
    for j in range(4): add(E + 2 * j, E + 2 * j, b2f + 2 * j)
    for j in range(4): add(E + 2 * j, E + 2 * j, E + 16 + 2 * j)
def unpack(s, dst, src):
    for j in range(4):
        s("v_lshlrev_b32 v%d, 16, v%d" % (dst + 2 * j, src + j)); s("v_and_b32 v%d, 0xffff0000, v%d" % (dst + 2 * j + 1, src + j))
def fin(s, sg, B, QF, Zr, T):
    unpack(s, T, Zr)
    for j in range(4):
        s("v_pk_fma_f32 %s, %s, %s, %s neg_lo:[0,0,1] neg_hi:[0,0,1]" % (vr(QF + 2 * j, 2), vr(QF + 2 * j, 2), vr(T + 2 * j, 2), vr(B + 2 * j, 2)))
    for j in range(4):
        s("v_pk_fma_f32 %s, %s, %s, %s op_sel_hi:[1,0,1]" % (vr(B + 2 * j, 2), vr(QF + 2 * j, 2), vr(vG[sg], 2), vr(B + 2 * j, 2)))
    for j in range(4):
        s("v_cvt_pk_bf16_f32 v%d, v%d, v%d" % (T + j, B + 2 * j, B + 2 * j + 1))
    s("buffer_store_dwordx4 %s, v%d, %s, %s offen %s" % (vr(T, 4), vQO, OUT, "0" if sg == 0 else sQ1, OPT.get("ost", "").replace("_", " ")), tag="ost")

def g2_mf(s, n, t):
    sg, k = n // 28, n % 28
    half, j = k // 14, k % 14
    c = "0" if k == 0 else vr(vA2[2 * sg + t], 16)
    s("v_mfma_f32_32x32x16_bf16 %s, %s, %s, %s" % (vr(vA2[2 * sg + t], 16), ar(aW2[half] + 8 * j + 4 * t, 4), rr(n), c))
def g2_seg(n0, n1, lim):
    s = Stream()
    for n in range(n0, n1):
        s.wait_vm("h%d" % n)
        if n == 0: s.wait_lgkm("w2r0_13")
        if 14 <= n < 28: s.wait_lgkm("w2r1_%d" % (n - 14))
        rd = Stream()
        if n < 14:
            rd.wait_vm("w2_1_%d" % n); w2_reads(rd, 1, n)
        for t in range(2):
            g2_mf(s, n, t)
            if t == 0:
                if hnext[0] < lim and hnext[0] < n + NR:
                    h_issue(s, hnext[0]); hnext[0] += 1
                s.ops.extend(rd.ops[:3])
            else:
                s.ops.extend(rd.ops[3:])
    return s
PH1 = opt("ph1", 10)
m.extend(g2_seg(0, PH1, 28))
spoll_check(m, 8, sPH, "ph1")
fstamp(m)
m("s_barrier")
f = Stream()
flag_store(f, sFZ, "zst")
f("buffer_load_dwordx4 %s, v%d, %s, 0 offen" % (vr(vQ[0], 4), vQO, Q), tag="q")
f("buffer_load_dwordx4 %s, v%d, %s, %s offen" % (vr(vQ[1], 4), vQO, Q, sQ1), tag="q")
gran_issue(f, vG[0], vGA, 0, "pg0"); gran_issue(f, vG[1], vGA, 256, "pg1")
f("v_add_u32 v%d, %d, v%d" % (vT[3], L_PB0, vPW)); f("v_add_u32 v%d, %d, v%d" % (vT[2], L_PB0, vPRD))
unpack(f, vEPB, vB2)
m.extend(spread(g2_seg(PH1, 28, 56), f, 0.0, 0.6))
m.smem_done()
stamp(m)
f = Stream(); part_write(f, 0); f.wait_lgkm("pw0"); f("s_barrier")
m.extend(spread(g2_seg(28, 38, 56), f, 0.1, 1.0))
fstamp(m)
ZP = opt("zp", 40)
f = Stream(); red_reads(f, 0, vA2[0]); red(f, 0, vA2[0], False, vEPB); spoll_issue(f, 16, sPZ)
f.wait_vm("q"); unpack(f, vA2[0] + 8, vQ[0]); unpack(f, vA2[0] + 16, vQ[1])
m.extend(spread(g2_seg(38, 48, 56), f, 0.0, 1.0))
s = Stream()
for n in range(48, 56):
    s.wait_vm("h%d" % n); g2_mf(s, n, 0)
f = Stream(); gran_check(f, vG[0], vGA, 0, "pg0"); gran_check(f, vG[1], vGA, 256, "pg1"); z_load(f)
m.extend(spread(s, f, 0.0, 0.6))
s = Stream()
for n in range(48, 56): g2_mf(s, n, 1)
f = Stream(); part_write(f, 1, (0,))
m.extend(spread(s, f, 0.2, 1.0))
stamp(m)
z_xpose(m)
part_write(m, 1, (1,))
z_xpose2(m)
m.wait_lgkm("zw2")
m("s_barrier")
stamp(m)
m("ds_read_b128 %s, v%d" % (vr(vT[4], 4), vZR), tag="zt")
m("ds_read_b128 %s, v%d offset:%d" % (vr(vT[0], 4), vZR, 32 * 144), tag="zt")
red_reads(m, 1, vA2[2])
m.wait_lgkm("zt")
fin(m, 0, vA2[0], vA2[0] + 8, vT[4], vEPB + 8)
red(m, 1, vA2[2], True, vEPB)
fin(m, 1, vA2[2], vA2[0] + 16, vT[0], vEPB + 16)
stamp(m)
print("vgprs used:", va.n, vc.n, "ring", NR, file=sys.stderr)

def stamp_out(s):
    if not STAMP: return
    s("s_waitcnt vmcnt(0)")
    stamp(s)
    nstamp[0] = 40
    stamp(s, rt=True)
    if AT >= 0:
        if s is not m: return
        s("v_readlane_b32 s40, v%d, %d" % (vSTA, AT))
        s("s_add_u32 s40, s40, 1600")
        s("L_cal:")
        s("s_memrealtime s[42:43]")
        s("s_waitcnt lgkmcnt(0)")
        s("s_sub_u32 s41, s42, s40")
        s("s_cmp_lt_i32 s41, 0")
        s("s_cbranch_scc1 L_cal")
        return
    if DBG:
        if s is not m: return
        sel = [int(x) for x in OPT.get("sel", "2,4,6,7,8,9,10,11,12,13,14,15").split(",")]
        s("v_readlane_b32 s40, v%d, 1" % vSTA)
        for k, idx in enumerate(sel):
            s("v_readlane_b32 s41, v%d, %d" % (vSTA, idx))
            s("s_sub_u32 s41, s41, s40")
            s("v_writelane_b32 v%d, s41, %d" % (vT[0], k))
        s("v_readlane_b32 s41, v%d, 40" % vSTA); s("v_writelane_b32 v%d, s41, 13" % vT[0])
        s("v_readlane_b32 s41, v%d, 41" % vSTA); s("v_writelane_b32 v%d, s41, 14" % vT[0])
        s("s_not_b32 s41, s41"); s("v_writelane_b32 v%d, s41, 15" % vT[0])
        s("v_lshlrev_b32 v%d, 2, v%d" % (vT[1], vLANE))
        s("v_add_co_u32 v62, vcc, v62, v%d" % vT[1])
        s("v_addc_co_u32 v63, vcc, 0, v63, vcc")
        s("s_mov_b64 exec, 0x%x" % ((1 << len(sel)) - 1))
        s("global_atomic_add v[62:63], v%d, off sc1" % vT[0])
        s("s_mov_b64 exec, 0xe000")
        s("global_atomic_umax v[62:63], v%d, off sc1" % vT[0])
        return
    slin(s, sT0, [("s2", 1024), (sW, 256)], WS_STAMP)
    s("v_lshlrev_b32 v%d, 2, v%d" % (vT[0], vLANE))
    s("buffer_store_dword v%d, v%d, %s, %s offen" % (vSTA, vT[0], WS, sT0))
stamp_out(m)
m("s_endpgm")

g = Stream(); g_stream[0] = g
g("L_spare:")
g("s_mov_b64 s[36:37], s[68:69]"); g("s_mov_b64 s[28:29], s[58:59]")
nstamp[0] = 0
stamp(g, rt=True); stamp(g)
if STAMP: g("v_writelane_b32 v%d, s6, 41" % vSTA)
g("v_mov_b32 v12, 0")
g("buffer_load_dword v%d, v12, %s, 0 offen sc1" % (vTAG, WS))
sJ = sA
if opt("pf", 1):
    g("s_sub_u32 %s, %s, 28" % (sT0, sI)); g("s_lshl_b32 %s, %s, 2" % (sT0, sT0)); g("s_add_u32 %s, %s, %s" % (sT0, sT0, sW))
    g("v_lshrrev_b32 v12, 1, v%d" % vLANE); g("v_mul_u32_u24 v12, 3584, v12")
    g("v_and_b32 v13, 1, v%d" % vLANE); g("v_lshl_add_u32 v12, v13, 7, v12")
    g("s_and_b32 %s, %s, 1" % (sCH, sX)); g("s_mul_i32 %s, %s, %d" % (sCH, sCH, 7 * 256))
    g("L_pf1:")
    g("s_lshr_b32 %s, %s, 1" % (sT1, sT0))
    g("s_mul_i32 %s, %s, 147" % (sT2, sT1)); g("s_lshr_b32 %s, %s, 10" % (sT2, sT2))
    g("s_mul_i32 %s, %s, 7" % (sT3, sT2)); g("s_sub_u32 %s, %s, %s" % (sT1, sT1, sT3))
    g("s_lshl_b32 %s, %s, 1" % (sT2, sT2)); g("s_add_u32 %s, %s, %s" % (sT2, sT2, sT1)); g("s_add_u32 %s, %s, 1" % (sT2, sT2))
    g("s_cmp_ge_u32 %s, 7" % sT2); g("s_cselect_b32 %s, 7, 0" % sT3); g("s_sub_u32 %s, %s, %s" % (sT2, sT2, sT3))
    g("s_lshl_b32 %s, %s, 1" % (sT2, sT2)); g("s_and_b32 %s, %s, 1" % (sT3, sT0)); g("s_add_u32 %s, %s, %s" % (sT2, sT2, sT3))
    g("s_mul_i32 %s, %s, %d" % (sT2, sT2, 32 * 3584))
    g("s_lshl_b32 %s, %s, 8" % (sT1, sT1)); g("s_add_u32 %s, %s, %s" % (sT2, sT2, sT1)); g("s_add_u32 %s, %s, %s" % (sT2, sT2, sCH))
    g("buffer_load_dword v13, v12, %s, %s offen" % (W1, sT2))
    g("s_add_u32 %s, %s, 16" % (sT0, sT0))
    g("s_cmp_lt_u32 %s, 42" % sT0)
    g("s_cbranch_scc1 L_pf1")
    g("s_sub_u32 %s, %s, 42" % (sT0, sT0))
    g("v_mul_u32_u24 v12, 896, v%d" % vLANE)
    g("L_pf:")
    g("s_cmp_ge_u32 %s, 98" % sT0); g("s_cselect_b32 %s, 98, 0" % sT1); g("s_cselect_b32 %s, 57344, 0" % sCH)
    g("s_sub_u32 %s, %s, %s" % (sT1, sT0, sT1))
    g("s_mul_i32 %s, %s, 147" % (sT2, sT1)); g("s_lshr_b32 %s, %s, 10" % (sT2, sT2))
    g("s_mul_i32 %s, %s, 7" % (sT3, sT2)); g("s_sub_u32 %s, %s, %s" % (sT1, sT1, sT3))
    g("s_lshl_b32 %s, %s, 1" % (sT3, sT1)); g("s_add_u32 %s, %s, %s" % (sT2, sT2, sT3))
    g("s_cmp_ge_u32 %s, 14" % sT2); g("s_cselect_b32 %s, 14, 0" % sT3); g("s_sub_u32 %s, %s, %s" % (sT2, sT2, sT3))
    g("s_mul_i32 %s, %s, %d" % (sT2, sT2, CBS)); g("s_lshl_b32 %s, %s, 7" % (sT1, sT1))
    g("s_add_u32 %s, %s, %s" % (sT1, sT1, sT2)); g("s_add_u32 %s, %s, %s" % (sT1, sT1, sCH))
    g("buffer_load_dword v13, v12, %s, %s offen" % (W2, sT1))
    g("s_add_u32 %s, %s, 16" % (sT0, sT0))
    g("s_cmp_lt_u32 %s, %d" % (sT0, 98 + 7 * JT))
    g("s_cbranch_scc1 L_pf")
g("s_sub_u32 %s, %s, 28" % (sJ, sI)); g("s_lshl_b32 %s, %s, 2" % (sT0, sX)); g("s_add_u32 %s, %s, %s" % (sJ, sJ, sT0))
slin(g, sT0, [(sJ, 64), (sW, 16)])
g("v_lshrrev_b32 v12, 2, v%d" % vLANE); g("v_add_u32 v12, %s, v12" % sT0)
g("v_and_b32 v15, 3, v%d" % vLANE); g("v_lshlrev_b32 v15, 4, v15")
g("v_mul_u32_u24 v14, 896, v12"); g("v_add_u32 v14, v14, v15")
for i in range(14):
    g("buffer_load_dwordx4 v[%d:%d], v14, %s, 0 offen offset:%d" % (16 + 4 * i, 19 + 4 * i, Q, 64 * i), tag="gq")
for i in range(14):
    g("global_load_dwordx4 v[%d:%d], v15, %s offset:%d" % (80 + 4 * i, 83 + 4 * i, P_GATE, 64 * i), tag="gq")
g("s_waitcnt vmcnt(0)")
g("v_add_u32 v%d, 0x%x, v%d" % (vTAG, TAG_INC, vTAG))
for i in range(56):
    acc = 140 + (i % 4)
    g("v_dot2_f32_bf16 v%d, v%d, v%d, %s" % (acc, 16 + i, 80 + i, "0" if i < 4 else "v%d" % acc))
g("v_add_f32 v140, v140, v141"); g("v_add_f32 v142, v142, v143"); g("v_add_f32 v140, v140, v142")
g("v_add_f32_dpp v140, v140, v140 quad_perm:[1,0,3,2] row_mask:0xf bank_mask:0xf")
g("v_add_f32_dpp v140, v140, v140 quad_perm:[2,3,0,1] row_mask:0xf bank_mask:0xf")
g("v_mul_f32 v140, 0x%x, v140" % f2u(-math.log2(math.e)))
g("v_exp_f32 v140, v140"); g("v_add_f32 v140, 1.0, v140"); g("v_rcp_f32 v140, v140")
g("v_mov_b32 v141, v%d" % vTAG)
g("v_lshlrev_b32 v12, 3, v12"); g("v_add_u32 v12, 0x%x, v12" % WS_G)
g("s_mov_b32 exec_lo, 0x11111111"); g("s_mov_b32 exec_hi, 0x11111111")
g("buffer_store_dwordx2 v[140:141], v12, %s, 0 offen sc1" % WS)
g("s_mov_b64 exec, -1")
g("s_cmp_lg_u32 s2, 255"); g("s_cbranch_scc1 L_spare_done")
g("s_cmp_lg_u32 %s, 0" % sW); g("s_cbranch_scc1 L_spare_done")
g("v_lshlrev_b32 v12, 4, v%d" % vLANE); g("v_add_u32 v12, 0x%x, v12" % WS_FU)
g("v_min_u32 v15, 31, v%d" % vLANE); g("v_lshlrev_b32 v15, 4, v15"); g("v_add_u32 v15, 0x%x, v15" % (WS_FU + 3072))
g("v_lshlrev_b32 v13, 7, v%d" % vLANE); g("v_add_u32 v13, 0x%x, v13" % (WS_G + 4))
g("v_add_u32 v14, 8192, v13")
g("s_mov_b32 %s, 0" % sSPIN)
g("L_upd:")
g("s_sleep 8")
for i in range(3):
    g("buffer_load_dwordx4 v[%d:%d], v12, %s, 0 offen offset:%d sc1" % (16 + 4 * i, 19 + 4 * i, WS, 1024 * i))
g("buffer_load_dwordx4 v[28:31], v15, %s, 0 offen sc1" % WS)
g("buffer_load_dword v32, v13, %s, 0 offen sc1" % WS)
g("buffer_load_dword v33, v14, %s, 0 offen sc1" % WS)
g("s_add_u32 %s, %s, 1" % (sSPIN, sSPIN))
g("s_waitcnt vmcnt(0)")
for i in range(18): g("v_xor_b32 v%d, v%d, v%d" % (16 + i, 16 + i, vTAG))
for i in range(1, 18): g("v_or_b32 v16, v16, v%d" % (16 + i))
g("v_cmp_ne_u32 vcc, 0, v16")
g("s_cmp_gt_u32 %s, 0x40000" % sSPIN)
g("s_cbranch_scc1 L_upd_go")
g("s_cbranch_vccnz L_upd")
g("L_upd_go:")
g("v_mov_b32 v12, 0")
g("s_mov_b64 exec, 1")
g("buffer_store_dword v%d, v12, %s, 0 offen sc1" % (vTAG, WS))
g("s_mov_b64 exec, -1")
g("L_spare_done:")
nstamp[0] = 2
stamp_out(g)
g("L_end:")
g("s_endpgm")

k_ = 0
for o in m.ops:
    if "STAMPIDX" in o.text:
        o.text = o.text.replace("STAMPIDX", str(k_)); k_ += 1
assert k_ <= 40
if AT >= 0:
    keep = []
    for o in m.ops:
        mm = re.match(r"v_writelane_b32 v%d, s66, (\d+)$" % vSTA, o.text)
        if mm and int(mm.group(1)) != AT:
            keep.pop(); keep.pop(); continue
        keep.append(o)
    m.ops = keep
nts = [d for d in OPT.get("nt", "").split(",") if d]
for o in m.ops:
    if o.kind in VMEMK and o.tag and any(o.tag.startswith(d) for d in nts) and "global_" not in o.text:
        o.text = o.text.replace(" lds", " nt lds") if o.text.endswith(" lds") else o.text + " nt"
drops = [d for d in OPT.get("drop", "").split(",") if d]
if drops:
    keep = []; dropped = set()
    for o in m.ops:
        if o.kind in VMEMK and o.tag and any(o.tag.startswith(d) for d in drops):
            dropped.add(o.tag); continue
        if o.kind == "waitvm" and o.waitfor in dropped: continue
        keep.append(o)
    m.ops = keep
body = render(finalize(m)) + "\n" + render(insert_nops(spins.ops)) + "\n" + render(insert_nops(resolve_waits(g.ops)))
hdr = open("cdna_kernels/%s.s.ref" % NAME).read().split("; Override launch")[0]
out = hdr + "; @launch grid=(256,1,1) block=(256,1,1) lds=%d\n" % LDS_TOTAL
out += '.amdgcn_target "amdgcn-amd-amdhsa--gfx950"\n.text\n.globl %s_kernel\n.p2align 8\n.type %s_kernel,@function\n%s_kernel:\n' % (NAME, NAME, NAME)
out += body + "\nL_code_end:\n"
out = out.replace("CODE_BYTES", "L_code_end-%s_kernel-64" % NAME)
out += '.section .rodata,"a"\n.p2align 6\n.amdhsa_kernel %s_kernel\n' % NAME
out += "  .amdhsa_next_free_vgpr 512\n  .amdhsa_next_free_sgpr 102\n  .amdhsa_accum_offset 256\n  .amdhsa_group_segment_fixed_size 0\n"
out += "  .amdhsa_kernarg_size 120\n  .amdhsa_user_sgpr_count 2\n  .amdhsa_user_sgpr_kernarg_segment_ptr 1\n  .amdhsa_system_sgpr_workgroup_id_x 1\n.end_amdhsa_kernel\n"
open(sys.argv[1], "w").write(out)
```

```python
import sys, math, struct
sys.path.insert(0, "gen")
from asmlib import *

NAME = "gated_mix__ssm_conv_h3__dense_activation_gelu__prompt"
STAMP = int(sys.argv[2]) if len(sys.argv) > 2 else 0
DBG = STAMP >= 3
if DBG: STAMP -= 2
AT = -1
if STAMP == 3: STAMP = 2; DBG = False; AT = int(dict(a.split("=") for a in sys.argv[3:])["at"])
OPT = dict(a.split("=") for a in sys.argv[3:])
def opt(k, d): return type(d)(OPT.get(k, d))
f2u = lambda f: struct.unpack("<I", struct.pack("<f", f))[0]

WS_FU = 0x1000
WS_FZ = 0x2000
WS_FH = 0x3000
WS_G  = 0x8000
WS_STAMP = 0x10000
WS_U  = 0x100000
WS_Z  = 0x300000
CP = 4224
WS_H  = 0x500000
CBS = 128 * 896
WS_SIZE = 0x1000000
TAG_INC = 0x9E3779B9
SLOT = 32768
L_HC = 114688; HC_SZ = 4128
L_UW = 131200; UW_SZ = 4624; UP = 1152
L_KS = 131200
L_VS = L_KS + 72 * 128
L_P0 = 149696
L_Y = 114688; Y_SZ = 10256
L_PB0 = 114688; PB_SZ = 8704
L_PB1 = 0
L_ZT = 149696
LDS_TOTAL = 163840
W2POS = [12, 13, 0, 1, 2, 3, 4, 5, 6, 7, 8, 9, 10, 11]

Q, K, V, SSM, W1, W2, OUT, WS = ["s[%d:%d]" % (b, b + 3) for b in range(8, 40, 4)]
WSP = "s[36:37]"
P_SHIFT, P_D, P_B1, P_B2, P_GATE = "s[46:47]", "s[50:51]", "s[56:57]", "s[60:61]", "s[62:63]"
sW, sX, sI, sA, sC, sRB128, sCB128, sRB64 = "s70", "s71", "s72", "s73", "s74", "s75", "s76", "s77"
sT0, sT1, sT2, sT3 = "s78", "s79", "s80", "s81"
sTAG = "s[82:83]"
sROT, sSPIN, sCH, sHB = "s84", "s85", "s86", "s87"
sXL, sWL, sW2L, sUW, sPO, sHC, sHSRC = "s88", "s89", "s3", "s4", "s5", "s6", "s7"
sC1 = "s[64:65]"
sST = "s[66:67]"
tXO = ["s40", "s41", "s42", "s43", "s44", "s45", "s48"]
tWO = ["s49", "s52", "s53", "s54", "s55", "s58", "s59"]
tCB = ["s%d" % i for i in range(90, 102)] + ["s68", "s69"]
sPOLL = 40

class VA:
    def __init__(self, lo, hi): self.n = lo; self.hi = hi
    def get(self, k=1, align=1):
        self.n = (self.n + align - 1) // align * align
        r = self.n; self.n += k
        assert self.n <= self.hi, "out of regs"
        return r
def vr(b, k=1): return "v%d" % b if k == 1 else "v[%d:%d]" % (b, b + k - 1)
def ar(b, k=1): return "a%d" % b if k == 1 else "a[%d:%d]" % (b, b + k - 1)

spins = Stream()
nstamp = [0]
g_stream = [None]
va = VA(0, 64); vb = VA(128, 254)
vTID = va.get(); vLANE = va.get(); vTAG = va.get(); vSTA = va.get()
vT = [va.get() for _ in range(8)]
L = vLANE

def stamp(s, rt=False):
    if not STAMP: return
    i = nstamp[0]; nstamp[0] += 1
    s.begin()
    s("%s %s" % ("s_memrealtime" if (rt or STAMP == 2) else "s_memtime", sST))
    s("s_waitcnt lgkmcnt(0)")
    s("v_writelane_b32 v%d, s66, %s" % (vSTA, "STAMPIDX" if i < 40 and s is not g_stream[0] else str(i)))
    s.end()

def slin(s, dst, terms, const=0, tmp=None):
    tmp = tmp or sT3
    first = True
    for reg, mult in terms:
        d = dst if first else tmp
        if mult == 1: src = reg
        else:
            if mult & (mult - 1) == 0: s("s_lshl_b32 %s, %s, %d" % (d, reg, mult.bit_length() - 1))
            else: s("s_mul_i32 %s, %s, %d" % (d, reg, mult))
            src = d
        if first:
            if src != dst: s("s_mov_b32 %s, %s" % (dst, src))
        else: s("s_add_u32 %s, %s, %s" % (dst, dst, src))
        first = False
    if const: s("s_add_u32 %s, %s, 0x%x" % (dst, dst, const))

def flag_store(s, vaddr, tagwait, off=0):
    s.wait_vm(tagwait)
    s.begin()
    s("s_mov_b64 exec, 1")
    s("buffer_store_dword v%d, v%d, %s, 0 offen offset:%d sc1" % (vTAG, vaddr, WS, off), tag="flag")
    s("s_mov_b64 exec, -1")
    s.end()

npoll = [0]
def spoll_issue(s, n, soff):
    s("s_load_dwordx%d s[%d:%d], %s, %s glc" % (n, sPOLL, sPOLL + n - 1, WSP, soff))
def spoll_check(s, n, soff, tag):
    s.begin()
    s("s_waitcnt lgkmcnt(0)")
    for i in range(0, n, 2):
        s("s_cmp_lg_u64 s[%d:%d], %s" % (sPOLL + i, sPOLL + i + 1, sTAG))
        s("s_cbranch_scc1 L_spin_%s" % tag)
    s("L_ok_%s:" % tag)
    s.end()
    t = spins
    t("L_spin_%s:" % tag)
    t("s_mov_b32 %s, 0" % sSPIN)
    t("v_min_u32 v254, %d, v%d" % (n - 1, L))
    t("v_lshl_add_u32 v254, v254, 2, %s" % soff)
    t("L_spin2_%s:" % tag)
    t("buffer_load_dword v255, v254, %s, 0 offen sc1" % WS)
    t("s_add_u32 %s, %s, 1" % (sSPIN, sSPIN))
    t("s_waitcnt vmcnt(0)")
    t("v_cmp_ne_u32 vcc, v255, v%d" % vTAG)
    if STAMP: t("v_writelane_b32 v%d, %s, %d" % (vSTA, sSPIN, 48 + npoll[0]))
    npoll[0] += 1
    t("s_cmp_gt_u32 %s, 0x40000" % sSPIN)
    t("s_cbranch_scc1 L_ok_%s" % tag)
    t("s_cbranch_vccz L_ok_%s" % tag)
    t("s_sleep 1")
    t("s_branch L_spin2_%s" % tag)
def gran_issue(s, vdst, vaddr, tag):
    s("buffer_load_dwordx2 %s, v%d, %s, 0 offen sc1" % (vr(vdst, 2), vaddr, WS), tag=tag)
def gran_check(s, vdst, vaddr, tag):
    s.wait_vm(tag)
    s.begin()
    s("v_cmp_ne_u32 vcc, v%d, v%d" % (vdst + 1, vTAG))
    s("s_cbranch_vccnz L_spin_%s" % tag)
    s("L_ok_%s:" % tag)
    s.end()
    t = spins
    t("L_spin_%s:" % tag)
    t("s_mov_b32 %s, 0" % sSPIN)
    t("L_spin2_%s:" % tag)
    t("s_sleep 1")
    gran_issue(t, vdst, vaddr, tag)
    t("s_add_u32 %s, %s, 1" % (sSPIN, sSPIN))
    t("s_waitcnt vmcnt(0)")
    t("v_cmp_ne_u32 vcc, v%d, v%d" % (vdst + 1, vTAG))
    if STAMP: t("v_writelane_b32 v%d, %s, %d" % (vSTA, sSPIN, 48 + npoll[0]))
    npoll[0] += 1
    t("s_cmp_gt_u32 %s, 0x40000" % sSPIN)
    t("s_cbranch_scc1 L_ok_%s" % tag)
    t("s_cbranch_vccnz L_spin2_%s" % tag)
    t("s_branch L_ok_%s" % tag)

def srd(s, name, lo, nbytes):
    b = int(name[2:].split(":")[0])
    s("s_mov_b32 s%d, s%d" % (b, lo)); s("s_mov_b32 s%d, s%d" % (b + 1, lo + 1))
    s("s_mov_b32 s%d, 0x%x" % (b + 2, nbytes)); s("s_mov_b32 s%d, 0x20000" % (b + 3))

m = Stream()
if STAMP: m("s_memrealtime s[6:7]")
m("s_load_dwordx16 s[40:55], s[0:1], 0")
m("s_load_dwordx8 s[56:63], s[0:1], 64")
m("s_load_dwordx4 s[64:67], s[0:1], 96")
m("s_load_dwordx2 s[68:69], s[0:1], 112")
m("s_cmp_ge_u32 s2, 256")
m("s_cbranch_scc1 L_end")
m("s_getpc_b64 s[4:5]")
m("v_lshlrev_b32 v%d, 7, v0" % vT[0])
m("v_min_u32 v%d, CODE_BYTES, v%d" % (vT[0], vT[0]))
m("global_load_dword v255, v%d, s[4:5]" % vT[0], tag="cpf")
m("v_mov_b32 v%d, 0" % vSTA)
m("v_and_b32 v%d, 63, v0" % vLANE)
m("v_lshrrev_b32 v%d, 6, v0" % vT[2])
m("v_readfirstlane_b32 %s, v%d" % (sW, vT[2]))
m("s_and_b32 %s, s2, 7" % sX)
m("s_lshr_b32 %s, s2, 3" % sI)
m("s_mul_i32 %s, %s, 37" % (sA, sI)); m("s_lshr_b32 %s, %s, 8" % (sA, sA))
m("s_mul_i32 %s, %s, 7" % (sC, sA)); m("s_sub_u32 %s, %s, %s" % (sC, sI, sC))
m("s_lshr_b32 %s, %s, 1" % (sT0, sX)); slin(m, sRB128, [(sT0, 4), (sA, 1)])
m("s_and_b32 %s, %s, 1" % (sT0, sX)); slin(m, sCB128, [(sT0, 7), (sC, 1)])
slin(m, sRB64, [(sX, 4), (sA, 1)])
slin(m, sROT, [(sA, 2), (sC, 1)])
m("s_cmp_ge_u32 %s, 7" % sROT); m("s_cselect_b32 %s, 7, 0" % sT0); m("s_sub_u32 %s, %s, %s" % (sROT, sROT, sT0))
vL8 = va.get(); vLd8 = va.get()
m("v_and_b32 v%d, 7, v%d" % (vL8, L)); m("v_lshrrev_b32 v%d, 3, v%d" % (vLd8, L))
vXV = [va.get() for _ in range(4)]
vWV = [va.get() for _ in range(4)]
slin(m, sT0, [(sRB128, 128), (sW, 32)])
m("v_add_u32 v%d, %s, v%d" % (vT[0], sT0, vLd8))
m("v_mul_u32_u24 v%d, 896, v%d" % (vT[0], vT[0]))
vG4 = va.get()
m("v_lshrrev_b32 v%d, 4, v%d" % (vG4, L))
m("v_xor_b32 v%d, v%d, v%d" % (vT[3], vL8, vG4))
m("v_lshl_add_u32 v%d, v%d, 4, v%d" % (vXV[0], vT[3], vT[0]))
m("v_xor_b32 v%d, 4, v%d" % (vT[3], vT[3]))
m("v_lshl_add_u32 v%d, v%d, 4, v%d" % (vXV[1], vT[3], vT[0]))
m("v_add_u32 v%d, %d, v%d" % (vXV[2], 2 * 6144, vXV[0]))
m("v_add_u32 v%d, %d, v%d" % (vXV[3], 3 * 6144, vXV[1]))
m("v_add_u32 v%d, %d, v%d" % (vXV[1], 6144, vXV[1]))
vSWZ = va.get()
m("v_and_b32 v%d, 1, v%d" % (vT[3], vG4)); m("v_lshlrev_b32 v%d, 2, v%d" % (vT[3], vT[3]))
m("v_xor_b32 v%d, v%d, v%d" % (vT[3], vL8, vT[3])); m("v_lshlrev_b32 v%d, 4, v%d" % (vSWZ, vT[3]))
m("s_lshl_b32 %s, %s, 4" % (sT0, sW))
m("v_add_u32 v%d, %s, v%d" % (vT[0], sT0, vLd8))
m("v_mul_u32_u24 v%d, 3584, v%d" % (vT[0], vT[0]))
m("s_lshl_b32 %s, %s, 8" % (sT0, sCB128))
m("v_add3_u32 v%d, v%d, v%d, %s" % (vWV[0], vT[0], vSWZ, sT0))
m("v_add_u32 v%d, %d, v%d" % (vWV[1], 8 * 3584 - 1024, vWV[0]))
m("v_add_u32 v%d, 128, v%d" % (vWV[2], vWV[0]))
m("v_add_u32 v%d, 128, v%d" % (vWV[3], vWV[1]))
m("s_lshl_b32 %s, %s, 12" % (sXL, sW))
m("s_add_u32 %s, %s, 16384" % (sWL, sXL))
m("s_waitcnt lgkmcnt(0)")
NB = 2048 * 448 * 2
srd(m, Q, 40, NB); srd(m, W1, 54, 448 * 1792 * 2); srd(m, WS, 68, WS_SIZE); srd(m, W2, 58, 448 * 1792 * 2)
if DBG: m("v_mov_b32 v62, s66"); m("v_mov_b32 v63, s67")
stamp(m, rt=True)
stamp(m)
if STAMP: m("v_writelane_b32 v%d, s6, 41" % vSTA)
m("s_cmp_ge_u32 %s, 28" % sI)
m("s_cbranch_scc1 L_spare")
m("s_lshl_b32 %s, %s, 7" % (sT1, sROT)); m("s_mul_i32 %s, %s, %d" % (sT2, sROT, 64 * 3584))

def st_groups(t, xo=None, wo=None):
    gs = []
    slot = (t % 4) * SLOT
    for q in range(4):
        s = Stream(); s.begin()
        if q == 0: s("s_add_u32 m0, %s, %d" % (sXL, slot))
        s("buffer_load_dwordx4 v%d, %s, %s offen offset:%d lds" % (vXV[q], Q, xo or tXO[t], 1024 * q), tag="st%d" % t)
        s.end(); gs.append(s)
    for q in range(4):
        s = Stream(); s.begin()
        if q in (0, 2): s("s_add_u32 m0, %s, %d" % (sWL, slot + (2048 if q == 2 else 0)))
        s("buffer_load_dwordx4 v%d, %s, %s offen offset:%d lds" % (vWV[q], W1, wo or tWO[t], 1024 * (q & 1)), tag="st%d" % t)
        s.end(); gs.append(s)
    return gs
def st_issue(s, t, part="xw", **kw):
    gs = st_groups(t, **kw)
    for p_ in part:
        for g_ in (gs[:4] if p_ == "x" else gs[4:]): s.extend(g_)
st_issue(m, 0, xo=sT1, wo=sT2)
srd(m, K, 42, NB); srd(m, V, 44, NB); srd(m, SSM, 48, NB); srd(m, OUT, 64, NB)
m("s_mov_b32 %s, %s" % (tXO[0], sT1)); m("s_mov_b32 %s, %s" % (tWO[0], sT2))
for t in range(1, 7):
    if t < 4:
        m("s_add_u32 %s, %s, %d" % (sT0, sA, t)); m("s_and_b32 %s, %s, 3" % (sT0, sT0)); add = 0
    else:
        m("s_add_u32 %s, %s, %d" % (sT0, sA, t - 4)); m("s_cmp_ge_u32 %s, 3" % sT0); m("s_cselect_b32 %s, 3, 0" % sT1); m("s_sub_u32 %s, %s, %s" % (sT0, sT0, sT1)); add = 1
    m("s_lshl_b32 %s, %s, 1" % (sT0, sT0)); m("s_add_u32 %s, %s, %s" % (sT0, sT0, sC))
    if add: m("s_add_u32 %s, %s, 1" % (sT0, sT0))
    m("s_cmp_ge_u32 %s, 7" % sT0); m("s_cselect_b32 %s, 7, 0" % sT1); m("s_sub_u32 %s, %s, %s" % (sT0, sT0, sT1))
    m("s_lshl_b32 %s, %s, 7" % (tXO[t], sT0)); m("s_mul_i32 %s, %s, %d" % (tWO[t], sT0, 64 * 3584))
m("v_mov_b32 v%d, 0" % vT[0])
m("buffer_load_dword v%d, v%d, %s, 0 offen sc1" % (vTAG, vT[0], WS), tag="sm")
if opt("tlb", 0):
    m("v_min_u32 v%d, 11, v%d" % (vT[1], L))
    m("v_mul_u32_u24 v%d, %d, v%d" % (vT[1], 8 * CBS, vT[1]))
    m("v_add_u32 v%d, 0x%x, v%d" % (vT[1], WS_H + 98304, vT[1]))
    m("v_writelane_b32 v%d, 0x2f0000, 63" % vT[1] if False else "s_mov_b32 %s, 0x2f0000" % sT0)
    m("v_writelane_b32 v%d, %s, 63" % (vT[1], sT0))
    m("buffer_load_dword v254, v%d, %s, 0 offen" % (vT[1], WS), tag="sm")
    m("buffer_load_dword v254, v%d, %s, 0 offen" % (vT[0], W2), tag="sm")
    m("buffer_load_dword v254, v%d, %s, 0 offen" % (vT[0], OUT), tag="sm")
    m("global_load_dword v254, v%d, %s" % (vT[0], P_B2), tag="sm")
vB1 = vb.get(4, 4); vTP = vb.get(2, 2)
vS32 = va.get(); vHH = va.get(); vL15 = va.get()
m("v_and_b32 v%d, 31, v%d" % (vS32, L)); m("v_lshrrev_b32 v%d, 5, v%d" % (vHH, L)); m("v_and_b32 v%d, 15, v%d" % (vL15, L))
m("s_and_b32 %s, %s, 1" % (sT1, sW)); slin(m, sT0, [(sCB128, 256), (sT1, 128)])
m("v_lshl_add_u32 v%d, v%d, 1, %s" % (vT[1], vS32, sT0))
m("global_load_ushort v%d, v%d, %s" % (vB1, vT[1], P_B1), tag="sm")
m("global_load_ushort v%d, v%d, %s offset:64" % (vB1 + 2, vT[1], P_B1), tag="sm")
slin(m, sT0, [(sC, 512), (sW, 128)])
m("v_lshl_add_u32 v%d, v%d, 3, %s" % (vT[1], vL15, sT0))
m("global_load_dwordx2 %s, v%d, %s" % (vr(vTP, 2), vT[1], P_SHIFT), tag="sm")
vHP = va.get(2, 2); vDP = va.get()
m("s_lshr_b32 %s, %s, 1" % (sT0, sW)); slin(m, sCH, [(sC, 64), (sRB64, 2), (sT0, 1)])
m("s_lshl_b32 %s, %s, 1" % (sT0, sCH))
m("v_mov_b32 v%d, %s" % (vT[1], sT0))
m("global_load_ushort v%d, v%d, %s" % (vDP, vT[1], P_D), tag="sm")
r2 = Stream()
vKV = vb.get(); vKH = vb.get()
slin(m, sT0, [(sRB64, 64), (sW, 16)])
m("v_add_u32 v%d, %s, v%d" % (vT[0], sT0, vLd8))
m("v_mul_u32_u24 v%d, 896, v%d" % (vT[0], vT[0]))
m("s_lshl_b32 %s, %s, 7" % (sT1, sC))
m("v_lshl_add_u32 v%d, v%d, 4, %s" % (vT[1], vL8, sT1))
m("v_add_u32 v%d, v%d, v%d" % (vKV, vT[0], vT[1]))
m("s_mul_i32 %s, %s, %d" % (sT0, sW, 16 * 896)); m("s_add_u32 %s, %s, %d" % (sT0, sT0, 8 * 896))
m("v_subrev_u32 v%d, %s, v%d" % (vKH, sT0, vKV))
m("s_mov_b32 %s, %d" % (sPO, 8 * 896 - 1024))
m("s_lshl_b32 %s, %s, 11" % (sW2L, sW))
for src, base in ((K, L_KS + 1024), (V, L_VS)):
    r2.begin(); r2("s_add_u32 m0, %s, %d" % (sW2L, base))
    r2("buffer_load_dwordx4 v%d, %s, 0 offen lds" % (vKV, src), tag="kv"); r2.end()
    r2("buffer_load_dwordx4 v%d, %s, %s offen offset:1024 lds" % (vKV, src, sPO), tag="kv")
r2.begin()
r2("s_mov_b32 m0, %d" % L_KS)
r2("s_mov_b32 exec_lo, 0")
r2("buffer_load_dwordx4 v%d, %s, 0 offen lds" % (vKH, K), tag="kv")
r2("s_mov_b32 exec_lo, -1")
r2.end()
r2b = Stream()
st_issue(r2b, 4, "w")
r2b("s_lshl_b32 %s, %s, 12" % (sHSRC, sCH))
r2b("v_lshl_add_u32 v%d, v%d, 7, %s" % (vT[7], vS32, sHSRC))
r2b("buffer_load_dwordx2 %s, v%d, %s, 0 offen" % (vr(vHP, 2), vT[7], SSM), tag="hp")

su = Stream()
su("v_mov_b32 v%d, 0" % (vB1 + 1)); su("v_mov_b32 v%d, 0" % (vB1 + 3))
vXA = [va.get() for _ in range(4)]
vWA = [va.get() for _ in range(2)]
vW2R = [va.get() for _ in range(4)]
su("v_bfe_u32 v%d, v%d, 1, 3" % (vT[0], L))
su("v_xor_b32 v%d, v%d, v%d" % (vT[0], vT[0], vHH))
su("v_lshlrev_b32 v%d, 4, v%d" % (vT[0], vT[0]))
su("v_lshl_add_u32 v%d, v%d, 7, v%d" % (vT[0], vS32, vT[0]))
su("s_lshr_b32 %s, %s, 1" % (sT1, sW)); su("s_lshl_b32 %s, %s, 13" % (sT1, sT1))
for ks in range(4):
    su("v_xor_b32 v%d, %d, v%d" % (vXA[ks], 32 * ks, vT[0]))
    su("v_add_u32 v%d, %s, v%d" % (vXA[ks], sT1, vXA[ks]))
vC4 = va.get(); vR4 = va.get()
su("v_and_b32 v%d, 3, v%d" % (vC4, L)); su("v_bfe_u32 v%d, v%d, 2, 2" % (vR4, L))
su("v_bfe_u32 v%d, v%d, 4, 1" % (vT[0], L))
su("v_lshlrev_b32 v%d, 5, v%d" % (vT[0], vT[0]))
su("v_lshl_add_u32 v%d, v%d, 3, v%d" % (vT[0], vC4, vT[0]))
su("v_lshl_add_u32 v%d, v%d, 7, v%d" % (vT[0], vR4, vT[0]))
su("v_bfe_u32 v%d, v%d, 3, 1" % (vT[1], L))
su("v_lshl_add_u32 v%d, v%d, 6, v%d" % (vT[0], vT[1], vT[0]))
su("v_lshl_add_u32 v%d, v%d, 10, v%d" % (vWA[0], vHH, vT[0]))
su("s_and_b32 %s, %s, 1" % (sT1, sW)); slin(su, sT1, [(sT1, 2048)], 16384)
su("v_add_u32 v%d, %s, v%d" % (vWA[0], sT1, vWA[0]))
su("v_xor_b32 v%d, 64, v%d" % (vWA[1], vWA[0]))
su("v_lshl_add_u32 v%d, v%d, 9, v%d" % (vW2R[0], vHH, vT[0]))
su("v_add_u32 v%d, %s, v%d" % (vW2R[0], sW2L, vW2R[0]))
su("v_xor_b32 v%d, 64, v%d" % (vW2R[1], vW2R[0]))
su("v_add_u32 v%d, 0x10000, v%d" % (vW2R[2], vW2R[0])); su("v_add_u32 v%d, 0x10000, v%d" % (vW2R[3], vW2R[1]))
vZ4 = va.get(4, 4)
for i in range(4): su("v_mov_b32 v%d, 0" % (vZ4 + i))
slin(su, sUW, [(sW, UW_SZ)], L_UW)
vACC = [64 + 16 * i for i in range(4)]
vONE = vb.get(8, 4)
for i in range(8): su("v_mov_b32 v%d, 0" % (vONE + i))
su.begin()
su("v_cmp_gt_u32 vcc, 32, v%d" % L)
su("v_mov_b32 v%d, 0x3f80" % vT[0])
su("v_cndmask_b32 v%d, 0, v%d, vcc" % (vONE, vT[0]))
su.end()
su("v_mov_b32 v%d, v%d" % (vONE + 6, vONE))
vL16 = va.get()
su("v_lshlrev_b32 v%d, 4, v%d" % (vL16, L))
slin(su, sHC, [(sW, HC_SZ)], L_HC)
su("s_mul_i32 %s, %s, %d" % (tCB[0], sROT, 2 * CBS))
for j in range(1, 14):
    su.begin()
    su("s_add_u32 %s, %s, %d" % (tCB[j], tCB[j - 1], CBS)); su("s_cmp_ge_u32 %s, %d" % (tCB[j], 14 * CBS)); su("s_cselect_b32 %s, 0, %s" % (tCB[j], tCB[j]))
    su.end()
vW2V = [va.get() for _ in range(4)]
su("v_mul_u32_u24 v%d, 896, v%d" % (vT[0], vLd8))
slin(su, sT1, [(sC, 128), (sW, 16 * 896)])
su("v_add3_u32 v%d, v%d, v%d, %s" % (vW2V[0], vT[0], vSWZ, sT1))
su("v_add_u32 v%d, %d, v%d" % (vW2V[1], 8 * 896 - 1024, vW2V[0]))
su("v_add_u32 v%d, %d, v%d" % (vW2V[2], 64 * 896, vW2V[0]))
su("v_add_u32 v%d, %d, v%d" % (vW2V[3], 64 * 896, vW2V[1]))
c_ = math.sqrt(2.0 / math.pi) * 2.0 * math.log2(math.e)
su("s_mov_b32 s64, 0x%x" % f2u(-c_ * 0.044715)); su("s_mov_b32 s65, 0x%x" % f2u(-c_ * 0.044715))
vC0 = va.get(2, 2)
su("v_mov_b32 v%d, 0x%x" % (vC0, f2u(-c_))); su("v_mov_b32 v%d, 0x%x" % (vC0 + 1, f2u(-c_)))
su("s_mul_i32 %s, %s, 43" % (sT1, sRB128)); su("s_lshr_b32 %s, %s, 7" % (sT1, sT1))
slin(su, sHB, [(sT1, 14 * CBS - 3 * 32768), (sRB128, 32768), (sCB128, CBS), (sW, 8192)], WS_H)
vFHA = va.get(); vFUA = va.get()
su("s_lshr_b32 %s, %s, 1" % (sT1, sW)); su("s_and_b32 %s, %s, 1" % (sT2, sW))
slin(su, sT0, [(sRB128, 512), (sT1, 256), (sCB128, 8), (sT2, 4)], WS_FH)
su("v_mov_b32 v%d, %s" % (vFHA, sT0))
slin(su, sT0, [(sC, 512), (sW, 128), (sRB64, 4)], WS_FU)
su("v_mov_b32 v%d, %s" % (vFUA, sT0))
vP0R = vb.get(); vP0W = vb.get(); vP0B = vb.get(); vP0S = vb.get()
su("v_lshl_add_u32 v%d, v%d, 4, v%d" % (vT[0], vG4, vR4))
su("v_lshlrev_b32 v%d, 7, v%d" % (vT[0], vT[0]))
su("v_lshl_add_u32 v%d, v%d, 3, v%d" % (vT[0], vC4, vT[0]))
slin(su, sT0, [(sW, 32)], L_KS + 512)
su("v_add_u32 v%d, %s, v%d" % (vP0R, sT0, vT[0]))
slin(su, sT0, [(sW, 2304)], L_P0)
su("v_mul_u32_u24 v%d, 144, v%d" % (vT[0], vL15)); su("v_lshl_add_u32 v%d, v%d, 5, v%d" % (vT[0], vG4, vT[0]))
su("v_add_u32 v%d, %s, v%d" % (vP0W, sT0, vT[0]))
su("v_mul_u32_u24 v%d, 144, v%d" % (vT[0], vLd8)); su("v_lshl_add_u32 v%d, v%d, 4, v%d" % (vT[0], vL8, vT[0]))
su("v_add_u32 v%d, %s, v%d" % (vP0B, sT0, vT[0]))
slin(su, sT0, [(sC, 64 * CP), (sW, 16 * CP), (sRB64, 128)], WS_U)
su("v_mul_u32_u24 v%d, %d, v%d" % (vT[0], CP, vLd8)); su("v_lshl_add_u32 v%d, v%d, 4, v%d" % (vT[0], vL8, vT[0]))
su("v_add_u32 v%d, %s, v%d" % (vP0S, sT0, vT[0]))
vCA = va.get(); vCB = va.get()
su("v_sub_u32 v%d, v%d, v%d" % (vT[0], vC4, vR4)); su("v_lshlrev_b32 v%d, 3, v%d" % (vT[0], vT[0]))
su("v_lshlrev_b32 v%d, 6, v%d" % (vT[1], vG4)); su("v_sub_u32 v%d, v%d, v%d" % (vT[0], vT[0], vT[1]))
su("s_lshr_b32 %s, %s, 1" % (sT1, sW)); slin(su, sT1, [(sT1, 2 * HC_SZ)], L_HC + 216)
su("v_add_u32 v%d, %s, v%d" % (vCA, sT1, vT[0]))
su("v_lshlrev_b32 v%d, 3, v%d" % (vT[1], vL15))
su("v_lshl_add_u32 v%d, v%d, 4, v%d" % (vT[1], vG4, vT[1]))
su("v_and_b32 v%d, 1, v%d" % (vT[0], L)); su("v_xor_b32 v%d, 1, v%d" % (vT[0], vT[0]))
su("v_mul_u32_u24 v%d, %d, v%d" % (vT[0], UP + 8, vT[0]))
su("v_add3_u32 v%d, v%d, v%d, %s" % (vCB, vT[0], vT[1], sUW))
su("v_add_u32 v%d, 8, v%d" % (vCB, vCB))
m.extend(su)
stamp(m)
st_issue(m, 1)
stamp(m)

vKD = vb.get(10, 2)
vVD = vb.get(8, 2)
vKO = vb.get(10, 2)
vKS = vb.get(16, 4); vVF = vb.get(16, 4); vTR = vb.get(2, 2); vUO = vb.get(8, 4)
p0r = Stream()
for i in range(5): p0r("ds_read_b64_tr_b16 %s, v%d offset:%d" % (vr(vKD + 2 * i, 2), vP0R, 512 * i), tag="p0r")
for i in range(4): p0r("ds_read_b64_tr_b16 %s, v%d offset:%d" % (vr(vVD + 2 * i, 2), vP0R, L_VS - L_KS - 512 + 512 * i), tag="p0r")
p0 = Stream()
p0("v_alignbit_b32 v%d, v%d, v%d, 16" % (vTR, vTP, vTP))
p0("v_alignbit_b32 v%d, v%d, v%d, 16" % (vTR + 1, vTP + 1, vTP + 1))
p0.wait_lgkm("p0r")
for j in range(9): p0("v_alignbit_b32 v%d, v%d, v%d, 16" % (vKO + j, vKD + j + 1, vKD + j))
for j in range(8):
    p0("v_lshlrev_b32 v%d, 16, v%d" % (vVF + 2 * j, vVD + j)); p0("v_and_b32 v%d, 0xffff0000, v%d" % (vVF + 2 * j + 1, vVD + j))
for s_ in range(16):
    hi = (vKD + (s_ + 3) // 2) if s_ % 2 else (vKO + (s_ + 2) // 2)
    p0("v_dot2_f32_bf16 v%d, v%d, v%d, 0" % (vKS + s_, hi, vTR))
for s_ in range(16):
    lo = (vKD + (s_ + 1) // 2) if s_ % 2 else (vKO + s_ // 2)
    p0("v_dot2_f32_bf16 v%d, v%d, v%d, v%d" % (vKS + s_, lo, vTR + 1, vKS + s_))
for j in range(8): p0("v_pk_mul_f32 %s, %s, %s" % (vr(vKS + 2 * j, 2), vr(vKS + 2 * j, 2), vr(vVF + 2 * j, 2)))
for p_ in range(4):
    for hf in range(2): p0("v_cvt_pk_bf16_f32 v%d, v%d, v%d" % (vUO + 2 * p_ + hf, vKS + p_ + 8 * hf, vKS + p_ + 8 * hf + 4))
p0("ds_write_b128 v%d, %s" % (vP0W, vr(vUO, 4)), tag="p0w")
p0("ds_write_b128 v%d, %s offset:16" % (vP0W, vr(vUO + 4, 4)), tag="p0w")
p0b = Stream()
p0b.wait_lgkm("p0w")
p0b("ds_read_b128 %s, v%d" % (vr(vKS, 4), vP0B), tag="p0b")
p0b("ds_read_b128 %s, v%d offset:1152" % (vr(vKS + 4, 4), vP0B), tag="p0b")
p0b("s_mov_b32 %s, %d" % (sPO, 8 * CP))
p0c = Stream()
p0c.wait_lgkm("p0b")
p0c("buffer_store_dwordx4 %s, v%d, %s, 0 offen sc1" % (vr(vKS, 4), vP0S, WS), tag="ust")
p0c("buffer_store_dwordx4 %s, v%d, %s, %s offen sc1" % (vr(vKS + 4, 4), vP0S, WS, sPO), tag="ust")

aF = 0
def g1_reads(kap):
    t, ks = kap // 4, kap % 4
    slot = (t % 4) * SLOT
    b = aF + 16 * (kap % 2)
    so = slot - (65536 if slot >= 65536 else 0)
    gs = [Stream(), Stream(), Stream()]
    for ft in range(2):
        g_ = gs[2 * ft]
        g_("ds_read_b64_tr_b16 %s, v%d offset:%d" % (ar(b + 8 + 4 * ft, 2), vWA[ft], so + ks * 4096), tag="f%d_%d" % (kap, ft))
        g_("ds_read_b64_tr_b16 %s, v%d offset:%d" % (ar(b + 8 + 4 * ft + 2, 2), vWA[ft], so + ks * 4096 + 512), tag="f%d_%d" % (kap, ft))
        gs[1]("ds_read_b128 %s, v%d offset:%d" % (ar(b + 4 * ft, 4), vXA[ks], so + 4096 * ft), tag="f%d_0" % kap)
    return gs
def addr_shift(s, delta):
    for r in vXA + vWA:
        s("v_add_u32 v%d, 0x%x, v%d" % (r, delta & 0xffffffff, r))
def g1_mf(s, kap, i, ft):
    b = aF + 16 * (kap % 2)
    c = "0" if kap == 0 else vr(vACC[2 * i + ft], 16)
    s("v_mfma_f32_32x32x16_bf16 %s, %s, %s, %s" % (vr(vACC[2 * i + ft], 16), ar(b + 8 + 4 * ft, 4), ar(b + 4 * i, 4), c))
def g1_kstep(s, kap, pre=None):
    rd = g1_reads(kap + 1) if kap + 1 < 28 else [Stream(), Stream(), Stream()]
    if pre is not None: s.wait_lgkm("f%d_1" % kap)
    else: s.wait_lgkm("f%d_0" % kap)
    g1_mf(s, kap, 0, 0)
    if pre is not None: s.extend(pre)
    s.extend(rd[0])
    g1_mf(s, kap, 1, 0)
    s.extend(rd[1])
    s.wait_lgkm("f%d_1" % kap)
    g1_mf(s, kap, 0, 1)
    s.extend(rd[2])
    g1_mf(s, kap, 1, 1)

def w2_issue(s, half, j):
    for q in range(2):
        s.begin()
        if q == 0: s("s_add_u32 m0, %s, %d" % (sW2L, 8192 * W2POS[j]))
        s("buffer_load_dwordx4 v%d, %s, %s offen offset:%d lds" % (vW2V[2 * half + q], W2, tCB[j], 1024 * q), tag="w2_%d_%d" % (half, j))
        s.end()
aW2 = [128, 0]
def w2_reads(s, half, j):
    off = 8192 * W2POS[j]; hi = off >= 65536; off -= 65536 * hi
    for t in range(2):
        b = aW2[half] + 8 * j + 4 * t
        s("ds_read_b64_tr_b16 %s, v%d offset:%d" % (ar(b, 2), vW2R[2 * hi + t], off), tag="w2r%d_%d" % (half, j))
        s("ds_read_b64_tr_b16 %s, v%d offset:%d" % (ar(b + 2, 2), vW2R[2 * hi + t], off + 1024), tag="w2r%d_%d" % (half, j))

hc = Stream()
hc("s_and_b32 %s, %s, 1" % (sT0, sW)); hc("s_lshl_b32 %s, %s, 1" % (sT1, sT0))
hc("s_add_u32 %s, %s, 8" % (sHSRC, sHSRC)); hc("s_sub_u32 %s, %s, %s" % (sHSRC, sHSRC, sT1))
for q in range(4):
    hc.begin()
    if q == 0: hc("s_add_u32 m0, %s, 32" % sHC)
    hc("buffer_load_dwordx4 v%d, %s, %s offen offset:%d lds" % (vL16, SSM, sHSRC, 1024 * q), tag="hc")
    hc.end()
hc("v_lshlrev_b32 v%d, 16, v%d" % (vT[0], vHP)); hc("v_lshlrev_b32 v%d, 16, v%d" % (vT[1], vDP))
hc("v_add_f32 v%d, v%d, v%d" % (vT[0], vT[0], vT[1]))
hc("v_and_b32 v%d, 0xffff0000, v%d" % (vT[1], vHP))
hc("v_cvt_pk_bf16_f32 v%d, v%d, v%d" % (vHP, vT[0], vT[1]))
hc("s_lshl_b32 %s, %s, 4" % (sT0, sT0))
hc("v_lshlrev_b64 %s, %s, %s" % (vr(vT[2], 2), sT0, vr(vHP, 2)))
hc("v_mov_b32 v%d, 0" % vT[0]); hc("v_mov_b32 v%d, 0" % vT[1])
hc("v_mov_b32 v%d, %s" % (vT[4], sHC))
hc.begin()
hc("s_mov_b64 exec, 1")
hc("ds_write_b128 v%d, %s" % (vT[4], vr(vZ4, 4)), tag="z0")
hc("ds_write_b128 v%d, %s offset:16" % (vT[4], vr(vT[0], 4)), tag="z0")
hc("s_mov_b64 exec, -1")
hc.end()
uz = Stream()
uz("v_mul_u32_u24 v%d, 57, v%d" % (vT[5], L)); uz("v_lshrrev_b32 v%d, 9, v%d" % (vT[5], vT[5]))
uz("v_mul_u32_u24 v%d, %d, v%d" % (vT[5], UP - 144, vT[5]))
uz("v_add3_u32 v%d, v%d, v%d, %s" % (vT[5], vT[5], vL16, sUW))
uz.begin()
uz("s_mov_b32 exec_hi, 15")
uz("ds_write_b128 v%d, %s" % (vT[5], vr(vZ4, 4)), tag="z0")
uz("s_mov_b64 exec, -1")
uz.end()

fill = {t: Stream() for t in range(7)}
st_issue(fill[0], 2)
fill[1].extend(r2); st_issue(fill[1], 3, "x")
st_issue(fill[2], 3, "w"); fill[2].extend(r2b)
st_issue(fill[3], 4, "x"); st_issue(fill[3], 5)
st_issue(fill[4], 6); fill[4].extend(uz); flag_store(fill[4], vFUA, "ust")
fill[5].extend(hc); w2_issue(fill[5], 0, 0); w2_issue(fill[5], 0, 1)
for j in range(2, 6): w2_issue(fill[6], 0, j)
p0pre = Stream()
for i in range(2):
    for ft in range(2):
        p0pre("v_mfma_f32_32x32x16_bf16 %s, %s, %s, %s" % (vr(vACC[2 * i + ft], 16), vr(vB1, 4), vr(vONE + 4 * ft, 4), vr(vACC[2 * i + ft], 16)))
p0pre("v_add_u32 v%d, 0x%x, v%d" % (vTAG, TAG_INC, vTAG))
stamp(p0pre)
p0pre.wait_vm("kv")
p0pre("s_barrier")
stamp(p0pre)
p0pre.extend(p0r)
p0pre("v_readfirstlane_b32 s82, v%d" % vTAG); p0pre("v_readfirstlane_b32 s83, v%d" % vTAG)
p0pre.extend(p0); p0pre.extend(p0b); p0pre.extend(p0c)
stamp(p0pre)
def bar(t):
    b_ = Stream()
    if opt("fine", 0): stamp(b_)
    if t < 7: b_.wait_vm("st%d" % t)
    else: b_.wait_vm("hc")
    if opt("fine", 0): stamp(b_)
    b_("s_barrier")
    if opt("fine", 0): stamp(b_)
    if t in (2, 4, 6): addr_shift(b_, 65536 if t in (2, 6) else -65536)
    return b_
m.extend(bar(0))
for g_ in g1_reads(0): m.extend(g_)
for t in range(7):
    s = Stream()
    if t > 0: g1_kstep(s, 4 * t - 1, bar(t))
    for ks in range(3): g1_kstep(s, 4 * t + ks)
    m.extend(spread(s, fill[t], 0.1 if t > 0 else 0.0, 1.0))
    if t == 2: m.extend(p0pre)
g1_kstep(m, 27, bar(7))
stamp(m)

vb = VA(128, 254)
vGT = vb.get(16, 4); vHO = vb.get(8, 4); vUL = vb.get(8, 4)
def gelu(i):
    ge = Stream()
    n = 0
    for ft in range(2):
        for hf in range(2):
            x0 = vACC[2 * i + ft] + 8 * hf
            T = vGT + 8 * (n % 2); ho = vHO + 4 * (n % 2); n += 1
            for j in range(4): ge("v_pk_mul_f32 %s, %s, %s" % (vr(T + 2 * j, 2), vr(x0 + 2 * j, 2), vr(x0 + 2 * j, 2)))
            for j in range(4): ge("v_pk_fma_f32 %s, %s, %s, %s" % (vr(T + 2 * j, 2), vr(T + 2 * j, 2), sC1, vr(vC0, 2)))
            for j in range(4): ge("v_pk_mul_f32 %s, %s, %s" % (vr(T + 2 * j, 2), vr(T + 2 * j, 2), vr(x0 + 2 * j, 2)))
            for j in range(8): ge("v_exp_f32 v%d, v%d" % (T + j, T + j))
            for j in range(4): ge("v_pk_add_f32 %s, %s, 1.0 op_sel_hi:[1,0]" % (vr(T + 2 * j, 2), vr(T + 2 * j, 2)))
            for j in range(8): ge("v_rcp_f32 v%d, v%d" % (T + j, T + j))
            for j in range(4): ge("v_pk_mul_f32 %s, %s, %s" % (vr(T + 2 * j, 2), vr(T + 2 * j, 2), vr(x0 + 2 * j, 2)))
            for j in range(4): ge("v_cvt_pk_bf16_f32 v%d, v%d, v%d" % (ho + j, T + 2 * j, T + 2 * j + 1))
            ge("buffer_store_dwordx4 %s, v%d, %s, %s offen offset:%d sc1" % (vr(ho, 4), vL16, WS, sHB, 1024 * (2 * ft + hf)), tag="hst%d" % i)
    if i == 0: ge("s_add_u32 %s, %s, 4096" % (sHB, sHB))
    return ge
gf = Stream()
gf("s_lshr_b32 %s, %s, 3" % (sT0, sRB64)); slin(gf, sPO, [(sC, 512), (sT0, 128), (sW, 32)], WS_FU)
spoll_issue(gf, 8, sPO)
for j in range(6, 14): w2_issue(gf, 0, j)
gf("v_lshlrev_b32 v%d, 5, v%d" % (vT[1], L))
gf("s_and_b32 %s, %s, 1" % (sT1, sW)); slin(gf, sT0, [(sCH, CP), (sT1, 16)], WS_U)
m.extend(spread(gelu(0), gf, 0.0, 0.9, unit="any"))
spoll_check(m, 8, sPO, "pu")
m("s_barrier")
for q in range(2):
    m("buffer_load_dwordx4 %s, v%d, %s, %s offen offset:%d sc1" % (vr(vUL + 4 * q, 4), vT[1], WS, sT0, 2048 * q), tag="ul")
gf = Stream()
def w2_swap(s, j):
    s.wait_vm("w2_0_%d" % j); w2_reads(s, 0, j)
def w2_refill(s, j):
    s.wait_lgkm("w2r0_%d" % j); w2_issue(s, 1, j)
NSW = opt("nsw", 6); NRF = opt("nrf", 0)
order = [("r", j) for j in range(NSW)] + [("f", j) for j in range(NRF)]
NG = len(order)
jr, jf = NSW, NRF
while jr < 14 or jf < 14:
    if jr < 14: order.append(("r", jr)); jr += 1
    if jf < jr - 1 or (jr == 14 and jf < 14): order.append(("f", jf)); jf += 1
    if jr == 14 and jf < 14 and False: pass
def do_order(s, lst):
    for kind, j in lst: (w2_swap if kind == "r" else w2_refill)(s, j)
do_order(gf, order[:NG])
gf("v_lshl_add_u32 v%d, v%d, 3, %s" % (vT[2], L, sUW))
gf("v_add_u32 v%d, %d, v%d" % (vT[3], 2 * UP, vT[2]))
gf.wait_vm("ul")
for q in range(2):
    for e2 in range(2):
        d_ = vr(vUL + 4 * q + 2 * e2, 2)
        gf("ds_write2_b64 v%d, %s, %s offset0:%d offset1:%d" % (vT[2 + e2], d_, d_, 16 + 64 * q, 16 + 64 * q + 145), tag="uw")
flag_store(gf, vFHA, "hst0")
m.extend(spread(gelu(1), gf, 0.0, 0.95, unit="any"))
stamp(m)

vCACC = vACC[0]
aCF = 0
def conv_reads(bi):
    s = Stream()
    e2, r = bi >> 1, bi & 1
    base = aCF + 64 * (bi & 1)
    for a in range(8):
        off = e2 * HC_SZ + 256 * (2 * a + r)
        s("ds_read_b64_tr_b16 %s, v%d offset:%d" % (ar(base + 8 * a, 2), vCA, off + 32), tag="c%d_%d" % (bi, a))
        s("ds_read_b64_tr_b16 %s, v%d offset:%d" % (ar(base + 8 * a + 2, 2), vCA, off), tag="c%d_%d" % (bi, a))
        s("ds_read_b128 %s, v%d offset:%d" % (ar(base + 8 * a + 4, 4), vCB, e2 * 2 * UP + 64 * (2 * a - r + 1)), tag="c%d_%d" % (bi, a))
    return s
def conv_mfma(bi):
    s = Stream()
    base = aCF + 64 * (bi & 1)
    first = set()
    if bi > 0: s.wait_lgkm("c%d_7" % bi)
    for mx in range(8):
        if bi == 0: s.wait_lgkm("c%d_%d" % (bi, mx))
        prs = [(mx, i) for i in range(mx + 1)] + [(a, mx) for a in range(mx)]
        for a, i in prs:
            if a + i > 7: continue
            j = a + i
            c = vr(vCACC + 4 * j, 4)
            if bi == 0 and j not in first:
                first.add(j); c = "0"
            s("v_mfma_f32_16x16x32_bf16 %s, %s, %s, %s" % (vr(vCACC + 4 * j, 4), ar(base + 8 * a, 4), ar(base + 8 * i + 4, 4), c))
    return s
vb = VA(128, 254)
vEPB = vb.get(32, 4)
vQ = [vb.get(4, 4) for _ in range(2)]; vG = [vb.get(2, 2) for _ in range(2)]; vB2 = vb.get(4, 4)
ring = [vb.get(4, 4) for _ in range(19)]
RING = [("v", r) for r in ring] + [("a", 240 + 4 * i) for i in range(4)] + [("a", 112 + 4 * i) for i in range(4)]
NR = len(RING)
def rr(i): f, b = RING[i % NR]; return ("%s[%d:%d]" % (f, b, b + 3))
vHV = vXV
def h_issue(s, n):
    sg, k = n // 28, n % 28
    half, j = k // 14, k % 14
    s("buffer_load_dwordx4 %s, v%d, %s, %s offen sc1" % (rr(n), vHV[2 * sg + half], WS, tCB[j]), tag="h%d" % n)
vQO = vWV[0]; vGA = vWV[1]; vPW = vWV[2]; vPRD = vWV[3]; vZR = vXA[0]; vGA2 = vXA[1]; vB2A = vXA[2]; vYA0 = vXA[3]; vYA1 = vWA[0]; vYR = vWA[1]
vFZA = vFUA
sPB0 = sHC; sZB = sHB; sQ1 = sHSRC
cs = Stream()
cs("s_lshr_b32 %s, %s, 1" % (sT0, sRB64)); cs("s_mul_i32 %s, %s, 43" % (sT1, sT0)); cs("s_lshr_b32 %s, %s, 7" % (sT1, sT1))
slin(cs, sT2, [(sT1, 14 * CBS - 3 * 32768), (sRB64, 16384), (sW, 1024)], WS_H)
cs("v_add_u32 v%d, %s, v%d" % (vHV[0], sT2, vL16))
cs("v_add_u32 v%d, 8192, v%d" % (vHV[1], vHV[0])); cs("v_add_u32 v%d, 4096, v%d" % (vHV[2], vHV[0])); cs("v_add_u32 v%d, 12288, v%d" % (vHV[3], vHV[0]))
cs("s_mul_i32 %s, %s, 28" % (sT0, sW)); cs("s_min_u32 %s, %s, 80" % (sT0, sT0)); slin(cs, sPO, [(sRB64, 256), (sT0, 1)], WS_FH)
cs("v_mul_u32_u24 v%d, 80, v%d" % (vT[0], vL15))
cs("v_lshl_add_u32 v%d, v%d, 4, v%d" % (vT[0], vG4, vT[0]))
cs("s_and_b32 %s, %s, 1" % (sT1, sW)); slin(cs, sT0, [(sW, Y_SZ)], L_Y); slin(cs, sT2, [(sT1, 8), (sT0, 1)])
cs("v_add_u32 v%d, %s, v%d" % (vYA0, sT2, vT[0]))
cs("s_lshl_b32 %s, %s, 4" % (sT2, sT1))
cs("v_mov_b32 v%d, %s" % (vT[2], sT2))
cs.begin()
cs("v_cmp_eq_u32 vcc, 3, v%d" % vG4)
cs("v_cndmask_b32 v%d, 0, v%d, vcc" % (vT[2], vT[2]))
cs.end()
cs("v_add3_u32 v%d, v%d, v%d, 8" % (vYA1, vYA0, vT[2]))
cs("v_mov_b32 v%d, %s" % (vT[6], sT0))
cs("v_lshrrev_b32 v%d, 1, v%d" % (vT[2], L)); cs("v_mul_u32_u24 v%d, 80, v%d" % (vT[2], vT[2]))
cs("v_and_b32 v%d, 1, v%d" % (vT[3], L)); cs("v_lshl_add_u32 v%d, v%d, 5, v%d" % (vT[2], vT[3], vT[2]))
cs("s_lshr_b32 %s, %s, 1" % (sT0, sW)); slin(cs, sT0, [(sT0, 2 * Y_SZ), (sT1, 64 * 80)], L_Y)
cs("v_add_u32 v%d, %s, v%d" % (vYR, sT0, vT[2]))
slin(cs, sZB, [(sCH, CP), (sT1, 2048)], WS_Z)
cs("s_and_b32 %s, %s, 63" % (sT2, sCH)); slin(cs, sT0, [(sC, 512), (sT1, 256), (sT2, 4)], WS_FZ)
cs("v_mov_b32 v%d, %s" % (vFZA, sT0))
es = Stream()
slin(es, sT0, [(sRB64, 64), (sW, 8)])
es("v_add_u32 v%d, %s, v%d" % (vT[0], sT0, vLd8))
es("v_lshlrev_b32 v%d, 3, v%d" % (vGA, vT[0])); es("v_add_u32 v%d, 0x%x, v%d" % (vGA, WS_G, vGA))
es("v_add_u32 v%d, 256, v%d" % (vGA2, vGA))
es("v_mul_u32_u24 v%d, 896, v%d" % (vT[0], vT[0]))
es("s_lshl_b32 %s, %s, 7" % (sT0, sC))
es("v_lshl_add_u32 v%d, v%d, 4, %s" % (vB2A, vL8, sT0))
es("v_add_u32 v%d, v%d, v%d" % (vQO, vT[0], vB2A))
es("v_mul_u32_u24 v%d, 272, v%d" % (vT[0], vS32)); es("v_lshl_add_u32 v%d, v%d, 4, v%d" % (vPW, vHH, vT[0]))
es("s_mul_i32 %s, %s, %d" % (sT0, sW, PB_SZ))
es("v_add_u32 v%d, %s, v%d" % (vPW, sT0, vPW))
es("s_lshl_b32 %s, %s, 3" % (sT0, sW))
es("v_add_u32 v%d, %s, v%d" % (vT[0], sT0, vLd8))
es("v_mul_u32_u24 v%d, 272, v%d" % (vT[1], vT[0])); es("v_lshl_add_u32 v%d, v%d, 5, v%d" % (vPRD, vL8, vT[1]))
es("v_mul_u32_u24 v%d, 144, v%d" % (vT[1], vT[0])); es("v_lshl_add_u32 v%d, v%d, 4, v%d" % (vZR, vL8, vT[1]))
es("v_add_u32 v%d, %d, v%d" % (vZR, L_ZT, vZR))
es("s_mov_b32 %s, %d" % (sQ1, 32 * 896))

m.wait_lgkm("uw")
m.extend(conv_reads(0))
cf = [Stream() for _ in range(4)]
rest = order[NG:]
NB3 = opt("nb3", 3)
h_ = (len(rest) + NB3 - 1) // NB3
cf[0].extend(cs)
spoll_issue(cf[2], 8, sPO)
for b_ in range(NB3): do_order(cf[b_], rest[b_ * h_:(b_ + 1) * h_])
flag_store(cf[1], vFHA, "hst1", off=128)
cf[2].extend(es)
HC3 = opt("hc3", 11)
for n in range(HC3): h_issue(cf[3], n)
for bi in range(4):
    mf = conv_mfma(bi)
    if bi < 3: mf = spread(mf, conv_reads(bi + 1), 0.0, 0.8)
    if bi == 3:
        spoll_check(m, 8, sPO, "ph0")
        m("s_barrier")
        m("s_add_u32 %s, %s, 128" % (sPO, sPO))
    mf = spread(mf, cf[bi], 0.0, 1.0)
    m.extend(mf)
stamp(m)
m.begin()
m("s_mov_b64 exec, 1")
m("ds_write_b64 v%d, %s" % (vT[6], vr(vZ4, 2)), tag="yw")
m("s_mov_b64 exec, -1")
m.end()
yw = Stream()
for j in range(8):
    yw("ds_write_b64 v%d, %s offset:%d" % (vYA0, vr(vCACC + 4 * j, 2), 1280 * j), tag="yw")
    yw("ds_write_b64 v%d, %s offset:%d" % (vYA1, vr(vCACC + 4 * j + 2, 2), 1280 * j), tag="yw")
f = Stream()
for n in range(HC3, HC3 + 6): h_issue(f, n)
m.extend(spread(yw, f, 0.0, 1.0, unit="any"))
m.wait_lgkm("yw")
m("s_barrier")
for q in range(2):
    for y in range(2):
        for hf in range(2):
            m("ds_read_b128 %s, v%d offset:%d" % (vr(vEPB + 16 * q + 8 * y + 4 * hf, 4), vYR, 2560 * q + Y_SZ * y + 16 * hf), tag="yr%d" % q)
for q in range(2):
    m.wait_lgkm("yr%d" % q)
    b = vEPB + 16 * q
    for j in range(4): m("v_pk_add_f32 %s, %s, %s" % (vr(b + 2 * j, 2), vr(b + 2 * j, 2), vr(b + 8 + 2 * j, 2)))
    for j in range(4): m("v_cvt_pk_bf16_f32 v%d, v%d, v%d" % (b + 8 + j, b + 2 * j, b + 2 * j + 1))
    m("buffer_store_dwordx4 %s, v%d, %s, %s offen offset:%d sc1" % (vr(b + 8, 4), vL16, WS, sZB, 1024 * q), tag="zst")
stamp(m)
spoll_issue(m, 8, sPO)

vA2 = vACC
vZL = vEPB + 16; vEP = vEPB
vBS = vT[0]
def z_load(s):
    slin(s, sT1, [(sC, 64 * CP), (sW, 16 * CP), (sRB64, 128)], WS_Z)
    s("s_add_u32 %s, %s, %d" % (sT2, sT1, 8 * CP))
    s("v_mul_u32_u24 v%d, %d, v%d" % (vT[0], CP, vLd8)); s("v_lshl_add_u32 v%d, v%d, 4, v%d" % (vT[0], vL8, vT[0]))
    spoll_check(s, 16, sPO, "pz")
    s("buffer_load_dwordx4 %s, v%d, %s, %s offen sc1" % (vr(vZL, 4), vT[0], WS, sT1), tag="zl")
    s("buffer_load_dwordx4 %s, v%d, %s, %s offen sc1" % (vr(vZL + 4, 4), vT[0], WS, sT2), tag="zl")
ZST = 65536
def z_xpose(s):
    s("v_add_u32 v%d, %s, v%d" % (vT[0], sW2L, vL16))
    s("v_add_u32 v%d, %d, v%d" % (vT[0], ZST, vT[0]))
    s("v_lshlrev_b32 v%d, 7, v%d" % (vT[1], vR4)); s("v_lshl_add_u32 v%d, v%d, 5, v%d" % (vT[1], vG4, vT[1])); s("v_lshl_add_u32 v%d, v%d, 3, v%d" % (vT[1], vC4, vT[1]))
    s("s_add_u32 %s, %s, %d" % (sT1, sW2L, ZST))
    s("v_add_u32 v%d, %s, v%d" % (vT[1], sT1, vT[1]))
    s("v_mul_u32_u24 v%d, 144, v%d" % (vT[2], L)); slin(s, sT1, [(sW, 32)], L_ZT)
    s("v_add_u32 v%d, %s, v%d" % (vT[2], sT1, vT[2]))
    s.wait_vm("zl")
    s("ds_write_b128 v%d, %s" % (vT[0], vr(vZL, 4)), tag="zw")
    s("ds_write_b128 v%d, %s offset:1024" % (vT[0], vr(vZL + 4, 4)), tag="zw")
    s.wait_lgkm("zw")
    for i in range(4):
        s("ds_read_b64_tr_b16 %s, v%d offset:%d" % (vr(vZL + 8 + 2 * i, 2), vT[1], 512 * i), tag="zr")
    s.wait_lgkm("zr")
    s("ds_write_b128 v%d, %s" % (vT[2], vr(vZL + 8, 4)), tag="zw2")
    s("ds_write_b128 v%d, %s offset:16" % (vT[2], vr(vZL + 12, 4)), tag="zw2")
def part_write(s, sg):
    s("v_add_u32 v%d, %d, v%d" % (vT[3], L_PB0 if sg == 0 else L_PB1, vPW))
    for t in range(2):
        for a in range(4):
            s("ds_write_b128 v%d, %s offset:%d" % (vT[3], vr(vA2[2 * sg + t] + 4 * a, 4), 128 * t + 32 * a), tag="pw%d" % sg)
def red(s, sg, E, pk):
    s("v_add_u32 v%d, %d, v%d" % (vT[3], L_PB0 if sg == 0 else L_PB1, vPRD))
    for w in range(4):
        for hf in range(2):
            s("ds_read_b128 %s, v%d offset:%d" % (vr(E + 8 * w + 4 * hf, 4), vT[3], PB_SZ * w + 16 * hf), tag="pr%d" % sg)
    s.wait_vm("q")
    s.wait_lgkm("pr%d" % sg)
    def add(d, a, b):
        if pk: s("v_pk_add_f32 %s, %s, %s" % (vr(d, 2), vr(a, 2), vr(b, 2)))
        else:
            s("v_add_f32 v%d, v%d, v%d" % (d, a, b)); s("v_add_f32 v%d, v%d, v%d" % (d + 1, a + 1, b + 1))
    for j in range(4):
        add(E + 2 * j, E + 2 * j, E + 8 + 2 * j)
        add(E + 16 + 2 * j, E + 16 + 2 * j, E + 24 + 2 * j)
    for j in range(4):
        s("v_lshlrev_b32 v%d, 16, v%d" % (E + 8 + 2 * j, vB2 + j)); s("v_and_b32 v%d, 0xffff0000, v%d" % (E + 9 + 2 * j, vB2 + j))
        add(E + 2 * j, E + 2 * j, E + 16 + 2 * j)
    for j in range(4): add(E + 2 * j, E + 2 * j, E + 8 + 2 * j)
def fin(s, sg, E, Zr):
    for j in range(4):
        s("v_lshlrev_b32 v%d, 16, v%d" % (E + 16 + 2 * j, vQ[sg] + j)); s("v_and_b32 v%d, 0xffff0000, v%d" % (E + 17 + 2 * j, vQ[sg] + j))
        s("v_lshlrev_b32 v%d, 16, v%d" % (E + 24 + 2 * j, Zr + j)); s("v_and_b32 v%d, 0xffff0000, v%d" % (E + 25 + 2 * j, Zr + j))
    for j in range(4):
        s("v_pk_fma_f32 %s, %s, %s, %s neg_lo:[0,0,1] neg_hi:[0,0,1]" % (vr(E + 16 + 2 * j, 2), vr(E + 16 + 2 * j, 2), vr(E + 24 + 2 * j, 2), vr(E + 2 * j, 2)))
    for j in range(4):
        s("v_pk_fma_f32 %s, %s, %s, %s op_sel_hi:[1,0,1]" % (vr(E + 2 * j, 2), vr(E + 16 + 2 * j, 2), vr(vG[sg], 2), vr(E + 2 * j, 2)))
    for j in range(4):
        s("v_cvt_pk_bf16_f32 v%d, v%d, v%d" % (E + 8 + j, E + 2 * j, E + 2 * j + 1))
    s("buffer_store_dwordx4 %s, v%d, %s, %s offen %s" % (vr(E + 8, 4), vQO, OUT, "0" if sg == 0 else sQ1, OPT.get("ost", "").replace("_", " ")), tag="ost")

hnext = [HC3 + 6]
def g2_seg(n0, n1, lim):
    s = Stream()
    for n in range(n0, n1):
        sg, k = n // 28, n % 28
        half, j = k // 14, k % 14
        s.wait_vm("h%d" % n)
        if n == 0: s.wait_lgkm("w2r0_13")
        if 14 <= n < 28: s.wait_lgkm("w2r1_%d" % j)
        rd = Stream()
        if n < 14:
            rd.wait_vm("w2_1_%d" % n); w2_reads(rd, 1, n)
        for t in range(2):
            c = "0" if k == 0 else vr(vA2[2 * sg + t], 16)
            s("v_mfma_f32_32x32x16_bf16 %s, %s, %s, %s" % (vr(vA2[2 * sg + t], 16), ar(aW2[half] + 8 * j + 4 * t, 4), rr(n), c))
            if t == 0:
                if hnext[0] < lim and hnext[0] < n + NR:
                    h_issue(s, hnext[0]); hnext[0] += 1
                s.ops.extend(rd.ops[:3])
            else:
                s.ops.extend(rd.ops[3:])
    return s
PH1 = opt("ph1", 10)
m.extend(g2_seg(0, PH1, 28))
spoll_check(m, 8, sPO, "ph1")
m("s_barrier")
f = Stream()
flag_store(f, vFZA, "zst")
f("global_load_dwordx4 %s, v%d, %s" % (vr(vB2, 4), vB2A, P_B2), tag="q")
f("buffer_load_dwordx4 %s, v%d, %s, 0 offen" % (vr(vQ[0], 4), vQO, Q), tag="q")
f("buffer_load_dwordx4 %s, v%d, %s, %s offen" % (vr(vQ[1], 4), vQO, Q, sQ1), tag="q")
gran_issue(f, vG[0], vGA, "pg0"); gran_issue(f, vG[1], vGA2, "pg1")
f("s_lshr_b32 %s, %s, 4" % (sT0, sRB64)); slin(f, sPO, [(sC, 512), (sT0, 256), (sW, 64)], WS_FZ)
m.extend(spread(g2_seg(PH1, 28, 56), f, 0.0, 0.5))
stamp(m)
f = Stream(); part_write(f, 0); f.wait_lgkm("pw0"); f("s_barrier")
m.extend(spread(g2_seg(28, 38, 56), f, 0.1, 1.0))
f = Stream(); red(f, 0, vA2[0], False); spoll_issue(f, 16, sPO)
m.extend(spread(g2_seg(38, 46, 56), f, 0.0, 1.0))
f = Stream(); gran_check(f, vG[0], vGA, "pg0"); gran_check(f, vG[1], vGA2, "pg1"); z_load(f)
m.extend(spread(g2_seg(46, 56, 56), f, 0.3, 0.9))
stamp(m)
part_write(m, 1)
z_xpose(m)
m.wait_lgkm("zw2")
m("s_barrier")
stamp(m)
m("ds_read_b128 %s, v%d" % (vr(vT[4], 4), vZR), tag="zt")
m("ds_read_b128 %s, v%d offset:%d" % (vr(ring[0], 4), vZR, 32 * 144), tag="zt")
r1 = Stream(); red(r1, 1, vEPB, True)
m.ops.extend(r1.ops[:9])
m.wait_lgkm("zt")
fin(m, 0, vA2[0], vT[4])
m.ops.extend(r1.ops[9:])
fin(m, 1, vEPB, ring[0])
stamp(m)
print("vgprs used:", va.n, file=sys.stderr)

def stamp_out(s):
    if not STAMP: return
    s("s_waitcnt vmcnt(0)")
    stamp(s)
    nstamp[0] = 40
    stamp(s, rt=True)
    if AT >= 0:
        if s is not m: return
        s("v_readlane_b32 s40, v%d, %d" % (vSTA, AT))
        s("s_add_u32 s40, s40, 1600")
        s("L_cal:")
        s("s_memrealtime s[42:43]")
        s("s_waitcnt lgkmcnt(0)")
        s("s_sub_u32 s41, s42, s40")
        s("s_cmp_lt_i32 s41, 0")
        s("s_cbranch_scc1 L_cal")
        return
    if DBG:
        if s is not m: return
        sel = [int(x) for x in OPT.get("sel", "2,4,6,7,8,9,10,11,12,13,14,15").split(",")]
        s("v_readlane_b32 s40, v%d, 1" % vSTA)
        for k, idx in enumerate(sel):
            s("v_readlane_b32 s41, v%d, %d" % (vSTA, idx))
            s("s_sub_u32 s41, s41, s40")
            s("v_writelane_b32 v%d, s41, %d" % (vT[0], k))
        s("v_readlane_b32 s41, v%d, 40" % vSTA); s("v_writelane_b32 v%d, s41, 13" % vT[0])
        s("v_readlane_b32 s41, v%d, 41" % vSTA); s("v_writelane_b32 v%d, s41, 14" % vT[0])
        s("s_not_b32 s41, s41"); s("v_writelane_b32 v%d, s41, 15" % vT[0])
        s("v_lshlrev_b32 v%d, 2, v%d" % (vT[1], vLANE))
        s("v_add_co_u32 v62, vcc, v62, v%d" % vT[1])
        s("v_addc_co_u32 v63, vcc, 0, v63, vcc")
        s("s_mov_b64 exec, 0x%x" % ((1 << len(sel)) - 1))
        s("global_atomic_add v[62:63], v%d, off sc1" % vT[0])
        s("s_mov_b64 exec, 0xe000")
        s("global_atomic_umax v[62:63], v%d, off sc1" % vT[0])
        return
    slin(s, sT0, [("s2", 1024), (sW, 256)], WS_STAMP)
    s("v_lshlrev_b32 v%d, 2, v%d" % (vT[0], vLANE))
    s("buffer_store_dword v%d, v%d, %s, %s offen" % (vSTA, vT[0], WS, sT0))
stamp_out(m)
m("s_endpgm")

g = Stream(); g_stream[0] = g
g("L_spare:")
nstamp[0] = 2
g("v_mov_b32 v12, 0")
g("buffer_load_dword v%d, v12, %s, 0 offen sc1" % (vTAG, WS))
sJ = sA
if opt("pf", 1):
    g("s_sub_u32 %s, %s, 28" % (sT0, sI)); g("s_lshl_b32 %s, %s, 2" % (sT0, sT0)); g("s_add_u32 %s, %s, %s" % (sT0, sT0, sW))
    g("v_lshlrev_b32 v12, 7, v%d" % vLANE)
    g("L_pf:")
    g("s_cmp_ge_u32 %s, 98" % sT0); g("s_cselect_b32 %s, 98, 0" % sT1); g("s_cselect_b32 %s, 57344, 0" % sT3)
    g("s_sub_u32 %s, %s, %s" % (sT1, sT0, sT1))
    g("s_mul_i32 %s, %s, 147" % (sT2, sT1)); g("s_lshr_b32 %s, %s, 10" % (sT2, sT2))
    g("s_mul_i32 %s, %s, 57344" % (sT2, sT2)); g("s_lshl_b32 %s, %s, 13" % (sT1, sT1))
    g("s_add_u32 %s, %s, %s" % (sT1, sT1, sT2)); g("s_add_u32 %s, %s, %s" % (sT1, sT1, sT3))
    g("buffer_load_dword v13, v12, %s, %s offen" % (W2, sT1))
    g("s_add_u32 %s, %s, 16" % (sT0, sT0))
    g("s_cmp_lt_u32 %s, 196" % sT0)
    g("s_cbranch_scc1 L_pf")
g("s_sub_u32 %s, %s, 28" % (sJ, sI)); g("s_lshl_b32 %s, %s, 2" % (sT0, sX)); g("s_add_u32 %s, %s, %s" % (sJ, sJ, sT0))
g("s_waitcnt vmcnt(0)")
slin(g, sT0, [(sJ, 64), (sW, 16)])
g("v_lshrrev_b32 v12, 2, v%d" % vLANE); g("v_add_u32 v12, %s, v12" % sT0)
g("v_and_b32 v13, 3, v%d" % vLANE); g("v_lshlrev_b32 v13, 4, v13")
g("v_mul_u32_u24 v14, 896, v12"); g("v_add_u32 v14, v14, v13")
for i in range(14):
    g("buffer_load_dwordx4 v[%d:%d], v14, %s, 0 offen offset:%d" % (16 + 4 * i, 19 + 4 * i, Q, 64 * i), tag="gq")
for i in range(14):
    g("global_load_dwordx4 v[%d:%d], v13, %s offset:%d" % (80 + 4 * i, 83 + 4 * i, P_GATE, 64 * i), tag="gq")
g("s_waitcnt vmcnt(0)")
g("v_add_u32 v%d, 0x%x, v%d" % (vTAG, TAG_INC, vTAG))
for i in range(56):
    acc = 140 + (i % 4)
    g("v_dot2_f32_bf16 v%d, v%d, v%d, %s" % (acc, 16 + i, 80 + i, "0" if i < 4 else "v%d" % acc))
g("v_add_f32 v140, v140, v141"); g("v_add_f32 v142, v142, v143"); g("v_add_f32 v140, v140, v142")
g("v_add_f32_dpp v140, v140, v140 quad_perm:[1,0,3,2] row_mask:0xf bank_mask:0xf")
g("v_add_f32_dpp v140, v140, v140 quad_perm:[2,3,0,1] row_mask:0xf bank_mask:0xf")
g("v_mul_f32 v140, 0x%x, v140" % f2u(-math.log2(math.e)))
g("v_exp_f32 v140, v140"); g("v_add_f32 v140, 1.0, v140"); g("v_rcp_f32 v140, v140")
g("v_mov_b32 v141, v%d" % vTAG)
g("v_lshlrev_b32 v12, 3, v12"); g("v_add_u32 v12, 0x%x, v12" % WS_G)
g("s_mov_b32 exec_lo, 0x11111111"); g("s_mov_b32 exec_hi, 0x11111111")
g("buffer_store_dwordx2 v[140:141], v12, %s, 0 offen sc1" % WS)
g("s_mov_b64 exec, -1")
g("s_cmp_lg_u32 s2, 255"); g("s_cbranch_scc1 L_spare_done")
g("s_cmp_lg_u32 %s, 0" % sW); g("s_cbranch_scc1 L_spare_done")
g("v_lshlrev_b32 v12, 4, v%d" % vLANE); g("v_add_u32 v12, 0x%x, v12" % WS_FU)
g("v_min_u32 v15, 31, v%d" % vLANE); g("v_lshlrev_b32 v15, 4, v15"); g("v_add_u32 v15, 0x%x, v15" % (WS_FU + 3072))
g("v_lshlrev_b32 v13, 7, v%d" % vLANE); g("v_add_u32 v13, 0x%x, v13" % (WS_G + 4))
g("v_add_u32 v14, 8192, v13")
g("s_mov_b32 %s, 0" % sSPIN)
g("L_upd:")
g("s_sleep 32")
for i in range(3):
    g("buffer_load_dwordx4 v[%d:%d], v12, %s, 0 offen offset:%d sc1" % (16 + 4 * i, 19 + 4 * i, WS, 1024 * i))
g("buffer_load_dwordx4 v[28:31], v15, %s, 0 offen sc1" % WS)
g("buffer_load_dword v32, v13, %s, 0 offen sc1" % WS)
g("buffer_load_dword v33, v14, %s, 0 offen sc1" % WS)
g("s_add_u32 %s, %s, 1" % (sSPIN, sSPIN))
g("s_waitcnt vmcnt(0)")
for i in range(18): g("v_xor_b32 v%d, v%d, v%d" % (16 + i, 16 + i, vTAG))
for i in range(1, 18): g("v_or_b32 v16, v16, v%d" % (16 + i))
g("v_cmp_ne_u32 vcc, 0, v16")
g("s_cmp_gt_u32 %s, 0x40000" % sSPIN)
g("s_cbranch_scc1 L_upd_go")
g("s_cbranch_vccnz L_upd")
g("L_upd_go:")
g("v_mov_b32 v12, 0")
g("s_mov_b64 exec, 1")
g("buffer_store_dword v%d, v12, %s, 0 offen sc1" % (vTAG, WS))
g("s_mov_b64 exec, -1")
g("L_spare_done:")
stamp_out(g)
g("L_end:")
g("s_endpgm")

k_ = 0
for o in m.ops:
    if "STAMPIDX" in o.text:
        o.text = o.text.replace("STAMPIDX", str(k_)); k_ += 1
assert k_ <= 40
if AT >= 0:
    keep = []
    for o in m.ops:
        mm = re.match(r"v_writelane_b32 v%d, s66, (\d+)$" % vSTA, o.text)
        if mm and int(mm.group(1)) != AT:
            keep.pop(); keep.pop(); continue
        keep.append(o)
    m.ops = keep
nts = [d for d in OPT.get("nt", "").split(",") if d]
for o in m.ops:
    if o.kind in VMEMK and o.tag and any(o.tag.startswith(d) for d in nts) and "global_" not in o.text:
        o.text = o.text.replace(" lds", " nt lds") if o.text.endswith(" lds") else o.text + " nt"
drops = [d for d in OPT.get("drop", "").split(",") if d]
if drops:
    keep = []; dropped = set()
    for o in m.ops:
        if o.kind in VMEMK and o.tag and any(o.tag.startswith(d) for d in drops):
            dropped.add(o.tag); continue
        if o.kind == "waitvm" and o.waitfor in dropped: continue
        keep.append(o)
    m.ops = keep
body = render(finalize(m)) + "\n" + render(insert_nops(spins.ops)) + "\n" + render(insert_nops(resolve_waits(g.ops)))
hdr = open("cdna_kernels/%s.s.ref" % NAME).read().split("; Override launch")[0]
out = hdr + "; @launch grid=(256,1,1) block=(256,1,1) lds=%d\n" % LDS_TOTAL
out += '.amdgcn_target "amdgcn-amd-amdhsa--gfx950"\n.text\n.globl %s_kernel\n.p2align 8\n.type %s_kernel,@function\n%s_kernel:\n' % (NAME, NAME, NAME)
out += body + "\nL_code_end:\n"
out = out.replace("CODE_BYTES", "L_code_end-%s_kernel-64" % NAME)
out += '.section .rodata,"a"\n.p2align 6\n.amdhsa_kernel %s_kernel\n' % NAME
out += "  .amdhsa_next_free_vgpr 512\n  .amdhsa_next_free_sgpr 102\n  .amdhsa_accum_offset 256\n  .amdhsa_group_segment_fixed_size 0\n"
out += "  .amdhsa_kernarg_size 120\n  .amdhsa_user_sgpr_count 2\n  .amdhsa_user_sgpr_kernarg_segment_ptr 1\n  .amdhsa_system_sgpr_workgroup_id_x 1\n.end_amdhsa_kernel\n"
open(sys.argv[1], "w").write(out)
```

```python
import sys, math, struct
sys.path.insert(0, "gen")
from asmlib import *

NAME = "gated_mix__ssm_conv_h3__dense_activation_gelu__prompt"
STAMP = int(sys.argv[2]) if len(sys.argv) > 2 else 0
DBG = STAMP >= 3
if DBG: STAMP -= 2
AT = -1
if STAMP == 3: STAMP = 2; DBG = False; AT = int(dict(a.split("=") for a in sys.argv[3:])["at"])
OPT = dict(a.split("=") for a in sys.argv[3:])
def opt(k, d): return type(d)(OPT.get(k, d))
f2u = lambda f: struct.unpack("<I", struct.pack("<f", f))[0]

FUS = opt("fus", 128); FHS = opt("fhs", 128)
WS_FU = 0x60000
WS_FH = 0x80000
WS_G  = 0x8000
WS_STAMP = 0x10000
WS_U  = 0x100000
WS_Z  = 0x300000
WS_P  = 0xE40000
CP = 4224
WS_H  = 0x500000
CBS = 128 * 896
WS_SIZE = 0x1000000
TAG_INC = 0x9E3779B9
SLOT = 32768
L_R = 114688; RSZ = 11280
R_UW = 4160; UP = 1280; R_CY = 9216
L_KS = 131072
L_VS = L_KS + 72 * 128
L_P0 = L_VS + 64 * 128
L_PB0 = 114688; PB_SZ = 8704
L_PB1 = 0
L_ZT = 149696
ZST = 65536
LDS_TOTAL = 163840
W2POS = [12, 13, 0, 1, 2, 3, 4, 5, 6, 7, 8, 9, 10, 11]

Q, K, V, SSM, W1, W2, OUT, WS = ["s[%d:%d]" % (b, b + 3) for b in range(8, 40, 4)]
WSP = "s[36:37]"
P_SHIFT, P_D, P_B1, P_B2, P_GATE = "s[46:47]", "s[50:51]", "s[56:57]", "s[60:61]", "s[62:63]"
sW, sX, sI, sA, sC, sRB128, sCB128, sRB64 = "s70", "s71", "s72", "s73", "s74", "s75", "s76", "s77"
sT0, sT1, sT2, sT3 = "s78", "s79", "s80", "s81"
sTAG = "s[82:83]"
sROT, sSPIN, sCH, sHB = "s84", "s85", "s86", "s87"
sXL, sWL, sW2L, sRW, sPO, sE2, sHSRC = "s88", "s89", "s3", "s4", "s5", "s6", "s7"
sC1 = "s[64:65]"
sST = "s[66:67]"
sFU, sFH, sPH = "s14", "s15", "s62"
sZB, sQ1, sZ8, sPS, sPR, sMSK = "s63", "s56", "s12", "s57", "s60", "s61"
sW0, sHP, sDP = "s13", "s0", "s83"
sP = sHB
tXO = ["s40", "s41", "s42", "s43", "s44", "s45", "s48"]
tWO = ["s49", "s52", "s53", "s54", "s55", "s58", "s59"]
tCB = ["s%d" % i for i in range(90, 97)]
sPOLL = 40

class VA:
    def __init__(self, lo, hi): self.n = lo; self.hi = hi
    def get(self, k=1, align=1):
        self.n = (self.n + align - 1) // align * align
        r = self.n; self.n += k
        assert self.n <= self.hi, "out of regs"
        return r
def vr(b, k=1): return "v%d" % b if k == 1 else "v[%d:%d]" % (b, b + k - 1)
def ar(b, k=1): return "a%d" % b if k == 1 else "a[%d:%d]" % (b, b + k - 1)

spins = Stream()
nstamp = [0]; g_stream = [None]
VB_HI = 236
va = VA(0, 64); vb = VA(128, VB_HI); vc = VA(VB_HI, 252)
vTID = va.get(); vLANE = va.get(); vTAG = va.get(); vSTA = va.get()
vT = [va.get() for _ in range(8)]
L = vLANE

def stamp(s, rt=False):
    if not STAMP: return
    i = nstamp[0]; nstamp[0] += 1
    s.begin()
    s("%s %s" % ("s_memrealtime" if (rt or STAMP == 2) else "s_memtime", sST))
    s("s_waitcnt lgkmcnt(0)")
    s("v_writelane_b32 v%d, s66, %s" % (vSTA, "STAMPIDX" if i < 40 and s is not g_stream[0] else str(i)))
    s.end()
def fstamp(s, lvl=2):
    if opt("fine", 0) == lvl: stamp(s)

def slin(s, dst, terms, const=0):
    tmp = sT3; first = True
    for reg, mult in terms:
        d = dst if first else tmp
        if mult == 1: src = reg
        else:
            if mult & (mult - 1) == 0: s("s_lshl_b32 %s, %s, %d" % (d, reg, mult.bit_length() - 1))
            else: s("s_mul_i32 %s, %s, %d" % (d, reg, mult))
            src = d
        if first:
            if src != dst: s("s_mov_b32 %s, %s" % (dst, src))
        else: s("s_add_u32 %s, %s, %s" % (dst, dst, src))
        first = False
    if const: s("s_add_u32 %s, %s, 0x%x" % (dst, dst, const))
def vlin(s, dst, terms, base=None):
    acc = None
    terms = sorted(terms, key=lambda t: t[1] & (t[1] - 1) == 0)
    for reg, mult in terms:
        p2 = mult & (mult - 1) == 0
        if acc is None:
            if p2 and isinstance(base, str):
                s("v_lshl_add_u32 v%d, v%d, %d, %s" % (dst, reg, mult.bit_length() - 1, base)); base = None
            elif p2: s("v_lshlrev_b32 v%d, %d, v%d" % (dst, mult.bit_length() - 1, reg))
            else: s("v_mul_u32_u24 v%d, %d, v%d" % (dst, mult, reg))
            acc = dst
        else:
            assert p2
            s("v_lshl_add_u32 v%d, v%d, %d, v%d" % (dst, reg, mult.bit_length() - 1, dst))
    if base is not None:
        s("v_add_u32 v%d, %s, v%d" % (dst, base if isinstance(base, str) else "0x%x" % base, dst))

def flag_store(s, sreg, tagwait):
    s.wait_vm(tagwait)
    s.begin()
    s("s_mov_b64 exec, 1")
    s("buffer_store_dword v%d, off, %s, %s sc1" % (vTAG, WS, sreg), tag="flag")
    s("s_mov_b64 exec, -1")
    s.end()

npoll = [0]
def spoll_issue(s, n, soff):
    s("s_load_dwordx%d s[%d:%d], %s, %s glc" % (n, sPOLL, sPOLL + n - 1, WSP, soff))
def spin_tail(t, tag):
    if STAMP: t("v_writelane_b32 v%d, %s, %d" % (vSTA, sSPIN, 48 + npoll[0]))
    npoll[0] += 1
    t("s_cmp_gt_u32 %s, 0x40000" % sSPIN)
    t("s_cbranch_scc1 L_ok_%s" % tag)
    t("s_cbranch_vccz L_ok_%s" % tag)
    t("s_sleep 1")
    t("s_branch L_spin2_%s" % tag)
def spoll_check(s, n, soff, tag):
    s.begin()
    s("s_waitcnt lgkmcnt(0)")
    for i in range(0, n, 2):
        if i + 1 < n: s("s_cmp_lg_u64 s[%d:%d], %s" % (sPOLL + i, sPOLL + i + 1, sTAG))
        else: s("s_cmp_lg_u32 s%d, s82" % (sPOLL + i))
        s("s_cbranch_scc1 L_spin_%s" % tag)
    s("L_ok_%s:" % tag)
    s.end()
    t = spins
    t("L_spin_%s:" % tag)
    t("s_mov_b32 %s, 0" % sSPIN)
    t("v_min_u32 v254, %d, v%d" % (n - 1, L))
    t("v_lshl_add_u32 v254, v254, 2, %s" % soff)
    t("L_spin2_%s:" % tag)
    t("buffer_load_dword v255, v254, %s, 0 offen sc1" % WS)
    t("s_add_u32 %s, %s, 1" % (sSPIN, sSPIN))
    t("s_waitcnt vmcnt(0)")
    t("v_cmp_ne_u32 vcc, v255, v%d" % vTAG)
    spin_tail(t, tag)
def gran_issue(s, vdst, vaddr, off, tag):
    s("buffer_load_dwordx2 %s, v%d, %s, 0 offen offset:%d sc1" % (vr(vdst, 2), vaddr, WS, off), tag=tag)
def gran_check(s, vdst, vaddr, off, tag):
    s.wait_vm(tag)
    s.begin()
    s("v_cmp_ne_u32 vcc, v%d, v%d" % (vdst + 1, vTAG))
    s("s_cbranch_vccnz L_spin_%s" % tag)
    s("L_ok_%s:" % tag)
    s.end()
    t = spins
    t("L_spin_%s:" % tag)
    t("s_mov_b32 %s, 0" % sSPIN)
    t("L_spin2_%s:" % tag)
    gran_issue(t, vdst, vaddr, off, tag)
    t("s_add_u32 %s, %s, 1" % (sSPIN, sSPIN))
    t("s_waitcnt vmcnt(0)")
    t("v_cmp_ne_u32 vcc, v%d, v%d" % (vdst + 1, vTAG))
    spin_tail(t, tag)

def tag_cmp(s, regs):
    for k, r in enumerate(regs): s("v_xor_b32 v%d, v%d, v%d" % (r, vTK[k % 4], r))
    s("v_or_b32 v254, v%d, v%d" % (regs[0], regs[1]))
    for k in range(2, len(regs), 2): s("v_or3_b32 v254, v254, v%d, v%d" % (regs[k], regs[k + 1]))
    s("v_and_b32 v254, %s, v254" % sMSK)
    s("v_cmp_ne_u32 vcc, 0, v254")
def tag_check(s, issue, regs, tag):
    s.wait_vm(tag)
    tag_cmp(s, regs)
    s.ops[-1].glue = False
    s.begin(); s._g -= 1
    s("s_cbranch_vccnz L_spin_%s" % tag)
    s("L_ok_%s:" % tag)
    s.end()
    t = spins
    t("L_spin_%s:" % tag)
    t("s_mov_b32 %s, 0" % sSPIN)
    t("L_spin2_%s:" % tag)
    issue(t)
    t("s_add_u32 %s, %s, 1" % (sSPIN, sSPIN))
    t("s_waitcnt vmcnt(0)")
    tag_cmp(t, regs)
    spin_tail(t, tag)
def tag_put(s, regs):
    for k, r in enumerate(regs): s("v_bfi_b32 v%d, %s, v%d, v%d" % (r, sMSK, vTK[k % 4], r))

def srd(s, name, lo, nbytes):
    b = int(name[2:].split(":")[0])
    s("s_mov_b64 s[%d:%d], s[%d:%d]" % (b, b + 1, lo, lo + 1))
    s("s_mov_b32 s%d, 0x%x" % (b + 2, nbytes)); s("s_mov_b32 s%d, 0x20000" % (b + 3))

m = Stream()
NB = 2048 * 448 * 2
NW = 448 * 1792 * 2
def srd23(s, nm, nb):
    b = int(nm[2:].split(":")[0])
    s("s_mov_b32 s%d, 0x%x" % (b + 2, nb)); s("s_mov_b32 s%d, 0x20000" % (b + 3))
if STAMP: m("s_memrealtime s[32:33]")
m("s_load_dwordx16 s[40:55], s[0:1], 0")
m("s_load_dwordx8 s[56:63], s[0:1], 64")
m("s_load_dwordx4 s[64:67], s[0:1], 96")
m("s_load_dwordx2 s[68:69], s[0:1], 112")
m("v_lshrrev_b32 v%d, 6, v0" % vT[2])
m("v_and_b32 v%d, 63, v0" % vLANE)
m("s_and_b32 %s, s2, 7" % sX)
m("v_readfirstlane_b32 %s, v%d" % (sW, vT[2]))
m("s_lshr_b32 %s, s2, 3" % sI)
m("s_cmp_lt_u32 s2, 224")
m("s_cbranch_scc1 L_main")
m("s_getpc_b64 s[4:5]")
m("v_lshlrev_b32 v%d, 7, v0" % vT[0])
m("v_min_u32 v%d, CODE_BYTES, v%d" % (vT[0], vT[0]))
m("global_load_dword v255, v%d, s[4:5]" % vT[0], tag="cpf")
m("s_branch L_spare")
m("L_main:")
if opt("cpf", 0):
    m("s_getpc_b64 s[4:5]")
    m("v_lshlrev_b32 v%d, 7, v0" % vT[0])
    m("v_min_u32 v%d, %d, v%d" % (vT[0], opt("cpf", 0), vT[0]))
    m("global_load_dword v255, v%d, s[4:5]" % vT[0], tag="cpf")
if STAMP: m("v_mov_b32 v%d, 0" % vSTA)
m("s_mul_i32 %s, %s, 37" % (sA, sI)); m("s_lshr_b32 %s, %s, 8" % (sA, sA))
m("s_mul_i32 %s, %s, 7" % (sC, sA)); m("s_sub_u32 %s, %s, %s" % (sC, sI, sC))
vL8 = va.get(); vLd8 = va.get(); vG4 = va.get()
vXV = [va.get() for _ in range(4)]
vWV = [va.get() for _ in range(4)]
vTK = vXV
vB1 = vb.get(4, 4); vTP = vb.get(2, 2)
vS32 = va.get(); vHH = va.get(); vL15 = va.get()
vKV = vb.get(); vKH = vb.get(); vB2 = vc.get(4, 4)
m("v_and_b32 v%d, 7, v%d" % (vL8, L)); m("v_lshrrev_b32 v%d, 3, v%d" % (vLd8, L)); m("v_and_b32 v%d, 15, v%d" % (vL15, L))
ka = Stream()
ka("s_lshr_b32 %s, %s, 1" % (sT0, sX)); slin(ka, sRB128, [(sT0, 4), (sA, 1)])
ka("s_and_b32 %s, %s, 1" % (sHB, sX))
slin(ka, sRB64, [(sRB128, 2), (sHB, 1)])
srd23(ka, K, NB); srd23(ka, V, NB)
ka("s_lshl_b32 %s, %s, 7" % (sT0, sC))
vlin(ka, vT[6], [(vL8, 16)], sT0)
ka("v_mul_u32_u24 v%d, 896, v%d" % (vT[5], vLd8))
slin(ka, sT0, [(sRB64, 64 * 896), (sW, 16 * 896)])
ka("v_add3_u32 v%d, v%d, v%d, %s" % (vKV, vT[5], vT[6], sT0))
ka("s_add_u32 %s, %s, %d" % (sT0, sT3, 8 * 896))
ka("v_subrev_u32 v%d, %s, v%d" % (vKH, sT0, vKV))
ka("s_mov_b32 %s, %d" % (sPO, 8 * 896 - 1024))
ka("s_lshl_b32 %s, %s, 11" % (sW2L, sW))
slin(ka, sT0, [(sC, 512), (sW, 128)])
vlin(ka, vT[2], [(vL15, 8)], sT0)
slin(ka, sT2, [(sC, 128), (sRB64, 4)])
ka("s_add_u32 %s, %s, %s" % (sCH, sT2, sW)); ka("s_lshr_b32 %s, %s, 1" % (sCH, sCH))
ka("s_lshl_b32 %s, %s, 12" % (sHSRC, sCH))
r2 = Stream()
r2("s_load_dword s82, s[68:69], 0")
r2("s_load_dword %s, s[48:49], %s offset:2044" % (sHP, sHSRC))
r2("s_load_dword %s, %s, %s" % (sDP, P_D, sT2))
r2("s_mov_b64 s[12:13], s[42:43]"); r2("s_mov_b64 s[16:17], s[44:45]")
for src, base in ((K, L_KS + 1024), (V, L_VS)):
    r2.begin(); r2("s_add_u32 m0, %s, %d" % (sW2L, base))
    if src == K: r2("global_load_dwordx2 %s, v%d, %s" % (vr(vTP, 2), vT[2], P_SHIFT), tag="kv")
    r2("buffer_load_dwordx4 v%d, %s, 0 offen lds" % (vKV, src), tag="kv"); r2.end()
    r2("buffer_load_dwordx4 v%d, %s, %s offen offset:1024 lds" % (vKV, src, sPO), tag="kv")
r2.begin()
r2("s_mov_b32 m0, %d" % L_KS)
r2("s_mov_b32 exec_lo, 0")
r2("buffer_load_dwordx4 v%d, %s, 0 offen lds" % (vKH, K), tag="kv")
r2("s_mov_b32 exec_lo, -1")
r2.end()
xa = Stream()
slin(xa, sROT, [(sA, 2), (sC, 1)])
xa("s_cmp_ge_u32 %s, 7" % sROT); xa("s_cselect_b32 %s, 7, 0" % sT0); xa("s_sub_u32 %s, %s, %s" % (sROT, sROT, sT0))
xa("v_lshrrev_b32 v%d, 4, v%d" % (vG4, L))
xa("s_xor_b32 %s, %s, %s" % (sT0, sW, sHB)); xa("s_andn2_b32 %s, 1, %s" % (sT0, sT0)); xa("s_lshr_b32 %s, %s, 1" % (sT1, sW))
slin(xa, sT1, [(sT1, 32 * 896), (sT0, 64 * 896), (sRB128, 128 * 896)])
xa("s_mov_b32 %s, %s" % (sT0, sT1))
xa("v_add_u32 v%d, %s, v%d" % (vT[0], sT0, vT[5]))
xa("v_xor_b32 v%d, v%d, v%d" % (vT[3], vL8, vG4))
xa("v_lshl_add_u32 v%d, v%d, 4, v%d" % (vXV[0], vT[3], vT[0]))
xa("v_xor_b32 v%d, 4, v%d" % (vT[3], vT[3]))
xa("v_lshl_add_u32 v%d, v%d, 4, v%d" % (vXV[1], vT[3], vT[0]))
xa("v_add_u32 v%d, %d, v%d" % (vXV[2], 2 * 6144, vXV[0]))
xa("v_add_u32 v%d, %d, v%d" % (vXV[3], 3 * 6144, vXV[1]))
xa("v_add_u32 v%d, %d, v%d" % (vXV[1], 6144, vXV[1]))
xa("s_lshl_b32 %s, %s, 12" % (sXL, sW))
xa("s_lshl_b32 %s, %s, 7" % (sT1, sROT))
srd23(xa, Q, NB)
wa = Stream()
vSWZ = vT[7]
slin(wa, sCB128, [(sP, 7), (sC, 1)])
wa("v_and_b32 v%d, 1, v%d" % (vT[3], vG4)); wa("v_lshlrev_b32 v%d, 2, v%d" % (vT[3], vT[3]))
wa("v_xor_b32 v%d, v%d, v%d" % (vSWZ, vL8, vT[3]))
slin(wa, sT0, [(sW, 16 * 3584), (sCB128, 256)])
vlin(wa, vWV[0], [(vLd8, 3584), (vSWZ, 16)], sT0)
wa("v_add_u32 v%d, %d, v%d" % (vWV[1], 8 * 3584 - 1024, vWV[0]))
wa("v_add_u32 v%d, 128, v%d" % (vWV[2], vWV[0]))
wa("v_add_u32 v%d, 128, v%d" % (vWV[3], vWV[1]))
wa("s_add_u32 %s, %s, 16384" % (sWL, sXL))
wa("s_mul_i32 %s, %s, %d" % (sW0, sROT, 64 * 3584))
srd23(wa, W1, NW)
wa("s_mov_b64 s[24:25], s[54:55]")
r3 = Stream()
r3("s_and_b32 %s, %s, 1" % (sE2, sW))
r3("v_and_b32 v%d, 31, v%d" % (vS32, L))
slin(r3, sT0, [(sCB128, 256), (sE2, 128)])
vlin(r3, vT[1], [(vS32, 2)], sT0)
r3("global_load_ushort v%d, v%d, %s" % (vB1, vT[1], P_B1), tag="sm")
r3("global_load_ushort v%d, v%d, %s offset:64" % (vB1 + 2, vT[1], P_B1), tag="sm")
r3("global_load_dwordx4 %s, v%d, %s" % (vr(vB2, 4), vT[6], P_B2), tag="sm")

def st_groups(t, xo=None, wo=None):
    gs = []
    slot = (t % 4) * SLOT
    for q in range(4):
        s = Stream(); s.begin()
        if q == 0: s("s_add_u32 m0, %s, %d" % (sXL, slot))
        s("buffer_load_dwordx4 v%d, %s, %s offen offset:%d lds" % (vXV[q], Q, xo or tXO[t], 1024 * q), tag="st%d" % t)
        s.end(); gs.append(s)
    for q in range(4):
        s = Stream(); s.begin()
        if q in (0, 2): s("s_add_u32 m0, %s, %d" % (sWL, slot + (2048 if q == 2 else 0)))
        s("buffer_load_dwordx4 v%d, %s, %s offen offset:%d lds" % (vWV[q], W1, wo or tWO[t], 1024 * (q & 1)), tag="st%d" % t)
        s.end(); gs.append(s)
    return gs
def st_issue(s, t, part="xw", **kw):
    gs = st_groups(t, **kw)
    for p_ in part:
        for g_ in (gs[:4] if p_ == "x" else gs[4:]): s.extend(g_)
PROBE = ""
m.extend(ka)
m.extend(xa)
m("s_waitcnt lgkmcnt(0)")
if DBG: m("v_mov_b32 v62, s66"); m("v_mov_b32 v63, s67")
stamp(m, rt=True)
stamp(m)
if STAMP: m("v_writelane_b32 v%d, s32, 41" % vSTA)
m.extend(r2)
m("s_mov_b64 s[8:9], s[40:41]")
X0P = opt("x0p", 200)
if X0P < 0: st_issue(m, 0, "x", xo=sT1)
else: m("s_mov_b32 s17, %s" % sT1)
m.extend(wa)
m.extend(r3)

su = Stream()
su("s_mov_b64 s[36:37], s[68:69]"); srd23(su, WS, WS_SIZE)
su("s_mov_b64 s[28:29], s[58:59]"); srd23(su, W2, NW)
srd(su, SSM, 48, NB); srd(su, OUT, 64, NB)
tch = Stream()
if opt("tw2", 1):
    vTW = vb.get()
    slin(su, sT0, [("s2", 56 * 128), (sW, 14 * 128)])
    su("v_min_u32 v%d, 13, v%d" % (vTW, L)); vlin(su, vTW, [(vTW, 128)], sT0)
    tch("buffer_load_dword v252, v%d, %s, 0 offen" % (vTW, W2), tag="tw2")
if opt("tpos", 0) == 0: su.extend(tch)
su("v_lshrrev_b32 v%d, 5, v%d" % (vHH, L))
vC4 = vT[4]; vR4 = vT[5]; vMH = vT[3]
su("v_and_b32 v%d, 3, v%d" % (vC4, L)); su("v_bfe_u32 v%d, v%d, 2, 2" % (vR4, L)); su("v_bfe_u32 v%d, v%d, 4, 1" % (vMH, L))
vP0R = vb.get(); vP0W = vb.get(); vP0B = vb.get(); vP0S = vb.get()
slin(su, sT0, [(sW, 32)], L_KS + 512)
vlin(su, vP0R, [(vG4, 2048), (vR4, 128), (vC4, 8)], sT0)
slin(su, sT0, [(sW, 2304)], L_P0)
vlin(su, vP0W, [(vL15, 144), (vG4, 32)], sT0)
vlin(su, vP0B, [(vLd8, 144), (vL8, 16)], sT0)
slin(su, sT0, [(sC, 64 * CP), (sW, 16 * CP), (sRB64, 128)], WS_U)
vlin(su, vP0S, [(vLd8, CP), (vL8, 16)], sT0)
su("s_mov_b32 %s, %d" % (sZ8, 8 * CP))
su("v_mov_b32 v%d, 0" % (vB1 + 1)); su("v_mov_b32 v%d, 0" % (vB1 + 3))
vXA = [va.get() for _ in range(4)]
vWA = [va.get() for _ in range(2)]
vW2R = [va.get() for _ in range(4)]
su("v_bfe_u32 v%d, v%d, 1, 3" % (vT[0], L))
su("v_xor_b32 v%d, v%d, v%d" % (vT[0], vT[0], vHH))
su("s_lshr_b32 %s, %s, 1" % (sT1, sW)); su("s_lshl_b32 %s, %s, 13" % (sT1, sT1))
vlin(su, vXA[0], [(vT[0], 16), (vS32, 128)], sT1)
for ks in range(1, 4): su("v_xor_b32 v%d, %d, v%d" % (vXA[ks], 32 * ks, vXA[0]))
su("v_bfe_u32 v%d, v%d, 3, 1" % (vT[1], L))
vlin(su, vT[0], [(vMH, 32), (vC4, 8), (vR4, 128), (vT[1], 64)])
slin(su, sT1, [(sE2, 2048)], 16384)
vlin(su, vWA[0], [(vHH, 1024), (vT[0], 1)], sT1)
su("v_xor_b32 v%d, 64, v%d" % (vWA[1], vWA[0]))
su("s_lshl_b32 %s, %s, 13" % (sT1, sE2))
vlin(su, vW2R[0], [(vHH, 512), (vT[0], 1)], sT1)
vACC = [64 + 16 * i for i in range(4)]
vONE = vb.get(8, 4)
for i in range(1, 8): su("v_mov_b32 v%d, 0" % (vONE + i))
su("v_sub_u32 v%d, 1, v%d" % (vONE, vHH))
su("v_mul_u32_u24 v%d, 0x3f80, v%d" % (vONE, vONE))
su("v_mov_b32 v%d, v%d" % (vONE + 6, vONE))
vL16 = va.get()
DUMMY_DS[0] = "ds_read_b32 v253, v%d" % vL16
su("v_lshlrev_b32 v%d, 4, v%d" % (vL16, L))
for t in range(1, 7):
    if t < 4:
        su("s_add_u32 %s, %s, %d" % (sT0, sA, t)); su("s_and_b32 %s, %s, 3" % (sT0, sT0))
        su("s_lshl_b32 %s, %s, 1" % (sT0, sT0)); su("s_add_u32 %s, %s, %s" % (sT0, sT0, sC))
    else:
        su("s_add_u32 %s, %s, %d" % (sT0, sC, 2 * (t - 4) + 1))
    su("s_cmp_ge_u32 %s, 7" % sT0); su("s_cselect_b32 %s, 7, 0" % sT1); su("s_sub_u32 %s, %s, %s" % (sT0, sT0, sT1))
    su("s_lshl_b32 %s, %s, 7" % (tXO[t], sT0)); su("s_mul_i32 %s, %s, %d" % (tWO[t], sT0, 64 * 3584))
su1 = su
su = Stream()
slin(su, sFU, [(sC, 128 * FUS), (sW, 32 * FUS), (sRB64, FUS)], WS_FU)
su("v_xor_b32 v%d, 64, v%d" % (vW2R[1], vW2R[0]))
su("v_add_u32 v%d, 0x10000, v%d" % (vW2R[2], vW2R[0])); su("v_add_u32 v%d, 0x10000, v%d" % (vW2R[3], vW2R[1]))
vZ4 = va.get(4, 4)
for i in range(4): su("v_mov_b32 v%d, 0" % (vZ4 + i))
slin(su, sRW, [(sW, RSZ)], L_R)
su("s_lshl_b32 %s, %s, 11" % (sT1, sE2)); su("s_add_u32 %s, %s, %s" % (sHSRC, sHSRC, sT1))
su("s_mul_i32 %s, %s, %d" % (tCB[0], sC, CBS))
for j in range(1, 7):
    su("s_add_u32 %s, %s, %d" % (tCB[j], tCB[j - 1], CBS)); su("s_cmp_ge_u32 %s, %d" % (tCB[j], 7 * CBS)); su("s_cselect_b32 %s, 0, %s" % (tCB[j], tCB[j]))
vW2V = [va.get() for _ in range(4)]
slin(su, sT1, [(sC, 128), (sW, 16 * 896), (sP, 7 * CBS)])
vlin(su, vW2V[0], [(vLd8, 896), (vSWZ, 16)], sT1)
su("v_add_u32 v%d, %d, v%d" % (vW2V[1], 8 * 896 - 1024, vW2V[0]))
su("v_add_u32 v%d, %d, v%d" % (vW2V[2], 64 * 896, vW2V[0]))
su("v_add_u32 v%d, %d, v%d" % (vW2V[3], 64 * 896, vW2V[1]))
c_ = math.sqrt(2.0 / math.pi) * 2.0 * math.log2(math.e)
su("s_mov_b32 s64, 0x%x" % f2u(-c_ * 0.044715)); su("s_mov_b32 s65, 0x%x" % f2u(-c_ * 0.044715))
vC0 = va.get(2, 2)
su("v_mov_b32 v%d, 0x%x" % (vC0, f2u(-c_))); su("v_mov_b32 v%d, 0x%x" % (vC0 + 1, f2u(-c_)))
vCA = va.get(); vCB = va.get(); vUA = va.get(); vUWA = va.get(); vPADA = va.get()
su("v_and_b32 v%d, 1, v%d" % (vT[0], L)); su("v_bfe_u32 v%d, v%d, 1, 1" % (vT[1], L))
su("s_add_u32 %s, %s, %d" % (sT0, sRW, 64 + 64 - 32))
vlin(su, vCA, [(vT[0], 32), (vMH, 16), (vT[1], 8)], sT0)
vlin(su, vT[0], [(vHH, 64), (vR4, 8)])
su("v_sub_u32 v%d, v%d, v%d" % (vCA, vCA, vT[0]))
su("s_add_u32 %s, %s, %d" % (sT0, sRW, R_UW + 16))
vlin(su, vCB, [(vMH, UP), (vL15, 16), (vHH, 16)], sT0)
slin(su, sT0, [(sCH, CP), (sE2, 16)], WS_U)
vlin(su, vUA, [(L, 32)], sT0)
su("s_add_u32 %s, %s, %d" % (sT0, sRW, R_UW + 256))
vlin(su, vUWA, [(L, 8)], sT0)
su("s_add_u32 %s, %s, %d" % (sT0, sRW, R_UW))
vlin(su, vPADA, [(vMH, UP), (vL15, 16)], sT0)
vlin(su, vT[0], [(vS32, 16)], sRW)
su("v_cmp_gt_u32 vcc, 32, v%d" % L)
su("v_cndmask_b32 v%d, v%d, v%d, vcc" % (vPADA, vT[0], vPADA))
vYM = va.get(); vYC = va.get(); vYR = va.get(); vYRC = va.get()
vlin(su, vYM, [(vL15, 144), (vHH, 64), (vMH, 32)], sRW)
su("s_add_u32 %s, %s, %d" % (sT0, sRW, R_CY + 8))
vlin(su, vYC, [(vL15, 32), (vHH, 16), (vMH, 8)], sT0)
su("s_lshr_b32 %s, %s, 1" % (sT1, sW)); slin(su, sT2, [(sT1, 2 * RSZ)], L_R)
slin(su, sT0, [(sE2, 2 * 2304), (sT2, 1)])
su("v_lshrrev_b32 v%d, 2, v%d" % (vT[0], L))
vlin(su, vYR, [(L, 32), (vT[0], 16)], sT0)
slin(su, sT0, [(sE2, 1024), (sT2, 1)], R_CY)
vlin(su, vYRC, [(L, 8)], sT0)
vHW = va.get(); vUP = va.get()
slin(su, sT0, [(sE2, 2048), (sT2, 1)], 64)
su("v_add_u32 v%d, %s, v%d" % (vHW, sT0, vL16))
su("s_lshr_b32 %s, %s, 3" % (sT0, sRB64)); slin(su, sT1, [(sC, 128 * FUS), (sT0, 32 * FUS), (sW, 8 * FUS)], WS_FU)
vlin(su, vUP, [(vL8, FUS)], sT1)
vHV = [vc.get(), vc.get()]; vQO = vc.get(); vGA = vc.get(); vPW = vc.get(); vPRD = vc.get(); vZR = vc.get(); vZW = vc.get(); vZT = vc.get(); vZTW = vc.get(); vZA = vc.get()
su("s_mul_i32 %s, %s, 43" % (sT1, sRB128)); su("s_lshr_b32 %s, %s, 7" % (sT1, sT1))
slin(su, sT2, [(sT1, 14 * CBS - 3 * 32768), (sRB128, 32768), (sP, 7 * CBS), (sW, 8192)], WS_H)
su("v_add_u32 v%d, %s, v%d" % (vHV[0], sT2, vL16))
su("v_add_u32 v%d, 4096, v%d" % (vHV[1], vHV[0]))
vHT = va.get()
vlin(su, vHT, [(L, 128)], sT2)
su("v_add_u32 v%d, 0x%x, v%d" % (vZA, WS_Z - WS_U, vP0S))
slin(su, sT0, [(sRB64, 64 * 8), (sW, 64)], WS_G)
vlin(su, vGA, [(vLd8, 8)], sT0)
slin(su, sT0, [(sRB64, 64 * 896), (sW, 8 * 896)])
vlin(su, vQO, [(vLd8, 896), (vT[6], 1)], sT0)
su("s_mul_i32 %s, %s, %d" % (sT0, sW, PB_SZ))
vlin(su, vPW, [(vS32, 272), (vHH, 16)], sT0)
su("s_mul_i32 %s, %s, %d" % (sT0, sW, 8 * 272))
vlin(su, vPRD, [(vLd8, 272), (vL8, 32)], sT0)
slin(su, sT0, [(sW, 8 * 144)], L_ZT)
vlin(su, vZR, [(vLd8, 144), (vL8, 16)], sT0)
su("s_add_u32 %s, %s, %d" % (sT0, sW2L, ZST))
su("v_add_u32 v%d, %s, v%d" % (vZW, sT0, vL16))
vlin(su, vZT, [(vR4, 128), (vG4, 32), (vC4, 8)], sT0)
slin(su, sT0, [(sW, 32)], L_ZT)
vlin(su, vZTW, [(L, 144)], sT0)
slin(su, sPH, [(sRB64, 8 * FHS), (sW, 2 * FHS)], WS_FH)
slin(su, sFH, [(sC, 4), (sPH, 1)])
slin(su, sZB, [(sCH, CP), (sE2, 2048)], WS_Z)
su("s_mov_b32 %s, %d" % (sQ1, 32 * 896))
su("s_mov_b32 %s, 0x10001" % sMSK)
slin(su, sPR, [(sRB64, 7 * 8192), (sC, 8192), (sW, 2048)], WS_P)
su("s_xor_b32 %s, %s, 1" % (sT0, sRB64))
slin(su, sPS, [(sT0, 7 * 8192), (sC, 8192), (sW, 2048)], WS_P)
su2 = su
for o in su1.ops + su2.ops:
    if o.text.startswith(("s_cselect", "v_cndmask")): o.glue = True
print("su1", len(su1.ops), "su2", len(su2.ops), file=sys.stderr)
g2_ = groups(su2.ops)
nA, nB = opt("sa", 300), opt("sb", 60)
def take(n):
    s_ = Stream()
    while g2_ and len(s_.ops) < n: s_.ops.extend(g2_.pop(0))
    return s_
W0P = opt("w0p", 1000)
pre = Stream(); pre.extend(su1); pre.extend(take(nA))
gp = groups(pre.ops); cnt = 0; done = False
for g_ in gp:
    if X0P >= 0 and cnt >= X0P: st_issue(m, 0, "x", xo="s17"); X0P = -1
    if cnt >= W0P and not done: st_issue(m, 0, "w", wo=sW0); done = True
    m.ops.extend(g_); cnt += len(g_)
fstamp(m, 3)
if not done: st_issue(m, 0, "w", wo=sW0)
stamp(m)

vKD = vb.get(10, 2); vVD = vb.get(8, 2); vKO = vb.get(10, 2)
vKS = vb.get(16, 4); vVF = vb.get(16, 4); vTR = vb.get(2, 2); vUO = vb.get(8, 4)
p0r = Stream()
for i in range(5): p0r("ds_read_b64_tr_b16 %s, v%d offset:%d" % (vr(vKD + 2 * i, 2), vP0R, 512 * i), tag="p0r")
for i in range(4): p0r("ds_read_b64_tr_b16 %s, v%d offset:%d" % (vr(vVD + 2 * i, 2), vP0R, L_VS - L_KS - 512 + 512 * i), tag="p0v")
p0 = Stream()
p0.wait_lgkm("p0r")
for j in range(9): p0("v_alignbit_b32 v%d, v%d, v%d, 16" % (vKO + j, vKD + j + 1, vKD + j))
for s_ in range(16):
    hi = (vKD + (s_ + 3) // 2) if s_ % 2 else (vKO + (s_ + 2) // 2)
    p0("v_dot2_f32_bf16 v%d, v%d, v%d, 0" % (vKS + s_, hi, vTR))
p0.wait_lgkm("p0v")
for s_ in range(16):
    lo = (vKD + (s_ + 1) // 2) if s_ % 2 else (vKO + s_ // 2)
    p0("v_dot2_f32_bf16 v%d, v%d, v%d, v%d" % (vKS + s_, lo, vTR + 1, vKS + s_))
    j = s_ // 2
    p0("v_lshlrev_b32 v%d, 16, v%d" % (vVF + 2 * j, vVD + j) if s_ % 2 == 0 else "v_and_b32 v%d, 0xffff0000, v%d" % (vVF + 2 * j + 1, vVD + j))
for j in range(8): p0("v_pk_mul_f32 %s, %s, %s" % (vr(vKS + 2 * j, 2), vr(vKS + 2 * j, 2), vr(vVF + 2 * j, 2)))
for k_, p_ in enumerate((0, 2, 1, 3)):
    for hf in range(2): p0("v_cvt_pk_bf16_f32 v%d, v%d, v%d" % (vUO + 2 * k_ + hf, vKS + p_ + 8 * hf, vKS + p_ + 8 * hf + 4))
p0b = Stream()
p0b("ds_write_b128 v%d, %s" % (vP0W, vr(vUO, 4)), tag="p0w")
p0b("ds_write_b128 v%d, %s offset:16" % (vP0W, vr(vUO + 4, 4)), tag="p0w")
p0b("ds_read_b128 %s, v%d" % (vr(vKS, 4), vP0B), tag="p0b")
p0b("ds_read_b128 %s, v%d offset:1152" % (vr(vKS + 4, 4), vP0B), tag="p0b")
p0c = Stream()
p0c.wait_lgkm("p0b")
p0c("buffer_store_dwordx4 %s, v%d, %s, 0 offen sc1" % (vr(vKS, 4), vP0S, WS), tag="ust")
p0c("buffer_store_dwordx4 %s, v%d, %s, %s offen sc1" % (vr(vKS + 4, 4), vP0S, WS, sZ8), tag="ust")

aF = 0
def g1_reads(kap):
    t, ks = kap // 4, kap % 4
    slot = (t % 4) * SLOT
    b = aF + 16 * (kap % 2)
    so = slot - (65536 if slot >= 65536 else 0)
    gs = [Stream(), Stream(), Stream()]
    for ft in range(2):
        g_ = gs[2 * ft]
        g_("ds_read_b64_tr_b16 %s, v%d offset:%d" % (ar(b + 8 + 4 * ft, 2), vWA[ft], so + ks * 4096), tag="f%d_%d" % (kap, ft))
        g_("ds_read_b64_tr_b16 %s, v%d offset:%d" % (ar(b + 8 + 4 * ft + 2, 2), vWA[ft], so + ks * 4096 + 512), tag="f%d_%d" % (kap, ft))
        gs[1]("ds_read_b128 %s, v%d offset:%d" % (ar(b + 4 * ft, 4), vXA[ks], so + 4096 * ft), tag="f%d_0" % kap)
    return gs
def g1_mf(s, kap, i, ft):
    b = aF + 16 * (kap % 2)
    c = vr(vACC[2 * i + ft], 16)
    s("v_mfma_f32_32x32x16_bf16 %s, %s, %s, %s" % (vr(vACC[2 * i + ft], 16), ar(b + 8 + 4 * ft, 4), ar(b + 4 * i, 4), c))
def g1_kstep(s, kap, pre=None):
    rd = g1_reads(kap + 1) if kap + 1 < 28 else [Stream(), Stream(), Stream()]
    if pre is not None: s.wait_lgkm("f%d_1" % kap)
    else: s.wait_lgkm("f%d_0" % kap)
    g1_mf(s, kap, 0, 0)
    if pre is not None: s.extend(pre)
    s.extend(rd[0])
    g1_mf(s, kap, 1, 0)
    s.extend(rd[1])
    s.wait_lgkm("f%d_1" % kap)
    g1_mf(s, kap, 0, 1)
    s.extend(rd[2])
    g1_mf(s, kap, 1, 1)
    if kap % 8 == 6 and kap < 24:
        delta = 65536 if kap in (6, 22) else -65536
        for r in vXA + vWA: s("v_add_u32 v%d, 0x%x, v%d" % (r, delta & 0xffffffff, r))

def w2_issue(s, k):
    j, kh = k // 2, k % 2
    for q in range(2):
        s.begin()
        if q == 0: s("s_add_u32 m0, %s, %d" % (sW2L, 8192 * W2POS[k]))
        s("buffer_load_dwordx4 v%d, %s, %s offen offset:%d lds" % (vW2V[2 * kh + q], W2, tCB[j], 1024 * q), tag="w2_%d" % k)
        s.end()
def aW2(n): return (8 * n + 64) % 224
def w2_reads(s, n):
    j, ks = n // 4, n % 4
    off = 8192 * W2POS[2 * j] + 2048 * ks; hi = off >= 65536; off -= 65536 * hi
    for t in range(2):
        b = aW2(n) + 4 * t
        s("ds_read_b64_tr_b16 %s, v%d offset:%d" % (ar(b, 2), vW2R[2 * hi + t], off), tag="w2r%d" % n)
        s("ds_read_b64_tr_b16 %s, v%d offset:%d" % (ar(b + 2, 2), vW2R[2 * hi + t], off + 1024), tag="w2r%d" % n)

vG1 = vACC
vCC = [128 + 16 * i for i in range(4)]
vEPB = 192
vGT = vEPB; vUL = vEPB + 16; vUF = vEPB + 24
vQ = [224, 228]; vG = [232, 234]
vHL = 128; vHS = 136; vHX = 144
hc = Stream()
for q in range(2):
    hc("buffer_load_dwordx4 %s, v%d, %s, %s offen offset:%d" % (vr(vHL + 4 * q, 4), vL16, SSM, sHSRC, 1024 * q), tag="hc")
sDP = "s16"
hz = Stream()
hz.begin(); hz("s_mov_b32 exec_hi, 15"); hz("ds_write_b128 v%d, %s" % (vPADA, vr(vZ4, 4)), tag="z0"); hz("s_mov_b32 exec_hi, -1"); hz.end()
hz("s_lshl_b32 %s, %s, 3" % (sT0, sW)); hz("s_and_b32 %s, %s, 16" % (sT0, sT0)); hz("s_lshr_b32 %s, %s, %s" % (sDP, sDP, sT0)); hz("s_lshl_b32 %s, %s, 16" % (sDP, sDP))
hz.begin(); hz("s_cmp_eq_u32 %s, 0" % sE2); hz("s_cselect_b32 %s, %s, 0" % (sDP, sDP)); hz("s_cselect_b32 %s, 0, %s" % (sHP, sHP)); hz.end()
hz("v_mov_b32 v%d, %s" % (vHX, sHP))
hp = Stream()
hp.wait_vm("hc")
hp("v_lshlrev_b32 v%d, 16, v%d" % (vT[0], vHL)); hp("v_and_b32 v%d, 0xffff0000, v%d" % (vT[1], vHL))
hp("v_add_f32 v%d, %s, v%d" % (vT[0], sDP, vT[0]))
hp("v_readlane_b32 %s, v%d, 63" % (sT0, vHL + 3))
hp.begin(); hp("s_mov_b64 exec, 1"); hp("v_cvt_pk_bf16_f32 v%d, v%d, v%d" % (vHL, vT[0], vT[1])); hp("s_mov_b64 exec, -1"); hp.end()
hp("v_mov_b32 v%d, %s" % (vHX + 1, sT0))
for q in range(2):
    hp("v_mov_b32_dpp v%d, v%d wave_shr:1 row_mask:0xf bank_mask:0xf" % (vHX + q, vHL + 4 * q + 3))
for q in range(2):
    hp("ds_write_b128 v%d, %s offset:%d" % (vHW, vr(vHL + 4 * q, 4), 1024 * q), tag="hw"); hp.ops[-1].cost = 6
    for j in range(4):
        hp("v_alignbit_b32 v%d, v%d, v%d, 16" % (vHS + 4 * q + j, vHL + 4 * q + j, vHL + 4 * q + j - 1 if j else vHX + q))
for q in range(2):
    hp("ds_write_b128 v%d, %s offset:%d" % (vHW, vr(vHS + 4 * q, 4), RSZ + 1024 * q), tag="hw"); hp.ops[-1].cost = 10
def up_issue(s): s("buffer_load_dword v%d, v%d, %s, 0 offen sc1" % (vUF, vUP, WS), tag="pu")
uc = Stream()
uc.wait_vm("pu")
uc.begin()
uc("v_cmp_ne_u32 vcc, v%d, v%d" % (vUF, vTAG))
uc("s_cbranch_vccnz L_spin_pu")
uc("L_ok_pu:")
uc.end()
spins("L_spin_pu:"); spins("s_mov_b32 %s, 0" % sSPIN); spins("L_spin2_pu:")
up_issue(spins)
spins("s_add_u32 %s, %s, 1" % (sSPIN, sSPIN)); spins("s_waitcnt vmcnt(0)"); spins("v_cmp_ne_u32 vcc, v%d, v%d" % (vUF, vTAG))
spin_tail(spins, "pu")
ul = Stream()
for q in range(2):
    ul("buffer_load_dwordx4 %s, v%d, %s, 0 offen offset:%d sc1" % (vr(vUL + 4 * q, 4), vUA, WS, 2048 * q), tag="ul")

TP = opt("tpos", 0)
TL = []
def place(pos, st, step=2.0):
    for g_ in groups(st.ops):
        TL.append((int(pos), g_))
        if any(o.kind in VMEMK for o in g_): pos += step
    return pos
def place_spread(p0_, p1_, st):
    gs = groups(st.ops); tot = float(sum(gcost(g_) for g_ in gs)); acc = 0
    for g_ in gs:
        TL.append((int(p0_ + (p1_ - p0_) * acc / tot), g_)); acc += gcost(g_)
FUP = opt("fup", 0); GAP = opt("gap", 0); E6 = opt("e6", 4)
f = Stream(); flag_store(f, sFU, "ust"); place(FUP, f)
pos = 1
for t in range(2, 7):
    if t >= 4: pos = max(pos, 16 * (t - 3) - 3)
    f = Stream()
    if t == opt("hct", 6): f.extend(hc); HCP = pos + 4
    st_issue(f, t)
    for g_ in groups(f.ops):
        if FUP + 16 <= pos < FUP + 16 + GAP: pos = FUP + 16 + GAP
        TL.append((int(pos), g_)); pos += 2
    assert pos < 16 * t - 4
if opt("hct", 6) == 7: pos = place(pos, hc); HCP = pos
f = Stream(); up_issue(f); place(opt("upp", 58), f)
UCB = opt("ucb", 6)
ULP = 16 * UCB - 3
for k in range(E6 + 1):
    if ULP and (pos >= ULP or k == E6): pos = place(max(pos, ULP), ul); ULP = 0
    if k == E6: break
    pos = max(pos, [64, 80, 80, 96, 96][k // 2] - 3)
    f = Stream(); w2_issue(f, k); pos = place(pos, f)
print("G1 vmem end pos", pos, "hc", HCP, file=sys.stderr)
f = Stream()
f("v_lshlrev_b32 v%d, 3, v%d" % (vTK[3], L))
f("v_bfe_u32 v%d, v%d, v%d, 8" % (vTK[3], vTAG, vTK[3]))
f("v_lshl_or_b32 v%d, v%d, 15, v%d" % (vTK[3], vTK[3], vTK[3]))
f("v_and_b32 v%d, %s, v%d" % (vTK[0], sMSK, vTK[3]))
for k in range(1, 4):
    f("v_lshrrev_b32 v%d, %d, v%d" % (vTK[k], 2 * k, vTK[3])); f("v_and_b32 v%d, %s, v%d" % (vTK[k], sMSK, vTK[k]))
place_spread(100, 110, f)
HPG = opt("hpg", 2)
if HPG == 0:
    place_spread(64, 76, hz); place_spread(max(HCP + 8, 84), 107, hp)
elif HPG == 2:
    f = Stream(); f.ops = [o for o in hz.ops[3:] + hp.ops if o.kind != "ds"]; place_spread(max(HCP + 8, 84), 107, f)
    hz.ops = hz.ops[:3]; hp.ops = [o for o in hp.ops if o.kind == "ds"]
p0pre = Stream()
p0pre("s_waitcnt lgkmcnt(0)")
p0pre("s_add_u32 s82, s82, 0x%x" % TAG_INC); p0pre("s_mov_b32 s16, s83"); p0pre("s_mov_b32 s83, s82"); p0pre("v_mov_b32 v%d, s82" % vTAG)
fstamp(p0pre, 3)
p0pre.wait_vm("kv")
fstamp(p0pre, 3)
p0pre("s_barrier")
stamp(p0pre)
bm = Stream()
for i in range(2):
    for ft in range(2):
        bm("v_mfma_f32_32x32x16_bf16 %s, %s, %s, 0" % (vr(vACC[2 * i + ft], 16), vr(vB1, 4), vr(vONE + 4 * ft, 4)))
p0pre.extend(p0r)
p0pre("v_alignbit_b32 v%d, v%d, v%d, 16" % (vTR, vTP, vTP))
p0pre("v_alignbit_b32 v%d, v%d, v%d, 16" % (vTR + 1, vTP + 1, vTP + 1))
p0pre.extend(p0); p0pre.extend(p0b); p0pre.extend(p0c)
if TP == 1: p0pre.extend(tch)
stamp(p0pre)
p0pre.extend(take(nB))
p0pre.wait_vm("sm")
p0pre.extend(bm)
st_issue(p0pre, 1)
stamp(p0pre)
m.extend(p0pre)
rest = take(10000)
if rest.ops: place_spread(0, 60, rest)
def bar(t):
    b_ = Stream()
    fstamp(b_, 1)
    if t < 7: b_.wait_vm("st%d" % t)
    elif HPG == 0: b_.wait_lgkm("hw")
    if t == UCB: b_.extend(uc)
    fstamp(b_, 1)
    b_("s_barrier")
    fstamp(b_, 1)
    return b_
m.extend(bar(0))
fstamp(m, 3)
for g_ in g1_reads(0): m.extend(g_)
s = Stream()
for kap in range(28):
    g1_kstep(s, kap, bar((kap + 1) // 4) if kap % 4 == 3 else None)
    if kap == 10: stamp(s)
TL.sort(key=lambda x: x[0])
k_ = -1; pend_ = []
for i_, o in enumerate(s.ops):
    if o.kind == "mfma":
        k_ += 1
        m.ops.append(o)
        if k_ % 16 == 12: continue
        while TL and TL[0][0] <= k_: m.ops.extend(TL.pop(0)[1])
    else: m.ops.append(o)
for _, g_ in TL: m.ops.extend(g_)
stamp(m)

def own(n): return vG1[0] + 8 * n
def hstore(s, n):
    s("buffer_store_dwordx4 %s, v%d, %s, %s offen offset:%d sc1" % (vr(own(n), 4), vHV[n // 4], WS, tCB[0], 1024 * (n % 4)), tag="hst%d" % (n // 4))
def gelu(n, pk):
    ge = Stream()
    x0 = own(n); T = vGT + 8 * (n % 2)
    if pk:
        for j in range(4): ge("v_pk_mul_f32 %s, %s, %s" % (vr(T + 2 * j, 2), vr(x0 + 2 * j, 2), vr(x0 + 2 * j, 2)))
        for j in range(4): ge("v_pk_fma_f32 %s, %s, %s, %s" % (vr(T + 2 * j, 2), vr(T + 2 * j, 2), sC1, vr(vC0, 2)))
        for j in range(4): ge("v_pk_mul_f32 %s, %s, %s" % (vr(T + 2 * j, 2), vr(T + 2 * j, 2), vr(x0 + 2 * j, 2)))
        for j in range(8): ge("v_exp_f32 v%d, v%d" % (T + j, T + j))
        for j in range(4): ge("v_pk_add_f32 %s, %s, 1.0 op_sel_hi:[1,0]" % (vr(T + 2 * j, 2), vr(T + 2 * j, 2)))
        for j in range(8): ge("v_rcp_f32 v%d, v%d" % (T + j, T + j))
        for j in range(4): ge("v_pk_mul_f32 %s, %s, %s" % (vr(T + 2 * j, 2), vr(T + 2 * j, 2), vr(x0 + 2 * j, 2)))
    else:
        for j in range(8): ge("v_mul_f32 v%d, v%d, v%d" % (T + j, x0 + j, x0 + j))
        for j in range(8): ge("v_fma_f32 v%d, v%d, s64, v%d" % (T + j, T + j, vC0))
        for j in range(8): ge("v_mul_f32 v%d, v%d, v%d" % (T + j, T + j, x0 + j))
        for j in range(8): ge("v_exp_f32 v%d, v%d" % (T + j, T + j))
        for j in range(8): ge("v_add_f32 v%d, 1.0, v%d" % (T + j, T + j))
        for j in range(8): ge("v_rcp_f32 v%d, v%d" % (T + j, T + j))
        for j in range(8): ge("v_mul_f32 v%d, v%d, v%d" % (T + j, T + j, x0 + j))
    for j in range(4): ge("v_cvt_pk_bf16_f32 v%d, v%d, v%d" % (x0 + j, T + 2 * j, T + 2 * j + 1))
    hstore(ge, n)
    return ge
aCF = 0
def conv_readsA(r):
    s = Stream(); base = aCF + 32 * (r & 1)
    for a in range(4):
        off = 128 * (8 * a + r)
        s("ds_read_b64_tr_b16 %s, v%d offset:%d" % (ar(base + 8 * a, 2), vCA, off + 32), tag="c%d" % r)
        s("ds_read_b64_tr_b16 %s, v%d offset:%d" % (ar(base + 8 * a + 2, 2), vCA, off), tag="c%d" % r)
    return s
def conv_readsB(r):
    s = Stream(); base = aCF + 32 * (r & 1)
    for i in range(4):
        s("ds_read_b128 %s, v%d offset:%d" % (ar(base + 8 * i + 4, 4), vCB, 32 * (8 * i - r + 7)), tag="c%d" % r)
    return s
NP = opt("np", 4); EG = opt("eg", 8)
g1s = Stream()
for n in range(NP): g1s.ops.extend(gelu(n, True).ops)
gf = Stream()
for k in range(E6, EG): w2_issue(gf, k)
g1s = spread(g1s, gf, 0.0, 0.9, unit="any")
if HPG:
    gf = Stream(); gf.extend(hz); gf.extend(hp)
    g1s = spread(g1s, gf, 0.0, 0.6, unit="any")
gf = Stream()
if HPG: gf.wait_lgkm("hw"); gf("s_barrier")
gf.extend(conv_readsA(0))
gf.wait_vm("ul")
for q in range(2):
    gf("ds_write2_b64 v%d, %s, %s offset0:%d offset1:%d" % (vUWA, vr(vUL + 4 * q, 2), vr(vUL + 4 * q + 2, 2), 64 * q, 64 * q + 160), tag="uw")
gf.extend(conv_readsB(0))
m.extend(spread(g1s, gf, opt("ulo", 0.8), 0.95, unit="any"))
stamp(m)

RING = [("a", 224 + 4 * i) for i in range(8)] + [("v", vG1[0] + 8 * i + 4) for i in range(8)]
NR = len(RING)
POOL = [[f, b, -1] for f, b in RING]
if opt("xr", 1): POOL += [["a", aW2(k) + 4 * t, 28 + k] for k in range(8) for t in range(2)]
HL = [n for n in range(56) if n % 28 >= 4]
HREG = {}
def hreg(n):
    if n % 28 < 4: return vr(own(4 * (n // 28) + n % 28), 4)
    return HREG[n]
hnext = [0]
def h_issue(s, now=0, lim=56):
    if hnext[0] >= len(HL) or HL[hnext[0]] >= lim: return
    fr = [x for x in POOL if x[2] < now]
    if not fr: return
    n = HL[hnext[0]]; hnext[0] += 1
    sl = min(fr, key=lambda x: x[2]); sl[2] = n
    HREG[n] = "%s[%d:%d]" % (sl[0], sl[1], sl[1] + 3)
    k = n % 28
    s("buffer_load_dwordx4 %s, v%d, %s, %s offen offset:%d sc1" % (hreg(n), vHV[n // 28], WS, tCB[k // 4], 1024 * (k % 4)), tag="h%d" % n)
def conv_mf(s, r, a, i):
    base = aCF + 32 * (r & 1); j = a + i
    c = "0" if (r == 0 and a == 0) else vr(vCC[j], 16)
    s("v_mfma_f32_32x32x16_bf16 %s, %s, %s, %s" % (vr(vCC[j], 16), ar(base + 8 * a, 4), ar(base + 8 * i + 4, 4), c))
def y_out(j):
    s = Stream(); R = vCC[j]
    for v in range(8): s("v_permlane16_swap_b32 v%d, v%d" % (R + v, R + v + 8))
    for v in range(2, 8): s("v_add_f32 v%d, v%d, v%d" % (R + v, R + v, R + 6 + v))
    s("ds_write_b64 v%d, %s offset:%d" % (vYC, vr(R + 14, 2), 512 * j), tag="yw")
    s("ds_write_b128 v%d, %s offset:%d" % (vYM, vr(R, 4), 2304 * j), tag="yw")
    s("ds_write_b128 v%d, %s offset:%d" % (vYM, vr(R + 4, 4), 2304 * j + 16), tag="yw")
    return s
def hflag(s, i):
    flag_store(s, sFH, "hst%d" % i)
    if opt("ht", 1):
        s.begin()
        s("s_mov_b32 %s, 0" % ("exec_hi" if i == 0 else "exec_lo"))
        s("buffer_load_dword v252, v%d, %s, %s offen sc1" % (vHT, WS, tCB[0]), tag="ht")
        s("s_mov_b32 %s, -1" % ("exec_hi" if i == 0 else "exec_lo"))
        s.end()
    if i == 0: s("s_add_u32 %s, %s, %d" % (sFH, sFH, FHS))
F0, PB, HB, HPB = opt("f0", 2), opt("pb", 5), opt("hb", 7), opt("hpb", 8)
cv = Stream()
WPB = opt("wpb", 2)
WBB = opt("wbb", 5)
PRE = opt("pre", 14); PRS = opt("prs", 10)
wnext = EG
rnext = [0]
for r in range(7):
    s = Stream()
    s.wait_lgkm("c%d" % r)
    for a in range(4):
        for i in range(4 - a): conv_mf(s, r, a, i)
    rd = conv_readsA(r + 1); rd.extend(conv_readsB(r + 1))
    s = spread(s, rd, 0.0, 0.7)
    f = Stream()
    if r in (2, 4): fstamp(cv)
    if r == WBB:
        assert wnext == 14
        cv.wait_vm("w2_13"); cv("s_barrier")
    if r == HB: spoll_check(cv, 7, sPH, "ph0"); cv("s_add_u32 %s, %s, %d" % (sPH, sPH, FHS))
    if r == F0: hflag(f, 0)
    if r == PB: spoll_issue(f, 8, sPH)
    if r == -opt("f1", -7): hflag(f, 1)
    for _ in range(WPB):
        if wnext < 14: w2_issue(f, wnext); wnext += 1
    if r == 4:
        f("buffer_load_dwordx4 %s, v%d, %s, 0 offen" % (vr(vQ[0], 4), vQO, Q), tag="q")
        f("buffer_load_dwordx4 %s, v%d, %s, %s offen" % (vr(vQ[1], 4), vQO, Q, sQ1), tag="q")
    if r >= HB:
        for _ in range(HPB): h_issue(f)
    s = spread(s, f, 0.0, 1.0)
    if r >= WBB:
        f = Stream()
        while rnext[0] < PRE * (r + 1 - WBB) // (7 - WBB): w2_reads(f, rnext[0]); rnext[0] += 1
        s = spread(s, f, 0.0, 1.0)
    cv.extend(s)
ge = Stream()
for n in range(NP, 8): ge.ops.extend(gelu(n, False).ops)
m.extend(spread(cv, ge, 0.0, opt("ghi", 0.7)))
fstamp(m)
if HB == 7: spoll_check(m, 7, sPH, "ph0"); m("s_add_u32 %s, %s, %d" % (sPH, sPH, FHS))
if opt("f1", -7) == -7: hflag(m, 1)
m.wait_lgkm("c7")
mf = Stream()
for j in range(4):
    for a in range(j + 1): conv_mf(mf, 7, a, j - a)
f = Stream()
if HB <= 7:
    for _ in range(HPB): h_issue(f)
zc = Stream(); zc("v_mov_b32 v%d, %s" % (vT[4], sRW)); zc("s_mov_b64 exec, 1"); zc("ds_write_b64 v%d, %s offset:%d" % (vT[4], vr(vZ4, 2), R_CY), tag="yw"); zc("s_mov_b64 exec, -1")
fg = groups(f.ops)
y0, y1, y2 = y_out(0).ops, y_out(1).ops, y_out(2).ops
plan = {0: zc.ops + sum(fg[:2], []), 1: sum(fg[2:4], []), 2: y0[:6], 3: y0[6:12], 4: y0[12:] + y1[:3], 5: y1[3:9], 6: y1[9:15], 7: y1[15:] + y2[:4], 8: y2[4:8] + sum(fg[4:6], []), 9: sum(fg[6:], [])}
for k_, o in enumerate(mf.ops):
    m.ops.append(o); m.ops.extend(plan[k_])
stamp(m)

vA2 = vCC
def g2_mf(s, n, t):
    sg, k = n // 28, n % 28
    c = "0" if k == 0 else vr(vA2[2 * sg + t], 16)
    s("v_mfma_f32_32x32x16_bf16 %s, %s, %s, %s" % (vr(vA2[2 * sg + t], 16), ar(aW2(k) + 4 * t, 4), "HREG", c), tag=(n, t))
def g2_seg(n0, n1, lim=None):
    s = Stream()
    for n in range(n0, n1):
        if n in HL: s.wait_vm("h%d" % n)
        if n < 28: s.wait_lgkm("w2r%d" % n)
        rd = Stream()
        if n >= PRS:
            for _ in range(2):
                if rnext[0] < 28 and rnext[0] < n + opt("pra", 6): w2_reads(rd, rnext[0]); rnext[0] += 1
        hl_ = len(rd.ops) // 2
        for t in range(2):
            g2_mf(s, n, t)
            s.ops.extend(rd.ops[hl_ * t:hl_ * t + hl_])
    return s
G2START = len(m.ops)
def pace():
    ops = m.ops[G2START:]; m.ops = m.ops[:G2START]
    RATE = opt("rate", 0.5); CRED = opt("cred", 1.0); MINA = opt("mina", 12)
    lim = 28 if HB <= 7 else 0
    cred = CRED; donet = set()
    for i, o in enumerate(ops):
        if o.text == "L_ok_ph0:": lim = 28
        if o.text == "L_ok_ph1:": lim = 56
        if o.kind == "mfma" and "HREG" in o.text:
            n, t = o.tag
            o.text = o.text.replace("HREG", hreg(n)); o.tag = None; analyze(o)
            m.ops.append(o); donet.add((n, t))
            now = 0
            while (now, 0) in donet and (now, 1) in donet: now += 1
            cred = min(cred + RATE, CRED + RATE)
            j = i + 1; nv = 0
            while j < len(ops) and ops[j].kind != "mfma":
                nv += ops[j].kind in VMEMK; j += 1
            urgent = hnext[0] < len(HL) and HL[hnext[0]] - n <= MINA
            if cred - nv >= 1 or urgent:
                k0 = len(m.ops); h_issue(m, now, lim)
                if len(m.ops) > k0: cred -= 1
            continue
        if o.kind in VMEMK: cred -= 1
        m.ops.append(o)
    assert hnext[0] == len(HL)
def unpack(s, dst, src):
    for j in range(4):
        s("v_lshlrev_b32 v%d, 16, v%d" % (dst[2 * j], src + j)); s("v_and_b32 v%d, 0xffff0000, v%d" % (dst[2 * j + 1], src + j))
ce = Stream()
ce.ops.extend(y2[8:])
ce.extend(y_out(3))
ce.wait_lgkm("yw")
ce("s_barrier")
NY = opt("ny", 6)
NZ = opt("nz", 12); F1 = opt("f1", -7); P1 = opt("p1", 4); PH1 = opt("ph1", 18); GP = opt("gp", 12)
sg0 = spread(g2_seg(0, NY), ce, 0.0, 1.0)
fstamp(sg0)
ce = Stream()
for q in range(2):
    b = vEPB + 16 * q
    for y in range(2):
        ce("ds_read_b64 %s, v%d offset:%d" % (vr(vT[4 * q + 2 * y], 2), vYRC, 512 * q + RSZ * y), tag="yr%d" % q)
        for hf in range(2):
            ce("ds_read_b128 %s, v%d offset:%d" % (vr(b + 8 * y + 4 * hf, 4), vYR, 2304 * q + RSZ * y + 16 * hf), tag="yr%d" % q)
for q in range(2):
    ce.wait_lgkm("yr%d" % q)
    b = vEPB + 16 * q
    for j in range(2): ce("v_add_f32 v%d, v%d, v%d" % (vT[4 * q + j], vT[4 * q + j], vT[4 * q + 2 + j]))
    for j in range(8): ce("v_add_f32 v%d, v%d, v%d" % (b + j, b + j, b + 8 + j))
    for j in range(2): ce("v_add_f32 v%d, v%d, v%d" % (b + j, b + j, vT[4 * q + j]))
    for j in (1, 2, 3, 0): ce("v_cvt_pk_f16_f32 v%d, v%d, v%d" % (b + 8 + j, b + 2 * j, b + 2 * j + 1))
    tag_put(ce, list(range(b + 8, b + 12)))
for q in range(2):
    ce("buffer_store_dwordx4 %s, v%d, %s, %s offen offset:%d sc1" % (vr(vEPB + 16 * q + 8, 4), vL16, WS, sZB, 1024 * q), tag="zst")
sg0.extend(spread(g2_seg(NY, NZ), ce, 0.0, 1.0))
stamp(sg0)
vB2F = list(range(vEPB + 16, vEPB + 24))
vQF = [own(k // 4) + k % 4 for k in range(16)]
f = Stream()
f("v_add_u32 v%d, %d, v%d" % (vT[3], L_PB0, vPW)); f("v_add_u32 v%d, %d, v%d" % (vT[2], L_PB0, vPRD))
unpack(f, vB2F, vB2)
f("s_barrier")
sg0.extend(spread(g2_seg(NZ, 28), f, 0.0, 0.8))
def at(seg, n, f):
    for i, o in enumerate(seg.ops):
        if o.kind == "mfma" and o.tag == (n - 1, 1):
            seg.ops[i + 1:i + 1] = f.ops; return
    assert n == 0; seg.ops[0:0] = f.ops
f = Stream(); fstamp(f); spoll_check(f, 7, sPH, "ph1"); at(sg0, PH1, f)
f = Stream(); gran_issue(f, vG[0], vGA, 0, "pg0"); gran_issue(f, vG[1], vGA, 256, "pg1"); at(sg0, GP, f)
f = Stream(); spoll_issue(f, 8, sPH); at(sg0, P1, f)
if F1 >= 0: f = Stream(); hflag(f, 1); at(sg0, F1, f)
m.extend(sg0)
stamp(m)
def part_write(s, sg, ts=(0, 1)):
    for t in ts:
        for a in range(4):
            s("ds_write_b128 v%d, %s offset:%d" % (vT[3] if sg == 0 else vPW, vr(vA2[2 * sg + t] + 4 * a, 4), 128 * t + 32 * a), tag="pw%d" % sg)
def red_reads(s, sg, E):
    for w in range(4):
        for hf in range(2):
            s("ds_read_b128 %s, v%d offset:%d" % (vr(E + 8 * w + 4 * hf, 4), vT[2] if sg == 0 else vPRD, PB_SZ * w + 16 * hf), tag="pr%d_%d" % (sg, w // 2))
N1, N2, N3, N4 = opt("n1", 33), opt("n2", 39), opt("n3", 44), opt("n4", 48)
E = vA2[0]
vZL = vEPB
def z_issue(s):
    for g_ in range(2):
        s("buffer_load_dwordx4 %s, v%d, %s, %s offen sc1" % (vr(vZL + 4 * g_, 4), vZA, WS, sZ8 if g_ else "0"), tag="pz")
vP = E
def p_issue(s):
    for q in range(2):
        s("buffer_load_dwordx4 %s, v%d, %s, %s offen offset:%d sc1" % (vr(vP + 4 * q, 4), vL16, WS, sPR, 1024 * q), tag="pp")
f = Stream(); part_write(f, 0); f.wait_lgkm("pw0"); f("s_barrier")
sg1 = spread(g2_seg(28, N1), f, 0.1, 1.0)
fstamp(sg1)
f = Stream(); red_reads(f, 0, E)
for rh in range(2):
    b = E + 16 * rh
    f.wait_lgkm("pr0_%d" % rh)
    for j in range(8): f("v_add_f32 v%d, v%d, v%d" % (b + j, b + j, b + 8 + j))
    for j in range(8): f("v_add_f32 v%d, v%d, v%d" % (b + j, b + j, vB2F[j]))
    for j in range(4): f("v_cvt_pk_f16_f32 v%d, v%d, v%d" % (b + 8 + j, b + 2 * j, b + 2 * j + 1))
    tag_put(f, list(range(b + 8, b + 12)))
    f("buffer_store_dwordx4 %s, v%d, %s, %s offen offset:%d sc1" % (vr(b + 8, 4), vL16, WS, sPS, 1024 * rh), tag="pst")
sg1.extend(spread(g2_seg(N1, N2), f, 0.0, 1.0))
fstamp(sg1)
f = Stream()
gran_check(f, vG[0], vGA, 0, "pg0"); gran_check(f, vG[1], vGA, 256, "pg1")
for rh in range(2):
    unpack(f, vQF[8 * rh:8 * rh + 8], vQ[rh])
    for j in range(8): f("v_mul_f32 v%d, v%d, v%d" % (vQF[8 * rh + j], vQF[8 * rh + j], vG[rh]))
    f("v_sub_f32 v%d, 1.0, v%d" % (vG[rh], vG[rh]))
tag_check(f, z_issue, list(range(vZL, vZL + 8)), "pz")
f("ds_write_b128 v%d, %s" % (vZW, vr(vZL, 4)), tag="zw")
f("ds_write_b128 v%d, %s offset:1024" % (vZW, vr(vZL + 4, 4)), tag="zw")
for i in range(4):
    f("ds_read_b64_tr_b16 %s, v%d offset:%d" % (vr(vZL + 24 + 2 * i, 2), vZT, 512 * i), tag="zr")
s = g2_seg(N2, N4)
for n in range(N4, 56):
    s.wait_vm("h%d" % n); g2_mf(s, n, 0)
sg1.extend(spread(s, f, 0.0, 1.0))
f = Stream(); z_issue(f); at(sg1, opt("zp", 36), f)
m.extend(sg1)
fstamp(m)
s = Stream()
for n in range(N4, 56): g2_mf(s, n, 1)
f = Stream()
f.wait_lgkm("zr")
f("ds_write_b128 v%d, %s" % (vZTW, vr(vZL + 24, 4)), tag="zw2")
f("ds_write_b128 v%d, %s offset:16" % (vZTW, vr(vZL + 28, 4)), tag="zw2")
part_write(f, 1, (0,))
s = spread(s, f, 0.0, 1.0)
f = Stream(); p_issue(f)
m.extend(spread(s, f, opt("plo", 0.0), opt("plo", 0.0) + 0.5))
stamp(m)
part_write(m, 1, (1,))
m.wait_lgkm("pw1")
m("s_barrier")
stamp(m)
m("ds_read_b128 %s, v%d" % (vr(vT[0], 4), vZR), tag="zt")
m("ds_read_b128 %s, v%d offset:%d" % (vr(vT[4], 4), vZR, 32 * 144), tag="zt")
E1 = vA2[2]
red_reads(m, 1, E1)
m.wait_lgkm("zt")
def mix(s, d, h16, j, a, c):
    s("v_fma_mix_f32 v%d, v%d, %s, %s op_sel:[%d,0,0] op_sel_hi:[1,0,0]" % (d, h16 + j // 2, a, c, j & 1))
for rh in range(2):
    for j in range(8): mix(m, vZL + 8 * rh + j, vT[4 * rh], j, "v%d" % vQF[8 * rh + j], "0")
for rh in range(2):
    b = E1 + 16 * rh
    m.wait_lgkm("pr1_%d" % rh)
    for kh in range(2):
        for j in range(4): m("v_pk_fma_f32 %s, %s, %s, %s op_sel_hi:[1,0,1]" % (vr(vZL + 8 * rh + 2 * j, 2), vr(b + 8 * kh + 2 * j, 2), vr(vG[rh], 2), vr(vZL + 8 * rh + 2 * j, 2)))
tag_check(m, p_issue, list(range(vP, vP + 8)), "pp")
for rh in range(2):
    b = vZL + 8 * rh
    for j in range(8): mix(m, b + j, vP + 4 * rh, j, "v%d" % vG[rh], "v%d" % (b + j))
    for j in range(4): m("v_cvt_pk_bf16_f32 v%d, v%d, v%d" % (E1 + 4 * rh + j, b + 2 * j, b + 2 * j + 1))
    m("buffer_store_dwordx4 %s, v%d, %s, %s offen" % (vr(E1 + 4 * rh, 4), vQO, OUT, "0" if rh == 0 else sQ1), tag="ost")
stamp(m)
pace()
print("vgprs used:", va.n, vc.n, "ring", NR, file=sys.stderr)

def stamp_out(s):
    if not STAMP: return
    s("s_waitcnt vmcnt(0)")
    stamp(s)
    nstamp[0] = 40
    stamp(s, rt=True)
    if AT >= 0:
        if s is not m: return
        s("v_readlane_b32 s40, v%d, %d" % (vSTA, AT))
        s("s_add_u32 s40, s40, 1600")
        if PROBE:
            s("v_readlane_b32 s41, v%d, 42" % vSTA); s("s_mul_i32 s41, s41, 3"); s("s_add_u32 s40, s40, s41")
        s("L_cal:")
        s("s_memrealtime s[42:43]")
        s("s_waitcnt lgkmcnt(0)")
        s("s_sub_u32 s41, s42, s40")
        s("s_cmp_lt_i32 s41, 0")
        s("s_cbranch_scc1 L_cal")
        return
    if DBG:
        if s is not m: return
        sel = [int(x) for x in OPT.get("sel", "2,4,6,7,8,9,10,11,12,13,14,15").split(",")]
        s("v_readlane_b32 s40, v%d, 1" % vSTA)
        for k, idx in enumerate(sel):
            s("v_readlane_b32 s41, v%d, %d" % (vSTA, idx))
            s("s_sub_u32 s41, s41, s40")
            s("v_writelane_b32 v%d, s41, %d" % (vT[0], k))
        s("v_readlane_b32 s41, v%d, 40" % vSTA); s("v_writelane_b32 v%d, s41, 13" % vT[0])
        s("v_readlane_b32 s41, v%d, 41" % vSTA); s("v_writelane_b32 v%d, s41, 14" % vT[0])
        s("s_not_b32 s41, s41"); s("v_writelane_b32 v%d, s41, 15" % vT[0])
        s("v_lshlrev_b32 v%d, 2, v%d" % (vT[1], vLANE))
        s("v_add_co_u32 v62, vcc, v62, v%d" % vT[1])
        s("v_addc_co_u32 v63, vcc, 0, v63, vcc")
        s("s_mov_b64 exec, 0x%x" % ((1 << len(sel)) - 1))
        s("global_atomic_add v[62:63], v%d, off sc1" % vT[0])
        s("s_mov_b64 exec, 0xe000")
        s("global_atomic_umax v[62:63], v%d, off sc1" % vT[0])
        return
    slin(s, sT0, [("s2", 1024), (sW, 256)], WS_STAMP)
    s("v_lshlrev_b32 v%d, 2, v%d" % (vT[0], vLANE))
    s("buffer_store_dword v%d, v%d, %s, %s offen" % (vSTA, vT[0], WS, sT0))
stamp_out(m)
m("s_endpgm")

g = Stream(); g_stream[0] = g
g("L_spare:")
g("s_cmp_ge_u32 s2, 256")
g("s_cbranch_scc1 L_end")
if STAMP: g("v_mov_b32 v%d, 0" % vSTA)
for nm, nb in ((Q, NB), (W1, NW), (WS, WS_SIZE), (W2, NW), (SSM, NB)): srd23(g, nm, nb)
g("s_waitcnt lgkmcnt(0)")
g("s_mov_b64 s[8:9], s[40:41]"); g("s_mov_b64 s[24:25], s[54:55]"); g("s_mov_b64 s[20:21], s[48:49]")
g("s_mov_b64 s[36:37], s[68:69]"); g("s_mov_b64 s[28:29], s[58:59]")
nstamp[0] = 0
stamp(g, rt=True); stamp(g)
if STAMP: g("v_writelane_b32 v%d, s32, 41" % vSTA)
g("v_mov_b32 v12, 0")
g("buffer_load_dword v%d, v12, %s, 0 offen sc1" % (vTAG, WS))
sJ = sA
if opt("pf", 1):
    g("s_sub_u32 %s, %s, 28" % (sT0, sI)); g("s_lshl_b32 %s, %s, 2" % (sT0, sT0)); g("s_add_u32 %s, %s, %s" % (sT0, sT0, sW))
    g("v_lshrrev_b32 v12, 1, v%d" % vLANE); g("v_mul_u32_u24 v12, 3584, v12")
    g("v_and_b32 v13, 1, v%d" % vLANE); g("v_lshl_add_u32 v12, v13, 7, v12")
    g("s_and_b32 %s, %s, 1" % (sCH, sX)); g("s_mul_i32 %s, %s, %d" % (sCH, sCH, 7 * 256))
    g("L_pf1:")
    g("s_lshr_b32 %s, %s, 1" % (sT1, sT0))
    g("s_mul_i32 %s, %s, 147" % (sT2, sT1)); g("s_lshr_b32 %s, %s, 10" % (sT2, sT2))
    g("s_mul_i32 %s, %s, 7" % (sT3, sT2)); g("s_sub_u32 %s, %s, %s" % (sT1, sT1, sT3))
    g("s_lshl_b32 %s, %s, 1" % (sT2, sT2)); g("s_add_u32 %s, %s, %s" % (sT2, sT2, sT1)); g("s_add_u32 %s, %s, 1" % (sT2, sT2))
    g("s_cmp_ge_u32 %s, 7" % sT2); g("s_cselect_b32 %s, 7, 0" % sT3); g("s_sub_u32 %s, %s, %s" % (sT2, sT2, sT3))
    g("s_lshl_b32 %s, %s, 1" % (sT2, sT2)); g("s_and_b32 %s, %s, 1" % (sT3, sT0)); g("s_add_u32 %s, %s, %s" % (sT2, sT2, sT3))
    g("s_mul_i32 %s, %s, %d" % (sT2, sT2, 32 * 3584))
    g("s_lshl_b32 %s, %s, 8" % (sT1, sT1)); g("s_add_u32 %s, %s, %s" % (sT2, sT2, sT1)); g("s_add_u32 %s, %s, %s" % (sT2, sT2, sCH))
    g("buffer_load_dword v13, v12, %s, %s offen" % (W1, sT2))
    g("s_add_u32 %s, %s, 16" % (sT0, sT0))
    g("s_cmp_lt_u32 %s, 42" % sT0)
    g("s_cbranch_scc1 L_pf1")
    g("s_sub_u32 %s, %s, 42" % (sT0, sT0))
    if opt("pfs", 1):
        g("v_lshlrev_b32 v12, 7, v%d" % vLANE)
        g("s_lshr_b32 %s, %s, 1" % (sCH, sX)); g("s_lshl_b32 %s, %s, 16" % (sCH, sCH)); g("s_and_b32 %s, %s, 1" % (sT1, sX)); g("s_lshl_b32 %s, %s, 13" % (sT1, sT1))
        g("s_add_u32 %s, %s, %s" % (sCH, sCH, sT1))
        g("L_pfs:")
        g("s_and_b32 %s, %s, 3" % (sT1, sT0)); g("s_lshl_b32 %s, %s, 14" % (sT1, sT1))
        g("s_lshr_b32 %s, %s, 2" % (sT2, sT0)); g("s_lshl_b32 %s, %s, 18" % (sT2, sT2))
        g("s_add_u32 %s, %s, %s" % (sT1, sT1, sT2)); g("s_add_u32 %s, %s, %s" % (sT1, sT1, sCH))
        g("buffer_load_dword v13, v12, %s, %s offen" % (SSM, sT1))
        g("s_add_u32 %s, %s, 16" % (sT0, sT0))
        g("s_cmp_lt_u32 %s, 28" % sT0)
        g("s_cbranch_scc1 L_pfs")
        g("s_sub_u32 %s, %s, 28" % (sT0, sT0))
    g("v_mul_u32_u24 v12, 896, v%d" % vLANE)
    g("s_and_b32 %s, %s, 1" % (sCH, sX)); g("s_mul_i32 %s, %s, %d" % (sCH, sCH, 7 * CBS))
    g("L_pf:")
    g("s_mul_i32 %s, %s, 147" % (sT2, sT0)); g("s_lshr_b32 %s, %s, 10" % (sT2, sT2))
    g("s_mul_i32 %s, %s, 7" % (sT3, sT2)); g("s_sub_u32 %s, %s, %s" % (sT1, sT0, sT3))
    g("s_lshl_b32 %s, %s, 1" % (sT3, sT1)); g("s_add_u32 %s, %s, %s" % (sT2, sT2, sT3))
    g("s_cmp_ge_u32 %s, 14" % sT2); g("s_cselect_b32 %s, 14, 0" % sT3); g("s_sub_u32 %s, %s, %s" % (sT2, sT2, sT3))
    g("s_mul_i32 %s, %s, %d" % (sT2, sT2, CBS // 2)); g("s_lshl_b32 %s, %s, 7" % (sT1, sT1))
    g("s_add_u32 %s, %s, %s" % (sT1, sT1, sT2)); g("s_add_u32 %s, %s, %s" % (sT1, sT1, sCH))
    g("buffer_load_dword v13, v12, %s, %s offen" % (W2, sT1))
    g("s_add_u32 %s, %s, 16" % (sT0, sT0))
    g("s_cmp_lt_u32 %s, 98" % sT0)
    g("s_cbranch_scc1 L_pf")
g("s_sub_u32 %s, %s, 28" % (sJ, sI)); g("s_lshl_b32 %s, %s, 2" % (sT0, sX)); g("s_add_u32 %s, %s, %s" % (sJ, sJ, sT0))
slin(g, sT0, [(sJ, 64), (sW, 16)])
g("v_lshrrev_b32 v12, 2, v%d" % vLANE); g("v_add_u32 v12, %s, v12" % sT0)
g("v_and_b32 v15, 3, v%d" % vLANE); g("v_lshlrev_b32 v15, 4, v15")
g("v_mul_u32_u24 v14, 896, v12"); g("v_add_u32 v14, v14, v15")
for i in range(14):
    g("buffer_load_dwordx4 v[%d:%d], v14, %s, 0 offen offset:%d" % (16 + 4 * i, 19 + 4 * i, Q, 64 * i), tag="gq")
for i in range(14):
    g("global_load_dwordx4 v[%d:%d], v15, %s offset:%d" % (80 + 4 * i, 83 + 4 * i, P_GATE, 64 * i), tag="gq")
g("s_waitcnt vmcnt(0)")
g("v_add_u32 v%d, 0x%x, v%d" % (vTAG, TAG_INC, vTAG))
for i in range(56):
    acc = 140 + (i % 4)
    g("v_dot2_f32_bf16 v%d, v%d, v%d, %s" % (acc, 16 + i, 80 + i, "0" if i < 4 else "v%d" % acc))
g("v_add_f32 v140, v140, v141"); g("v_add_f32 v142, v142, v143"); g("v_add_f32 v140, v140, v142")
g("v_add_f32_dpp v140, v140, v140 quad_perm:[1,0,3,2] row_mask:0xf bank_mask:0xf")
g("v_add_f32_dpp v140, v140, v140 quad_perm:[2,3,0,1] row_mask:0xf bank_mask:0xf")
g("v_mul_f32 v140, 0x%x, v140" % f2u(-math.log2(math.e)))
g("v_exp_f32 v140, v140"); g("v_add_f32 v140, 1.0, v140"); g("v_rcp_f32 v140, v140")
g("v_mov_b32 v141, v%d" % vTAG)
g("v_lshlrev_b32 v12, 3, v12"); g("v_add_u32 v12, 0x%x, v12" % WS_G)
g("s_mov_b32 exec_lo, 0x11111111"); g("s_mov_b32 exec_hi, 0x11111111")
g("buffer_store_dwordx2 v[140:141], v12, %s, 0 offen sc1" % WS)
g("s_mov_b64 exec, -1")
if opt("wb", 0):
    g("s_cmp_lt_u32 s2, 248"); g("s_cbranch_scc1 L_nowb")
    g("s_cmp_lg_u32 %s, 1" % sW); g("s_cbranch_scc1 L_nowb")
    g("buffer_wbl2 sc1")
    g("s_waitcnt vmcnt(0)")
    g("L_nowb:")
g("s_cmp_lg_u32 s2, 255"); g("s_cbranch_scc1 L_spare_done")
g("s_cmp_lg_u32 %s, 0" % sW); g("s_cbranch_scc1 L_spare_done")
g("v_mul_u32_u24 v12, %d, v%d" % (FUS, vLANE))
g("v_lshlrev_b32 v13, 7, v%d" % vLANE); g("v_add_u32 v13, 0x%x, v13" % (WS_G + 4))
g("v_add_u32 v14, 8192, v13")
g("s_mov_b32 %s, 0" % sSPIN)
g("L_upd:")
g("s_sleep 8")
for i in range(14):
    g("s_mov_b32 %s, 0x%x" % (sT0, WS_FU + 64 * FUS * i))
    g("buffer_load_dword v%d, v12, %s, %s offen sc1" % (18 + i, WS, sT0))
g("buffer_load_dword v32, v13, %s, 0 offen sc1" % WS)
g("buffer_load_dword v33, v14, %s, 0 offen sc1" % WS)
g("s_add_u32 %s, %s, 1" % (sSPIN, sSPIN))
g("s_waitcnt vmcnt(0)")
for i in range(16): g("v_xor_b32 v%d, v%d, v%d" % (18 + i, 18 + i, vTAG))
for i in range(1, 16): g("v_or_b32 v18, v18, v%d" % (18 + i))
g("v_cmp_ne_u32 vcc, 0, v18")
g("s_cmp_gt_u32 %s, 0x40000" % sSPIN)
g("s_cbranch_scc1 L_upd_go")
g("s_cbranch_vccnz L_upd")
g("L_upd_go:")
g("v_mov_b32 v12, 0")
g("s_mov_b64 exec, 1")
g("buffer_store_dword v%d, v12, %s, 0 offen sc1" % (vTAG, WS))
g("s_mov_b64 exec, -1")
g("L_spare_done:")
nstamp[0] = 2
stamp_out(g)
g("L_end:")
g("s_endpgm")

k_ = 0
for o in m.ops:
    if "STAMPIDX" in o.text:
        o.text = o.text.replace("STAMPIDX", str(k_)); k_ += 1
assert k_ <= 40
if AT >= 0:
    keep = []
    for o in m.ops:
        mm = re.match(r"v_writelane_b32 v%d, s66, (\d+)$" % vSTA, o.text)
        if mm and int(mm.group(1)) != AT:
            keep.pop(); keep.pop(); continue
        keep.append(o)
    m.ops = keep
nts = [d for d in OPT.get("nt", "").split(",") if d]
for o in m.ops:
    if o.kind in VMEMK and o.tag and any(o.tag.startswith(d) for d in nts) and "global_" not in o.text:
        o.text = o.text.replace(" lds", " nt lds") if o.text.endswith(" lds") else o.text + " nt"
drops = [d for d in OPT.get("drop", "").split(",") if d]
if drops:
    keep = []; dropped = set()
    for o in m.ops:
        if o.kind in VMEMK and o.tag and any(re.fullmatch(d, o.tag) for d in drops):
            dropped.add(o.tag); continue
        if o.kind == "waitvm" and o.waitfor in dropped: continue
        keep.append(o)
    m.ops = keep
for t_ in OPT.get("nochk", "").split(","):
    m.ops = [o for o in m.ops if o.text != "s_cbranch_vccnz L_spin_%s" % t_ and o.text != "s_cbranch_scc1 L_spin_%s" % t_]
body = render(finalize(m)) + "\n" + render(insert_nops(spins.ops)) + "\n" + render(insert_nops(resolve_waits(g.ops)))
hdr = open("cdna_kernels/%s.s.ref" % NAME).read().split("; Override launch")[0]
out = hdr + "; @launch grid=(256,1,1) block=(256,1,1) lds=%d\n" % LDS_TOTAL
out += '.amdgcn_target "amdgcn-amd-amdhsa--gfx950"\n.text\n.globl %s_kernel\n.p2align 8\n.type %s_kernel,@function\n%s_kernel:\n' % (NAME, NAME, NAME)
out += body + "\nL_code_end:\n"
out = out.replace("CODE_BYTES", "L_code_end-%s_kernel-128" % NAME)
out += '.section .rodata,"a"\n.p2align 6\n.amdhsa_kernel %s_kernel\n' % NAME
out += "  .amdhsa_next_free_vgpr 512\n  .amdhsa_next_free_sgpr 102\n  .amdhsa_accum_offset 256\n  .amdhsa_group_segment_fixed_size 0\n"
out += "  .amdhsa_kernarg_size 120\n  .amdhsa_user_sgpr_count 2\n  .amdhsa_user_sgpr_kernarg_segment_ptr 1\n  .amdhsa_system_sgpr_workgroup_id_x 1\n.end_amdhsa_kernel\n"
open(sys.argv[1], "w").write(out)
```

```python
import sys, math, struct
sys.path.insert(0, "gen")
from asmlib import *

NAME = "gated_mix__ssm_conv_h3__dense_activation_gelu__prompt"
STAMP = int(sys.argv[2]) if len(sys.argv) > 2 else 0
DBG = STAMP >= 3
if DBG: STAMP -= 2
AT = -1
if STAMP == 3: STAMP = 2; DBG = False; AT = int(dict(a.split("=") for a in sys.argv[3:])["at"])
OPT = dict(a.split("=") for a in sys.argv[3:])
def opt(k, d): return type(d)(OPT.get(k, d))
f2u = lambda f: struct.unpack("<I", struct.pack("<f", f))[0]

FUS = opt("fus", 128); FHS = opt("fhs", 128)
WS_FU = 0x60000
WS_FH = 0x80000
WS_G  = 0x8000
WS_STAMP = 0x10000
WS_U  = 0x100000
WS_Z  = 0x300000
WS_P  = 0xE40000
CP = 4224
WS_H  = 0x500000
CBS = 128 * 896
WS_SIZE = 0x1000000
TAG_INC = 0x9E3779B9
SLOT = 32768
L_R = 114688; RSZ = 11280
R_UW = 4160; UP = 1280; R_CY = 9216
L_KS = 131072
L_VS = L_KS + 72 * 128
L_P0 = L_VS + 64 * 128
L_PB0 = 114688; PB_SZ = 8704
L_PB1 = 0
L_ZT = 149696
ZST = 65536
LDS_TOTAL = 163840
W2POS = [12, 13, 0, 1, 2, 3, 4, 5, 6, 7, 8, 9, 10, 11]

Q, K, V, SSM, W1, W2, OUT, WS = ["s[%d:%d]" % (b, b + 3) for b in range(8, 40, 4)]
WSP = "s[36:37]"
P_SHIFT, P_D, P_B1, P_B2, P_GATE = "s[46:47]", "s[50:51]", "s[56:57]", "s[60:61]", "s[62:63]"
sW, sX, sI, sA, sC, sRB128, sCB128, sRB64 = "s70", "s71", "s72", "s73", "s74", "s75", "s76", "s77"
sT0, sT1, sT2, sT3 = "s78", "s79", "s80", "s81"
sTAG = "s[82:83]"
sROT, sSPIN, sCH, sHB = "s84", "s85", "s86", "s87"
sXL, sWL, sW2L, sRW, sPO, sE2, sHSRC = "s88", "s89", "s3", "s4", "s5", "s6", "s7"
sC1 = "s[64:65]"
sST = "s[66:67]"
sFU, sFH, sPH = "s14", "s15", "s62"
sZB, sQ1, sZ8, sPS, sPR, sMSK = "s63", "s56", "s12", "s57", "s60", "s61"
sW0, sHP, sDP = "s13", "s0", "s83"
sP = sHB
tXO = ["s40", "s41", "s42", "s43", "s44", "s45", "s48"]
tWO = ["s49", "s52", "s53", "s54", "s55", "s58", "s59"]
tCB = ["s%d" % i for i in range(90, 97)]
sPOLL = 40

class VA:
    def __init__(self, lo, hi): self.n = lo; self.hi = hi
    def get(self, k=1, align=1):
        self.n = (self.n + align - 1) // align * align
        r = self.n; self.n += k
        assert self.n <= self.hi, "out of regs"
        return r
def vr(b, k=1): return "v%d" % b if k == 1 else "v[%d:%d]" % (b, b + k - 1)
def ar(b, k=1): return "a%d" % b if k == 1 else "a[%d:%d]" % (b, b + k - 1)

spins = Stream()
nstamp = [0]; g_stream = [None]
VB_HI = 236
va = VA(0, 64); vb = VA(128, VB_HI); vc = VA(VB_HI, 252)
vTID = va.get(); vLANE = va.get(); vTAG = va.get(); vSTA = va.get()
vT = [va.get() for _ in range(8)]
L = vLANE

def stamp(s, rt=False):
    if not STAMP: return
    i = nstamp[0]; nstamp[0] += 1
    s.begin()
    s("%s %s" % ("s_memrealtime" if (rt or STAMP == 2) else "s_memtime", sST))
    s("s_waitcnt lgkmcnt(0)")
    s("v_writelane_b32 v%d, s66, %s" % (vSTA, "STAMPIDX" if i < 40 and s is not g_stream[0] else str(i)))
    s.end()
def fstamp(s, lvl=2):
    if opt("fine", 0) == lvl: stamp(s)

def slin(s, dst, terms, const=0):
    tmp = sT3; first = True
    for reg, mult in terms:
        d = dst if first else tmp
        if mult == 1: src = reg
        else:
            if mult & (mult - 1) == 0: s("s_lshl_b32 %s, %s, %d" % (d, reg, mult.bit_length() - 1))
            else: s("s_mul_i32 %s, %s, %d" % (d, reg, mult))
            src = d
        if first:
            if src != dst: s("s_mov_b32 %s, %s" % (dst, src))
        else: s("s_add_u32 %s, %s, %s" % (dst, dst, src))
        first = False
    if const: s("s_add_u32 %s, %s, 0x%x" % (dst, dst, const))
def vlin(s, dst, terms, base=None):
    acc = None
    terms = sorted(terms, key=lambda t: t[1] & (t[1] - 1) == 0)
    for reg, mult in terms:
        p2 = mult & (mult - 1) == 0
        if acc is None:
            if p2 and isinstance(base, str):
                s("v_lshl_add_u32 v%d, v%d, %d, %s" % (dst, reg, mult.bit_length() - 1, base)); base = None
            elif p2: s("v_lshlrev_b32 v%d, %d, v%d" % (dst, mult.bit_length() - 1, reg))
            else: s("v_mul_u32_u24 v%d, %d, v%d" % (dst, mult, reg))
            acc = dst
        else:
            assert p2
            s("v_lshl_add_u32 v%d, v%d, %d, v%d" % (dst, reg, mult.bit_length() - 1, dst))
    if base is not None:
        s("v_add_u32 v%d, %s, v%d" % (dst, base if isinstance(base, str) else "0x%x" % base, dst))

def flag_store(s, sreg, tagwait):
    s.wait_vm(tagwait)
    s.begin()
    s("s_mov_b64 exec, 1")
    s("buffer_store_dword v%d, off, %s, %s sc1" % (vTAG, WS, sreg), tag="flag")
    s("s_mov_b64 exec, -1")
    s.end()

npoll = [0]
def spoll_issue(s, n, soff):
    s("s_load_dwordx%d s[%d:%d], %s, %s glc" % (n, sPOLL, sPOLL + n - 1, WSP, soff))
def spin_tail(t, tag):
    if STAMP: t("v_writelane_b32 v%d, %s, %d" % (vSTA, sSPIN, 48 + npoll[0]))
    npoll[0] += 1
    t("s_cmp_gt_u32 %s, 0x40000" % sSPIN)
    t("s_cbranch_scc1 L_ok_%s" % tag)
    t("s_cbranch_vccz L_ok_%s" % tag)
    t("s_sleep 1")
    t("s_branch L_spin2_%s" % tag)
def spoll_check(s, n, soff, tag):
    s.begin()
    s("s_waitcnt lgkmcnt(0)")
    for i in range(0, n, 2):
        if i + 1 < n: s("s_cmp_lg_u64 s[%d:%d], %s" % (sPOLL + i, sPOLL + i + 1, sTAG))
        else: s("s_cmp_lg_u32 s%d, s82" % (sPOLL + i))
        s("s_cbranch_scc1 L_spin_%s" % tag)
    s("L_ok_%s:" % tag)
    s.end()
    t = spins
    t("L_spin_%s:" % tag)
    t("s_mov_b32 %s, 0" % sSPIN)
    t("v_min_u32 v254, %d, v%d" % (n - 1, L))
    t("v_lshl_add_u32 v254, v254, 2, %s" % soff)
    t("L_spin2_%s:" % tag)
    t("buffer_load_dword v255, v254, %s, 0 offen sc1" % WS)
    t("s_add_u32 %s, %s, 1" % (sSPIN, sSPIN))
    t("s_waitcnt vmcnt(0)")
    t("v_cmp_ne_u32 vcc, v255, v%d" % vTAG)
    spin_tail(t, tag)
def gran_issue(s, vdst, vaddr, off, tag):
    s("buffer_load_dwordx2 %s, v%d, %s, 0 offen offset:%d sc1" % (vr(vdst, 2), vaddr, WS, off), tag=tag)
def gran_check(s, vdst, vaddr, off, tag):
    s.wait_vm(tag)
    s.begin()
    s("v_cmp_ne_u32 vcc, v%d, v%d" % (vdst + 1, vTAG))
    s("s_cbranch_vccnz L_spin_%s" % tag)
    s("L_ok_%s:" % tag)
    s.end()
    t = spins
    t("L_spin_%s:" % tag)
    t("s_mov_b32 %s, 0" % sSPIN)
    t("L_spin2_%s:" % tag)
    gran_issue(t, vdst, vaddr, off, tag)
    t("s_add_u32 %s, %s, 1" % (sSPIN, sSPIN))
    t("s_waitcnt vmcnt(0)")
    t("v_cmp_ne_u32 vcc, v%d, v%d" % (vdst + 1, vTAG))
    spin_tail(t, tag)

def tag_cmp(s, regs):
    for k, r in enumerate(regs): s("v_xor_b32 v%d, v%d, v%d" % (r, vTK[k % 4], r))
    s("v_or_b32 v254, v%d, v%d" % (regs[0], regs[1]))
    for k in range(2, len(regs), 2): s("v_or3_b32 v254, v254, v%d, v%d" % (regs[k], regs[k + 1]))
    s("v_and_b32 v254, %s, v254" % sMSK)
    s("v_cmp_ne_u32 vcc, 0, v254")
def tag_check(s, issue, regs, tag):
    s.wait_vm(tag)
    tag_cmp(s, regs)
    s.ops[-1].glue = False
    s.begin(); s._g -= 1
    s("s_cbranch_vccnz L_spin_%s" % tag)
    s("L_ok_%s:" % tag)
    s.end()
    t = spins
    t("L_spin_%s:" % tag)
    t("s_mov_b32 %s, 0" % sSPIN)
    t("L_spin2_%s:" % tag)
    issue(t)
    t("s_add_u32 %s, %s, 1" % (sSPIN, sSPIN))
    t("s_waitcnt vmcnt(0)")
    tag_cmp(t, regs)
    spin_tail(t, tag)
def tag_put(s, regs):
    for k, r in enumerate(regs): s("v_bfi_b32 v%d, %s, v%d, v%d" % (r, sMSK, vTK[k % 4], r))

def srd(s, name, lo, nbytes):
    b = int(name[2:].split(":")[0])
    s("s_mov_b64 s[%d:%d], s[%d:%d]" % (b, b + 1, lo, lo + 1))
    s("s_mov_b32 s%d, 0x%x" % (b + 2, nbytes)); s("s_mov_b32 s%d, 0x20000" % (b + 3))

m = Stream()
NB = 2048 * 448 * 2
NW = 448 * 1792 * 2
def srd23(s, nm, nb):
    b = int(nm[2:].split(":")[0])
    s("s_mov_b32 s%d, 0x%x" % (b + 2, nb)); s("s_mov_b32 s%d, 0x20000" % (b + 3))
if STAMP: m("s_memrealtime s[32:33]")
m("s_load_dwordx16 s[40:55], s[0:1], 0")
m("s_load_dwordx8 s[56:63], s[0:1], 64")
m("s_load_dwordx4 s[64:67], s[0:1], 96")
m("s_load_dwordx2 s[68:69], s[0:1], 112")
m("v_lshrrev_b32 v%d, 6, v0" % vT[2])
m("v_and_b32 v%d, 63, v0" % vLANE)
m("s_and_b32 %s, s2, 7" % sX)
m("v_readfirstlane_b32 %s, v%d" % (sW, vT[2]))
m("s_lshr_b32 %s, s2, 3" % sI)
m("s_cmp_lt_u32 s2, 224")
m("s_cbranch_scc1 L_main")
m("s_getpc_b64 s[4:5]")
m("v_lshlrev_b32 v%d, 7, v0" % vT[0])
m("v_min_u32 v%d, CODE_BYTES, v%d" % (vT[0], vT[0]))
m("global_load_dword v255, v%d, s[4:5]" % vT[0], tag="cpf")
m("s_branch L_spare")
m("L_main:")
if opt("cpf", 0):
    m("s_getpc_b64 s[4:5]")
    m("v_lshlrev_b32 v%d, 7, v0" % vT[0])
    m("v_min_u32 v%d, %d, v%d" % (vT[0], opt("cpf", 0), vT[0]))
    m("global_load_dword v255, v%d, s[4:5]" % vT[0], tag="cpf")
if STAMP: m("v_mov_b32 v%d, 0" % vSTA)
m("s_mul_i32 %s, %s, 37" % (sA, sI)); m("s_lshr_b32 %s, %s, 8" % (sA, sA))
m("s_mul_i32 %s, %s, 7" % (sC, sA)); m("s_sub_u32 %s, %s, %s" % (sC, sI, sC))
vL8 = va.get(); vLd8 = va.get(); vG4 = va.get()
vXV = [va.get() for _ in range(4)]
vWV = [va.get() for _ in range(4)]
vTK = vXV
vB1 = vb.get(4, 4); vTP = vb.get(2, 2)
vS32 = va.get(); vHH = va.get(); vL15 = va.get()
vKV = vb.get(); vKH = vb.get(); vB2 = vc.get(4, 4)
m("v_and_b32 v%d, 7, v%d" % (vL8, L)); m("v_lshrrev_b32 v%d, 3, v%d" % (vLd8, L)); m("v_and_b32 v%d, 15, v%d" % (vL15, L))
ka = Stream()
ka("s_lshr_b32 %s, %s, 1" % (sT0, sX)); slin(ka, sRB128, [(sT0, 4), (sA, 1)])
ka("s_and_b32 %s, %s, 1" % (sHB, sX))
slin(ka, sRB64, [(sRB128, 2), (sHB, 1)])
srd23(ka, K, NB); srd23(ka, V, NB)
ka("s_lshl_b32 %s, %s, 7" % (sT0, sC))
vlin(ka, vT[6], [(vL8, 16)], sT0)
ka("v_mul_u32_u24 v%d, 896, v%d" % (vT[5], vLd8))
slin(ka, sT0, [(sRB64, 64 * 896), (sW, 16 * 896)])
ka("v_add3_u32 v%d, v%d, v%d, %s" % (vKV, vT[5], vT[6], sT0))
ka("s_add_u32 %s, %s, %d" % (sT0, sT3, 8 * 896))
ka("v_subrev_u32 v%d, %s, v%d" % (vKH, sT0, vKV))
ka("s_mov_b32 %s, %d" % (sPO, 8 * 896 - 1024))
ka("s_lshl_b32 %s, %s, 11" % (sW2L, sW))
slin(ka, sT0, [(sC, 512), (sW, 128)])
vlin(ka, vT[2], [(vL15, 8)], sT0)
slin(ka, sT2, [(sC, 128), (sRB64, 4)])
ka("s_add_u32 %s, %s, %s" % (sCH, sT2, sW)); ka("s_lshr_b32 %s, %s, 1" % (sCH, sCH))
ka("s_lshl_b32 %s, %s, 12" % (sHSRC, sCH))
r2 = Stream()
r2("s_load_dword s82, s[68:69], 0")
r2("s_load_dword %s, s[48:49], %s offset:2044" % (sHP, sHSRC))
r2("s_load_dword %s, %s, %s" % (sDP, P_D, sT2))
r2("s_mov_b64 s[12:13], s[42:43]"); r2("s_mov_b64 s[16:17], s[44:45]")
for src, base in ((K, L_KS + 1024), (V, L_VS)):
    r2.begin(); r2("s_add_u32 m0, %s, %d" % (sW2L, base))
    if src == K: r2("global_load_dwordx2 %s, v%d, %s" % (vr(vTP, 2), vT[2], P_SHIFT), tag="kv")
    r2("buffer_load_dwordx4 v%d, %s, 0 offen lds" % (vKV, src), tag="kv"); r2.end()
    r2("buffer_load_dwordx4 v%d, %s, %s offen offset:1024 lds" % (vKV, src, sPO), tag="kv")
r2.begin()
r2("s_mov_b32 m0, %d" % L_KS)
r2("s_mov_b32 exec_lo, 0")
r2("buffer_load_dwordx4 v%d, %s, 0 offen lds" % (vKH, K), tag="kv")
r2("s_mov_b32 exec_lo, -1")
r2.end()
xa = Stream()
slin(xa, sROT, [(sA, 2), (sC, 1)])
xa("s_cmp_ge_u32 %s, 7" % sROT); xa("s_cselect_b32 %s, 7, 0" % sT0); xa("s_sub_u32 %s, %s, %s" % (sROT, sROT, sT0))
xa("v_lshrrev_b32 v%d, 4, v%d" % (vG4, L))
xa("s_xor_b32 %s, %s, %s" % (sT0, sW, sHB)); xa("s_andn2_b32 %s, 1, %s" % (sT0, sT0)); xa("s_lshr_b32 %s, %s, 1" % (sT1, sW))
slin(xa, sT1, [(sT1, 32 * 896), (sT0, 64 * 896), (sRB128, 128 * 896)])
xa("s_mov_b32 %s, %s" % (sT0, sT1))
xa("v_add_u32 v%d, %s, v%d" % (vT[0], sT0, vT[5]))
xa("v_xor_b32 v%d, v%d, v%d" % (vT[3], vL8, vG4))
xa("v_lshl_add_u32 v%d, v%d, 4, v%d" % (vXV[0], vT[3], vT[0]))
xa("v_xor_b32 v%d, 4, v%d" % (vT[3], vT[3]))
xa("v_lshl_add_u32 v%d, v%d, 4, v%d" % (vXV[1], vT[3], vT[0]))
xa("v_add_u32 v%d, %d, v%d" % (vXV[2], 2 * 6144, vXV[0]))
xa("v_add_u32 v%d, %d, v%d" % (vXV[3], 3 * 6144, vXV[1]))
xa("v_add_u32 v%d, %d, v%d" % (vXV[1], 6144, vXV[1]))
xa("s_lshl_b32 %s, %s, 12" % (sXL, sW))
xa("s_lshl_b32 %s, %s, 7" % (sT1, sROT))
srd23(xa, Q, NB)
wa = Stream()
vSWZ = vT[7]
slin(wa, sCB128, [(sP, 7), (sC, 1)])
wa("v_and_b32 v%d, 1, v%d" % (vT[3], vG4)); wa("v_lshlrev_b32 v%d, 2, v%d" % (vT[3], vT[3]))
wa("v_xor_b32 v%d, v%d, v%d" % (vSWZ, vL8, vT[3]))
slin(wa, sT0, [(sW, 16 * 3584), (sCB128, 256)])
vlin(wa, vWV[0], [(vLd8, 3584), (vSWZ, 16)], sT0)
wa("v_add_u32 v%d, %d, v%d" % (vWV[1], 8 * 3584 - 1024, vWV[0]))
wa("v_add_u32 v%d, 128, v%d" % (vWV[2], vWV[0]))
wa("v_add_u32 v%d, 128, v%d" % (vWV[3], vWV[1]))
wa("s_add_u32 %s, %s, 16384" % (sWL, sXL))
wa("s_mul_i32 %s, %s, %d" % (sW0, sROT, 64 * 3584))
srd23(wa, W1, NW)
wa("s_mov_b64 s[24:25], s[54:55]")
r3 = Stream()
r3("s_and_b32 %s, %s, 1" % (sE2, sW))
r3("v_and_b32 v%d, 31, v%d" % (vS32, L))
slin(r3, sT0, [(sCB128, 256), (sE2, 128)])
vlin(r3, vT[1], [(vS32, 2)], sT0)
r3("global_load_ushort v%d, v%d, %s" % (vB1, vT[1], P_B1), tag="sm")
r3("global_load_ushort v%d, v%d, %s offset:64" % (vB1 + 2, vT[1], P_B1), tag="sm")
r3("global_load_dwordx4 %s, v%d, %s" % (vr(vB2, 4), vT[6], P_B2), tag="sm")

def st_groups(t, xo=None, wo=None):
    gs = []
    slot = (t % 4) * SLOT
    for q in range(4):
        s = Stream(); s.begin()
        if q == 0: s("s_add_u32 m0, %s, %d" % (sXL, slot))
        s("buffer_load_dwordx4 v%d, %s, %s offen offset:%d lds" % (vXV[q], Q, xo or tXO[t], 1024 * q), tag="st%d" % t)
        s.end(); gs.append(s)
    for q in range(4):
        s = Stream(); s.begin()
        if q in (0, 2): s("s_add_u32 m0, %s, %d" % (sWL, slot + (2048 if q == 2 else 0)))
        s("buffer_load_dwordx4 v%d, %s, %s offen offset:%d lds" % (vWV[q], W1, wo or tWO[t], 1024 * (q & 1)), tag="st%d" % t)
        s.end(); gs.append(s)
    return gs
def st_issue(s, t, part="xw", **kw):
    gs = st_groups(t, **kw)
    for p_ in part:
        for g_ in (gs[:4] if p_ == "x" else gs[4:]): s.extend(g_)
PROBE = ""
m.extend(ka)
m.extend(xa)
m("s_waitcnt lgkmcnt(0)")
if DBG: m("v_mov_b32 v62, s66"); m("v_mov_b32 v63, s67")
stamp(m, rt=True)
stamp(m)
if STAMP: m("v_writelane_b32 v%d, s32, 41" % vSTA)
m.extend(r2)
m("s_mov_b64 s[8:9], s[40:41]")
X0P = opt("x0p", 200)
if X0P < 0: st_issue(m, 0, "x", xo=sT1)
else: m("s_mov_b32 s17, %s" % sT1)
m.extend(wa)
m.extend(r3)

su = Stream()
su("s_mov_b64 s[36:37], s[68:69]"); srd23(su, WS, WS_SIZE)
su("s_mov_b64 s[28:29], s[58:59]"); srd23(su, W2, NW)
srd(su, SSM, 48, NB); srd(su, OUT, 64, NB)
tch = Stream()
if opt("tw2", 0):
    vTW = vb.get()
    slin(su, sT0, [("s2", 56 * 128), (sW, 14 * 128)])
    su("v_min_u32 v%d, 13, v%d" % (vTW, L)); vlin(su, vTW, [(vTW, 128)], sT0)
    tch("buffer_load_dword v252, v%d, %s, 0 offen" % (vTW, W2), tag="tw2")
if opt("tpos", 0) == 0: su.extend(tch)
su("v_lshrrev_b32 v%d, 5, v%d" % (vHH, L))
vC4 = vT[4]; vR4 = vT[5]; vMH = vT[3]
su("v_and_b32 v%d, 3, v%d" % (vC4, L)); su("v_bfe_u32 v%d, v%d, 2, 2" % (vR4, L)); su("v_bfe_u32 v%d, v%d, 4, 1" % (vMH, L))
vP0R = vb.get(); vP0W = vb.get(); vP0B = vb.get(); vP0S = vb.get()
slin(su, sT0, [(sW, 32)], L_KS + 512)
vlin(su, vP0R, [(vG4, 2048), (vR4, 128), (vC4, 8)], sT0)
slin(su, sT0, [(sW, 2304)], L_P0)
vlin(su, vP0W, [(vL15, 144), (vG4, 32)], sT0)
vlin(su, vP0B, [(vLd8, 144), (vL8, 16)], sT0)
slin(su, sT0, [(sC, 64 * CP), (sW, 16 * CP), (sRB64, 128)], WS_U)
vlin(su, vP0S, [(vLd8, CP), (vL8, 16)], sT0)
su("s_mov_b32 %s, %d" % (sZ8, 8 * CP))
su("v_mov_b32 v%d, 0" % (vB1 + 1)); su("v_mov_b32 v%d, 0" % (vB1 + 3))
vXA = [va.get() for _ in range(4)]
vWA = [va.get() for _ in range(2)]
vW2R = [va.get() for _ in range(4)]
su("v_bfe_u32 v%d, v%d, 1, 3" % (vT[0], L))
su("v_xor_b32 v%d, v%d, v%d" % (vT[0], vT[0], vHH))
su("s_lshr_b32 %s, %s, 1" % (sT1, sW)); su("s_lshl_b32 %s, %s, 13" % (sT1, sT1))
vlin(su, vXA[0], [(vT[0], 16), (vS32, 128)], sT1)
for ks in range(1, 4): su("v_xor_b32 v%d, %d, v%d" % (vXA[ks], 32 * ks, vXA[0]))
su("v_bfe_u32 v%d, v%d, 3, 1" % (vT[1], L))
vlin(su, vT[0], [(vMH, 32), (vC4, 8), (vR4, 128), (vT[1], 64)])
slin(su, sT1, [(sE2, 2048)], 16384)
vlin(su, vWA[0], [(vHH, 1024), (vT[0], 1)], sT1)
su("v_xor_b32 v%d, 64, v%d" % (vWA[1], vWA[0]))
su("s_lshl_b32 %s, %s, 13" % (sT1, sE2))
vlin(su, vW2R[0], [(vHH, 512), (vT[0], 1)], sT1)
vACC = [64 + 16 * i for i in range(4)]
vONE = vb.get(8, 4)
for i in range(1, 8): su("v_mov_b32 v%d, 0" % (vONE + i))
su("v_sub_u32 v%d, 1, v%d" % (vONE, vHH))
su("v_mul_u32_u24 v%d, 0x3f80, v%d" % (vONE, vONE))
su("v_mov_b32 v%d, v%d" % (vONE + 6, vONE))
vL16 = va.get()
DUMMY_DS[0] = "ds_read_b32 v253, v%d" % vL16
su("v_lshlrev_b32 v%d, 4, v%d" % (vL16, L))
for t in range(1, 7):
    if t < 4:
        su("s_add_u32 %s, %s, %d" % (sT0, sA, t)); su("s_and_b32 %s, %s, 3" % (sT0, sT0))
        su("s_lshl_b32 %s, %s, 1" % (sT0, sT0)); su("s_add_u32 %s, %s, %s" % (sT0, sT0, sC))
    else:
        su("s_add_u32 %s, %s, %d" % (sT0, sC, 2 * (t - 4) + 1))
    su("s_cmp_ge_u32 %s, 7" % sT0); su("s_cselect_b32 %s, 7, 0" % sT1); su("s_sub_u32 %s, %s, %s" % (sT0, sT0, sT1))
    su("s_lshl_b32 %s, %s, 7" % (tXO[t], sT0)); su("s_mul_i32 %s, %s, %d" % (tWO[t], sT0, 64 * 3584))
su1 = su
su = Stream()
slin(su, sFU, [(sC, 128 * FUS), (sW, 32 * FUS), (sRB64, FUS)], WS_FU)
su("v_xor_b32 v%d, 64, v%d" % (vW2R[1], vW2R[0]))
su("v_add_u32 v%d, 0x10000, v%d" % (vW2R[2], vW2R[0])); su("v_add_u32 v%d, 0x10000, v%d" % (vW2R[3], vW2R[1]))
vZ4 = va.get(4, 4)
for i in range(4): su("v_mov_b32 v%d, 0" % (vZ4 + i))
slin(su, sRW, [(sW, RSZ)], L_R)
su("s_lshl_b32 %s, %s, 11" % (sT1, sE2)); su("s_add_u32 %s, %s, %s" % (sHSRC, sHSRC, sT1))
su("s_mul_i32 %s, %s, %d" % (tCB[0], sC, CBS))
ROTX = opt("rotx", 1)
if ROTX:
    su("s_lshr_b32 %s, %s, 1" % (sT0, sX)); su("s_mul_i32 %s, %s, 3" % (sT0, sT0)); su("s_add_u32 %s, %s, 1" % (sT0, sT0)); su("s_lshr_b32 %s, %s, 1" % (sT0, sT0))
    su("s_add_u32 %s, %s, %s" % (sT0, sT0, sC)); su("s_mul_i32 %s, %s, %d" % (sT0, sT0, CBS))
    su("s_cmp_ge_u32 %s, %d" % (sT0, 7 * CBS)); su("s_cselect_b32 %s, %d, 0" % (sT1, 7 * CBS)); su("s_sub_u32 %s, %s, %s" % (sT0, sT0, sT1))
    su("s_add_u32 %s, %s, %d" % (sT2, tCB[0], CBS)); su("s_cmp_ge_u32 %s, %d" % (sT2, 7 * CBS)); su("s_cselect_b32 %s, 0, %s" % (sT2, sT2))
for j in range(1, 7):
    su("s_add_u32 %s, %s, %d" % (tCB[j], sT0 if (j == 1 and ROTX) else tCB[j - 1], CBS)); su("s_cmp_ge_u32 %s, %d" % (tCB[j], 7 * CBS)); su("s_cselect_b32 %s, 0, %s" % (tCB[j], tCB[j]))
    if ROTX and j > 1: su("s_cmp_eq_u32 %s, %s" % (tCB[j], tCB[0])); su("s_cselect_b32 %s, %s, %s" % (tCB[j], sT2, tCB[j]))
vW2V = [va.get() for _ in range(4)]
slin(su, sT1, [(sC, 128), (sW, 16 * 896), (sP, 7 * CBS)])
vlin(su, vW2V[0], [(vLd8, 896), (vSWZ, 16)], sT1)
su("v_add_u32 v%d, %d, v%d" % (vW2V[1], 8 * 896 - 1024, vW2V[0]))
su("v_add_u32 v%d, %d, v%d" % (vW2V[2], 64 * 896, vW2V[0]))
su("v_add_u32 v%d, %d, v%d" % (vW2V[3], 64 * 896, vW2V[1]))
c_ = math.sqrt(2.0 / math.pi) * 2.0 * math.log2(math.e)
su("s_mov_b32 s64, 0x%x" % f2u(-c_ * 0.044715)); su("s_mov_b32 s65, 0x%x" % f2u(-c_ * 0.044715))
vC0 = va.get(2, 2)
su("v_mov_b32 v%d, 0x%x" % (vC0, f2u(-c_))); su("v_mov_b32 v%d, 0x%x" % (vC0 + 1, f2u(-c_)))
vCA = va.get(); vCB = va.get(); vUA = va.get(); vUWA = va.get(); vPADA = va.get()
su("v_and_b32 v%d, 1, v%d" % (vT[0], L)); su("v_bfe_u32 v%d, v%d, 1, 1" % (vT[1], L))
su("s_add_u32 %s, %s, %d" % (sT0, sRW, 64 + 64 - 32))
vlin(su, vCA, [(vT[0], 32), (vMH, 16), (vT[1], 8)], sT0)
vlin(su, vT[0], [(vHH, 64), (vR4, 8)])
su("v_sub_u32 v%d, v%d, v%d" % (vCA, vCA, vT[0]))
su("s_add_u32 %s, %s, %d" % (sT0, sRW, R_UW + 16))
vlin(su, vCB, [(vMH, UP), (vL15, 16), (vHH, 16)], sT0)
slin(su, sT0, [(sCH, CP), (sE2, 16)], WS_U)
vlin(su, vUA, [(L, 32)], sT0)
su("s_add_u32 %s, %s, %d" % (sT0, sRW, R_UW + 256))
vlin(su, vUWA, [(L, 8)], sT0)
su("s_add_u32 %s, %s, %d" % (sT0, sRW, R_UW))
vlin(su, vPADA, [(vMH, UP), (vL15, 16)], sT0)
vlin(su, vT[0], [(vS32, 16)], sRW)
su("v_cmp_gt_u32 vcc, 32, v%d" % L)
su("v_cndmask_b32 v%d, v%d, v%d, vcc" % (vPADA, vT[0], vPADA))
vYM = va.get(); vYC = va.get(); vYR = va.get(); vYRC = va.get()
vlin(su, vYM, [(vL15, 144), (vHH, 64), (vMH, 32)], sRW)
su("s_add_u32 %s, %s, %d" % (sT0, sRW, R_CY + 8))
vlin(su, vYC, [(vL15, 32), (vHH, 16), (vMH, 8)], sT0)
su("s_lshr_b32 %s, %s, 1" % (sT1, sW)); slin(su, sT2, [(sT1, 2 * RSZ)], L_R)
slin(su, sT0, [(sE2, 2 * 2304), (sT2, 1)])
su("v_lshrrev_b32 v%d, 2, v%d" % (vT[0], L))
vlin(su, vYR, [(L, 32), (vT[0], 16)], sT0)
slin(su, sT0, [(sE2, 1024), (sT2, 1)], R_CY)
vlin(su, vYRC, [(L, 8)], sT0)
vHW = va.get(); vUP = va.get()
slin(su, sT0, [(sE2, 2048), (sT2, 1)], 64)
su("v_add_u32 v%d, %s, v%d" % (vHW, sT0, vL16))
su("s_lshr_b32 %s, %s, 3" % (sT0, sRB64)); slin(su, sT1, [(sC, 128 * FUS), (sT0, 32 * FUS), (sW, 8 * FUS)], WS_FU)
vlin(su, vUP, [(vL8, FUS)], sT1)
vHV = [vc.get(), vc.get()]; vQO = vc.get(); vGA = vc.get(); vPW = vc.get(); vPRD = vc.get(); vZR = vc.get(); vZW = vc.get(); vZT = vc.get(); vZTW = vc.get(); vZA = vc.get()
su("s_mul_i32 %s, %s, 43" % (sT1, sRB128)); su("s_lshr_b32 %s, %s, 7" % (sT1, sT1))
slin(su, sT2, [(sT1, 14 * CBS - 3 * 32768), (sRB128, 32768), (sP, 7 * CBS), (sW, 8192)], WS_H)
su("v_add_u32 v%d, %s, v%d" % (vHV[0], sT2, vL16))
su("v_add_u32 v%d, 4096, v%d" % (vHV[1], vHV[0]))
vHT = va.get()
vlin(su, vHT, [(L, 128)], sT2)
su("v_add_u32 v%d, 0x%x, v%d" % (vZA, WS_Z - WS_U, vP0S))
slin(su, sT0, [(sRB64, 64 * 8), (sW, 64)], WS_G)
vlin(su, vGA, [(vLd8, 8)], sT0)
slin(su, sT0, [(sRB64, 64 * 896), (sW, 8 * 896)])
vlin(su, vQO, [(vLd8, 896), (vT[6], 1)], sT0)
su("s_mul_i32 %s, %s, %d" % (sT0, sW, PB_SZ))
vlin(su, vPW, [(vS32, 272), (vHH, 16)], sT0)
su("s_mul_i32 %s, %s, %d" % (sT0, sW, 8 * 272))
vlin(su, vPRD, [(vLd8, 272), (vL8, 32)], sT0)
slin(su, sT0, [(sW, 8 * 144)], L_ZT)
vlin(su, vZR, [(vLd8, 144), (vL8, 16)], sT0)
su("s_add_u32 %s, %s, %d" % (sT0, sW2L, ZST))
su("v_add_u32 v%d, %s, v%d" % (vZW, sT0, vL16))
vlin(su, vZT, [(vR4, 128), (vG4, 32), (vC4, 8)], sT0)
slin(su, sT0, [(sW, 32)], L_ZT)
vlin(su, vZTW, [(L, 144)], sT0)
slin(su, sPH, [(sRB64, 8 * FHS), (sW, 2 * FHS)], WS_FH)
slin(su, sFH, [(sC, 4), (sPH, 1)])
slin(su, sZB, [(sCH, CP), (sE2, 2048)], WS_Z)
su("s_mov_b32 %s, %d" % (sQ1, 32 * 896))
su("s_mov_b32 %s, 0x10001" % sMSK)
slin(su, sPR, [(sRB64, 7 * 8192), (sC, 8192), (sW, 2048)], WS_P)
su("s_xor_b32 %s, %s, 1" % (sT0, sRB64))
slin(su, sPS, [(sT0, 7 * 8192), (sC, 8192), (sW, 2048)], WS_P)
su2 = su
for o in su1.ops + su2.ops:
    if o.text.startswith(("s_cselect", "v_cndmask")): o.glue = True
print("su1", len(su1.ops), "su2", len(su2.ops), file=sys.stderr)
g2_ = groups(su2.ops)
nA, nB = opt("sa", 300), opt("sb", 60)
def take(n):
    s_ = Stream()
    while g2_ and len(s_.ops) < n: s_.ops.extend(g2_.pop(0))
    return s_
W0P = opt("w0p", 1000)
pre = Stream(); pre.extend(su1); pre.extend(take(nA))
gp = groups(pre.ops); cnt = 0; done = False
for g_ in gp:
    if X0P >= 0 and cnt >= X0P: st_issue(m, 0, "x", xo="s17"); X0P = -1
    if cnt >= W0P and not done: st_issue(m, 0, "w", wo=sW0); done = True
    m.ops.extend(g_); cnt += len(g_)
fstamp(m, 3)
if not done: st_issue(m, 0, "w", wo=sW0)
stamp(m)

vKD = vb.get(10, 2); vVD = vb.get(8, 2); vKO = vb.get(10, 2)
vKS = vb.get(16, 4); vVF = vb.get(16, 4); vTR = vb.get(2, 2); vUO = vb.get(8, 4)
p0r = Stream()
for i in range(5): p0r("ds_read_b64_tr_b16 %s, v%d offset:%d" % (vr(vKD + 2 * i, 2), vP0R, 512 * i), tag="p0r")
for i in range(4): p0r("ds_read_b64_tr_b16 %s, v%d offset:%d" % (vr(vVD + 2 * i, 2), vP0R, L_VS - L_KS - 512 + 512 * i), tag="p0v")
p0 = Stream()
p0.wait_lgkm("p0r")
for j in range(9): p0("v_alignbit_b32 v%d, v%d, v%d, 16" % (vKO + j, vKD + j + 1, vKD + j))
for s_ in range(16):
    hi = (vKD + (s_ + 3) // 2) if s_ % 2 else (vKO + (s_ + 2) // 2)
    p0("v_dot2_f32_bf16 v%d, v%d, v%d, 0" % (vKS + s_, hi, vTR))
p0.wait_lgkm("p0v")
for s_ in range(16):
    lo = (vKD + (s_ + 1) // 2) if s_ % 2 else (vKO + s_ // 2)
    p0("v_dot2_f32_bf16 v%d, v%d, v%d, v%d" % (vKS + s_, lo, vTR + 1, vKS + s_))
    j = s_ // 2
    p0("v_lshlrev_b32 v%d, 16, v%d" % (vVF + 2 * j, vVD + j) if s_ % 2 == 0 else "v_and_b32 v%d, 0xffff0000, v%d" % (vVF + 2 * j + 1, vVD + j))
for j in range(8): p0("v_pk_mul_f32 %s, %s, %s" % (vr(vKS + 2 * j, 2), vr(vKS + 2 * j, 2), vr(vVF + 2 * j, 2)))
for k_, p_ in enumerate((0, 2, 1, 3)):
    for hf in range(2): p0("v_cvt_pk_bf16_f32 v%d, v%d, v%d" % (vUO + 2 * k_ + hf, vKS + p_ + 8 * hf, vKS + p_ + 8 * hf + 4))
p0b = Stream()
p0b("ds_write_b128 v%d, %s" % (vP0W, vr(vUO, 4)), tag="p0w")
p0b("ds_write_b128 v%d, %s offset:16" % (vP0W, vr(vUO + 4, 4)), tag="p0w")
p0b("ds_read_b128 %s, v%d" % (vr(vKS, 4), vP0B), tag="p0b")
p0b("ds_read_b128 %s, v%d offset:1152" % (vr(vKS + 4, 4), vP0B), tag="p0b")
p0c = Stream()
p0c.wait_lgkm("p0b")
p0c("buffer_store_dwordx4 %s, v%d, %s, 0 offen sc1" % (vr(vKS, 4), vP0S, WS), tag="ust")
p0c("buffer_store_dwordx4 %s, v%d, %s, %s offen sc1" % (vr(vKS + 4, 4), vP0S, WS, sZ8), tag="ust")

aF = 0
def g1_reads(kap):
    t, ks = kap // 4, kap % 4
    slot = (t % 4) * SLOT
    b = aF + 16 * (kap % 2)
    so = slot - (65536 if slot >= 65536 else 0)
    gs = [Stream(), Stream(), Stream()]
    for ft in range(2):
        g_ = gs[2 * ft]
        g_("ds_read_b64_tr_b16 %s, v%d offset:%d" % (ar(b + 8 + 4 * ft, 2), vWA[ft], so + ks * 4096), tag="f%d_%d" % (kap, ft))
        g_("ds_read_b64_tr_b16 %s, v%d offset:%d" % (ar(b + 8 + 4 * ft + 2, 2), vWA[ft], so + ks * 4096 + 512), tag="f%d_%d" % (kap, ft))
        gs[1]("ds_read_b128 %s, v%d offset:%d" % (ar(b + 4 * ft, 4), vXA[ks], so + 4096 * ft), tag="f%d_0" % kap)
    return gs
def g1_mf(s, kap, i, ft):
    b = aF + 16 * (kap % 2)
    c = vr(vACC[2 * i + ft], 16)
    s("v_mfma_f32_32x32x16_bf16 %s, %s, %s, %s" % (vr(vACC[2 * i + ft], 16), ar(b + 8 + 4 * ft, 4), ar(b + 4 * i, 4), c))
def g1_kstep(s, kap, pre=None):
    rd = g1_reads(kap + 1) if kap + 1 < 28 else [Stream(), Stream(), Stream()]
    if pre is not None: s.wait_lgkm("f%d_1" % kap)
    else: s.wait_lgkm("f%d_0" % kap)
    g1_mf(s, kap, 0, 0)
    if pre is not None: s.extend(pre)
    s.extend(rd[0])
    g1_mf(s, kap, 1, 0)
    s.extend(rd[1])
    s.wait_lgkm("f%d_1" % kap)
    g1_mf(s, kap, 0, 1)
    s.extend(rd[2])
    g1_mf(s, kap, 1, 1)
    if kap % 8 == 6 and kap < 24:
        delta = 65536 if kap in (6, 22) else -65536
        for r in vXA + vWA: s("v_add_u32 v%d, 0x%x, v%d" % (r, delta & 0xffffffff, r))

def w2_issue(s, k):
    j, kh = k // 2, k % 2
    for q in range(2):
        s.begin()
        if q == 0: s("s_add_u32 m0, %s, %d" % (sW2L, 8192 * W2POS[k]))
        s("buffer_load_dwordx4 v%d, %s, %s offen offset:%d lds" % (vW2V[2 * kh + q], W2, tCB[j], 1024 * q), tag="w2_%d" % k)
        s.end()
def aW2(n): return (8 * n + 64) % 224
def w2_reads(s, n):
    j, ks = n // 4, n % 4
    off = 8192 * W2POS[2 * j] + 2048 * ks; hi = off >= 65536; off -= 65536 * hi
    for t in range(2):
        b = aW2(n) + 4 * t
        s("ds_read_b64_tr_b16 %s, v%d offset:%d" % (ar(b, 2), vW2R[2 * hi + t], off), tag="w2r%d" % n)
        s("ds_read_b64_tr_b16 %s, v%d offset:%d" % (ar(b + 2, 2), vW2R[2 * hi + t], off + 1024), tag="w2r%d" % n)

vG1 = vACC
vCC = [128 + 16 * i for i in range(4)]
vEPB = 192
vGT = vEPB; vUL = vEPB + 16; vUF = vEPB + 24
vQ = [224, 228]; vG = [232, 234]
vHL = 224 if opt("hct", 6) == 0 else 128; vHS = 136; vHX = 144
hc = Stream()
for q in range(2):
    hc("buffer_load_dwordx4 %s, v%d, %s, %s offen offset:%d" % (vr(vHL + 4 * q, 4), vL16, SSM, sHSRC, 1024 * q), tag="hc")
sDP = "s16"
hz = Stream()
hz.begin(); hz("s_mov_b32 exec_hi, 15"); hz("ds_write_b128 v%d, %s" % (vPADA, vr(vZ4, 4)), tag="z0"); hz("s_mov_b32 exec_hi, -1"); hz.end()
hz("s_lshl_b32 %s, %s, 3" % (sT0, sW)); hz("s_and_b32 %s, %s, 16" % (sT0, sT0)); hz("s_lshr_b32 %s, %s, %s" % (sDP, sDP, sT0)); hz("s_lshl_b32 %s, %s, 16" % (sDP, sDP))
hz.begin(); hz("s_cmp_eq_u32 %s, 0" % sE2); hz("s_cselect_b32 %s, %s, 0" % (sDP, sDP)); hz("s_cselect_b32 %s, 0, %s" % (sHP, sHP)); hz.end()
hz("v_mov_b32 v%d, %s" % (vHX, sHP))
hp = Stream()
hp.wait_vm("hc")
hp("v_lshlrev_b32 v%d, 16, v%d" % (vT[0], vHL)); hp("v_and_b32 v%d, 0xffff0000, v%d" % (vT[1], vHL))
hp("v_add_f32 v%d, %s, v%d" % (vT[0], sDP, vT[0]))
hp("v_readlane_b32 %s, v%d, 63" % (sT0, vHL + 3))
hp.begin(); hp("s_mov_b64 exec, 1"); hp("v_cvt_pk_bf16_f32 v%d, v%d, v%d" % (vHL, vT[0], vT[1])); hp("s_mov_b64 exec, -1"); hp.end()
hp("v_mov_b32 v%d, %s" % (vHX + 1, sT0))
for q in range(2):
    hp("v_mov_b32_dpp v%d, v%d wave_shr:1 row_mask:0xf bank_mask:0xf" % (vHX + q, vHL + 4 * q + 3))
for q in range(2):
    hp("ds_write_b128 v%d, %s offset:%d" % (vHW, vr(vHL + 4 * q, 4), 1024 * q), tag="hw"); hp.ops[-1].cost = 6
    for j in range(4):
        hp("v_alignbit_b32 v%d, v%d, v%d, 16" % (vHS + 4 * q + j, vHL + 4 * q + j, vHL + 4 * q + j - 1 if j else vHX + q))
for q in range(2):
    hp("ds_write_b128 v%d, %s offset:%d" % (vHW, vr(vHS + 4 * q, 4), RSZ + 1024 * q), tag="hw"); hp.ops[-1].cost = 10
def up_issue(s): s("buffer_load_dword v%d, v%d, %s, 0 offen sc1" % (vUF, vUP, WS), tag="pu")
uc = Stream()
uc.wait_vm("pu")
uc.begin()
uc("v_cmp_ne_u32 vcc, v%d, v%d" % (vUF, vTAG))
uc("s_cbranch_vccnz L_spin_pu")
uc("L_ok_pu:")
uc.end()
spins("L_spin_pu:"); spins("s_mov_b32 %s, 0" % sSPIN); spins("L_spin2_pu:")
up_issue(spins)
spins("s_add_u32 %s, %s, 1" % (sSPIN, sSPIN)); spins("s_waitcnt vmcnt(0)"); spins("v_cmp_ne_u32 vcc, v%d, v%d" % (vUF, vTAG))
spin_tail(spins, "pu")
ul = Stream()
for q in range(2):
    ul("buffer_load_dwordx4 %s, v%d, %s, 0 offen offset:%d sc1" % (vr(vUL + 4 * q, 4), vUA, WS, 2048 * q), tag="ul")

TP = opt("tpos", 0)
TL = []
def place(pos, st, step=2.0):
    for g_ in groups(st.ops):
        TL.append((int(pos), g_))
        if any(o.kind in VMEMK for o in g_): pos += step
    return pos
def place_spread(p0_, p1_, st):
    gs = groups(st.ops); tot = float(sum(gcost(g_) for g_ in gs)); acc = 0
    for g_ in gs:
        TL.append((int(p0_ + (p1_ - p0_) * acc / tot), g_)); acc += gcost(g_)
FUP = opt("fup", 0); GAP = opt("gap", 0); E6 = opt("e6", 6)
f = Stream(); flag_store(f, sFU, "ust"); place(FUP, f)
pos = 1
for t in range(2, 7):
    if t >= 4: pos = max(pos, 16 * (t - 3) - 3)
    f = Stream()
    if t == opt("hct", 6): f.extend(hc); HCP = pos + 4
    st_issue(f, t)
    for g_ in groups(f.ops):
        if FUP + 16 <= pos < FUP + 16 + GAP: pos = FUP + 16 + GAP
        TL.append((int(pos), g_)); pos += 2
    assert pos < 16 * t - 4
if opt("hct", 6) == 7: pos = place(pos, hc); HCP = pos
if opt("hct", 6) == 0: HCP = 0
f = Stream(); up_issue(f); place(opt("upp", 58), f)
UCB = opt("ucb", 6)
ULP = 16 * UCB - 3
for k in range(E6 + 1):
    if ULP and (pos >= ULP or k == E6): pos = place(max(pos, ULP), ul); ULP = 0
    if k == E6: break
    pos = max(pos, [64, 80, 80, 96, 96][k // 2] - 3)
    f = Stream(); w2_issue(f, k); pos = place(pos, f)
print("G1 vmem end pos", pos, "hc", HCP, file=sys.stderr)
f = Stream()
f("v_lshlrev_b32 v%d, 3, v%d" % (vTK[3], L))
f("v_bfe_u32 v%d, v%d, v%d, 8" % (vTK[3], vTAG, vTK[3]))
f("v_lshl_or_b32 v%d, v%d, 15, v%d" % (vTK[3], vTK[3], vTK[3]))
f("v_and_b32 v%d, %s, v%d" % (vTK[0], sMSK, vTK[3]))
for k in range(1, 4):
    f("v_lshrrev_b32 v%d, %d, v%d" % (vTK[k], 2 * k, vTK[3])); f("v_and_b32 v%d, %s, v%d" % (vTK[k], sMSK, vTK[k]))
place_spread(100, 110, f)
HPG = opt("hpg", 2)
if HPG == 0:
    place_spread(64, 76, hz); place_spread(max(HCP + 8, 84), 107, hp)
elif HPG == 2:
    f = Stream(); f.ops = [o for o in hz.ops[3:] + hp.ops if o.kind != "ds"]; place_spread(max(HCP + 8, 84), 107, f)
    hz.ops = hz.ops[:3]; hp.ops = [o for o in hp.ops if o.kind == "ds"]
p0pre = Stream()
p0pre("s_waitcnt lgkmcnt(0)")
p0pre("s_add_u32 s82, s82, 0x%x" % TAG_INC); p0pre("s_mov_b32 s16, s83"); p0pre("s_mov_b32 s83, s82"); p0pre("v_mov_b32 v%d, s82" % vTAG)
if opt("hct", 6) == 0: p0pre.extend(hc)
WARM = opt("warm", 0)
def warm(s):
    s.begin(); s("s_mov_b64 exec, 0"); s("s_branch L_stub0"); s("L_back:"); s("s_mov_b64 exec, -1"); s.end()
if WARM == 1: warm(p0pre)
fstamp(p0pre, 3)
p0pre.wait_vm("kv")
fstamp(p0pre, 3)
p0pre("s_barrier")
stamp(p0pre)
bm = Stream()
for i in range(2):
    for ft in range(2):
        bm("v_mfma_f32_32x32x16_bf16 %s, %s, %s, 0" % (vr(vACC[2 * i + ft], 16), vr(vB1, 4), vr(vONE + 4 * ft, 4)))
p0pre.extend(p0r)
p0pre("v_alignbit_b32 v%d, v%d, v%d, 16" % (vTR, vTP, vTP))
p0pre("v_alignbit_b32 v%d, v%d, v%d, 16" % (vTR + 1, vTP + 1, vTP + 1))
S1P = opt("s1p", 0)
if S1P:
    f = Stream(); st_issue(f, 1)
    p0x = Stream(); p0x.extend(p0); p0x.extend(p0b)
    p0pre.extend(spread(p0x, f, opt("s1lo", 0.0), 1.0, unit="any")); p0pre.extend(p0c)
else:
    p0pre.extend(p0); p0pre.extend(p0b); p0pre.extend(p0c)
if TP == 1: p0pre.extend(tch)
stamp(p0pre)
p0pre.extend(take(nB))
if WARM == 2: warm(p0pre)
p0pre.wait_vm("sm")
p0pre.extend(bm)
if not S1P: st_issue(p0pre, 1)
stamp(p0pre)
m.extend(p0pre)
rest = take(10000)
if rest.ops: place_spread(0, 60, rest)
def bar(t):
    b_ = Stream()
    fstamp(b_, 1)
    if t < 7: b_.wait_vm("st%d" % t)
    elif HPG == 0: b_.wait_lgkm("hw")
    if t == UCB: b_.extend(uc)
    fstamp(b_, 1)
    b_("s_barrier")
    fstamp(b_, 1)
    return b_
m.extend(bar(0))
fstamp(m, 3)
for g_ in g1_reads(0): m.extend(g_)
s = Stream()
for kap in range(28):
    g1_kstep(s, kap, bar((kap + 1) // 4) if kap % 4 == 3 else None)
    if kap == 10: stamp(s)
TL.sort(key=lambda x: x[0])
k_ = -1; pend_ = []
for i_, o in enumerate(s.ops):
    if o.kind == "mfma":
        k_ += 1
        m.ops.append(o)
        if k_ % 16 == 12: continue
        while TL and TL[0][0] <= k_: m.ops.extend(TL.pop(0)[1])
    else: m.ops.append(o)
for _, g_ in TL: m.ops.extend(g_)
stamp(m)

def own(n): return vG1[0] + 8 * n
def hstore(s, n):
    s("buffer_store_dwordx4 %s, v%d, %s, %s offen offset:%d sc1" % (vr(own(n), 4), vHV[n // 4], WS, tCB[0], 1024 * (n % 4)), tag="hst%d" % (n // 4))
def gelu(n, pk):
    ge = Stream()
    x0 = own(n); T = vGT + 8 * (n % 2)
    if pk:
        for j in range(4): ge("v_pk_mul_f32 %s, %s, %s" % (vr(T + 2 * j, 2), vr(x0 + 2 * j, 2), vr(x0 + 2 * j, 2)))
        for j in range(4): ge("v_pk_fma_f32 %s, %s, %s, %s" % (vr(T + 2 * j, 2), vr(T + 2 * j, 2), sC1, vr(vC0, 2)))
        for j in range(4): ge("v_pk_mul_f32 %s, %s, %s" % (vr(T + 2 * j, 2), vr(T + 2 * j, 2), vr(x0 + 2 * j, 2)))
        for j in range(8): ge("v_exp_f32 v%d, v%d" % (T + j, T + j))
        for j in range(4): ge("v_pk_add_f32 %s, %s, 1.0 op_sel_hi:[1,0]" % (vr(T + 2 * j, 2), vr(T + 2 * j, 2)))
        for j in range(8): ge("v_rcp_f32 v%d, v%d" % (T + j, T + j))
        for j in range(4): ge("v_pk_mul_f32 %s, %s, %s" % (vr(T + 2 * j, 2), vr(T + 2 * j, 2), vr(x0 + 2 * j, 2)))
    else:
        for j in range(8): ge("v_mul_f32 v%d, v%d, v%d" % (T + j, x0 + j, x0 + j))
        for j in range(8): ge("v_fma_f32 v%d, v%d, s64, v%d" % (T + j, T + j, vC0))
        for j in range(8): ge("v_mul_f32 v%d, v%d, v%d" % (T + j, T + j, x0 + j))
        for j in range(8): ge("v_exp_f32 v%d, v%d" % (T + j, T + j))
        for j in range(8): ge("v_add_f32 v%d, 1.0, v%d" % (T + j, T + j))
        for j in range(8): ge("v_rcp_f32 v%d, v%d" % (T + j, T + j))
        for j in range(8): ge("v_mul_f32 v%d, v%d, v%d" % (T + j, T + j, x0 + j))
    for j in range(4): ge("v_cvt_pk_bf16_f32 v%d, v%d, v%d" % (x0 + j, T + 2 * j, T + 2 * j + 1))
    hstore(ge, n)
    return ge
aCF = 0
def conv_readsA(r):
    s = Stream(); base = aCF + 32 * (r & 1)
    for a in range(4):
        off = 128 * (8 * a + r)
        s("ds_read_b64_tr_b16 %s, v%d offset:%d" % (ar(base + 8 * a, 2), vCA, off + 32), tag="c%d" % r)
        s("ds_read_b64_tr_b16 %s, v%d offset:%d" % (ar(base + 8 * a + 2, 2), vCA, off), tag="c%d" % r)
    return s
def conv_readsB(r):
    s = Stream(); base = aCF + 32 * (r & 1)
    for i in range(4):
        s("ds_read_b128 %s, v%d offset:%d" % (ar(base + 8 * i + 4, 4), vCB, 32 * (8 * i - r + 7)), tag="c%d" % r)
    return s
NP = opt("np", 4); EG = opt("eg", 10)
g1s = Stream()
for n in range(NP):
    g1s.ops.extend(gelu(n, True).ops)
    if n < NP - 1: fstamp(g1s, 5)
gf = Stream()
for k in range(E6, EG): w2_issue(gf, k)
g1s = spread(g1s, gf, 0.0, 0.9, unit="any")
if HPG:
    gf = Stream(); gf.extend(hz); gf.extend(hp)
    g1s = spread(g1s, gf, 0.0, 0.6, unit="any")
gf = Stream()
fstamp(gf, 5)
if HPG: gf.wait_lgkm("hw"); gf("s_barrier")
fstamp(gf, 5)
gf.extend(conv_readsA(0))
fstamp(gf, 5)
gf.wait_vm("ul")
fstamp(gf, 5)
for q in range(2):
    gf("ds_write2_b64 v%d, %s, %s offset0:%d offset1:%d" % (vUWA, vr(vUL + 4 * q, 2), vr(vUL + 4 * q + 2, 2), 64 * q, 64 * q + 160), tag="uw")
gf.extend(conv_readsB(0))
m.extend(spread(g1s, gf, opt("ulo", 0.8), 0.95, unit="any"))
stamp(m)

RING = [("a", 224 + 4 * i) for i in range(8)] + [("v", vG1[0] + 8 * i + 4) for i in range(8)]
NR = len(RING)
POOL = [[f, b, -1] for f, b in RING]
if opt("xr", 1): POOL += [["a", aW2(k) + 4 * t, 28 + k] for k in range(8) for t in range(2)]
HL = [n for n in range(56) if n % 28 >= 4]
HREG = {}
def hreg(n):
    if n % 28 < 4: return vr(own(4 * (n // 28) + n % 28), 4)
    return HREG[n]
hnext = [0]
def h_issue(s, now=0, lim=56):
    if hnext[0] >= len(HL) or HL[hnext[0]] >= lim: return
    fr = [x for x in POOL if x[2] < now]
    if not fr: return
    n = HL[hnext[0]]; hnext[0] += 1
    sl = min(fr, key=lambda x: x[2]); sl[2] = n
    HREG[n] = "%s[%d:%d]" % (sl[0], sl[1], sl[1] + 3)
    k = n % 28
    s("buffer_load_dwordx4 %s, v%d, %s, %s offen offset:%d sc1" % (hreg(n), vHV[n // 28], WS, tCB[k // 4], 1024 * (k % 4)), tag="h%d" % n)
def conv_mf(s, r, a, i):
    base = aCF + 32 * (r & 1); j = a + i
    c = "0" if (r == 0 and a == 0) else vr(vCC[j], 16)
    s("v_mfma_f32_32x32x16_bf16 %s, %s, %s, %s" % (vr(vCC[j], 16), ar(base + 8 * a, 4), ar(base + 8 * i + 4, 4), c))
def y_out(j):
    s = Stream(); R = vCC[j]
    for v in range(8): s("v_permlane16_swap_b32 v%d, v%d" % (R + v, R + v + 8))
    for v in range(2, 8): s("v_add_f32 v%d, v%d, v%d" % (R + v, R + v, R + 6 + v))
    s("ds_write_b64 v%d, %s offset:%d" % (vYC, vr(R + 14, 2), 512 * j), tag="yw")
    s("ds_write_b128 v%d, %s offset:%d" % (vYM, vr(R, 4), 2304 * j), tag="yw")
    s("ds_write_b128 v%d, %s offset:%d" % (vYM, vr(R + 4, 4), 2304 * j + 16), tag="yw")
    return s
def hflag(s, i):
    flag_store(s, sFH, "hst%d" % i)
    if opt("ht", 1):
        s.begin()
        s("s_mov_b32 %s, 0" % ("exec_hi" if i == 0 else "exec_lo"))
        s("buffer_load_dword v252, v%d, %s, %s offen sc1" % (vHT, WS, tCB[0]), tag="ht")
        s("s_mov_b32 %s, -1" % ("exec_hi" if i == 0 else "exec_lo"))
        s.end()
    if i == 0: s("s_add_u32 %s, %s, %d" % (sFH, sFH, FHS))
F0, PB, HB, HPB = opt("f0", 2), opt("pb", 5), opt("hb", 7), opt("hpb", 8)
cv = Stream()
WPB = opt("wpb", 2)
WBB = opt("wbb", 5)
PRE = opt("pre", 14); PRS = opt("prs", 10)
wnext = EG
rnext = [0]
for r in range(7):
    s = Stream()
    s.wait_lgkm("c%d" % r)
    for a in range(4):
        for i in range(4 - a): conv_mf(s, r, a, i)
    rd = conv_readsA(r + 1); rd.extend(conv_readsB(r + 1))
    s = spread(s, rd, 0.0, 0.7)
    f = Stream()
    if r in (2, 4): fstamp(cv)
    if r == WBB:
        WBK = 2 * ((PRE + 3) // 4) - 1
        assert wnext > WBK
        cv.wait_vm("w2_%d" % WBK); cv("s_barrier")
    if r == HB: spoll_check(cv, 7, sPH, "ph0"); cv("s_add_u32 %s, %s, %d" % (sPH, sPH, FHS))
    if r == F0: hflag(f, 0)
    if r == PB: spoll_issue(f, 8, sPH)
    if r == -opt("f1", -7): hflag(f, 1)
    for _ in range(WPB):
        if wnext < 14: w2_issue(f, wnext); wnext += 1
    if r == 4:
        f("buffer_load_dwordx4 %s, v%d, %s, 0 offen" % (vr(vQ[0], 4), vQO, Q), tag="q")
        f("buffer_load_dwordx4 %s, v%d, %s, %s offen" % (vr(vQ[1], 4), vQO, Q, sQ1), tag="q")
    if r >= HB:
        for _ in range(HPB): h_issue(f)
    s = spread(s, f, 0.0, 1.0)
    if r >= WBB:
        f = Stream()
        while rnext[0] < PRE * (r + 1 - WBB) // (7 - WBB): w2_reads(f, rnext[0]); rnext[0] += 1
        s = spread(s, f, 0.0, 1.0)
    cv.extend(s)
assert wnext == 14
ge = Stream()
for n in range(NP, 8): ge.ops.extend(gelu(n, False).ops)
m.extend(spread(cv, ge, 0.0, opt("ghi", 0.7)))
fstamp(m)
if HB == 7: spoll_check(m, 7, sPH, "ph0"); m("s_add_u32 %s, %s, %d" % (sPH, sPH, FHS))
if opt("f1", -7) == -7: hflag(m, 1)
m.wait_lgkm("c7")
mf = Stream()
for j in range(4):
    for a in range(j + 1): conv_mf(mf, 7, a, j - a)
f = Stream()
if HB <= 7:
    for _ in range(HPB): h_issue(f)
zc = Stream(); zc("v_mov_b32 v%d, %s" % (vT[4], sRW)); zc("s_mov_b64 exec, 1"); zc("ds_write_b64 v%d, %s offset:%d" % (vT[4], vr(vZ4, 2), R_CY), tag="yw"); zc("s_mov_b64 exec, -1")
fg = groups(f.ops)
y0, y1, y2 = y_out(0).ops, y_out(1).ops, y_out(2).ops
plan = {0: zc.ops + sum(fg[:2], []), 1: sum(fg[2:4], []), 2: y0[:6], 3: y0[6:12], 4: y0[12:] + y1[:3], 5: y1[3:9], 6: y1[9:15], 7: y1[15:] + y2[:4], 8: y2[4:8] + sum(fg[4:6], []), 9: sum(fg[6:], [])}
for k_, o in enumerate(mf.ops):
    m.ops.append(o); m.ops.extend(plan[k_])
stamp(m)

vA2 = vCC
def g2_mf(s, n, t):
    sg, k = n // 28, n % 28
    c = "0" if k == 0 else vr(vA2[2 * sg + t], 16)
    s("v_mfma_f32_32x32x16_bf16 %s, %s, %s, %s" % (vr(vA2[2 * sg + t], 16), ar(aW2(k) + 4 * t, 4), "HREG", c), tag=(n, t))
def g2_seg(n0, n1, lim=None):
    s = Stream()
    for n in range(n0, n1):
        if n in HL: s.wait_vm("h%d" % n)
        if n < 28: s.wait_lgkm("w2r%d" % n)
        rd = Stream()
        if n >= PRS:
            for _ in range(2):
                if rnext[0] < 28 and rnext[0] < n + opt("pra", 6): w2_reads(rd, rnext[0]); rnext[0] += 1
        hl_ = len(rd.ops) // 2
        for t in range(2):
            g2_mf(s, n, t)
            s.ops.extend(rd.ops[hl_ * t:hl_ * t + hl_])
    return s
G2START = len(m.ops)
def pace():
    ops = m.ops[G2START:]; m.ops = m.ops[:G2START]
    RATE = opt("rate", 0.5); CRED = opt("cred", 1.0); MINA = opt("mina", 12)
    lim = 28 if HB <= 7 else 0
    cred = CRED; donet = set()
    for i, o in enumerate(ops):
        if o.text == "L_ok_ph0:": lim = 28
        if o.text == "L_ok_ph1:": lim = 56
        if o.kind == "mfma" and "HREG" in o.text:
            n, t = o.tag
            o.text = o.text.replace("HREG", hreg(n)); o.tag = None; analyze(o)
            m.ops.append(o); donet.add((n, t))
            now = 0
            while (now, 0) in donet and (now, 1) in donet: now += 1
            cred = min(cred + RATE, CRED + RATE)
            j = i + 1; nv = 0
            while j < len(ops) and ops[j].kind != "mfma":
                nv += ops[j].kind in VMEMK; j += 1
            urgent = hnext[0] < len(HL) and HL[hnext[0]] - n <= MINA
            if cred - nv >= 1 or urgent:
                k0 = len(m.ops); h_issue(m, now, lim)
                if len(m.ops) > k0: cred -= 1
            continue
        if o.kind in VMEMK: cred -= 1
        m.ops.append(o)
    assert hnext[0] == len(HL)
def unpack(s, dst, src):
    for j in range(4):
        s("v_lshlrev_b32 v%d, 16, v%d" % (dst[2 * j], src + j)); s("v_and_b32 v%d, 0xffff0000, v%d" % (dst[2 * j + 1], src + j))
ce = Stream()
ce.ops.extend(y2[8:])
ce.extend(y_out(3))
ce.wait_vm("w2_13")
ce.wait_lgkm("yw")
ce("s_barrier")
NY = opt("ny", 6)
NZ = opt("nz", 12); F1 = opt("f1", -7); P1 = opt("p1", 13); PH1 = opt("ph1", 24); GP = opt("gp", 12)
assert PRS >= NY
sg0 = spread(g2_seg(0, NY), ce, 0.0, 1.0)
fstamp(sg0)
ce = Stream()
for q in range(2):
    b = vEPB + 16 * q
    for y in range(2):
        ce("ds_read_b64 %s, v%d offset:%d" % (vr(vT[4 * q + 2 * y], 2), vYRC, 512 * q + RSZ * y), tag="yr%d" % q)
        for hf in range(2):
            ce("ds_read_b128 %s, v%d offset:%d" % (vr(b + 8 * y + 4 * hf, 4), vYR, 2304 * q + RSZ * y + 16 * hf), tag="yr%d" % q)
for q in range(2):
    ce.wait_lgkm("yr%d" % q)
    b = vEPB + 16 * q
    for j in range(2): ce("v_add_f32 v%d, v%d, v%d" % (vT[4 * q + j], vT[4 * q + j], vT[4 * q + 2 + j]))
    for j in range(8): ce("v_add_f32 v%d, v%d, v%d" % (b + j, b + j, b + 8 + j))
    for j in range(2): ce("v_add_f32 v%d, v%d, v%d" % (b + j, b + j, vT[4 * q + j]))
    for j in (1, 2, 3, 0): ce("v_cvt_pk_f16_f32 v%d, v%d, v%d" % (b + 8 + j, b + 2 * j, b + 2 * j + 1))
    tag_put(ce, list(range(b + 8, b + 12)))
for q in range(2):
    ce("buffer_store_dwordx4 %s, v%d, %s, %s offen offset:%d sc1" % (vr(vEPB + 16 * q + 8, 4), vL16, WS, sZB, 1024 * q), tag="zst")
sg0.extend(spread(g2_seg(NY, NZ), ce, 0.0, 1.0))
stamp(sg0)
vB2F = list(range(vEPB + 16, vEPB + 24))
vQF = [own(k // 4) + k % 4 for k in range(16)]
f = Stream()
f("v_add_u32 v%d, %d, v%d" % (vT[3], L_PB0, vPW)); f("v_add_u32 v%d, %d, v%d" % (vT[2], L_PB0, vPRD))
unpack(f, vB2F, vB2)
f("s_barrier")
sg0.extend(spread(g2_seg(NZ, 28), f, 0.0, 0.8))
def at(seg, n, f):
    for i, o in enumerate(seg.ops):
        if o.kind == "mfma" and o.tag == (n - 1, 1):
            seg.ops[i + 1:i + 1] = f.ops; return
    assert n == 0; seg.ops[0:0] = f.ops
f = Stream(); fstamp(f); spoll_check(f, 7, sPH, "ph1"); at(sg0, PH1, f)
f = Stream(); gran_issue(f, vG[0], vGA, 0, "pg0"); gran_issue(f, vG[1], vGA, 256, "pg1"); at(sg0, GP, f)
f = Stream(); spoll_issue(f, 8, sPH); at(sg0, P1, f)
if F1 >= 0: f = Stream(); hflag(f, 1); at(sg0, F1, f)
m.extend(sg0)
stamp(m)
def part_write(s, sg, ts=(0, 1)):
    for t in ts:
        for a in range(4):
            s("ds_write_b128 v%d, %s offset:%d" % (vT[3] if sg == 0 else vPW, vr(vA2[2 * sg + t] + 4 * a, 4), 128 * t + 32 * a), tag="pw%d" % sg)
def red_reads(s, sg, E):
    for w in range(4):
        for hf in range(2):
            s("ds_read_b128 %s, v%d offset:%d" % (vr(E + 8 * w + 4 * hf, 4), vT[2] if sg == 0 else vPRD, PB_SZ * w + 16 * hf), tag="pr%d_%d" % (sg, w // 2))
N1, N2, N3, N4 = opt("n1", 33), opt("n2", 39), opt("n3", 44), opt("n4", 48)
E = vA2[0]
vZL = vEPB
def z_issue(s):
    for g_ in range(2):
        s("buffer_load_dwordx4 %s, v%d, %s, %s offen sc1" % (vr(vZL + 4 * g_, 4), vZA, WS, sZ8 if g_ else "0"), tag="pz")
vP = E
def p_issue(s):
    for q in range(2):
        s("buffer_load_dwordx4 %s, v%d, %s, %s offen offset:%d sc1" % (vr(vP + 4 * q, 4), vL16, WS, sPR, 1024 * q), tag="pp")
f = Stream(); part_write(f, 0); f.wait_lgkm("pw0"); f("s_barrier")
sg1 = spread(g2_seg(28, N1), f, 0.1, 1.0)
fstamp(sg1)
f = Stream(); red_reads(f, 0, E)
for rh in range(2):
    b = E + 16 * rh
    f.wait_lgkm("pr0_%d" % rh)
    for j in range(8): f("v_add_f32 v%d, v%d, v%d" % (b + j, b + j, b + 8 + j))
    for j in range(8): f("v_add_f32 v%d, v%d, v%d" % (b + j, b + j, vB2F[j]))
    for j in range(4): f("v_cvt_pk_f16_f32 v%d, v%d, v%d" % (b + 8 + j, b + 2 * j, b + 2 * j + 1))
    tag_put(f, list(range(b + 8, b + 12)))
    f("buffer_store_dwordx4 %s, v%d, %s, %s offen offset:%d sc1" % (vr(b + 8, 4), vL16, WS, sPS, 1024 * rh), tag="pst")
sg1.extend(spread(g2_seg(N1, N2), f, 0.0, 1.0))
fstamp(sg1)
f = Stream()
gran_check(f, vG[0], vGA, 0, "pg0"); gran_check(f, vG[1], vGA, 256, "pg1")
for rh in range(2):
    unpack(f, vQF[8 * rh:8 * rh + 8], vQ[rh])
    for j in range(8): f("v_mul_f32 v%d, v%d, v%d" % (vQF[8 * rh + j], vQF[8 * rh + j], vG[rh]))
    f("v_sub_f32 v%d, 1.0, v%d" % (vG[rh], vG[rh]))
tag_check(f, z_issue, list(range(vZL, vZL + 8)), "pz")
f("ds_write_b128 v%d, %s" % (vZW, vr(vZL, 4)), tag="zw")
f("ds_write_b128 v%d, %s offset:1024" % (vZW, vr(vZL + 4, 4)), tag="zw")
for i in range(4):
    f("ds_read_b64_tr_b16 %s, v%d offset:%d" % (vr(vZL + 24 + 2 * i, 2), vZT, 512 * i), tag="zr")
s = g2_seg(N2, N4)
for n in range(N4, 56):
    s.wait_vm("h%d" % n); g2_mf(s, n, 0)
sg1.extend(spread(s, f, 0.0, 1.0))
f = Stream(); z_issue(f); at(sg1, opt("zp", 32), f)
m.extend(sg1)
fstamp(m)
s = Stream()
for n in range(N4, 56): g2_mf(s, n, 1)
f = Stream()
f.wait_lgkm("zr")
f("ds_write_b128 v%d, %s" % (vZTW, vr(vZL + 24, 4)), tag="zw2")
f("ds_write_b128 v%d, %s offset:16" % (vZTW, vr(vZL + 28, 4)), tag="zw2")
part_write(f, 1, (0,))
s = spread(s, f, 0.0, 1.0)
f = Stream(); p_issue(f)
m.extend(spread(s, f, opt("plo", 0.0), opt("plo", 0.0) + 0.5))
stamp(m)
part_write(m, 1, (1,))
m.wait_lgkm("pw1")
m("s_barrier")
stamp(m)
m("ds_read_b128 %s, v%d" % (vr(vT[0], 4), vZR), tag="zt")
m("ds_read_b128 %s, v%d offset:%d" % (vr(vT[4], 4), vZR, 32 * 144), tag="zt")
E1 = vA2[2]
red_reads(m, 1, E1)
m.wait_lgkm("zt")
def mix(s, d, h16, j, a, c):
    s("v_fma_mix_f32 v%d, v%d, %s, %s op_sel:[%d,0,0] op_sel_hi:[1,0,0]" % (d, h16 + j // 2, a, c, j & 1))
for rh in range(2):
    for j in range(8): mix(m, vZL + 8 * rh + j, vT[4 * rh], j, "v%d" % vQF[8 * rh + j], "0")
for rh in range(2):
    b = E1 + 16 * rh
    m.wait_lgkm("pr1_%d" % rh)
    for kh in range(2):
        for j in range(4): m("v_pk_fma_f32 %s, %s, %s, %s op_sel_hi:[1,0,1]" % (vr(vZL + 8 * rh + 2 * j, 2), vr(b + 8 * kh + 2 * j, 2), vr(vG[rh], 2), vr(vZL + 8 * rh + 2 * j, 2)))
tag_check(m, p_issue, list(range(vP, vP + 8)), "pp")
for rh in range(2):
    b = vZL + 8 * rh
    for j in range(8): mix(m, b + j, vP + 4 * rh, j, "v%d" % vG[rh], "v%d" % (b + j))
    for j in range(4): m("v_cvt_pk_bf16_f32 v%d, v%d, v%d" % (E1 + 4 * rh + j, b + 2 * j, b + 2 * j + 1))
    m("buffer_store_dwordx4 %s, v%d, %s, %s offen" % (vr(E1 + 4 * rh, 4), vQO, OUT, "0" if rh == 0 else sQ1), tag="ost")
stamp(m)
pace()
print("vgprs used:", va.n, vc.n, "ring", NR, file=sys.stderr)

def stamp_out(s):
    if not STAMP: return
    s("s_waitcnt vmcnt(0)")
    stamp(s)
    nstamp[0] = 40
    stamp(s, rt=True)
    if AT >= 0:
        if s is not m: return
        s("v_readlane_b32 s40, v%d, %d" % (vSTA, AT))
        s("s_add_u32 s40, s40, 1600")
        if PROBE:
            s("v_readlane_b32 s41, v%d, 42" % vSTA); s("s_mul_i32 s41, s41, 3"); s("s_add_u32 s40, s40, s41")
        s("L_cal:")
        s("s_memrealtime s[42:43]")
        s("s_waitcnt lgkmcnt(0)")
        s("s_sub_u32 s41, s42, s40")
        s("s_cmp_lt_i32 s41, 0")
        s("s_cbranch_scc1 L_cal")
        return
    if DBG:
        if s is not m: return
        sel = [int(x) for x in OPT.get("sel", "2,4,6,7,8,9,10,11,12,13,14,15").split(",")]
        s("v_readlane_b32 s40, v%d, 1" % vSTA)
        for k, idx in enumerate(sel):
            s("v_readlane_b32 s41, v%d, %d" % (vSTA, idx))
            s("s_sub_u32 s41, s41, s40")
            s("v_writelane_b32 v%d, s41, %d" % (vT[0], k))
        s("v_readlane_b32 s41, v%d, 40" % vSTA); s("v_writelane_b32 v%d, s41, 13" % vT[0])
        s("v_readlane_b32 s41, v%d, 41" % vSTA); s("v_writelane_b32 v%d, s41, 14" % vT[0])
        s("s_not_b32 s41, s41"); s("v_writelane_b32 v%d, s41, 15" % vT[0])
        s("v_lshlrev_b32 v%d, 2, v%d" % (vT[1], vLANE))
        s("v_add_co_u32 v62, vcc, v62, v%d" % vT[1])
        s("v_addc_co_u32 v63, vcc, 0, v63, vcc")
        s("s_mov_b64 exec, 0x%x" % ((1 << len(sel)) - 1))
        s("global_atomic_add v[62:63], v%d, off sc1" % vT[0])
        s("s_mov_b64 exec, 0xe000")
        s("global_atomic_umax v[62:63], v%d, off sc1" % vT[0])
        return
    slin(s, sT0, [("s2", 1024), (sW, 256)], WS_STAMP)
    s("v_lshlrev_b32 v%d, 2, v%d" % (vT[0], vLANE))
    s("buffer_store_dword v%d, v%d, %s, %s offen" % (vSTA, vT[0], WS, sT0))
stamp_out(m)
m("s_endpgm")

g = Stream(); g_stream[0] = g
g("L_spare:")
g("s_cmp_ge_u32 s2, 256")
g("s_cbranch_scc1 L_end")
if STAMP: g("v_mov_b32 v%d, 0" % vSTA)
for nm, nb in ((Q, NB), (W1, NW), (WS, WS_SIZE), (W2, NW), (SSM, NB)): srd23(g, nm, nb)
g("s_waitcnt lgkmcnt(0)")
g("s_mov_b64 s[8:9], s[40:41]"); g("s_mov_b64 s[24:25], s[54:55]"); g("s_mov_b64 s[20:21], s[48:49]")
g("s_mov_b64 s[36:37], s[68:69]"); g("s_mov_b64 s[28:29], s[58:59]")
nstamp[0] = 0
stamp(g, rt=True); stamp(g)
if STAMP: g("v_writelane_b32 v%d, s32, 41" % vSTA)
g("v_mov_b32 v12, 0")
g("buffer_load_dword v%d, v12, %s, 0 offen sc1" % (vTAG, WS))
sJ = sA
def pf_part():
    g("s_sub_u32 %s, %s, 28" % (sT0, sI)); g("s_lshl_b32 %s, %s, 2" % (sT0, sT0)); g("s_add_u32 %s, %s, %s" % (sT0, sT0, sW))
    g("v_lshrrev_b32 v12, 1, v%d" % vLANE); g("v_mul_u32_u24 v12, 3584, v12")
    g("v_and_b32 v13, 1, v%d" % vLANE); g("v_lshl_add_u32 v12, v13, 7, v12")
    g("s_and_b32 %s, %s, 1" % (sCH, sX)); g("s_mul_i32 %s, %s, %d" % (sCH, sCH, 7 * 256))
    g("L_pf1:")
    g("s_lshr_b32 %s, %s, 1" % (sT1, sT0))
    g("s_mul_i32 %s, %s, 147" % (sT2, sT1)); g("s_lshr_b32 %s, %s, 10" % (sT2, sT2))
    g("s_mul_i32 %s, %s, 7" % (sT3, sT2)); g("s_sub_u32 %s, %s, %s" % (sT1, sT1, sT3))
    g("s_lshl_b32 %s, %s, 1" % (sT2, sT2)); g("s_add_u32 %s, %s, %s" % (sT2, sT2, sT1)); g("s_add_u32 %s, %s, 1" % (sT2, sT2))
    g("s_cmp_ge_u32 %s, 7" % sT2); g("s_cselect_b32 %s, 7, 0" % sT3); g("s_sub_u32 %s, %s, %s" % (sT2, sT2, sT3))
    g("s_lshl_b32 %s, %s, 1" % (sT2, sT2)); g("s_and_b32 %s, %s, 1" % (sT3, sT0)); g("s_add_u32 %s, %s, %s" % (sT2, sT2, sT3))
    g("s_mul_i32 %s, %s, %d" % (sT2, sT2, 32 * 3584))
    g("s_lshl_b32 %s, %s, 8" % (sT1, sT1)); g("s_add_u32 %s, %s, %s" % (sT2, sT2, sT1)); g("s_add_u32 %s, %s, %s" % (sT2, sT2, sCH))
    g("buffer_load_dword v13, v12, %s, %s offen" % (W1, sT2))
    g("s_add_u32 %s, %s, 16" % (sT0, sT0))
    g("s_cmp_lt_u32 %s, 42" % sT0)
    g("s_cbranch_scc1 L_pf1")
    g("s_sub_u32 %s, %s, 42" % (sT0, sT0))
    fstamp(g, 4)
    if opt("pfs", 1):
        g("v_lshlrev_b32 v12, 7, v%d" % vLANE)
        g("s_lshr_b32 %s, %s, 1" % (sCH, sX)); g("s_lshl_b32 %s, %s, 16" % (sCH, sCH)); g("s_and_b32 %s, %s, 1" % (sT1, sX)); g("s_lshl_b32 %s, %s, 13" % (sT1, sT1))
        g("s_add_u32 %s, %s, %s" % (sCH, sCH, sT1))
        g("L_pfs:")
        g("s_and_b32 %s, %s, 3" % (sT1, sT0)); g("s_lshl_b32 %s, %s, 14" % (sT1, sT1))
        g("s_lshr_b32 %s, %s, 2" % (sT2, sT0)); g("s_lshl_b32 %s, %s, 18" % (sT2, sT2))
        g("s_add_u32 %s, %s, %s" % (sT1, sT1, sT2)); g("s_add_u32 %s, %s, %s" % (sT1, sT1, sCH))
        g("buffer_load_dword v13, v12, %s, %s offen" % (SSM, sT1))
        g("s_add_u32 %s, %s, 16" % (sT0, sT0))
        g("s_cmp_lt_u32 %s, 28" % sT0)
        g("s_cbranch_scc1 L_pfs")
        g("s_sub_u32 %s, %s, 28" % (sT0, sT0))
    fstamp(g, 4)
    g("v_mul_u32_u24 v12, 896, v%d" % vLANE)
    g("s_and_b32 %s, %s, 1" % (sCH, sX)); g("s_mul_i32 %s, %s, %d" % (sCH, sCH, 7 * CBS))
    g("s_lshr_b32 %s, %s, 1" % (sROT, sX)); g("s_mul_i32 %s, %s, 3" % (sROT, sROT)); g("s_add_u32 %s, %s, 1" % (sROT, sROT)); g("s_and_b32 %s, %s, 14" % (sROT, sROT))
    g("L_pf:")
    g("s_mul_i32 %s, %s, 147" % (sT2, sT0)); g("s_lshr_b32 %s, %s, 10" % (sT2, sT2))
    g("s_mul_i32 %s, %s, 7" % (sT3, sT2)); g("s_sub_u32 %s, %s, %s" % (sT1, sT0, sT3))
    if ROTX:
        g("s_add_u32 %s, %s, %s" % (sT3, sT2, sROT)); g("s_cmp_ge_u32 %s, 14" % sT3); g("s_cselect_b32 %s, 12, 0" % sHB); g("s_sub_u32 %s, %s, %s" % (sT3, sT3, sHB))
        g("s_cmp_ge_u32 %s, 2" % sT2); g("s_cselect_b32 %s, %s, %s" % (sT2, sT3, sT2))
    g("s_lshl_b32 %s, %s, 1" % (sT3, sT1)); g("s_add_u32 %s, %s, %s" % (sT2, sT2, sT3))
    g("s_cmp_ge_u32 %s, 14" % sT2); g("s_cselect_b32 %s, 14, 0" % sT3); g("s_sub_u32 %s, %s, %s" % (sT2, sT2, sT3))
    g("s_mul_i32 %s, %s, %d" % (sT2, sT2, CBS // 2)); g("s_lshl_b32 %s, %s, 7" % (sT1, sT1))
    g("s_add_u32 %s, %s, %s" % (sT1, sT1, sT2)); g("s_add_u32 %s, %s, %s" % (sT1, sT1, sCH))
    g("buffer_load_dword v13, v12, %s, %s offen" % (W2, sT1))
    g("s_add_u32 %s, %s, 16" % (sT0, sT0))
    g("s_cmp_lt_u32 %s, 98" % sT0)
    g("s_cbranch_scc1 L_pf")
    fstamp(g, 4)
    if opt("fine", 0) == 4: g("s_waitcnt vmcnt(0)")
    fstamp(g, 4)
def gate_loads():
    g("s_sub_u32 %s, %s, 28" % (sJ, sI)); g("s_lshl_b32 %s, %s, 2" % (sT0, sX)); g("s_add_u32 %s, %s, %s" % (sJ, sJ, sT0))
    slin(g, sT0, [(sJ, 64), (sW, 16)])
    g("v_lshrrev_b32 v11, 3, v%d" % vLANE); g("v_add_u32 v11, %s, v11" % sT0)
    g("v_and_b32 v15, 7, v%d" % vLANE); g("v_lshlrev_b32 v15, 4, v15")
    g("v_mul_u32_u24 v14, 896, v11"); g("v_add_u32 v14, v14, v15")
    g("s_mov_b32 %s, %d" % (sT1, 8 * 896))
    for i in range(7):
        g("global_load_dwordx4 v[%d:%d], v15, %s offset:%d" % (80 + 4 * i, 83 + 4 * i, P_GATE, 128 * i), tag="gq")
    for i in range(14):
        g("buffer_load_dwordx4 v[%d:%d], v14, %s, %s offen offset:%d" % (16 + 4 * i, 19 + 4 * i, Q, sT1 if i >= 7 else "0", 128 * (i % 7)), tag="gq")
def gate_fin():
    g("s_waitcnt vmcnt(0)")
    g("v_add_u32 v%d, 0x%x, v%d" % (vTAG, TAG_INC, vTAG))
    for i in range(56):
        acc = 140 + 2 * (i // 28) + (i % 2)
        g("v_dot2_f32_bf16 v%d, v%d, v%d, %s" % (acc, 16 + i, 80 + i % 28, "0" if i % 28 < 2 else "v%d" % acc))
    g("v_add_f32 v140, v140, v141"); g("v_add_f32 v142, v142, v143")
    for ctl in ("quad_perm:[1,0,3,2]", "quad_perm:[2,3,0,1]", "row_half_mirror"):
        for r_ in (140, 142): g("v_add_f32_dpp v%d, v%d, v%d %s row_mask:0xf bank_mask:0xf" % (r_, r_, r_, ctl))
    g("v_and_b32 v15, 1, v%d" % vLANE); g("v_cmp_eq_u32 vcc, 1, v15")
    g("v_cndmask_b32 v140, v140, v142, vcc")
    g("v_mul_f32 v140, 0x%x, v140" % f2u(-math.log2(math.e)))
    g("v_exp_f32 v140, v140"); g("v_add_f32 v140, 1.0, v140"); g("v_rcp_f32 v140, v140")
    g("v_mov_b32 v141, v%d" % vTAG)
    g("v_lshl_add_u32 v11, v15, 3, v11")
    g("v_lshlrev_b32 v11, 3, v11"); g("v_add_u32 v11, 0x%x, v11" % WS_G)
    g("s_mov_b32 exec_lo, 0x03030303"); g("s_mov_b32 exec_hi, 0x03030303")
    g("buffer_store_dwordx2 v[140:141], v11, %s, 0 offen sc1" % WS)
    g("s_mov_b64 exec, -1")
if opt("gf", 0): gate_loads(); pf_part(); gate_fin()
else: pf_part(); gate_loads(); gate_fin()
if opt("wb", 0):
    g("s_cmp_lt_u32 s2, 248"); g("s_cbranch_scc1 L_nowb")
    g("s_cmp_lg_u32 %s, 1" % sW); g("s_cbranch_scc1 L_nowb")
    g("buffer_wbl2 sc1")
    g("s_waitcnt vmcnt(0)")
    g("L_nowb:")
g("s_cmp_lg_u32 s2, 255"); g("s_cbranch_scc1 L_spare_done")
g("s_cmp_lg_u32 %s, 0" % sW); g("s_cbranch_scc1 L_spare_done")
g("v_mul_u32_u24 v12, %d, v%d" % (FUS, vLANE))
g("v_lshlrev_b32 v13, 7, v%d" % vLANE); g("v_add_u32 v13, 0x%x, v13" % (WS_G + 4))
g("v_add_u32 v14, 8192, v13")
g("s_mov_b32 %s, 0" % sSPIN)
g("L_upd:")
g("s_sleep 8")
for i in range(14):
    g("s_mov_b32 %s, 0x%x" % (sT0, WS_FU + 64 * FUS * i))
    g("buffer_load_dword v%d, v12, %s, %s offen sc1" % (18 + i, WS, sT0))
g("buffer_load_dword v32, v13, %s, 0 offen sc1" % WS)
g("buffer_load_dword v33, v14, %s, 0 offen sc1" % WS)
g("s_add_u32 %s, %s, 1" % (sSPIN, sSPIN))
g("s_waitcnt vmcnt(0)")
for i in range(16): g("v_xor_b32 v%d, v%d, v%d" % (18 + i, 18 + i, vTAG))
for i in range(1, 16): g("v_or_b32 v18, v18, v%d" % (18 + i))
g("v_cmp_ne_u32 vcc, 0, v18")
g("s_cmp_gt_u32 %s, 0x40000" % sSPIN)
g("s_cbranch_scc1 L_upd_go")
g("s_cbranch_vccnz L_upd")
g("L_upd_go:")
g("v_mov_b32 v12, 0")
g("s_mov_b64 exec, 1")
g("buffer_store_dword v%d, v12, %s, 0 offen sc1" % (vTAG, WS))
g("s_mov_b64 exec, -1")
g("L_spare_done:")
nstamp[0] = 6
stamp_out(g)
g("L_end:")
g("s_endpgm")

k_ = 0
for o in m.ops:
    if "STAMPIDX" in o.text:
        o.text = o.text.replace("STAMPIDX", str(k_)); k_ += 1
assert k_ <= 40
if AT >= 0:
    keep = []
    for o in m.ops:
        mm = re.match(r"v_writelane_b32 v%d, s66, (\d+)$" % vSTA, o.text)
        if mm and int(mm.group(1)) != AT:
            keep.pop(); keep.pop(); continue
        keep.append(o)
    m.ops = keep
nts = [d for d in OPT.get("nt", "").split(",") if d]
for o in m.ops:
    if o.kind in VMEMK and o.tag and any(o.tag.startswith(d) for d in nts) and "global_" not in o.text:
        o.text = o.text.replace(" lds", " nt lds") if o.text.endswith(" lds") else o.text + " nt"
drops = [d for d in OPT.get("drop", "").split(",") if d]
if drops:
    keep = []; dropped = set()
    for o in m.ops:
        if o.kind in VMEMK and o.tag and any(re.fullmatch(d, o.tag) for d in drops):
            dropped.add(o.tag); continue
        if o.kind == "waitvm" and o.waitfor in dropped: continue
        keep.append(o)
    m.ops = keep
for t_ in OPT.get("nochk", "").split(","):
    m.ops = [o for o in m.ops if o.text != "s_cbranch_vccnz L_spin_%s" % t_ and o.text != "s_cbranch_scc1 L_spin_%s" % t_]
mops = finalize(m)
tail_ = "\n" + render(insert_nops(spins.ops)) + "\n" + render(insert_nops(resolve_waits(g.ops)))
hdr = open("cdna_kernels/%s.s.ref" % NAME).read().split("; Override launch")[0]
def emit(ops):
    out = hdr + "; @launch grid=(256,1,1) block=(256,1,1) lds=%d\n" % LDS_TOTAL
    out += '.amdgcn_target "amdgcn-amd-amdhsa--gfx950"\n.text\n.globl %s_kernel\n.p2align 12\n.type %s_kernel,@function\n%s_kernel:\n' % (NAME, NAME, NAME)
    out += render(ops) + tail_ + "\nL_code_end:\n"
    out = out.replace("CODE_BYTES", "L_code_end-%s_kernel-128" % NAME)
    out += '.section .rodata,"a"\n.p2align 6\n.amdhsa_kernel %s_kernel\n' % NAME
    out += "  .amdhsa_next_free_vgpr 512\n  .amdhsa_next_free_sgpr 102\n  .amdhsa_accum_offset 256\n  .amdhsa_group_segment_fixed_size 0\n"
    out += "  .amdhsa_kernarg_size 120\n  .amdhsa_user_sgpr_count 2\n  .amdhsa_user_sgpr_kernarg_segment_ptr 1\n  .amdhsa_system_sgpr_workgroup_id_x 1\n.end_amdhsa_kernel\n"
    return out
if WARM:
    import subprocess, tempfile, os
    td = tempfile.mkdtemp()
    open(td + "/a.s", "w").write(emit(mops).replace("s_branch L_stub0", "s_branch L_back"))
    subprocess.run(["clang", "-x", "assembler", "-target", "amdgcn-amd-amdhsa", "-mcpu=gfx950", "-c", td + "/a.s", "-o", td + "/a.o"], check=True)
    dis = subprocess.run(["llvm-objdump", "-d", td + "/a.o"], capture_output=True, text=True).stdout
    addrs = [int(x, 16) for x in re.findall(r"// ([0-9A-F]{12}):", dis)]
    res = []; k = 0; ns = 0; pos_ = []
    for o in mops:
        if o.kind != "label":
            if addrs[k] + 4 * ns >= 4096 * (ns + 1):
                pos_.append(len(res)); ns += 1
                res.append(None); res.append(None)
            k += 1
        res.append(o)
    for i, p_ in enumerate(pos_):
        res[p_] = Op("L_stub%d:" % i, "label"); res[p_ + 1] = Op("s_cbranch_execz %s" % ("L_stub%d" % (i + 1) if i + 1 < ns else "L_back"), "ctl")
    mops = res
    print("main code bytes", addrs[k - 1], "stubs", ns, file=sys.stderr)
open(sys.argv[1], "w").write(emit(mops))
```

```python
import sys, math, struct
sys.path.insert(0, "gen")
from asmlib import *

NAME = "gated_mix__ssm_conv_h3__dense_activation_gelu__prompt"
STAMP = int(sys.argv[2]) if len(sys.argv) > 2 else 0
DBG = STAMP >= 3
if DBG: STAMP -= 2
AT = -1
if STAMP == 3: STAMP = 2; DBG = False; AT = int(dict(a.split("=") for a in sys.argv[3:])["at"])
OPT = dict(a.split("=") for a in sys.argv[3:])
def opt(k, d): return type(d)(OPT.get(k, d))
f2u = lambda f: struct.unpack("<I", struct.pack("<f", f))[0]

FUS = opt("fus", 128); FHS = opt("fhs", 128)
WS_FU = 0x60000
WS_FH = 0x80000
WS_G  = 0x8000
WS_STAMP = 0x10000
WS_U  = 0x100000
WS_Z  = 0x300000
WS_P  = 0xE40000
CP = 4224
WS_H  = 0x500000
CBS = 128 * 896
WS_SIZE = 0x1000000
TAG_INC = 0x9E3779B9
SLOT = 32768
L_R = 114688; RSZ = 11280
R_UW = 4160; UP = 1280; R_CY = 9216
L_KS = 131072
L_VS = L_KS + 72 * 128
L_P0 = L_VS + 64 * 128
L_PB0 = 114688; PB_SZ = 8704
L_PB1 = 0
L_ZT = 149696
ZST = 65536
LDS_TOTAL = 163840
W2POS = [12, 13, 0, 1, 2, 3, 4, 5, 6, 7, 8, 9, 10, 11]

Q, K, V, SSM, W1, W2, OUT, WS = ["s[%d:%d]" % (b, b + 3) for b in range(8, 40, 4)]
WSP = "s[36:37]"
P_SHIFT, P_D, P_B1, P_B2, P_GATE = "s[46:47]", "s[50:51]", "s[56:57]", "s[60:61]", "s[62:63]"
sW, sX, sI, sA, sC, sRB128, sCB128, sRB64 = "s70", "s71", "s72", "s73", "s74", "s75", "s76", "s77"
sT0, sT1, sT2, sT3 = "s78", "s79", "s80", "s81"
sTAG = "s[82:83]"
sROT, sSPIN, sCH, sHB = "s84", "s85", "s86", "s87"
sXL, sWL, sW2L, sRW, sPO, sE2, sHSRC = "s88", "s89", "s3", "s4", "s5", "s6", "s7"
sC1 = "s[64:65]"
sST = "s[66:67]"
sFU, sFH, sPH = "s14", "s15", "s62"
sZB, sQ1, sZ8, sPS, sPR, sMSK = "s63", "s56", "s12", "s57", "s60", "s61"
sW0, sHP, sDP = "s13", "s0", "s83"
sP = sHB
tXO = ["s40", "s41", "s42", "s43", "s44", "s45", "s48"]
tWO = ["s49", "s52", "s53", "s54", "s55", "s58", "s59"]
tCB = ["s%d" % i for i in range(90, 97)]
sPOLL = 40

class VA:
    def __init__(self, lo, hi): self.n = lo; self.hi = hi
    def get(self, k=1, align=1):
        self.n = (self.n + align - 1) // align * align
        r = self.n; self.n += k
        assert self.n <= self.hi, "out of regs"
        return r
def vr(b, k=1): return "v%d" % b if k == 1 else "v[%d:%d]" % (b, b + k - 1)
def ar(b, k=1): return "a%d" % b if k == 1 else "a[%d:%d]" % (b, b + k - 1)

spins = Stream()
nstamp = [0]; g_stream = [None]
VB_HI = 236
va = VA(0, 64); vb = VA(128, VB_HI); vc = VA(VB_HI, 252)
vTID = va.get(); vLANE = va.get(); vTAG = va.get(); vSTA = va.get()
vT = [va.get() for _ in range(8)]
L = vLANE

def stamp(s, rt=False):
    if not STAMP: return
    i = nstamp[0]; nstamp[0] += 1
    s.begin()
    s("%s %s" % ("s_memrealtime" if (rt or STAMP == 2) else "s_memtime", sST))
    s("s_waitcnt lgkmcnt(0)")
    s("v_writelane_b32 v%d, s66, %s" % (vSTA, "STAMPIDX" if i < 40 and s is not g_stream[0] else str(i)))
    s.end()
def fstamp(s, lvl=2):
    if opt("fine", 0) == lvl: stamp(s)

def slin(s, dst, terms, const=0):
    tmp = sT3; first = True
    for reg, mult in terms:
        d = dst if first else tmp
        if mult == 1: src = reg
        else:
            if mult & (mult - 1) == 0: s("s_lshl_b32 %s, %s, %d" % (d, reg, mult.bit_length() - 1))
            else: s("s_mul_i32 %s, %s, %d" % (d, reg, mult))
            src = d
        if first:
            if src != dst: s("s_mov_b32 %s, %s" % (dst, src))
        else: s("s_add_u32 %s, %s, %s" % (dst, dst, src))
        first = False
    if const: s("s_add_u32 %s, %s, 0x%x" % (dst, dst, const))
def vlin(s, dst, terms, base=None):
    acc = None
    terms = sorted(terms, key=lambda t: t[1] & (t[1] - 1) == 0)
    for reg, mult in terms:
        p2 = mult & (mult - 1) == 0
        if acc is None:
            if p2 and isinstance(base, str):
                s("v_lshl_add_u32 v%d, v%d, %d, %s" % (dst, reg, mult.bit_length() - 1, base)); base = None
            elif p2: s("v_lshlrev_b32 v%d, %d, v%d" % (dst, mult.bit_length() - 1, reg))
            else: s("v_mul_u32_u24 v%d, %d, v%d" % (dst, mult, reg))
            acc = dst
        else:
            assert p2
            s("v_lshl_add_u32 v%d, v%d, %d, v%d" % (dst, reg, mult.bit_length() - 1, dst))
    if base is not None:
        s("v_add_u32 v%d, %s, v%d" % (dst, base if isinstance(base, str) else "0x%x" % base, dst))

def flag_store(s, sreg, tagwait):
    s.wait_vm(tagwait)
    s.begin()
    s("s_mov_b64 exec, 1")
    s("buffer_store_dword v%d, off, %s, %s sc1" % (vTAG, WS, sreg), tag="flag")
    s("s_mov_b64 exec, -1")
    s.end()

npoll = [0]
VP = opt("vp", 0)
npi = [0]
def spoll_issue(s, n, soff):
    if VP == 1:
        s("v_min_u32 v255, 6, v%d" % L); s("v_lshlrev_b32 v255, 2, v255")
        s("buffer_load_dword v255, v255, %s, %s offen sc1" % (WS, soff), tag="vp%d" % npi[0]); npi[0] += 1
    else: s("s_load_dwordx%d s[%d:%d], %s, %s%s" % (n, sPOLL, sPOLL + n - 1, WSP, soff, " glc" if VP == 0 else ""))
def spin_tail(t, tag):
    if STAMP: t("v_writelane_b32 v%d, %s, %d" % (vSTA, sSPIN, 48 + npoll[0]))
    npoll[0] += 1
    t("s_cmp_gt_u32 %s, 0x40000" % sSPIN)
    t("s_cbranch_scc1 L_ok_%s" % tag)
    t("s_cbranch_vccz L_ok_%s" % tag)
    t("s_sleep 1")
    t("s_branch L_spin2_%s" % tag)
def spoll_check(s, n, soff, tag):
    if VP == 1:
        s.wait_vm("vp" + tag[-1])
        s.begin()
        s("v_cmp_ne_u32 vcc, v255, v%d" % vTAG)
        s("s_cbranch_vccnz L_spin_%s" % tag)
    else:
        s.begin()
        s("s_waitcnt lgkmcnt(0)")
        for i in range(0, n, 2):
            if i + 1 < n: s("s_cmp_lg_u64 s[%d:%d], %s" % (sPOLL + i, sPOLL + i + 1, sTAG))
            else: s("s_cmp_lg_u32 s%d, s82" % (sPOLL + i))
            s("s_cbranch_scc1 L_spin_%s" % tag)
    s("L_ok_%s:" % tag)
    s.end()
    t = spins
    t("L_spin_%s:" % tag)
    t("s_mov_b32 %s, 0" % sSPIN)
    t("v_min_u32 v254, %d, v%d" % (n - 1, L))
    t("v_lshl_add_u32 v254, v254, 2, %s" % soff)
    t("L_spin2_%s:" % tag)
    t("buffer_load_dword v255, v254, %s, 0 offen sc1" % WS)
    t("s_add_u32 %s, %s, 1" % (sSPIN, sSPIN))
    t("s_waitcnt vmcnt(0)")
    t("v_cmp_ne_u32 vcc, v255, v%d" % vTAG)
    spin_tail(t, tag)
def gran_issue(s, vdst, vaddr, off, tag):
    s("buffer_load_dwordx2 %s, v%d, %s, 0 offen offset:%d sc1" % (vr(vdst, 2), vaddr, WS, off), tag=tag)
def gran_check(s, vdst, vaddr, off, tag):
    s.wait_vm(tag)
    s.begin()
    s("v_cmp_ne_u32 vcc, v%d, v%d" % (vdst + 1, vTAG))
    s("s_cbranch_vccnz L_spin_%s" % tag)
    s("L_ok_%s:" % tag)
    s.end()
    t = spins
    t("L_spin_%s:" % tag)
    t("s_mov_b32 %s, 0" % sSPIN)
    t("L_spin2_%s:" % tag)
    gran_issue(t, vdst, vaddr, off, tag)
    t("s_add_u32 %s, %s, 1" % (sSPIN, sSPIN))
    t("s_waitcnt vmcnt(0)")
    t("v_cmp_ne_u32 vcc, v%d, v%d" % (vdst + 1, vTAG))
    spin_tail(t, tag)

def tag_cmp(s, regs):
    for k, r in enumerate(regs): s("v_xor_b32 v%d, v%d, v%d" % (r, vTK[k % 4], r))
    s("v_or_b32 v254, v%d, v%d" % (regs[0], regs[1]))
    for k in range(2, len(regs), 2): s("v_or3_b32 v254, v254, v%d, v%d" % (regs[k], regs[k + 1]))
    s("v_and_b32 v254, %s, v254" % sMSK)
    s("v_cmp_ne_u32 vcc, 0, v254")
def tag_check(s, issue, regs, tag):
    s.wait_vm(tag)
    tag_cmp(s, regs)
    s.ops[-1].glue = False
    s.begin(); s._g -= 1
    s("s_cbranch_vccnz L_spin_%s" % tag)
    s("L_ok_%s:" % tag)
    s.end()
    t = spins
    t("L_spin_%s:" % tag)
    t("s_mov_b32 %s, 0" % sSPIN)
    t("L_spin2_%s:" % tag)
    issue(t)
    t("s_add_u32 %s, %s, 1" % (sSPIN, sSPIN))
    t("s_waitcnt vmcnt(0)")
    tag_cmp(t, regs)
    spin_tail(t, tag)
def tag_put(s, regs):
    for k, r in enumerate(regs): s("v_bfi_b32 v%d, %s, v%d, v%d" % (r, sMSK, vTK[k % 4], r))

def srd(s, name, lo, nbytes):
    b = int(name[2:].split(":")[0])
    s("s_mov_b64 s[%d:%d], s[%d:%d]" % (b, b + 1, lo, lo + 1))
    s("s_mov_b32 s%d, 0x%x" % (b + 2, nbytes)); s("s_mov_b32 s%d, 0x20000" % (b + 3))

m = Stream()
NB = 2048 * 448 * 2
NW = 448 * 1792 * 2
def srd23(s, nm, nb):
    b = int(nm[2:].split(":")[0])
    s("s_mov_b32 s%d, 0x%x" % (b + 2, nb)); s("s_mov_b32 s%d, 0x20000" % (b + 3))
if STAMP: m("s_memrealtime s[32:33]")
m("s_load_dwordx16 s[40:55], s[0:1], 0")
m("s_load_dwordx8 s[56:63], s[0:1], 64")
m("s_load_dwordx4 s[64:67], s[0:1], 96")
m("s_load_dwordx2 s[68:69], s[0:1], 112")
m("v_lshrrev_b32 v%d, 6, v0" % vT[2])
m("v_and_b32 v%d, 63, v0" % vLANE)
m("s_and_b32 %s, s2, 7" % sX)
m("v_readfirstlane_b32 %s, v%d" % (sW, vT[2]))
m("s_lshr_b32 %s, s2, 3" % sI)
m("s_cmp_lt_u32 s2, 224")
m("s_cbranch_scc1 L_main")
m("s_getpc_b64 s[4:5]")
m("v_lshlrev_b32 v%d, 7, v0" % vT[0])
m("v_min_u32 v%d, CODE_BYTES, v%d" % (vT[0], vT[0]))
m("global_load_dword v255, v%d, s[4:5]" % vT[0], tag="cpf")
m("s_branch L_spare")
m("L_main:")
if opt("cpf", 0):
    m("s_getpc_b64 s[4:5]")
    m("v_lshlrev_b32 v%d, 7, v0" % vT[0])
    m("v_min_u32 v%d, %d, v%d" % (vT[0], opt("cpf", 0), vT[0]))
    m("global_load_dword v255, v%d, s[4:5]" % vT[0], tag="cpf")
if STAMP: m("v_mov_b32 v%d, 0" % vSTA)
m("s_mul_i32 %s, %s, 37" % (sA, sI)); m("s_lshr_b32 %s, %s, 8" % (sA, sA))
m("s_mul_i32 %s, %s, 7" % (sC, sA)); m("s_sub_u32 %s, %s, %s" % (sC, sI, sC))
vL8 = va.get(); vLd8 = va.get(); vG4 = va.get()
vXV = [va.get() for _ in range(4)]
vWV = [va.get() for _ in range(4)]
vTK = vXV
vB1 = vb.get(4, 4); vTP = vb.get(2, 2)
vS32 = va.get(); vHH = va.get(); vL15 = va.get()
vKV = vb.get(); vKH = vb.get(); vB2 = vc.get(4, 4)
m("v_and_b32 v%d, 7, v%d" % (vL8, L)); m("v_lshrrev_b32 v%d, 3, v%d" % (vLd8, L)); m("v_and_b32 v%d, 15, v%d" % (vL15, L))
ka = Stream()
ka("s_lshr_b32 %s, %s, 1" % (sT0, sX)); slin(ka, sRB128, [(sT0, 4), (sA, 1)])
ka("s_and_b32 %s, %s, 1" % (sHB, sX))
slin(ka, sRB64, [(sRB128, 2), (sHB, 1)])
srd23(ka, K, NB); srd23(ka, V, NB)
ka("s_lshl_b32 %s, %s, 7" % (sT0, sC))
vlin(ka, vT[6], [(vL8, 16)], sT0)
ka("v_mul_u32_u24 v%d, 896, v%d" % (vT[5], vLd8))
slin(ka, sT0, [(sRB64, 64 * 896), (sW, 16 * 896)])
ka("v_add3_u32 v%d, v%d, v%d, %s" % (vKV, vT[5], vT[6], sT0))
ka("s_add_u32 %s, %s, %d" % (sT0, sT3, 8 * 896))
ka("v_subrev_u32 v%d, %s, v%d" % (vKH, sT0, vKV))
ka("s_mov_b32 %s, %d" % (sPO, 8 * 896 - 1024))
ka("s_lshl_b32 %s, %s, 11" % (sW2L, sW))
slin(ka, sT0, [(sC, 512), (sW, 128)])
vlin(ka, vT[2], [(vL15, 8)], sT0)
slin(ka, sT2, [(sC, 128), (sRB64, 4)])
ka("s_add_u32 %s, %s, %s" % (sCH, sT2, sW)); ka("s_lshr_b32 %s, %s, 1" % (sCH, sCH))
ka("s_lshl_b32 %s, %s, 12" % (sHSRC, sCH))
r2 = Stream()
r2("s_load_dword s82, s[68:69], 0")
r2("s_load_dword %s, s[48:49], %s offset:2044" % (sHP, sHSRC))
r2("s_load_dword %s, %s, %s" % (sDP, P_D, sT2))
r2("s_mov_b64 s[12:13], s[42:43]"); r2("s_mov_b64 s[16:17], s[44:45]")
for src, base in ((K, L_KS + 1024), (V, L_VS)):
    r2.begin(); r2("s_add_u32 m0, %s, %d" % (sW2L, base))
    if src == K: r2("global_load_dwordx2 %s, v%d, %s" % (vr(vTP, 2), vT[2], P_SHIFT), tag="kv")
    r2("buffer_load_dwordx4 v%d, %s, 0 offen lds" % (vKV, src), tag="kv"); r2.end()
    r2("buffer_load_dwordx4 v%d, %s, %s offen offset:1024 lds" % (vKV, src, sPO), tag="kv")
r2.begin()
r2("s_mov_b32 m0, %d" % L_KS)
r2("s_mov_b32 exec_lo, 0")
r2("buffer_load_dwordx4 v%d, %s, 0 offen lds" % (vKH, K), tag="kv")
r2("s_mov_b32 exec_lo, -1")
r2.end()
xa = Stream()
slin(xa, sROT, [(sA, 2), (sC, 1)])
xa("s_cmp_ge_u32 %s, 7" % sROT); xa("s_cselect_b32 %s, 7, 0" % sT0); xa("s_sub_u32 %s, %s, %s" % (sROT, sROT, sT0))
xa("v_lshrrev_b32 v%d, 4, v%d" % (vG4, L))
xa("s_xor_b32 %s, %s, %s" % (sT0, sW, sHB)); xa("s_andn2_b32 %s, 1, %s" % (sT0, sT0)); xa("s_lshr_b32 %s, %s, 1" % (sT1, sW))
slin(xa, sT1, [(sT1, 32 * 896), (sT0, 64 * 896), (sRB128, 128 * 896)])
xa("s_mov_b32 %s, %s" % (sT0, sT1))
xa("v_add_u32 v%d, %s, v%d" % (vT[0], sT0, vT[5]))
xa("v_xor_b32 v%d, v%d, v%d" % (vT[3], vL8, vG4))
xa("v_lshl_add_u32 v%d, v%d, 4, v%d" % (vXV[0], vT[3], vT[0]))
xa("v_xor_b32 v%d, 4, v%d" % (vT[3], vT[3]))
xa("v_lshl_add_u32 v%d, v%d, 4, v%d" % (vXV[1], vT[3], vT[0]))
xa("v_add_u32 v%d, %d, v%d" % (vXV[2], 2 * 6144, vXV[0]))
xa("v_add_u32 v%d, %d, v%d" % (vXV[3], 3 * 6144, vXV[1]))
xa("v_add_u32 v%d, %d, v%d" % (vXV[1], 6144, vXV[1]))
xa("s_lshl_b32 %s, %s, 12" % (sXL, sW))
xa("s_lshl_b32 %s, %s, 7" % (sT1, sROT))
srd23(xa, Q, NB)
wa = Stream()
vSWZ = vT[7]
slin(wa, sCB128, [(sP, 7), (sC, 1)])
wa("v_and_b32 v%d, 1, v%d" % (vT[3], vG4)); wa("v_lshlrev_b32 v%d, 2, v%d" % (vT[3], vT[3]))
wa("v_xor_b32 v%d, v%d, v%d" % (vSWZ, vL8, vT[3]))
slin(wa, sT0, [(sW, 16 * 3584), (sCB128, 256)])
vlin(wa, vWV[0], [(vLd8, 3584), (vSWZ, 16)], sT0)
wa("v_add_u32 v%d, %d, v%d" % (vWV[1], 8 * 3584 - 1024, vWV[0]))
wa("v_add_u32 v%d, 128, v%d" % (vWV[2], vWV[0]))
wa("v_add_u32 v%d, 128, v%d" % (vWV[3], vWV[1]))
wa("s_add_u32 %s, %s, 16384" % (sWL, sXL))
wa("s_mul_i32 %s, %s, %d" % (sW0, sROT, 64 * 3584))
srd23(wa, W1, NW)
wa("s_mov_b64 s[24:25], s[54:55]")
r3 = Stream()
r3("s_and_b32 %s, %s, 1" % (sE2, sW))
r3("v_and_b32 v%d, 31, v%d" % (vS32, L))
slin(r3, sT0, [(sCB128, 256), (sE2, 128)])
vlin(r3, vT[1], [(vS32, 2)], sT0)
r3("global_load_ushort v%d, v%d, %s" % (vB1, vT[1], P_B1), tag="sm")
r3("global_load_ushort v%d, v%d, %s offset:64" % (vB1 + 2, vT[1], P_B1), tag="sm")
r3("global_load_dwordx4 %s, v%d, %s" % (vr(vB2, 4), vT[6], P_B2), tag="sm")

def st_groups(t, xo=None, wo=None):
    gs = []
    slot = (t % 4) * SLOT
    for q in range(4):
        s = Stream(); s.begin()
        if q == 0: s("s_add_u32 m0, %s, %d" % (sXL, slot))
        s("buffer_load_dwordx4 v%d, %s, %s offen offset:%d lds" % (vXV[q], Q, xo or tXO[t], 1024 * q), tag="st%d" % t)
        s.end(); gs.append(s)
    for q in range(4):
        s = Stream(); s.begin()
        if q in (0, 2): s("s_add_u32 m0, %s, %d" % (sWL, slot + (2048 if q == 2 else 0)))
        s("buffer_load_dwordx4 v%d, %s, %s offen offset:%d lds" % (vWV[q], W1, wo or tWO[t], 1024 * (q & 1)), tag="st%d" % t)
        s.end(); gs.append(s)
    return gs
def st_issue(s, t, part="xw", **kw):
    gs = st_groups(t, **kw)
    for p_ in part:
        for g_ in (gs[:4] if p_ == "x" else gs[4:]): s.extend(g_)
PROBE = ""
m.extend(ka)
m.extend(xa)
m("s_waitcnt lgkmcnt(0)")
if DBG: m("v_mov_b32 v62, s66"); m("v_mov_b32 v63, s67")
stamp(m, rt=True)
stamp(m)
if STAMP: m("v_writelane_b32 v%d, s32, 41" % vSTA)
m.extend(r2)
m("s_mov_b64 s[8:9], s[40:41]")
X0P = opt("x0p", 200)
if X0P < 0: st_issue(m, 0, "x", xo=sT1)
else: m("s_mov_b32 s17, %s" % sT1)
m.extend(wa)
m.extend(r3)

su = Stream()
su("s_mov_b64 s[36:37], s[68:69]"); srd23(su, WS, WS_SIZE)
su("s_mov_b64 s[28:29], s[58:59]"); srd23(su, W2, NW)
srd(su, SSM, 48, NB); srd(su, OUT, 64, NB)
tch = Stream()
if opt("tw2", 0):
    vTW = vb.get()
    slin(su, sT0, [("s2", 56 * 128), (sW, 14 * 128)])
    su("v_min_u32 v%d, 13, v%d" % (vTW, L)); vlin(su, vTW, [(vTW, 128)], sT0)
    tch("buffer_load_dword v252, v%d, %s, 0 offen" % (vTW, W2), tag="tw2")
if opt("tpos", 0) == 0: su.extend(tch)
su("v_lshrrev_b32 v%d, 5, v%d" % (vHH, L))
vC4 = vT[4]; vR4 = vT[5]; vMH = vT[3]
su("v_and_b32 v%d, 3, v%d" % (vC4, L)); su("v_bfe_u32 v%d, v%d, 2, 2" % (vR4, L)); su("v_bfe_u32 v%d, v%d, 4, 1" % (vMH, L))
vP0R = vb.get(); vP0W = vb.get(); vP0B = vb.get(); vP0S = vb.get()
slin(su, sT0, [(sW, 32)], L_KS + 512)
vlin(su, vP0R, [(vG4, 2048), (vR4, 128), (vC4, 8)], sT0)
slin(su, sT0, [(sW, 2304)], L_P0)
vlin(su, vP0W, [(vL15, 144), (vG4, 32)], sT0)
vlin(su, vP0B, [(vLd8, 144), (vL8, 16)], sT0)
slin(su, sT0, [(sC, 64 * CP), (sW, 16 * CP), (sRB64, 128)], WS_U)
vlin(su, vP0S, [(vLd8, CP), (vL8, 16)], sT0)
su("s_mov_b32 %s, %d" % (sZ8, 8 * CP))
su("v_mov_b32 v%d, 0" % (vB1 + 1)); su("v_mov_b32 v%d, 0" % (vB1 + 3))
vXA = [va.get() for _ in range(4)]
vWA = [va.get() for _ in range(2)]
vW2R = [va.get() for _ in range(4)]
su("v_bfe_u32 v%d, v%d, 1, 3" % (vT[0], L))
su("v_xor_b32 v%d, v%d, v%d" % (vT[0], vT[0], vHH))
su("s_lshr_b32 %s, %s, 1" % (sT1, sW)); su("s_lshl_b32 %s, %s, 13" % (sT1, sT1))
vlin(su, vXA[0], [(vT[0], 16), (vS32, 128)], sT1)
for ks in range(1, 4): su("v_xor_b32 v%d, %d, v%d" % (vXA[ks], 32 * ks, vXA[0]))
su("v_bfe_u32 v%d, v%d, 3, 1" % (vT[1], L))
vlin(su, vT[0], [(vMH, 32), (vC4, 8), (vR4, 128), (vT[1], 64)])
slin(su, sT1, [(sE2, 2048)], 16384)
vlin(su, vWA[0], [(vHH, 1024), (vT[0], 1)], sT1)
su("v_xor_b32 v%d, 64, v%d" % (vWA[1], vWA[0]))
su("s_lshl_b32 %s, %s, 13" % (sT1, sE2))
vlin(su, vW2R[0], [(vHH, 512), (vT[0], 1)], sT1)
vACC = [64 + 16 * i for i in range(4)]
vONE = vb.get(8, 4)
for i in range(1, 8): su("v_mov_b32 v%d, 0" % (vONE + i))
su("v_sub_u32 v%d, 1, v%d" % (vONE, vHH))
su("v_mul_u32_u24 v%d, 0x3f80, v%d" % (vONE, vONE))
su("v_mov_b32 v%d, v%d" % (vONE + 6, vONE))
vL16 = va.get()
DUMMY_DS[0] = "ds_read_b32 v253, v%d" % vL16
su("v_lshlrev_b32 v%d, 4, v%d" % (vL16, L))
for t in range(1, 7):
    if t < 4:
        su("s_add_u32 %s, %s, %d" % (sT0, sA, t)); su("s_and_b32 %s, %s, 3" % (sT0, sT0))
        su("s_lshl_b32 %s, %s, 1" % (sT0, sT0)); su("s_add_u32 %s, %s, %s" % (sT0, sT0, sC))
    else:
        su("s_add_u32 %s, %s, %d" % (sT0, sC, 2 * (t - 4) + 1))
    su("s_cmp_ge_u32 %s, 7" % sT0); su("s_cselect_b32 %s, 7, 0" % sT1); su("s_sub_u32 %s, %s, %s" % (sT0, sT0, sT1))
    su("s_lshl_b32 %s, %s, 7" % (tXO[t], sT0)); su("s_mul_i32 %s, %s, %d" % (tWO[t], sT0, 64 * 3584))
su1 = su
su = Stream()
slin(su, sFU, [(sC, 128 * FUS), (sW, 32 * FUS), (sRB64, FUS)], WS_FU)
su("v_xor_b32 v%d, 64, v%d" % (vW2R[1], vW2R[0]))
su("v_add_u32 v%d, 0x10000, v%d" % (vW2R[2], vW2R[0])); su("v_add_u32 v%d, 0x10000, v%d" % (vW2R[3], vW2R[1]))
vZ4 = va.get(4, 4)
for i in range(4): su("v_mov_b32 v%d, 0" % (vZ4 + i))
slin(su, sRW, [(sW, RSZ)], L_R)
su("s_lshl_b32 %s, %s, 11" % (sT1, sE2)); su("s_add_u32 %s, %s, %s" % (sHSRC, sHSRC, sT1))
su("s_mul_i32 %s, %s, %d" % (tCB[0], sC, CBS))
ROTX = opt("rotx", 1)
if ROTX:
    su("s_lshr_b32 %s, %s, 1" % (sT0, sX)); su("s_mul_i32 %s, %s, 3" % (sT0, sT0)); su("s_add_u32 %s, %s, 1" % (sT0, sT0)); su("s_lshr_b32 %s, %s, 1" % (sT0, sT0))
    su("s_add_u32 %s, %s, %s" % (sT0, sT0, sC)); su("s_mul_i32 %s, %s, %d" % (sT0, sT0, CBS))
    su("s_cmp_ge_u32 %s, %d" % (sT0, 7 * CBS)); su("s_cselect_b32 %s, %d, 0" % (sT1, 7 * CBS)); su("s_sub_u32 %s, %s, %s" % (sT0, sT0, sT1))
    su("s_add_u32 %s, %s, %d" % (sT2, tCB[0], CBS)); su("s_cmp_ge_u32 %s, %d" % (sT2, 7 * CBS)); su("s_cselect_b32 %s, 0, %s" % (sT2, sT2))
for j in range(1, 7):
    su("s_add_u32 %s, %s, %d" % (tCB[j], sT0 if (j == 1 and ROTX) else tCB[j - 1], CBS)); su("s_cmp_ge_u32 %s, %d" % (tCB[j], 7 * CBS)); su("s_cselect_b32 %s, 0, %s" % (tCB[j], tCB[j]))
    if ROTX and j > 1: su("s_cmp_eq_u32 %s, %s" % (tCB[j], tCB[0])); su("s_cselect_b32 %s, %s, %s" % (tCB[j], sT2, tCB[j]))
vW2V = [va.get() for _ in range(4)]
slin(su, sT1, [(sC, 128), (sW, 16 * 896), (sP, 7 * CBS)])
vlin(su, vW2V[0], [(vLd8, 896), (vSWZ, 16)], sT1)
su("v_add_u32 v%d, %d, v%d" % (vW2V[1], 8 * 896 - 1024, vW2V[0]))
su("v_add_u32 v%d, %d, v%d" % (vW2V[2], 64 * 896, vW2V[0]))
su("v_add_u32 v%d, %d, v%d" % (vW2V[3], 64 * 896, vW2V[1]))
c_ = math.sqrt(2.0 / math.pi) * 2.0 * math.log2(math.e)
su("s_mov_b32 s64, 0x%x" % f2u(-c_ * 0.044715)); su("s_mov_b32 s65, 0x%x" % f2u(-c_ * 0.044715))
vC0 = va.get(2, 2)
su("v_mov_b32 v%d, 0x%x" % (vC0, f2u(-c_))); su("v_mov_b32 v%d, 0x%x" % (vC0 + 1, f2u(-c_)))
vCA = va.get(); vCB = va.get(); vUA = va.get(); vUWA = va.get(); vPADA = va.get()
su("v_and_b32 v%d, 1, v%d" % (vT[0], L)); su("v_bfe_u32 v%d, v%d, 1, 1" % (vT[1], L))
su("s_add_u32 %s, %s, %d" % (sT0, sRW, 64 + 64 - 32))
vlin(su, vCA, [(vT[0], 32), (vMH, 16), (vT[1], 8)], sT0)
vlin(su, vT[0], [(vHH, 64), (vR4, 8)])
su("v_sub_u32 v%d, v%d, v%d" % (vCA, vCA, vT[0]))
su("s_add_u32 %s, %s, %d" % (sT0, sRW, R_UW + 16))
vlin(su, vCB, [(vMH, UP), (vL15, 16), (vHH, 16)], sT0)
slin(su, sT0, [(sCH, CP), (sE2, 16)], WS_U)
vlin(su, vUA, [(L, 32)], sT0)
su("s_add_u32 %s, %s, %d" % (sT0, sRW, R_UW + 256))
vlin(su, vUWA, [(L, 8)], sT0)
su("s_add_u32 %s, %s, %d" % (sT0, sRW, R_UW))
vlin(su, vPADA, [(vMH, UP), (vL15, 16)], sT0)
vlin(su, vT[0], [(vS32, 16)], sRW)
su("v_cmp_gt_u32 vcc, 32, v%d" % L)
su("v_cndmask_b32 v%d, v%d, v%d, vcc" % (vPADA, vT[0], vPADA))
vYM = va.get(); vYC = va.get(); vYR = va.get(); vYRC = va.get()
vlin(su, vYM, [(vL15, 144), (vHH, 64), (vMH, 32)], sRW)
su("s_add_u32 %s, %s, %d" % (sT0, sRW, R_CY + 8))
vlin(su, vYC, [(vL15, 32), (vHH, 16), (vMH, 8)], sT0)
su("s_lshr_b32 %s, %s, 1" % (sT1, sW)); slin(su, sT2, [(sT1, 2 * RSZ)], L_R)
slin(su, sT0, [(sE2, 2 * 2304), (sT2, 1)])
su("v_lshrrev_b32 v%d, 2, v%d" % (vT[0], L))
vlin(su, vYR, [(L, 32), (vT[0], 16)], sT0)
slin(su, sT0, [(sE2, 1024), (sT2, 1)], R_CY)
vlin(su, vYRC, [(L, 8)], sT0)
vHW = va.get(); vUP = va.get()
slin(su, sT0, [(sE2, 2048), (sT2, 1)], 64)
su("v_add_u32 v%d, %s, v%d" % (vHW, sT0, vL16))
su("s_lshr_b32 %s, %s, 3" % (sT0, sRB64)); slin(su, sT1, [(sC, 128 * FUS), (sT0, 32 * FUS), (sW, 8 * FUS)], WS_FU)
vlin(su, vUP, [(vL8, FUS)], sT1)
vHV = [vc.get(), vc.get()]; vQO = vc.get(); vGA = vc.get(); vPW = vc.get(); vPRD = vc.get(); vZR = vc.get(); vZW = vc.get(); vZT = vc.get(); vZTW = vc.get(); vZA = vc.get()
su("s_mul_i32 %s, %s, 43" % (sT1, sRB128)); su("s_lshr_b32 %s, %s, 7" % (sT1, sT1))
HWS = opt("hws", 8192)
slin(su, sT2, [(sT1, 14 * CBS - 12 * HWS), (sRB128, 4 * HWS), (sP, 7 * CBS), (sW, HWS)], WS_H)
su("v_add_u32 v%d, %s, v%d" % (vHV[0], sT2, vL16))
su("v_add_u32 v%d, 4096, v%d" % (vHV[1], vHV[0]))
vHT = va.get()
vlin(su, vHT, [(L, 128)], sT2)
su("v_add_u32 v%d, 0x%x, v%d" % (vZA, WS_Z - WS_U, vP0S))
slin(su, sT0, [(sRB64, 64 * 8), (sW, 64)], WS_G)
vlin(su, vGA, [(vLd8, 8)], sT0)
slin(su, sT0, [(sRB64, 64 * 896), (sW, 8 * 896)])
vlin(su, vQO, [(vLd8, 896), (vT[6], 1)], sT0)
su("s_mul_i32 %s, %s, %d" % (sT0, sW, PB_SZ))
vlin(su, vPW, [(vS32, 272), (vHH, 16)], sT0)
su("s_mul_i32 %s, %s, %d" % (sT0, sW, 8 * 272))
vlin(su, vPRD, [(vLd8, 272), (vL8, 32)], sT0)
slin(su, sT0, [(sW, 8 * 144)], L_ZT)
vlin(su, vZR, [(vLd8, 144), (vL8, 16)], sT0)
su("s_add_u32 %s, %s, %d" % (sT0, sW2L, ZST))
su("v_add_u32 v%d, %s, v%d" % (vZW, sT0, vL16))
vlin(su, vZT, [(vR4, 128), (vG4, 32), (vC4, 8)], sT0)
slin(su, sT0, [(sW, 32)], L_ZT)
vlin(su, vZTW, [(L, 144)], sT0)
slin(su, sPH, [(sRB64, 8 * FHS), (sW, 2 * FHS)], WS_FH)
slin(su, sFH, [(sC, 4), (sPH, 1)])
slin(su, sZB, [(sCH, CP), (sE2, 2048)], WS_Z)
su("s_mov_b32 %s, %d" % (sQ1, 32 * 896))
su("s_mov_b32 %s, 0x10001" % sMSK)
slin(su, sPR, [(sRB64, 7 * 8192), (sC, 8192), (sW, 2048)], WS_P)
su("s_xor_b32 %s, %s, 1" % (sT0, sRB64))
slin(su, sPS, [(sT0, 7 * 8192), (sC, 8192), (sW, 2048)], WS_P)
su2 = su
for o in su1.ops + su2.ops:
    if o.text.startswith(("s_cselect", "v_cndmask")): o.glue = True
print("su1", len(su1.ops), "su2", len(su2.ops), file=sys.stderr)
g2_ = groups(su2.ops)
nA, nB = opt("sa", 300), opt("sb", 60)
def take(n):
    s_ = Stream()
    while g2_ and len(s_.ops) < n: s_.ops.extend(g2_.pop(0))
    return s_
W0P = opt("w0p", 1000)
pre = Stream(); pre.extend(su1); pre.extend(take(nA))
gp = groups(pre.ops); cnt = 0; done = False
for g_ in gp:
    if X0P >= 0 and cnt >= X0P: st_issue(m, 0, "x", xo="s17"); X0P = -1
    if cnt >= W0P and not done: st_issue(m, 0, "w", wo=sW0); done = True
    m.ops.extend(g_); cnt += len(g_)
fstamp(m, 3)
if not done: st_issue(m, 0, "w", wo=sW0)
stamp(m)

vKD = vb.get(10, 2); vVD = vb.get(8, 2); vKO = vb.get(10, 2)
vKS = vb.get(16, 4); vVF = vb.get(16, 4); vTR = vb.get(2, 2); vUO = vb.get(8, 4)
p0r = Stream()
for i in range(5): p0r("ds_read_b64_tr_b16 %s, v%d offset:%d" % (vr(vKD + 2 * i, 2), vP0R, 512 * i), tag="p0r")
for i in range(4): p0r("ds_read_b64_tr_b16 %s, v%d offset:%d" % (vr(vVD + 2 * i, 2), vP0R, L_VS - L_KS - 512 + 512 * i), tag="p0v")
p0 = Stream()
p0.wait_lgkm("p0r")
for j in range(9): p0("v_alignbit_b32 v%d, v%d, v%d, 16" % (vKO + j, vKD + j + 1, vKD + j))
for s_ in range(16):
    hi = (vKD + (s_ + 3) // 2) if s_ % 2 else (vKO + (s_ + 2) // 2)
    p0("v_dot2_f32_bf16 v%d, v%d, v%d, 0" % (vKS + s_, hi, vTR))
p0.wait_lgkm("p0v")
for s_ in range(16):
    lo = (vKD + (s_ + 1) // 2) if s_ % 2 else (vKO + s_ // 2)
    p0("v_dot2_f32_bf16 v%d, v%d, v%d, v%d" % (vKS + s_, lo, vTR + 1, vKS + s_))
    j = s_ // 2
    p0("v_lshlrev_b32 v%d, 16, v%d" % (vVF + 2 * j, vVD + j) if s_ % 2 == 0 else "v_and_b32 v%d, 0xffff0000, v%d" % (vVF + 2 * j + 1, vVD + j))
for j in range(8): p0("v_pk_mul_f32 %s, %s, %s" % (vr(vKS + 2 * j, 2), vr(vKS + 2 * j, 2), vr(vVF + 2 * j, 2)))
for k_, p_ in enumerate((0, 2, 1, 3)):
    for hf in range(2): p0("v_cvt_pk_bf16_f32 v%d, v%d, v%d" % (vUO + 2 * k_ + hf, vKS + p_ + 8 * hf, vKS + p_ + 8 * hf + 4))
p0b = Stream()
p0b("ds_write_b128 v%d, %s" % (vP0W, vr(vUO, 4)), tag="p0w")
p0b("ds_write_b128 v%d, %s offset:16" % (vP0W, vr(vUO + 4, 4)), tag="p0w")
p0b("ds_read_b128 %s, v%d" % (vr(vKS, 4), vP0B), tag="p0b")
p0b("ds_read_b128 %s, v%d offset:1152" % (vr(vKS + 4, 4), vP0B), tag="p0b")
p0c = Stream()
p0c.wait_lgkm("p0b")
p0c("buffer_store_dwordx4 %s, v%d, %s, 0 offen sc1" % (vr(vKS, 4), vP0S, WS), tag="ust")
p0c("buffer_store_dwordx4 %s, v%d, %s, %s offen sc1" % (vr(vKS + 4, 4), vP0S, WS, sZ8), tag="ust")

aF = 0
def g1_reads(kap):
    t, ks = kap // 4, kap % 4
    slot = (t % 4) * SLOT
    b = aF + 16 * (kap % 2)
    so = slot - (65536 if slot >= 65536 else 0)
    gs = [Stream(), Stream(), Stream()]
    for ft in range(2):
        g_ = gs[2 * ft]
        g_("ds_read_b64_tr_b16 %s, v%d offset:%d" % (ar(b + 8 + 4 * ft, 2), vWA[ft], so + ks * 4096), tag="f%d_%d" % (kap, ft))
        g_("ds_read_b64_tr_b16 %s, v%d offset:%d" % (ar(b + 8 + 4 * ft + 2, 2), vWA[ft], so + ks * 4096 + 512), tag="f%d_%d" % (kap, ft))
        gs[1]("ds_read_b128 %s, v%d offset:%d" % (ar(b + 4 * ft, 4), vXA[ks], so + 4096 * ft), tag="f%d_0" % kap)
    return gs
def g1_mf(s, kap, i, ft):
    b = aF + 16 * (kap % 2)
    c = vr(vACC[2 * i + ft], 16)
    s("v_mfma_f32_32x32x16_bf16 %s, %s, %s, %s" % (vr(vACC[2 * i + ft], 16), ar(b + 8 + 4 * ft, 4), ar(b + 4 * i, 4), c))
def g1_kstep(s, kap, pre=None):
    rd = g1_reads(kap + 1) if kap + 1 < 28 else [Stream(), Stream(), Stream()]
    if pre is not None: s.wait_lgkm("f%d_1" % kap)
    else: s.wait_lgkm("f%d_0" % kap)
    g1_mf(s, kap, 0, 0)
    if pre is not None: s.extend(pre)
    s.extend(rd[0])
    g1_mf(s, kap, 1, 0)
    s.extend(rd[1])
    s.wait_lgkm("f%d_1" % kap)
    g1_mf(s, kap, 0, 1)
    s.extend(rd[2])
    g1_mf(s, kap, 1, 1)
    if kap % 8 == 6 and kap < 24:
        delta = 65536 if kap in (6, 22) else -65536
        for r in vXA + vWA: s("v_add_u32 v%d, 0x%x, v%d" % (r, delta & 0xffffffff, r))

def w2_issue(s, k):
    j, kh = k // 2, k % 2
    for q in range(2):
        s.begin()
        if q == 0: s("s_add_u32 m0, %s, %d" % (sW2L, 8192 * W2POS[k]))
        s("buffer_load_dwordx4 v%d, %s, %s offen offset:%d lds" % (vW2V[2 * kh + q], W2, tCB[j], 1024 * q), tag="w2_%d" % k)
        s.end()
def aW2(n): return (8 * n + 64) % 224
def w2_reads(s, n):
    j, ks = n // 4, n % 4
    off = 8192 * W2POS[2 * j] + 2048 * ks; hi = off >= 65536; off -= 65536 * hi
    for t in range(2):
        b = aW2(n) + 4 * t
        s("ds_read_b64_tr_b16 %s, v%d offset:%d" % (ar(b, 2), vW2R[2 * hi + t], off), tag="w2r%d" % n)
        s("ds_read_b64_tr_b16 %s, v%d offset:%d" % (ar(b + 2, 2), vW2R[2 * hi + t], off + 1024), tag="w2r%d" % n)

vG1 = vACC
vCC = [128 + 16 * i for i in range(4)]
vEPB = 192
vGT = vEPB; vUL = vEPB + 16; vUF = vEPB + 24
vQ = [224, 228]; vG = [232, 234]
vHL = 224 if opt("hct", 6) == 0 else 128; vHS = 136; vHX = 144
hc = Stream()
for q in range(2):
    hc("buffer_load_dwordx4 %s, v%d, %s, %s offen offset:%d" % (vr(vHL + 4 * q, 4), vL16, SSM, sHSRC, 1024 * q), tag="hc")
sDP = "s16"
hz = Stream()
hz.begin(); hz("s_mov_b32 exec_hi, 15"); hz("ds_write_b128 v%d, %s" % (vPADA, vr(vZ4, 4)), tag="z0"); hz("s_mov_b32 exec_hi, -1"); hz.end()
hz("s_lshl_b32 %s, %s, 3" % (sT0, sW)); hz("s_and_b32 %s, %s, 16" % (sT0, sT0)); hz("s_lshr_b32 %s, %s, %s" % (sDP, sDP, sT0)); hz("s_lshl_b32 %s, %s, 16" % (sDP, sDP))
hz.begin(); hz("s_cmp_eq_u32 %s, 0" % sE2); hz("s_cselect_b32 %s, %s, 0" % (sDP, sDP)); hz("s_cselect_b32 %s, 0, %s" % (sHP, sHP)); hz.end()
hz("v_mov_b32 v%d, %s" % (vHX, sHP))
hp = Stream()
hp.wait_vm("hc")
hp("v_lshlrev_b32 v%d, 16, v%d" % (vT[0], vHL)); hp("v_and_b32 v%d, 0xffff0000, v%d" % (vT[1], vHL))
hp("v_add_f32 v%d, %s, v%d" % (vT[0], sDP, vT[0]))
hp("v_readlane_b32 %s, v%d, 63" % (sT0, vHL + 3))
hp.begin(); hp("s_mov_b64 exec, 1"); hp("v_cvt_pk_bf16_f32 v%d, v%d, v%d" % (vHL, vT[0], vT[1])); hp("s_mov_b64 exec, -1"); hp.end()
hp("v_mov_b32 v%d, %s" % (vHX + 1, sT0))
for q in range(2):
    hp("v_mov_b32_dpp v%d, v%d wave_shr:1 row_mask:0xf bank_mask:0xf" % (vHX + q, vHL + 4 * q + 3))
for q in range(2):
    hp("ds_write_b128 v%d, %s offset:%d" % (vHW, vr(vHL + 4 * q, 4), 1024 * q), tag="hw"); hp.ops[-1].cost = 6
    for j in range(4):
        hp("v_alignbit_b32 v%d, v%d, v%d, 16" % (vHS + 4 * q + j, vHL + 4 * q + j, vHL + 4 * q + j - 1 if j else vHX + q))
for q in range(2):
    hp("ds_write_b128 v%d, %s offset:%d" % (vHW, vr(vHS + 4 * q, 4), RSZ + 1024 * q), tag="hw"); hp.ops[-1].cost = 10
def up_issue(s): s("buffer_load_dword v%d, v%d, %s, 0 offen sc1" % (vUF, vUP, WS), tag="pu")
uc = Stream()
uc.wait_vm("pu")
uc.begin()
uc("v_cmp_ne_u32 vcc, v%d, v%d" % (vUF, vTAG))
uc("s_cbranch_vccnz L_spin_pu")
uc("L_ok_pu:")
uc.end()
spins("L_spin_pu:"); spins("s_mov_b32 %s, 0" % sSPIN); spins("L_spin2_pu:")
up_issue(spins)
spins("s_add_u32 %s, %s, 1" % (sSPIN, sSPIN)); spins("s_waitcnt vmcnt(0)"); spins("v_cmp_ne_u32 vcc, v%d, v%d" % (vUF, vTAG))
spin_tail(spins, "pu")
ul = Stream()
for q in range(2):
    ul("buffer_load_dwordx4 %s, v%d, %s, 0 offen offset:%d sc1" % (vr(vUL + 4 * q, 4), vUA, WS, 2048 * q), tag="ul")

TP = opt("tpos", 0)
TL = []
def place(pos, st, step=2.0):
    for g_ in groups(st.ops):
        TL.append((int(pos), g_))
        if any(o.kind in VMEMK for o in g_): pos += step
    return pos
def place_spread(p0_, p1_, st):
    gs = groups(st.ops); tot = float(sum(gcost(g_) for g_ in gs)); acc = 0
    for g_ in gs:
        TL.append((int(p0_ + (p1_ - p0_) * acc / tot), g_)); acc += gcost(g_)
FUP = opt("fup", 0); GAP = opt("gap", 0); E6 = opt("e6", 6)
f = Stream(); flag_store(f, sFU, "ust"); place(FUP, f)
pos = 1
for t in range(2, 7):
    if t >= 4: pos = max(pos, 16 * (t - 3) - 3)
    f = Stream()
    if t == opt("hct", 6): f.extend(hc); HCP = pos + 4
    st_issue(f, t)
    for g_ in groups(f.ops):
        if FUP + 16 <= pos < FUP + 16 + GAP: pos = FUP + 16 + GAP
        TL.append((int(pos), g_)); pos += 2
    assert pos < 16 * t - 4
if opt("hct", 6) == 7: pos = place(pos, hc); HCP = pos
if opt("hct", 6) == 0: HCP = 0
f = Stream(); up_issue(f); place(opt("upp", 58), f)
UCB = opt("ucb", 6)
ULP = 16 * UCB - 3
for k in range(E6 + 1):
    if ULP and (pos >= ULP or k == E6): pos = place(max(pos, ULP), ul); ULP = 0
    if k == E6: break
    pos = max(pos, [64, 80, 80, 96, 96][k // 2] - 3)
    f = Stream(); w2_issue(f, k); pos = place(pos, f)
print("G1 vmem end pos", pos, "hc", HCP, file=sys.stderr)
f = Stream()
f("v_lshlrev_b32 v%d, 3, v%d" % (vTK[3], L))
f("v_bfe_u32 v%d, v%d, v%d, 8" % (vTK[3], vTAG, vTK[3]))
f("v_lshl_or_b32 v%d, v%d, 15, v%d" % (vTK[3], vTK[3], vTK[3]))
f("v_and_b32 v%d, %s, v%d" % (vTK[0], sMSK, vTK[3]))
for k in range(1, 4):
    f("v_lshrrev_b32 v%d, %d, v%d" % (vTK[k], 2 * k, vTK[3])); f("v_and_b32 v%d, %s, v%d" % (vTK[k], sMSK, vTK[k]))
place_spread(100, 110, f)
HPG = opt("hpg", 2)
if HPG == 0:
    place_spread(64, 76, hz); place_spread(max(HCP + 8, 84), 107, hp)
elif HPG == 2:
    f = Stream(); f.ops = [o for o in hz.ops[3:] + hp.ops if o.kind != "ds"]; place_spread(max(HCP + 8, 84), 107, f)
    hz.ops = hz.ops[:3]; hp.ops = [o for o in hp.ops if o.kind == "ds"]
p0pre = Stream()
p0pre("s_waitcnt lgkmcnt(0)")
p0pre("s_add_u32 s82, s82, 0x%x" % TAG_INC); p0pre("s_mov_b32 s16, s83"); p0pre("s_mov_b32 s83, s82"); p0pre("v_mov_b32 v%d, s82" % vTAG)
if opt("hct", 6) == 0: p0pre.extend(hc)
WARM = opt("warm", 1)
def warm(s):
    s.begin(); s("s_mov_b64 exec, 0"); s("s_branch L_stub0"); s("L_back:"); s("s_mov_b64 exec, -1"); s.end()
if WARM == 1: warm(p0pre)
fstamp(p0pre, 3)
p0pre.wait_vm("kv")
fstamp(p0pre, 3)
p0pre("s_barrier")
stamp(p0pre)
bm = Stream()
for i in range(2):
    for ft in range(2):
        bm("v_mfma_f32_32x32x16_bf16 %s, %s, %s, 0" % (vr(vACC[2 * i + ft], 16), vr(vB1, 4), vr(vONE + 4 * ft, 4)))
p0pre.extend(p0r)
p0pre("v_alignbit_b32 v%d, v%d, v%d, 16" % (vTR, vTP, vTP))
p0pre("v_alignbit_b32 v%d, v%d, v%d, 16" % (vTR + 1, vTP + 1, vTP + 1))
S1P = opt("s1p", 0)
if S1P:
    f = Stream(); st_issue(f, 1)
    p0x = Stream(); p0x.extend(p0); p0x.extend(p0b)
    p0pre.extend(spread(p0x, f, opt("s1lo", 0.0), 1.0, unit="any")); p0pre.extend(p0c)
else:
    p0pre.extend(p0); p0pre.extend(p0b); p0pre.extend(p0c)
if TP == 1: p0pre.extend(tch)
stamp(p0pre)
p0pre.extend(take(nB))
if WARM == 2: warm(p0pre)
p0pre.wait_vm("sm")
p0pre.extend(bm)
if not S1P: st_issue(p0pre, 1)
stamp(p0pre)
m.extend(p0pre)
rest = take(10000)
if rest.ops: place_spread(opt("rlo", 0), opt("rhi", 60), rest)
def bar(t):
    b_ = Stream()
    fstamp(b_, 1)
    if t < 7: b_.wait_vm("st%d" % t)
    elif HPG == 0: b_.wait_lgkm("hw")
    if t == UCB: b_.extend(uc)
    fstamp(b_, 1)
    b_("s_barrier")
    fstamp(b_, 1)
    return b_
m.extend(bar(0))
fstamp(m, 3)
for g_ in g1_reads(0): m.extend(g_)
s = Stream()
for kap in range(28):
    g1_kstep(s, kap, bar((kap + 1) // 4) if kap % 4 == 3 else None)
    if kap == 10: stamp(s)
    if opt("g1n", 0) and opt("g1e", 28) > kap >= opt("g1k", 0): s("s_nop %d" % (opt("g1n", 0) - 1))
TL.sort(key=lambda x: x[0])
k_ = -1; pend_ = []
for i_, o in enumerate(s.ops):
    if o.kind == "mfma":
        k_ += 1
        m.ops.append(o)
        if k_ % 16 == 12: continue
        while TL and TL[0][0] <= k_: m.ops.extend(TL.pop(0)[1])
    else: m.ops.append(o)
for _, g_ in TL: m.ops.extend(g_)
stamp(m)

def own(n): return vG1[0] + 8 * n
def hstore(s, n):
    s("buffer_store_dwordx4 %s, v%d, %s, %s offen offset:%d %s" % (vr(own(n), 4), vHV[n // 4], WS, tCB[0], 1024 * (n % 4), OPT.get("hfl", "sc1").replace("_", " ")), tag="hst%d" % (n // 4))
def gelu(n, pk):
    ge = Stream()
    x0 = own(n); T = vGT + 8 * (n % 2)
    if pk:
        for j in range(4): ge("v_pk_mul_f32 %s, %s, %s" % (vr(T + 2 * j, 2), vr(x0 + 2 * j, 2), vr(x0 + 2 * j, 2)))
        for j in range(4): ge("v_pk_fma_f32 %s, %s, %s, %s" % (vr(T + 2 * j, 2), vr(T + 2 * j, 2), sC1, vr(vC0, 2)))
        for j in range(4): ge("v_pk_mul_f32 %s, %s, %s" % (vr(T + 2 * j, 2), vr(T + 2 * j, 2), vr(x0 + 2 * j, 2)))
        for j in range(8): ge("v_exp_f32 v%d, v%d" % (T + j, T + j))
        for j in range(4): ge("v_pk_add_f32 %s, %s, 1.0 op_sel_hi:[1,0]" % (vr(T + 2 * j, 2), vr(T + 2 * j, 2)))
        for j in range(8): ge("v_rcp_f32 v%d, v%d" % (T + j, T + j))
        for j in range(4): ge("v_pk_mul_f32 %s, %s, %s" % (vr(T + 2 * j, 2), vr(T + 2 * j, 2), vr(x0 + 2 * j, 2)))
    else:
        for j in range(8): ge("v_mul_f32 v%d, v%d, v%d" % (T + j, x0 + j, x0 + j))
        for j in range(8): ge("v_fma_f32 v%d, v%d, s64, v%d" % (T + j, T + j, vC0))
        for j in range(8): ge("v_mul_f32 v%d, v%d, v%d" % (T + j, T + j, x0 + j))
        for j in range(8): ge("v_exp_f32 v%d, v%d" % (T + j, T + j))
        for j in range(8): ge("v_add_f32 v%d, 1.0, v%d" % (T + j, T + j))
        for j in range(8): ge("v_rcp_f32 v%d, v%d" % (T + j, T + j))
        for j in range(8): ge("v_mul_f32 v%d, v%d, v%d" % (T + j, T + j, x0 + j))
    for j in range(4): ge("v_cvt_pk_bf16_f32 v%d, v%d, v%d" % (x0 + j, T + 2 * j, T + 2 * j + 1))
    hstore(ge, n)
    return ge
aCF = 0
def conv_readsA(r):
    s = Stream(); base = aCF + 32 * (r & 1)
    for a in range(4):
        off = 128 * (8 * a + r)
        s("ds_read_b64_tr_b16 %s, v%d offset:%d" % (ar(base + 8 * a, 2), vCA, off + 32), tag="c%d" % r)
        s("ds_read_b64_tr_b16 %s, v%d offset:%d" % (ar(base + 8 * a + 2, 2), vCA, off), tag="c%d" % r)
    return s
def conv_readsB(r):
    s = Stream(); base = aCF + 32 * (r & 1)
    for i in range(4):
        s("ds_read_b128 %s, v%d offset:%d" % (ar(base + 8 * i + 4, 4), vCB, 32 * (8 * i - r + 7)), tag="c%d" % r)
    return s
NP = opt("np", 4); EG = opt("eg", 10)
g1s = Stream()
for n in range(NP):
    g1s.ops.extend(gelu(n, True).ops)
    if n < NP - 1: fstamp(g1s, 5)
gf = Stream()
for k in range(E6, EG): w2_issue(gf, k)
g1s = spread(g1s, gf, 0.0, 0.9, unit="any")
if HPG:
    gf = Stream(); gf.extend(hz); gf.extend(hp)
    g1s = spread(g1s, gf, 0.0, 0.6, unit="any")
gf = Stream()
fstamp(gf, 5)
if HPG: gf.wait_lgkm("hw"); gf("s_barrier")
fstamp(gf, 5)
gf.extend(conv_readsA(0))
fstamp(gf, 5)
gf.wait_vm("ul")
fstamp(gf, 5)
for q in range(2):
    gf("ds_write2_b64 v%d, %s, %s offset0:%d offset1:%d" % (vUWA, vr(vUL + 4 * q, 2), vr(vUL + 4 * q + 2, 2), 64 * q, 64 * q + 160), tag="uw")
gf.extend(conv_readsB(0))
m.extend(spread(g1s, gf, opt("ulo", 0.8), 0.95, unit="any"))
stamp(m)

RING = [("a", 224 + 4 * i) for i in range(8)] + [("v", vG1[0] + 8 * i + 4) for i in range(8)]
NR = len(RING)
POOL = [[f, b, -1] for f, b in RING]
if opt("xr", 1): POOL += [["a", aW2(k) + 4 * t, 28 + k] for k in range(8) for t in range(2)]
HL = [n for n in range(56) if n % 28 >= 4]
HREG = {}
def hreg(n):
    if n % 28 < 4: return vr(own(4 * (n // 28) + n % 28), 4)
    return HREG[n]
hnext = [0]
def h_issue(s, now=0, lim=56):
    if hnext[0] >= len(HL) or HL[hnext[0]] >= lim: return
    fr = [x for x in POOL if x[2] < now]
    if not fr: return
    n = HL[hnext[0]]; hnext[0] += 1
    sl = min(fr, key=lambda x: x[2]); sl[2] = n
    HREG[n] = "%s[%d:%d]" % (sl[0], sl[1], sl[1] + 3)
    k = n % 28
    s("buffer_load_dwordx4 %s, v%d, %s, %s offen offset:%d sc1" % (hreg(n), vHV[n // 28], WS, tCB[k // 4], 1024 * (k % 4)), tag="h%d" % n)
def conv_mf(s, r, a, i):
    base = aCF + 32 * (r & 1); j = a + i
    c = "0" if (r == 0 and a == 0) else vr(vCC[j], 16)
    s("v_mfma_f32_32x32x16_bf16 %s, %s, %s, %s" % (vr(vCC[j], 16), ar(base + 8 * a, 4), ar(base + 8 * i + 4, 4), c))
def y_out(j):
    s = Stream(); R = vCC[j]
    for v in range(8): s("v_permlane16_swap_b32 v%d, v%d" % (R + v, R + v + 8))
    for v in range(2, 8): s("v_add_f32 v%d, v%d, v%d" % (R + v, R + v, R + 6 + v))
    s("ds_write_b64 v%d, %s offset:%d" % (vYC, vr(R + 14, 2), 512 * j), tag="yw")
    s("ds_write_b128 v%d, %s offset:%d" % (vYM, vr(R, 4), 2304 * j), tag="yw")
    s("ds_write_b128 v%d, %s offset:%d" % (vYM, vr(R + 4, 4), 2304 * j + 16), tag="yw")
    return s
def hflag(s, i):
    flag_store(s, sFH, "hst%d" % i)
    if opt("ht", 1):
        s.begin()
        s("s_mov_b32 %s, 0" % ("exec_hi" if i == 0 else "exec_lo"))
        s("buffer_load_dword v252, v%d, %s, %s offen sc1" % (vHT, WS, tCB[0]), tag="ht")
        s("s_mov_b32 %s, -1" % ("exec_hi" if i == 0 else "exec_lo"))
        s.end()
    if i == 0: s("s_add_u32 %s, %s, %d" % (sFH, sFH, FHS))
F0, PB, HB, HPB = opt("f0", 2), opt("pb", 5), opt("hb", 7), opt("hpb", 8)
cv = Stream()
WPB = opt("wpb", 2)
WBB = opt("wbb", 5)
PRE = opt("pre", 14); PRS = opt("prs", 10)
wnext = EG
rnext = [0]
for r in range(7):
    s = Stream()
    s.wait_lgkm("c%d" % r)
    for a in range(4):
        for i in range(4 - a): conv_mf(s, r, a, i)
    rd = conv_readsA(r + 1); rd.extend(conv_readsB(r + 1))
    s = spread(s, rd, 0.0, 0.7)
    f = Stream()
    if r in (2, 4): fstamp(cv)
    if r in (1, 2, 3, 4, 5): fstamp(cv, 6)
    if r == WBB:
        WBK = 2 * ((PRE + 3) // 4) - 1
        assert wnext > WBK
        cv.wait_vm("w2_%d" % WBK); cv("s_barrier")
    if r == HB: spoll_check(cv, 7, sPH, "ph0"); cv("s_add_u32 %s, %s, %d" % (sPH, sPH, FHS))
    if r == F0: hflag(f, 0)
    if r == PB: spoll_issue(f, 8, sPH)
    if r == -opt("f1", -7): hflag(f, 1)
    for _ in range(WPB):
        if wnext < 14: w2_issue(f, wnext); wnext += 1
    if r == 4:
        f("buffer_load_dwordx4 %s, v%d, %s, 0 offen" % (vr(vQ[0], 4), vQO, Q), tag="q")
        f("buffer_load_dwordx4 %s, v%d, %s, %s offen" % (vr(vQ[1], 4), vQO, Q, sQ1), tag="q")
    if r >= HB:
        for _ in range(HPB): h_issue(f)
    s = spread(s, f, 0.0, 1.0)
    if r >= WBB:
        f = Stream()
        while rnext[0] < PRE * (r + 1 - WBB) // (7 - WBB): w2_reads(f, rnext[0]); rnext[0] += 1
        s = spread(s, f, 0.0, 1.0)
    cv.extend(s)
assert wnext == 14
ge = Stream()
for n in range(NP, 8): ge.ops.extend(gelu(n, False).ops)
m.extend(spread(cv, ge, 0.0, opt("ghi", 0.7)))
fstamp(m); fstamp(m, 6)
if HB == 7: spoll_check(m, 7, sPH, "ph0"); m("s_add_u32 %s, %s, %d" % (sPH, sPH, FHS))
fstamp(m, 6)
if opt("f1", -7) == -7: hflag(m, 1)
fstamp(m, 6)
m.wait_lgkm("c7")
mf = Stream()
for j in range(4):
    for a in range(j + 1): conv_mf(mf, 7, a, j - a)
f = Stream()
if HB <= 7:
    for _ in range(HPB): h_issue(f)
zc = Stream(); zc("v_mov_b32 v%d, %s" % (vT[4], sRW)); zc("s_mov_b64 exec, 1"); zc("ds_write_b64 v%d, %s offset:%d" % (vT[4], vr(vZ4, 2), R_CY), tag="yw"); zc("s_mov_b64 exec, -1")
fg = groups(f.ops)
y0, y1, y2 = y_out(0).ops, y_out(1).ops, y_out(2).ops
plan = {0: zc.ops + sum(fg[:2], []), 1: sum(fg[2:4], []), 2: y0[:6], 3: y0[6:12], 4: y0[12:] + y1[:3], 5: y1[3:9], 6: y1[9:15], 7: y1[15:] + y2[:4], 8: y2[4:8] + sum(fg[4:6], []), 9: sum(fg[6:], [])}
for k_, o in enumerate(mf.ops):
    m.ops.append(o); m.ops.extend(plan[k_])
stamp(m)

vA2 = vCC
def g2_mf(s, n, t):
    sg, k = n // 28, n % 28
    c = "0" if k == 0 else vr(vA2[2 * sg + t], 16)
    s("v_mfma_f32_32x32x16_bf16 %s, %s, %s, %s" % (vr(vA2[2 * sg + t], 16), ar(aW2(k) + 4 * t, 4), "HREG", c), tag=(n, t))
def g2_seg(n0, n1, lim=None):
    s = Stream()
    for n in range(n0, n1):
        if n in HL: s.wait_vm("h%d" % n)
        if n < 28: s.wait_lgkm("w2r%d" % n)
        rd = Stream()
        if n >= PRS:
            for _ in range(2):
                if rnext[0] < 28 and rnext[0] < n + opt("pra", 6): w2_reads(rd, rnext[0]); rnext[0] += 1
        hl_ = len(rd.ops) // 2
        for t in range(2):
            g2_mf(s, n, t)
            s.ops.extend(rd.ops[hl_ * t:hl_ * t + hl_])
    return s
G2START = len(m.ops)
def pace():
    ops = m.ops[G2START:]; m.ops = m.ops[:G2START]
    RATE = opt("rate", 0.5); CRED = opt("cred", 1.0); MINA = opt("mina", 12)
    lim = 28 if HB <= 7 else 0
    cred = CRED; donet = set()
    for i, o in enumerate(ops):
        if o.text == "L_ok_ph0:": lim = 28
        if o.text == "L_ok_ph1:": lim = 56
        if o.kind == "mfma" and "HREG" in o.text:
            n, t = o.tag
            o.text = o.text.replace("HREG", hreg(n)); o.tag = None; analyze(o)
            m.ops.append(o); donet.add((n, t))
            now = 0
            while (now, 0) in donet and (now, 1) in donet: now += 1
            cred = min(cred + RATE, CRED + RATE)
            j = i + 1; nv = 0
            while j < len(ops) and ops[j].kind != "mfma":
                nv += ops[j].kind in VMEMK; j += 1
            urgent = hnext[0] < len(HL) and HL[hnext[0]] - n <= MINA
            if cred - nv >= 1 or urgent:
                k0 = len(m.ops); h_issue(m, now, lim)
                if len(m.ops) > k0: cred -= 1
            continue
        if o.kind in VMEMK: cred -= 1
        m.ops.append(o)
    assert hnext[0] == len(HL)
def unpack(s, dst, src):
    for j in range(4):
        s("v_lshlrev_b32 v%d, 16, v%d" % (dst[2 * j], src + j)); s("v_and_b32 v%d, 0xffff0000, v%d" % (dst[2 * j + 1], src + j))
ce = Stream()
ce.ops.extend(y2[8:])
ce.extend(y_out(3))
ce.wait_vm("w2_13")
ce.wait_lgkm("yw")
ce("s_barrier")
NY = opt("ny", 6)
NZ = opt("nz", 12); F1 = opt("f1", -7); P1 = opt("p1", 13); PH1 = opt("ph1", 24); GP = opt("gp", 12)
assert PRS >= NY
sg0 = spread(g2_seg(0, NY), ce, 0.0, 1.0)
fstamp(sg0)
ce = Stream()
for q in range(2):
    b = vEPB + 16 * q
    for y in range(2):
        ce("ds_read_b64 %s, v%d offset:%d" % (vr(vT[4 * q + 2 * y], 2), vYRC, 512 * q + RSZ * y), tag="yr%d" % q)
        for hf in range(2):
            ce("ds_read_b128 %s, v%d offset:%d" % (vr(b + 8 * y + 4 * hf, 4), vYR, 2304 * q + RSZ * y + 16 * hf), tag="yr%d" % q)
for q in range(2):
    ce.wait_lgkm("yr%d" % q)
    b = vEPB + 16 * q
    for j in range(2): ce("v_add_f32 v%d, v%d, v%d" % (vT[4 * q + j], vT[4 * q + j], vT[4 * q + 2 + j]))
    for j in range(8): ce("v_add_f32 v%d, v%d, v%d" % (b + j, b + j, b + 8 + j))
    for j in range(2): ce("v_add_f32 v%d, v%d, v%d" % (b + j, b + j, vT[4 * q + j]))
    for j in (1, 2, 3, 0): ce("v_cvt_pk_f16_f32 v%d, v%d, v%d" % (b + 8 + j, b + 2 * j, b + 2 * j + 1))
    tag_put(ce, list(range(b + 8, b + 12)))
for q in range(2):
    ce("buffer_store_dwordx4 %s, v%d, %s, %s offen offset:%d sc1" % (vr(vEPB + 16 * q + 8, 4), vL16, WS, sZB, 1024 * q), tag="zst")
sg0.extend(spread(g2_seg(NY, NZ), ce, 0.0, 1.0))
stamp(sg0)
vB2F = list(range(vEPB + 16, vEPB + 24))
vQF = [own(k // 4) + k % 4 for k in range(16)]
f = Stream()
f("v_add_u32 v%d, %d, v%d" % (vT[3], L_PB0, vPW)); f("v_add_u32 v%d, %d, v%d" % (vT[2], L_PB0, vPRD))
unpack(f, vB2F, vB2)
f("s_barrier")
sg0.extend(spread(g2_seg(NZ, 28), f, 0.0, 0.8))
def at(seg, n, f):
    for i, o in enumerate(seg.ops):
        if o.kind == "mfma" and o.tag == (n - 1, 1):
            seg.ops[i + 1:i + 1] = f.ops; return
    assert n == 0; seg.ops[0:0] = f.ops
f = Stream(); fstamp(f); spoll_check(f, 7, sPH, "ph1"); at(sg0, PH1, f)
gi = Stream(); gran_issue(gi, vG[0], vGA, 0, "pg0"); gran_issue(gi, vG[1], vGA, 256, "pg1")
if GP <= 28: at(sg0, GP, gi)
f = Stream(); spoll_issue(f, 8, sPH); at(sg0, P1, f)
if F1 >= 0: f = Stream(); hflag(f, 1); at(sg0, F1, f)
m.extend(sg0)
stamp(m)
def part_write(s, sg, ts=(0, 1)):
    for t in ts:
        for a in range(4):
            s("ds_write_b128 v%d, %s offset:%d" % (vT[3] if sg == 0 else vPW, vr(vA2[2 * sg + t] + 4 * a, 4), 128 * t + 32 * a), tag="pw%d" % sg)
def red_reads(s, sg, E):
    for w in range(4):
        for hf in range(2):
            s("ds_read_b128 %s, v%d offset:%d" % (vr(E + 8 * w + 4 * hf, 4), vT[2] if sg == 0 else vPRD, PB_SZ * w + 16 * hf), tag="pr%d_%d" % (sg, w // 2))
N1, N2, N3, N4 = opt("n1", 33), opt("n2", 39), opt("n3", 44), opt("n4", 48)
E = vA2[0]
vZL = vEPB
def z_issue(s):
    for g_ in range(2):
        s("buffer_load_dwordx4 %s, v%d, %s, %s offen sc1" % (vr(vZL + 4 * g_, 4), vZA, WS, sZ8 if g_ else "0"), tag="pz")
vP = E
def p_issue(s):
    for q in range(2):
        s("buffer_load_dwordx4 %s, v%d, %s, %s offen offset:%d sc1" % (vr(vP + 4 * q, 4), vL16, WS, sPR, 1024 * q), tag="pp")
f = Stream(); part_write(f, 0); f.wait_lgkm("pw0"); f("s_barrier")
sg1 = spread(g2_seg(28, N1), f, 0.1, 1.0)
fstamp(sg1)
f = Stream(); red_reads(f, 0, E)
for rh in range(2):
    b = E + 16 * rh
    f.wait_lgkm("pr0_%d" % rh)
    for j in range(8): f("v_add_f32 v%d, v%d, v%d" % (b + j, b + j, b + 8 + j))
    for j in range(8): f("v_add_f32 v%d, v%d, v%d" % (b + j, b + j, vB2F[j]))
    for j in range(4): f("v_cvt_pk_f16_f32 v%d, v%d, v%d" % (b + 8 + j, b + 2 * j, b + 2 * j + 1))
    tag_put(f, list(range(b + 8, b + 12)))
    f("buffer_store_dwordx4 %s, v%d, %s, %s offen offset:%d sc1" % (vr(b + 8, 4), vL16, WS, sPS, 1024 * rh), tag="pst")
sg1.extend(spread(g2_seg(N1, N2), f, 0.0, 1.0))
fstamp(sg1)
fq = Stream()
gran_check(fq, vG[0], vGA, 0, "pg0"); gran_check(fq, vG[1], vGA, 256, "pg1")
for rh in range(2):
    for j in range(8): fq("v_mul_f32 v%d, v%d, v%d" % (vQF[8 * rh + j], vQF[8 * rh + j], vG[rh]))
    fq("v_sub_f32 v%d, 1.0, v%d" % (vG[rh], vG[rh]))
f = Stream()
for rh in range(2): unpack(f, vQF[8 * rh:8 * rh + 8], vQ[rh])
if GP <= 28: f.extend(fq)
tag_check(f, z_issue, list(range(vZL, vZL + 8)), "pz")
f("ds_write_b128 v%d, %s" % (vZW, vr(vZL, 4)), tag="zw")
f("ds_write_b128 v%d, %s offset:1024" % (vZW, vr(vZL + 4, 4)), tag="zw")
if GP > 28: f.extend(fq)
for i in range(4):
    f("ds_read_b64_tr_b16 %s, v%d offset:%d" % (vr(vZL + 24 + 2 * i, 2), vZT, 512 * i), tag="zr")
s = g2_seg(N2, N4)
for n in range(N4, 56):
    s.wait_vm("h%d" % n); g2_mf(s, n, 0)
sg1.extend(spread(s, f, opt("zlo", 0.0), 1.0))
if GP > 28: at(sg1, GP, gi)
f = Stream(); z_issue(f); at(sg1, opt("zp", 32), f)
m.extend(sg1)
fstamp(m)
s = Stream()
for n in range(N4, 56): g2_mf(s, n, 1)
f = Stream()
f.wait_lgkm("zr")
f("ds_write_b128 v%d, %s" % (vZTW, vr(vZL + 24, 4)), tag="zw2")
f("ds_write_b128 v%d, %s offset:16" % (vZTW, vr(vZL + 28, 4)), tag="zw2")
part_write(f, 1, (0,))
s = spread(s, f, 0.0, 1.0)
f = Stream(); p_issue(f)
m.extend(spread(s, f, opt("plo", 0.0), opt("plo", 0.0) + 0.5))
stamp(m)
part_write(m, 1, (1,))
m.wait_lgkm("pw1")
m("s_barrier")
stamp(m)
m("ds_read_b128 %s, v%d" % (vr(vT[0], 4), vZR), tag="zt")
m("ds_read_b128 %s, v%d offset:%d" % (vr(vT[4], 4), vZR, 32 * 144), tag="zt")
E1 = vA2[2]
red_reads(m, 1, E1)
m.wait_lgkm("zt")
def mix(s, d, h16, j, a, c):
    s("v_fma_mix_f32 v%d, v%d, %s, %s op_sel:[%d,0,0] op_sel_hi:[1,0,0]" % (d, h16 + j // 2, a, c, j & 1))
for rh in range(2):
    for j in range(8): mix(m, vZL + 8 * rh + j, vT[4 * rh], j, "v%d" % vQF[8 * rh + j], "0")
for rh in range(2):
    b = E1 + 16 * rh
    m.wait_lgkm("pr1_%d" % rh)
    for kh in range(2):
        for j in range(4): m("v_pk_fma_f32 %s, %s, %s, %s op_sel_hi:[1,0,1]" % (vr(vZL + 8 * rh + 2 * j, 2), vr(b + 8 * kh + 2 * j, 2), vr(vG[rh], 2), vr(vZL + 8 * rh + 2 * j, 2)))
tag_check(m, p_issue, list(range(vP, vP + 8)), "pp")
for rh in range(2):
    b = vZL + 8 * rh
    for j in range(8): mix(m, b + j, vP + 4 * rh, j, "v%d" % vG[rh], "v%d" % (b + j))
    for j in range(4): m("v_cvt_pk_bf16_f32 v%d, v%d, v%d" % (E1 + 4 * rh + j, b + 2 * j, b + 2 * j + 1))
    m("buffer_store_dwordx4 %s, v%d, %s, %s offen" % (vr(E1 + 4 * rh, 4), vQO, OUT, "0" if rh == 0 else sQ1), tag="ost")
stamp(m)
pace()
print("vgprs used:", va.n, vc.n, "ring", NR, file=sys.stderr)

def stamp_out(s):
    if not STAMP: return
    s("s_waitcnt vmcnt(0)")
    stamp(s)
    nstamp[0] = 40
    stamp(s, rt=True)
    if AT >= 0:
        if (s is m) == (AT >= 100): return
        s("v_readlane_b32 s40, v%d, %d" % (vSTA, AT % 100))
        s("s_add_u32 s40, s40, 1600")
        if PROBE:
            s("v_readlane_b32 s41, v%d, 42" % vSTA); s("s_mul_i32 s41, s41, 3"); s("s_add_u32 s40, s40, s41")
        s("L_cal:")
        s("s_memrealtime s[42:43]")
        s("s_waitcnt lgkmcnt(0)")
        s("s_sub_u32 s41, s42, s40")
        s("s_cmp_lt_i32 s41, 0")
        s("s_cbranch_scc1 L_cal")
        return
    if DBG:
        if s is not m: return
        sel = [int(x) for x in OPT.get("sel", "2,4,6,7,8,9,10,11,12,13,14,15").split(",")]
        s("v_readlane_b32 s40, v%d, 1" % vSTA)
        for k, idx in enumerate(sel):
            s("v_readlane_b32 s41, v%d, %d" % (vSTA, idx))
            s("s_sub_u32 s41, s41, s40")
            s("v_writelane_b32 v%d, s41, %d" % (vT[0], k))
        s("v_readlane_b32 s41, v%d, 40" % vSTA); s("v_writelane_b32 v%d, s41, 13" % vT[0])
        s("v_readlane_b32 s41, v%d, 41" % vSTA); s("v_writelane_b32 v%d, s41, 14" % vT[0])
        s("s_not_b32 s41, s41"); s("v_writelane_b32 v%d, s41, 15" % vT[0])
        s("v_lshlrev_b32 v%d, 2, v%d" % (vT[1], vLANE))
        s("v_add_co_u32 v62, vcc, v62, v%d" % vT[1])
        s("v_addc_co_u32 v63, vcc, 0, v63, vcc")
        s("s_mov_b64 exec, 0x%x" % ((1 << len(sel)) - 1))
        s("global_atomic_add v[62:63], v%d, off sc1" % vT[0])
        s("s_mov_b64 exec, 0xe000")
        s("global_atomic_umax v[62:63], v%d, off sc1" % vT[0])
        return
    slin(s, sT0, [("s2", 1024), (sW, 256)], WS_STAMP)
    s("v_lshlrev_b32 v%d, 2, v%d" % (vT[0], vLANE))
    s("buffer_store_dword v%d, v%d, %s, %s offen" % (vSTA, vT[0], WS, sT0))
stamp_out(m)
m("s_endpgm")

g = Stream(); g_stream[0] = g
g("L_spare:")
g("s_cmp_ge_u32 s2, 256")
g("s_cbranch_scc1 L_end")
if STAMP: g("v_mov_b32 v%d, 0" % vSTA)
for nm, nb in ((Q, NB), (W1, NW), (WS, WS_SIZE), (W2, NW), (SSM, NB)): srd23(g, nm, nb)
g("s_waitcnt lgkmcnt(0)")
g("s_mov_b64 s[8:9], s[40:41]"); g("s_mov_b64 s[24:25], s[54:55]"); g("s_mov_b64 s[20:21], s[48:49]")
g("s_mov_b64 s[36:37], s[68:69]"); g("s_mov_b64 s[28:29], s[58:59]")
nstamp[0] = 0
stamp(g, rt=True); stamp(g)
if STAMP: g("v_writelane_b32 v%d, s32, 41" % vSTA)
g("v_mov_b32 v12, 0")
g("buffer_load_dword v%d, v12, %s, 0 offen sc1" % (vTAG, WS))
sJ = sA
if opt("tlb", 0):
    g("v_lshlrev_b32 v12, 16, v0")
    if opt("tlb", 0) == 2: g("s_mov_b32 exec_lo, 1"); g("s_mov_b32 exec_hi, 1")
    g("buffer_load_dword v13, v12, %s, 0 offen offset:%d" % (WS, 3968))
    g("s_mov_b64 exec, -1")
def pf_part():
    g("s_sub_u32 %s, %s, 28" % (sT0, sI)); g("s_lshl_b32 %s, %s, 2" % (sT0, sT0)); g("s_add_u32 %s, %s, %s" % (sT0, sT0, sW))
    g("v_lshrrev_b32 v12, 1, v%d" % vLANE); g("v_mul_u32_u24 v12, 3584, v12")
    g("v_and_b32 v13, 1, v%d" % vLANE); g("v_lshl_add_u32 v12, v13, 7, v12")
    g("s_and_b32 %s, %s, 1" % (sCH, sX)); g("s_mul_i32 %s, %s, %d" % (sCH, sCH, 7 * 256))
    g("L_pf1:")
    g("s_lshr_b32 %s, %s, 1" % (sT1, sT0))
    g("s_mul_i32 %s, %s, 147" % (sT2, sT1)); g("s_lshr_b32 %s, %s, 10" % (sT2, sT2))
    g("s_mul_i32 %s, %s, 7" % (sT3, sT2)); g("s_sub_u32 %s, %s, %s" % (sT1, sT1, sT3))
    g("s_lshl_b32 %s, %s, 1" % (sT2, sT2)); g("s_add_u32 %s, %s, %s" % (sT2, sT2, sT1)); g("s_add_u32 %s, %s, 1" % (sT2, sT2))
    g("s_cmp_ge_u32 %s, 7" % sT2); g("s_cselect_b32 %s, 7, 0" % sT3); g("s_sub_u32 %s, %s, %s" % (sT2, sT2, sT3))
    g("s_lshl_b32 %s, %s, 1" % (sT2, sT2)); g("s_and_b32 %s, %s, 1" % (sT3, sT0)); g("s_add_u32 %s, %s, %s" % (sT2, sT2, sT3))
    g("s_mul_i32 %s, %s, %d" % (sT2, sT2, 32 * 3584))
    g("s_lshl_b32 %s, %s, 8" % (sT1, sT1)); g("s_add_u32 %s, %s, %s" % (sT2, sT2, sT1)); g("s_add_u32 %s, %s, %s" % (sT2, sT2, sCH))
    g("buffer_load_dword v13, v12, %s, %s offen" % (W1, sT2))
    g("s_add_u32 %s, %s, 16" % (sT0, sT0))
    g("s_cmp_lt_u32 %s, 42" % sT0)
    g("s_cbranch_scc1 L_pf1")
    g("s_sub_u32 %s, %s, 42" % (sT0, sT0))
    fstamp(g, 4)
    if opt("pfs", 1):
        g("v_lshlrev_b32 v12, 7, v%d" % vLANE)
        g("s_lshr_b32 %s, %s, 1" % (sCH, sX)); g("s_lshl_b32 %s, %s, 16" % (sCH, sCH)); g("s_and_b32 %s, %s, 1" % (sT1, sX)); g("s_lshl_b32 %s, %s, 13" % (sT1, sT1))
        g("s_add_u32 %s, %s, %s" % (sCH, sCH, sT1))
        g("L_pfs:")
        g("s_and_b32 %s, %s, 3" % (sT1, sT0)); g("s_lshl_b32 %s, %s, 14" % (sT1, sT1))
        g("s_lshr_b32 %s, %s, 2" % (sT2, sT0)); g("s_lshl_b32 %s, %s, 18" % (sT2, sT2))
        g("s_add_u32 %s, %s, %s" % (sT1, sT1, sT2)); g("s_add_u32 %s, %s, %s" % (sT1, sT1, sCH))
        g("buffer_load_dword v13, v12, %s, %s offen" % (SSM, sT1))
        g("s_add_u32 %s, %s, 16" % (sT0, sT0))
        g("s_cmp_lt_u32 %s, 28" % sT0)
        g("s_cbranch_scc1 L_pfs")
        g("s_sub_u32 %s, %s, 28" % (sT0, sT0))
    fstamp(g, 4)
    g("v_mul_u32_u24 v12, 896, v%d" % vLANE)
    g("s_and_b32 %s, %s, 1" % (sCH, sX)); g("s_mul_i32 %s, %s, %d" % (sCH, sCH, 7 * CBS))
    g("s_lshr_b32 %s, %s, 1" % (sROT, sX)); g("s_mul_i32 %s, %s, 3" % (sROT, sROT)); g("s_add_u32 %s, %s, 1" % (sROT, sROT)); g("s_and_b32 %s, %s, 14" % (sROT, sROT))
    g("L_pf:")
    g("s_mul_i32 %s, %s, 147" % (sT2, sT0)); g("s_lshr_b32 %s, %s, 10" % (sT2, sT2))
    g("s_mul_i32 %s, %s, 7" % (sT3, sT2)); g("s_sub_u32 %s, %s, %s" % (sT1, sT0, sT3))
    if ROTX:
        g("s_add_u32 %s, %s, %s" % (sT3, sT2, sROT)); g("s_cmp_ge_u32 %s, 14" % sT3); g("s_cselect_b32 %s, 12, 0" % sHB); g("s_sub_u32 %s, %s, %s" % (sT3, sT3, sHB))
        g("s_cmp_ge_u32 %s, 2" % sT2); g("s_cselect_b32 %s, %s, %s" % (sT2, sT3, sT2))
    g("s_lshl_b32 %s, %s, 1" % (sT3, sT1)); g("s_add_u32 %s, %s, %s" % (sT2, sT2, sT3))
    g("s_cmp_ge_u32 %s, 14" % sT2); g("s_cselect_b32 %s, 14, 0" % sT3); g("s_sub_u32 %s, %s, %s" % (sT2, sT2, sT3))
    g("s_mul_i32 %s, %s, %d" % (sT2, sT2, CBS // 2)); g("s_lshl_b32 %s, %s, 7" % (sT1, sT1))
    g("s_add_u32 %s, %s, %s" % (sT1, sT1, sT2)); g("s_add_u32 %s, %s, %s" % (sT1, sT1, sCH))
    g("buffer_load_dword v13, v12, %s, %s offen" % (W2, sT1))
    g("s_add_u32 %s, %s, 16" % (sT0, sT0))
    g("s_cmp_lt_u32 %s, 98" % sT0)
    g("s_cbranch_scc1 L_pf")
    fstamp(g, 4)
    if opt("fine", 0) == 4: g("s_waitcnt vmcnt(0)")
    fstamp(g, 4)
def gate_loads():
    g("s_sub_u32 %s, %s, 28" % (sJ, sI)); g("s_lshl_b32 %s, %s, 2" % (sT0, sX)); g("s_add_u32 %s, %s, %s" % (sJ, sJ, sT0))
    slin(g, sT0, [(sJ, 64), (sW, 16)])
    g("v_lshrrev_b32 v11, 3, v%d" % vLANE); g("v_add_u32 v11, %s, v11" % sT0)
    g("v_and_b32 v15, 7, v%d" % vLANE); g("v_lshlrev_b32 v15, 4, v15")
    g("v_mul_u32_u24 v14, 896, v11"); g("v_add_u32 v14, v14, v15")
    g("s_mov_b32 %s, %d" % (sT1, 8 * 896))
    for i in range(7):
        g("global_load_dwordx4 v[%d:%d], v15, %s offset:%d" % (80 + 4 * i, 83 + 4 * i, P_GATE, 128 * i), tag="gq")
    for i in range(14):
        g("buffer_load_dwordx4 v[%d:%d], v14, %s, %s offen offset:%d" % (16 + 4 * i, 19 + 4 * i, Q, sT1 if i >= 7 else "0", 128 * (i % 7)), tag="gq")
def gate_fin():
    g("s_waitcnt vmcnt(0)")
    g("v_add_u32 v%d, 0x%x, v%d" % (vTAG, TAG_INC, vTAG))
    for i in range(56):
        acc = 140 + 2 * (i // 28) + (i % 2)
        g("v_dot2_f32_bf16 v%d, v%d, v%d, %s" % (acc, 16 + i, 80 + i % 28, "0" if i % 28 < 2 else "v%d" % acc))
    g("v_add_f32 v140, v140, v141"); g("v_add_f32 v142, v142, v143")
    for ctl in ("quad_perm:[1,0,3,2]", "quad_perm:[2,3,0,1]", "row_half_mirror"):
        for r_ in (140, 142): g("v_add_f32_dpp v%d, v%d, v%d %s row_mask:0xf bank_mask:0xf" % (r_, r_, r_, ctl))
    g("v_and_b32 v15, 1, v%d" % vLANE); g("v_cmp_eq_u32 vcc, 1, v15")
    g("v_cndmask_b32 v140, v140, v142, vcc")
    g("v_mul_f32 v140, 0x%x, v140" % f2u(-math.log2(math.e)))
    g("v_exp_f32 v140, v140"); g("v_add_f32 v140, 1.0, v140"); g("v_rcp_f32 v140, v140")
    g("v_mov_b32 v141, v%d" % vTAG)
    g("v_lshl_add_u32 v11, v15, 3, v11")
    g("v_lshlrev_b32 v11, 3, v11"); g("v_add_u32 v11, 0x%x, v11" % WS_G)
    g("s_mov_b32 exec_lo, 0x03030303"); g("s_mov_b32 exec_hi, 0x03030303")
    g("buffer_store_dwordx2 v[140:141], v11, %s, 0 offen sc1" % WS)
    g("s_mov_b64 exec, -1")
if opt("gf", 0): gate_loads(); pf_part(); gate_fin()
else: pf_part(); gate_loads(); gate_fin()
if opt("wb", 0):
    g("s_cmp_lt_u32 s2, 248"); g("s_cbranch_scc1 L_nowb")
    g("s_cmp_lg_u32 %s, 1" % sW); g("s_cbranch_scc1 L_nowb")
    g("buffer_wbl2 sc1")
    g("s_waitcnt vmcnt(0)")
    g("L_nowb:")
g("s_cmp_lg_u32 s2, 255"); g("s_cbranch_scc1 L_spare_done")
g("s_cmp_lg_u32 %s, 0" % sW); g("s_cbranch_scc1 L_spare_done")
g("v_mul_u32_u24 v12, %d, v%d" % (FUS, vLANE))
g("v_lshlrev_b32 v13, 7, v%d" % vLANE); g("v_add_u32 v13, 0x%x, v13" % (WS_G + 4))
g("v_add_u32 v14, 8192, v13")
g("s_mov_b32 %s, 0" % sSPIN)
g("L_upd:")
g("s_sleep 8")
for i in range(14):
    g("s_mov_b32 %s, 0x%x" % (sT0, WS_FU + 64 * FUS * i))
    g("buffer_load_dword v%d, v12, %s, %s offen sc1" % (18 + i, WS, sT0))
g("buffer_load_dword v32, v13, %s, 0 offen sc1" % WS)
g("buffer_load_dword v33, v14, %s, 0 offen sc1" % WS)
g("s_add_u32 %s, %s, 1" % (sSPIN, sSPIN))
g("s_waitcnt vmcnt(0)")
for i in range(16): g("v_xor_b32 v%d, v%d, v%d" % (18 + i, 18 + i, vTAG))
for i in range(1, 16): g("v_or_b32 v18, v18, v%d" % (18 + i))
g("v_cmp_ne_u32 vcc, 0, v18")
g("s_cmp_gt_u32 %s, 0x40000" % sSPIN)
g("s_cbranch_scc1 L_upd_go")
g("s_cbranch_vccnz L_upd")
g("L_upd_go:")
g("v_mov_b32 v12, 0")
g("s_mov_b64 exec, 1")
g("buffer_store_dword v%d, v12, %s, 0 offen sc1" % (vTAG, WS))
g("s_mov_b64 exec, -1")
g("L_spare_done:")
nstamp[0] = 6
stamp_out(g)
g("L_end:")
g("s_endpgm")

k_ = 0
for o in m.ops:
    if "STAMPIDX" in o.text:
        o.text = o.text.replace("STAMPIDX", str(k_)); k_ += 1
assert k_ <= 40
if AT >= 0:
    keep = []
    for o in m.ops:
        mm = re.match(r"v_writelane_b32 v%d, s66, (\d+)$" % vSTA, o.text)
        if mm and int(mm.group(1)) != AT:
            keep.pop(); keep.pop(); continue
        keep.append(o)
    m.ops = keep
nts = [d for d in OPT.get("nt", "").split(",") if d]
for o in m.ops:
    if o.kind in VMEMK and o.tag and any(o.tag.startswith(d) for d in nts) and "global_" not in o.text:
        o.text = o.text.replace(" lds", " nt lds") if o.text.endswith(" lds") else o.text + " nt"
drops = [d for d in OPT.get("drop", "").split(",") if d]
if drops:
    keep = []; dropped = set()
    for o in m.ops:
        if o.kind in VMEMK and o.tag and any(re.fullmatch(d, o.tag) for d in drops):
            dropped.add(o.tag); continue
        if o.kind == "waitvm" and o.waitfor in dropped: continue
        keep.append(o)
    m.ops = keep
if opt("x16", 0):
    lo_, hi_ = {1: (4, 116), 2: (4, 1000), 3: (116, 1000)}[opt("x16", 0)]
    res = []; k = 0
    for o in m.ops:
        if o.kind == "mfma":
            k += 1
            if lo_ < k <= hi_:
                mm = re.match(r"v_mfma_f32_32x32x16_bf16 v\[(\d+):\d+\], (\S+), (\S+), (\S+)", o.text)
                for h_ in range(2):
                    b_ = int(mm.group(1)) + 4 * (2 * ((k // 4) & 1) + h_)
                    o2 = Op("v_mfma_f32_16x16x32_bf16 v[%d:%d], %s, %s, v[%d:%d]" % (b_, b_ + 3, mm.group(2), mm.group(3), b_, b_ + 3), None); analyze(o2); res.append(o2)
                continue
        res.append(o)
    m.ops = res
for t_ in OPT.get("nochk", "").split(","):
    m.ops = [o for o in m.ops if o.text != "s_cbranch_vccnz L_spin_%s" % t_ and o.text != "s_cbranch_scc1 L_spin_%s" % t_]
mops = finalize(m)
tail_ = "\n" + render(insert_nops(spins.ops)) + "\n" + render(insert_nops(resolve_waits(g.ops)))
hdr = open("cdna_kernels/%s.s.ref" % NAME).read().split("; Override launch")[0]
def emit(ops):
    out = hdr + "; @launch grid=(256,1,1) block=(256,1,1) lds=%d\n" % LDS_TOTAL
    out += '.amdgcn_target "amdgcn-amd-amdhsa--gfx950"\n.text\n.globl %s_kernel\n.p2align 12\n.type %s_kernel,@function\n%s_kernel:\n' % (NAME, NAME, NAME)
    out += render(ops) + tail_ + "\nL_code_end:\n"
    out = out.replace("CODE_BYTES", "L_code_end-%s_kernel-128" % NAME)
    out += '.section .rodata,"a"\n.p2align 6\n.amdhsa_kernel %s_kernel\n' % NAME
    out += "  .amdhsa_next_free_vgpr 512\n  .amdhsa_next_free_sgpr 102\n  .amdhsa_accum_offset 256\n  .amdhsa_group_segment_fixed_size 0\n"
    out += "  .amdhsa_kernarg_size 120\n  .amdhsa_user_sgpr_count 2\n  .amdhsa_user_sgpr_kernarg_segment_ptr 1\n  .amdhsa_system_sgpr_workgroup_id_x 1\n.end_amdhsa_kernel\n"
    return out
if WARM:
    import subprocess, tempfile, os
    td = tempfile.mkdtemp()
    open(td + "/a.s", "w").write(emit(mops).replace("s_branch L_stub0", "s_branch L_back"))
    subprocess.run(["clang", "-x", "assembler", "-target", "amdgcn-amd-amdhsa", "-mcpu=gfx950", "-c", td + "/a.s", "-o", td + "/a.o"], check=True)
    dis = subprocess.run(["llvm-objdump", "-d", td + "/a.o"], capture_output=True, text=True).stdout
    addrs = [int(x, 16) for x in re.findall(r"// ([0-9A-F]{12}):", dis)]
    res = []; k = 0; ns = 0; pos_ = []
    for o in mops:
        if o.kind != "label":
            if addrs[k] + 4 * ns >= 4096 * (ns + 1):
                pos_.append(len(res)); ns += 1
                res.append(None); res.append(None)
            k += 1
        res.append(o)
    for i, p_ in enumerate(pos_):
        res[p_] = Op("L_stub%d:" % i, "label"); res[p_ + 1] = Op("s_cbranch_execz %s" % ("L_stub%d" % (i + 1) if i + 1 < ns else "L_back"), "ctl")
    mops = res
    print("main code bytes", addrs[k - 1], "stubs", ns, file=sys.stderr)
open(sys.argv[1], "w").write(emit(mops))
```

```python
import sys, math, struct
sys.path.insert(0, "gen")
from asmlib import *

NAME = "gated_mix__ssm_conv_h3__dense_activation_gelu__prompt"
STAMP = int(sys.argv[2]) if len(sys.argv) > 2 else 0
OPT = dict(a.split("=") for a in sys.argv[3:])
def opt(k, d): return type(d)(OPT.get(k, d))
f2u = lambda f: struct.unpack("<I", struct.pack("<f", f))[0]

FUS = 128; FHS = 128
WS_FU = 0x60000
WS_FH = 0x80000
WS_G  = 0x8000
WS_U  = 0x100000
WS_Z  = 0x300000
WS_P  = 0xE40000
CP = 4224
WS_H  = 0x500000
CBS = 128 * 896
WS_STAMP = 0x1200000
WS_SIZE = 0x1200000 + (0x80000 if STAMP else 0)
TAG_INC = 0x9E3779B9
SLOT = 32768
L_R = 114688; RSZ = 11920
R_UW = 4160; UP = 1280; R_Y = 6720; R_ZS = 4096; R_EG = 6144
L_KS = 131072
L_VS = L_KS + 72 * 128
L_P0 = L_VS + 64 * 128
L_TP = L_P0 + 4 * 2304
L_F = 163840 - 256
F_W2, F_HC, F_U, F_G0, F_Y, F_YD, F_X, F_E, F_KV, F_W2B, F_HI = range(11)
LDS_TOTAL = 163840
W2POS = [12, 13, 0, 1, 2, 3, 4, 5, 6, 7, 8, 9, 10, 11]

Q, K, V, SSM, W1, W2, OUT, WS = ["s[%d:%d]" % (b, b + 3) for b in range(8, 40, 4)]
WSP = "s[36:37]"
P_SHIFT, P_D, P_B1, P_B2, P_GATE = "s[46:47]", "s[50:51]", "s[56:57]", "s[60:61]", "s[62:63]"
sW, sX, sI, sA, sC, sRB128, sCB128, sRB64 = "s70", "s71", "s72", "s73", "s74", "s75", "s76", "s77"
sT0, sT1, sT2, sT3 = "s78", "s79", "s80", "s81"
sTAG = "s[82:83]"
sROT, sSPIN, sCH, sHB = "s84", "s85", "s86", "s87"
sXL, sWL, sW2L, sRW, sPO, sE2, sHSRC = "s88", "s89", "s3", "s4", "s5", "s6", "s7"
sC1 = "s[64:65]"
sST = "s[66:67]"
sFU, sFH, sPH = "s99", "s100", "s62"
sZB, sQ1, sZ8, sPS, sPR, sMSK = "s63", "s56", "s97", "s57", "s60", "s61"
sW0, sHP, sDP, sW8, sUP = "s98", "s0", "s83", "s1", "s64"
sP = sHB
tXO = ["s40", "s41", "s42", "s43", "s44", "s45", "s48"]
tWO = ["s49", "s52", "s53", "s54", "s55", "s58", "s59"]
tCB = ["s%d" % i for i in range(90, 97)]
sPOLL = 12

class VA:
    def __init__(self, lo, hi): self.n = lo; self.hi = hi
    def get(self, k=1, align=1):
        self.n = (self.n + align - 1) // align * align
        r = self.n; self.n += k
        assert self.n <= self.hi, "out of regs"
        return r
def vr(b, k=1): return "v%d" % b if k == 1 else "v[%d:%d]" % (b, b + k - 1)

spins = Stream()
vLANE, vTAG, vSTA = 1, 2, 3
vT = list(range(4, 12))
vSP0, vSP1, vDUM, vFW, vFR, vFL, vL16, vONEF = range(12, 20)
vTK = list(range(20, 24))
vW2R = list(range(24, 28))
vS32, vHH = 28, 29
L = vLANE
DUMMY_DS[0] = "ds_read_b32 v%d, v%d" % (vDUM, vL16)

def stamp(s, rt=False, idx=None):
    if not STAMP: return
    s.begin()
    s("%s %s" % ("s_memrealtime" if (rt or STAMP == 2) else "s_memtime", sST))
    s("s_waitcnt lgkmcnt(0)")
    s("v_writelane_b32 v%d, s66, %s" % (vSTA, "STAMPIDX" if idx is None else str(idx)))
    if STAMP == 3 and idx is None:
        s("s_memrealtime %s" % sST); s("s_waitcnt lgkmcnt(0)")
        s("v_writelane_b32 v%d, s66, STAMPIDY" % vSTA)
    s.end()
def fstamp(s, lvl=2):
    if opt("fine", 0) == lvl: stamp(s)

def slin(s, dst, terms, const=0):
    tmp = sT3; first = True
    for reg, mult in terms:
        d = dst if first else tmp
        if mult == 1: src = reg
        else:
            if mult & (mult - 1) == 0: s("s_lshl_b32 %s, %s, %d" % (d, reg, mult.bit_length() - 1))
            else: s("s_mul_i32 %s, %s, %d" % (d, reg, mult))
            src = d
        if first:
            if src != dst: s("s_mov_b32 %s, %s" % (dst, src))
        else: s("s_add_u32 %s, %s, %s" % (dst, dst, src))
        first = False
    if const: s("s_add_u32 %s, %s, 0x%x" % (dst, dst, const))
def vlin(s, dst, terms, base=None):
    acc = None
    terms = sorted(terms, key=lambda t: t[1] & (t[1] - 1) == 0)
    for reg, mult in terms:
        p2 = mult & (mult - 1) == 0
        if acc is None:
            if p2 and isinstance(base, str):
                s("v_lshl_add_u32 v%d, v%d, %d, %s" % (dst, reg, mult.bit_length() - 1, base)); base = None
            elif p2: s("v_lshlrev_b32 v%d, %d, v%d" % (dst, mult.bit_length() - 1, reg))
            else: s("v_mul_u32_u24 v%d, %d, v%d" % (dst, mult, reg))
            acc = dst
        else:
            assert p2
            s("v_lshl_add_u32 v%d, v%d, %d, v%d" % (dst, reg, mult.bit_length() - 1, dst))
    if base is not None:
        s("v_add_u32 v%d, %s, v%d" % (dst, base if isinstance(base, str) else "0x%x" % base, dst))

def flag_store(s, sreg, tagwait, fl="sc1"):
    s.wait_vm(tagwait)
    s.begin()
    s("s_mov_b64 exec, 1")
    s("buffer_store_dword v%d, off, %s, %s %s" % (vTAG, WS, sreg, fl), tag="flag")
    s("s_mov_b64 exec, -1")
    s.end()

npoll = [0]; pollnames = []
def spin_tail(t, tag, lim=0x40000, post=None):
    if STAMP: t("v_writelane_b32 v%d, %s, %d" % (vSTA, sSPIN, 44 + npoll[0]))
    npoll[0] += 1; pollnames.append(tag)
    out = "L_post_%s" % tag if post else "L_ok_%s" % tag
    t("s_cmp_gt_u32 %s, 0x%x" % (sSPIN, lim))
    t("s_cbranch_scc1 %s" % out)
    t("s_cbranch_vccz %s" % out)
    t("s_sleep 1")
    t("s_branch L_spin2_%s" % tag)
    if post:
        t("L_post_%s:" % tag)
        for o in post.ops: t(o.text)
        t("s_waitcnt lgkmcnt(0)")
        t("s_branch L_ok_%s" % tag)
def spoll_check(s, n, issue, tag):
    def cmp(s, lbl):
        s("s_waitcnt lgkmcnt(0)")
        for i in range(0, n, 2):
            if i + 1 < n: s("s_cmp_lg_u64 s[%d:%d], %s" % (sPOLL + i, sPOLL + i + 1, sTAG))
            else: s("s_cmp_lg_u32 s%d, s82" % (sPOLL + i))
            s("s_cbranch_scc1 %s" % lbl)
    s.begin()
    cmp(s, "L_spin_%s" % tag)
    s("L_ok_%s:" % tag)
    s.end()
    t = spins
    t("L_spin_%s:" % tag)
    t("s_mov_b32 %s, 0" % sSPIN)
    t("L_spin2_%s:" % tag)
    t("s_add_u32 %s, %s, 1" % (sSPIN, sSPIN))
    if STAMP: t("v_writelane_b32 v%d, %s, %d" % (vSTA, sSPIN, 44 + npoll[0]))
    npoll[0] += 1; pollnames.append(tag)
    t("s_cmp_gt_u32 %s, 0x40000" % sSPIN)
    t("s_cbranch_scc1 L_ok_%s" % tag)
    if opt("psl", 1): t("s_sleep %d" % opt("psl", 1))
    issue(t)
    cmp(t, "L_spin2_%s" % tag)
    t("s_branch L_ok_%s" % tag)
def hpoll_issue(s): s("s_load_dwordx8 s[%d:%d], %s, %s glc" % (sPOLL, sPOLL + 7, WSP, sPH))
def gran_issue(s, vdst, vaddr, tag):
    s("buffer_load_dwordx2 %s, v%d, %s, 0 offen sc1" % (vr(vdst, 2), vaddr, WS), tag=tag)
def gran_check(s, vdst, vaddr, tag):
    s.wait_vm(tag)
    s.begin()
    s("v_cmp_ne_u32 vcc, v%d, v%d" % (vdst + 1, vTAG))
    s("s_cbranch_vccnz L_spin_%s" % tag)
    s("L_ok_%s:" % tag)
    s.end()
    t = spins
    t("L_spin_%s:" % tag)
    t("s_mov_b32 %s, 0" % sSPIN)
    t("L_spin2_%s:" % tag)
    gran_issue(t, vdst, vaddr, tag)
    t("s_add_u32 %s, %s, 1" % (sSPIN, sSPIN))
    t("s_waitcnt vmcnt(0)")
    t("v_cmp_ne_u32 vcc, v%d, v%d" % (vdst + 1, vTAG))
    spin_tail(t, tag)
def tag_cmp(s, regs):
    for k, r in enumerate(regs): s("v_xor_b32 v%d, v%d, v%d" % (r, vTK[k % 4], r))
    s("v_or_b32 v%d, v%d, v%d" % (vSP0, regs[0], regs[1]))
    for k in range(2, len(regs), 2): s("v_or3_b32 v%d, v%d, v%d, v%d" % (vSP0, vSP0, regs[k], regs[k + 1]))
    s("v_and_b32 v%d, %s, v%d" % (vSP0, sMSK, vSP0))
    s("v_cmp_ne_u32 vcc, 0, v%d" % vSP0)
def tag_check(s, issue, regs, tag):
    s.wait_vm(tag)
    tag_cmp(s, regs)
    s.begin(); s._g -= 1
    s("s_cbranch_vccnz L_spin_%s" % tag)
    s("L_ok_%s:" % tag)
    s.end()
    t = spins
    t("L_spin_%s:" % tag)
    t("s_mov_b32 %s, 0" % sSPIN)
    t("L_spin2_%s:" % tag)
    issue(t)
    t("s_add_u32 %s, %s, 1" % (sSPIN, sSPIN))
    t("s_waitcnt vmcnt(0)")
    tag_cmp(t, regs)
    spin_tail(t, tag)
def tag_put(s, regs):
    for k, r in enumerate(regs): s("v_bfi_b32 v%d, %s, v%d, v%d" % (r, sMSK, vTK[k % 4], r))
def tag_keys(s):
    s("v_lshlrev_b32 v%d, 3, v%d" % (vTK[3], L))
    s("v_bfe_u32 v%d, v%d, v%d, 8" % (vTK[3], vTAG, vTK[3]))
    s("v_lshl_or_b32 v%d, v%d, 15, v%d" % (vTK[3], vTK[3], vTK[3]))
    s("v_and_b32 v%d, %s, v%d" % (vTK[0], sMSK, vTK[3]))
    for k in range(1, 4):
        s("v_lshrrev_b32 v%d, %d, v%d" % (vTK[k], 2 * k, vTK[3])); s("v_and_b32 v%d, %s, v%d" % (vTK[k], sMSK, vTK[k]))
def lf_set(s, k): s("ds_write_b32 v%d, v%d offset:%d" % (vFW, vONEF, 16 * k), tag="lfs")
def lf_issue(s, k, addr, tag): s("ds_read_b32 v%d, v%d offset:%d" % (vFL, addr, 16 * k), tag=tag)
def lf_check(s, k, addr, tag, post=None):
    s.wait_lgkm(tag)
    s.begin()
    s("v_cmp_eq_u32 vcc, 0, v%d" % vFL)
    s("s_cbranch_vccnz L_spin_%s" % tag)
    s("L_ok_%s:" % tag)
    s.end()
    t = spins
    t("L_spin_%s:" % tag)
    t("s_mov_b32 %s, 0" % sSPIN)
    t("L_spin2_%s:" % tag)
    lf_issue(t, k, addr, tag)
    t("s_add_u32 %s, %s, 1" % (sSPIN, sSPIN))
    t("s_waitcnt lgkmcnt(0)")
    t("v_cmp_eq_u32 vcc, 0, v%d" % vFL)
    spin_tail(t, tag, 0x400000, post)
def lf_wait(s, k, addr, tag, data=None, inline=True, sl=1):
    if inline:
        s("s_mov_b32 %s, 0" % sSPIN)
        s("L_rt_%s:" % tag)
    lf_issue(s, k, addr, tag)
    if data: s.extend(data)
    if not inline: return lf_check(s, k, addr, tag, data)
    s.wait_lgkm(tag)
    s("v_cmp_eq_u32 vcc, 0, v%d" % vFL)
    s("s_cbranch_vccz L_ok_%s" % tag)
    inl_tail(s, tag, 0x400000, sl)
def inl_tail(s, tag, lim, sl):
    if sl: s("s_sleep %d" % sl)
    s("s_add_u32 %s, %s, 1" % (sSPIN, sSPIN))
    if STAMP: s("v_writelane_b32 v%d, %s, %d" % (vSTA, sSPIN, 44 + npoll[0]))
    npoll[0] += 1; pollnames.append(tag)
    s("s_cmp_lt_u32 %s, 0x%x" % (sSPIN, lim))
    s("s_cbranch_scc1 L_rt_%s" % tag)
    s("L_ok_%s:" % tag)
def spoll_inline(s, n, issue, tag):
    s.begin()
    s("s_mov_b32 %s, 0" % sSPIN)
    s("s_branch L_c_%s" % tag)
    s("L_rt_%s:" % tag)
    if opt("psl", 1): s("s_sleep %d" % opt("psl", 1))
    s("s_add_u32 %s, %s, 1" % (sSPIN, sSPIN))
    if STAMP: s("v_writelane_b32 v%d, %s, %d" % (vSTA, sSPIN, 44 + npoll[0]))
    npoll[0] += 1; pollnames.append(tag)
    s("s_cmp_gt_u32 %s, 0x40000" % sSPIN)
    s("s_cbranch_scc1 L_ok_%s" % tag)
    issue(s)
    s("L_c_%s:" % tag)
    s("s_waitcnt lgkmcnt(0)")
    for i in range(0, n, 2):
        if i + 1 < n: s("s_cmp_lg_u64 s[%d:%d], %s" % (sPOLL + i, sPOLL + i + 1, sTAG))
        else: s("s_cmp_lg_u32 s%d, s82" % (sPOLL + i))
        s("s_cbranch_scc1 L_rt_%s" % tag)
    s("L_ok_%s:" % tag)
    s.end()

def srd(s, name, lo, nbytes):
    b = int(name[2:].split(":")[0])
    s("s_mov_b64 s[%d:%d], s[%d:%d]" % (b, b + 1, lo, lo + 1))
    s("s_mov_b32 s%d, 0x%x" % (b + 2, nbytes)); s("s_mov_b32 s%d, 0x20000" % (b + 3))
def srd23(s, nm, nb):
    b = int(nm[2:].split(":")[0])
    s("s_mov_b32 s%d, 0x%x" % (b + 2, nb)); s("s_mov_b32 s%d, 0x20000" % (b + 3))
def glue_sel(s):
    for o in s.ops:
        if o.text.startswith(("s_cselect", "v_cndmask")): o.glue = True
def unpack(s, dst, src):
    for j in range(4):
        s("v_lshlrev_b32 v%d, 16, v%d" % (dst[2 * j], src + j)); s("v_and_b32 v%d, 0xffff0000, v%d" % (dst[2 * j + 1], src + j))
def mix(s, d, h16, j, a, c):
    s("v_fma_mix_f32 v%d, v%d, %s, %s op_sel:[%d,0,0] op_sel_hi:[1,0,0]" % (d, h16 + j // 2, a, c, j & 1))

NB = 2048 * 448 * 2
NW = 448 * 1792 * 2
ORD = opt("ord", 0)
BW = opt("bw", 0)
m = Stream()
if STAMP: m("s_memrealtime s[32:33]")
m("s_load_dwordx16 s[40:55], s[0:1], 0")
m("s_load_dwordx8 s[56:63], s[0:1], 64")
m("s_load_dwordx4 s[64:67], s[0:1], 96")
m("s_load_dwordx2 s[68:69], s[0:1], 112")
m("v_lshrrev_b32 v%d, 6, v0" % vT[2])
m("v_and_b32 v%d, 63, v0" % vLANE)
m("s_and_b32 %s, s2, 7" % sX)
m("v_readfirstlane_b32 %s, v%d" % (sE2, vT[2]))
m("s_lshr_b32 %s, s2, 3" % sI)
m("s_and_b32 %s, %s, 3" % (sW, sE2))
m("s_cmp_lt_u32 s2, 224")
m("s_cbranch_scc1 L_main")
m("s_getpc_b64 s[4:5]")
m("v_lshlrev_b32 v%d, 7, v0" % vT[0])
m("v_min_u32 v%d, CODE_BYTES, v%d" % (vT[0], vT[0]))
m("global_load_dword v255, v%d, s[4:5]" % vT[0], tag="cpf")
m("s_branch L_spare")
m("L_main:")
if STAMP: m("v_mov_b32 v%d, 0" % vSTA)
m("s_mul_i32 %s, %s, 37" % (sA, sI)); m("s_lshr_b32 %s, %s, 8" % (sA, sA))
m("s_mul_i32 %s, %s, 7" % (sC, sA)); m("s_sub_u32 %s, %s, %s" % (sC, sI, sC))
m("s_lshr_b32 %s, %s, 1" % (sT0, sX)); slin(m, sRB128, [(sT0, 4), (sA, 1)])
m("s_and_b32 %s, %s, 1" % (sHB, sX))
slin(m, sRB64, [(sRB128, 2), (sHB, 1)])
slin(m, sCB128, [(sP, 7), (sC, 1)])
m("s_cmp_ge_u32 %s, 4" % sE2)
m("s_cbranch_scc%d L_A" % (0 if BW else 1))
pro = m

vC4 = vT[4]; vR4 = vT[5]; vMH = vT[3]
ROTX = opt("rotx", 1); ROTA = opt("rota", 0)
def common_setup(su):
    su("v_lshlrev_b32 v%d, 4, v%d" % (vL16, L))
    su("v_mov_b32 v%d, 1" % vONEF)
    slin(su, sT0, [(sW, 4)], L_F)
    su("v_mov_b32 v%d, %s" % (vFW, sT0))
    vlin(su, vFR, [(vC4, 4)], L_F)
    su("v_and_b32 v%d, 1, v%d" % (vT[0], L)); su("v_bfe_u32 v%d, v%d, 1, 1" % (vT[1], L)); su("v_bfe_u32 v%d, v%d, 3, 1" % (vT[2], L))
    su("s_lshl_b32 %s, %s, 13" % (sT1, sE2))
    vlin(su, vW2R[1], [(vHH, 512), (vR4, 128), (vT[2], 64), (vMH, 32), (vT[0], 16), (vT[1], 8)], sT1)
    su("s_lshl_b32 %s, %s, 6" % (sT1, sE2))
    su("v_xor_b32 v%d, %s, v%d" % (vW2R[1], sT1, vW2R[1]))
    su("v_xor_b32 v%d, 64, v%d" % (vW2R[0], vW2R[1]))
    su("v_add_u32 v%d, 0x10000, v%d" % (vW2R[2], vW2R[0])); su("v_add_u32 v%d, 0x10000, v%d" % (vW2R[3], vW2R[1]))
    su("s_mul_i32 %s, %s, %d" % (tCB[0], sC, CBS))
    su("s_lshr_b32 %s, %s, 1" % (sT0, sX))
    if ROTA: su("s_add_u32 %s, %s, %s" % (sT0, sT0, sA)); su("s_and_b32 %s, %s, 3" % (sT0, sT0))
    su("s_mul_i32 %s, %s, 3" % (sT0, sT0)); su("s_add_u32 %s, %s, 1" % (sT0, sT0)); su("s_lshr_b32 %s, %s, 1" % (sT0, sT0))
    su("s_add_u32 %s, %s, %s" % (sT0, sT0, sC)); su("s_mul_i32 %s, %s, %d" % (sT0, sT0, CBS))
    su("s_cmp_ge_u32 %s, %d" % (sT0, 7 * CBS)); su("s_cselect_b32 %s, %d, 0" % (sT1, 7 * CBS)); su("s_sub_u32 %s, %s, %s" % (sT0, sT0, sT1))
    su("s_add_u32 %s, %s, %d" % (sT2, tCB[0], CBS)); su("s_cmp_ge_u32 %s, %d" % (sT2, 7 * CBS)); su("s_cselect_b32 %s, 0, %s" % (sT2, sT2))
    for j in range(1, 7):
        su("s_add_u32 %s, %s, %d" % (tCB[j], sT0 if j == 1 else tCB[j - 1], CBS)); su("s_cmp_ge_u32 %s, %d" % (tCB[j], 7 * CBS)); su("s_cselect_b32 %s, 0, %s" % (tCB[j], tCB[j]))
        if j > 1: su("s_cmp_eq_u32 %s, %s" % (tCB[j], tCB[0])); su("s_cselect_b32 %s, %s, %s" % (tCB[j], sT2, tCB[j]))
    su("s_mov_b32 %s, 0x10001" % sMSK)
def h_base(su, dst, extra):
    su("s_mul_i32 %s, %s, 43" % (sT1, sRB128)); su("s_lshr_b32 %s, %s, 7" % (sT1, sT1))
    slin(su, sT2, [(sT1, 14 * CBS - 12 * 8192), (sRB128, 4 * 8192), (sP, 7 * CBS), (sW, 8192)], WS_H + extra)
    su("v_add_u32 v%d, %s, v%d" % (dst, sT2, vL16))
def tag_fin(s):
    s("s_waitcnt lgkmcnt(0)")
    s("s_add_u32 s82, s82, 0x%x" % TAG_INC); s("s_mov_b32 s101, s83"); s("s_mov_b32 s83, s82"); s("v_mov_b32 v%d, s82" % vTAG)
def w2_reads(s, n, reg, ts=(0, 1)):
    j, ks = n // 4, n % 4
    off = 8192 * W2POS[2 * j] + 2048 * ks; hi = off >= 65536; off -= 65536 * hi
    for t in ts:
        b = reg(n, t)
        s("ds_read_b64_tr_b16 %s, v%d offset:%d" % (vr(b, 2), vW2R[2 * hi + t], off), tag="w2r%d_%d" % (n, t))
        s("ds_read_b64_tr_b16 %s, v%d offset:%d" % (vr(b + 2, 2), vW2R[2 * hi + t], off + 1024), tag="w2r%d_%d" % (n, t))
def gemm2(order, acc, ring, nring, hreg, hload, npre, nrd, hfrom=0, rate=1, fin=None):
    slot = {nt: ring + 4 * (i % nring) for i, nt in enumerate(order)}
    assert nrd < nring
    pre = Stream()
    for n, t in order[:nrd]: w2_reads(pre, n, lambda a, b: slot[(a, b)], (t,))
    need = []
    for n, t in order:
        if n not in need and hload(n): need.append(n)
    preh = Stream()
    for n in need[:npre]: preh.extend(hload(n))
    need = need[npre:]
    if not need and fin: preh.extend(fin)
    s = Stream(); seen = set(); first = set()
    for i, (n, t) in enumerate(order):
        if n not in seen and hload(n): s.wait_vm("h%d" % n)
        s.wait_lgkm("w2r%d_%d" % (n, t))
        c = vr(acc[t], 16) if t in first else "0"
        first.add(t)
        s("v_mfma_f32_32x32x16_bf16 %s, %s, %s, %s" % (vr(acc[t], 16), vr(slot[(n, t)], 4), vr(hreg(n), 4), c), tag=(n, t))
        if (n not in seen or rate == 2) and need and n >= hfrom:
            s.extend(hload(need.pop(0)))
            if not need and fin: s.extend(fin)
        seen.add(n)
        if i + nrd < len(order):
            n2, t2 = order[i + nrd]; w2_reads(s, n2, lambda a, b: slot[(a, b)], (t2,))
    assert not need
    return pre, preh, s
def at(seg, i, f):
    if i < 0: seg.ops[0:0] = f.ops; return
    k = -1
    for p_, o in enumerate(seg.ops):
        if o.kind == "mfma":
            k += 1
            if k == i: seg.ops[p_ + 1:p_ + 1] = f.ops; return
    assert False
def stamp_out(s):
    if not STAMP: return
    s("s_waitcnt vmcnt(0)")
    stamp(s)
    stamp(s, rt=True, idx=40)
    s("v_lshrrev_b32 v%d, 6, v0" % vT[1])
    slin(s, sT0, [("s2", 2048)], WS_STAMP)
    vlin(s, vT[0], [(vLANE, 4), (vT[1], 256)])
    s("buffer_store_dword v%d, v%d, %s, %s offen" % (vSTA, vT[0], WS, sT0))

WARM = opt("warm", 2)
def warm(m):
    m.begin(); m("s_mov_b64 exec, 0"); m("s_branch L_stub0"); m("L_back:"); m("s_mov_b64 exec, -1"); m.end()
PA = opt("p0a", 1) and ORD != 1
P0X = opt("p0x", 0)
KVT = opt("kvt", 1)
def p0_addr(su, vb):
    global vP0R, vP0W, vP0B, vP0S
    vP0R = vb.get(); vP0W = vb.get(); vP0B = vb.get(); vP0S = vb.get()
    slin(su, sT0, [(sW, 32)], L_KS + 512)
    vlin(su, vP0R, [(vG4, 2048), (vR4, 128), (vC4, 8)], sT0)
    slin(su, sT0, [(sW, 2304)], L_P0)
    vlin(su, vP0W, [(vL15, 144), (vG4, 32)], sT0)
    vlin(su, vP0B, [(vLd8, 144), (vL8, 16)], sT0)
    slin(su, sT0, [(sC, 64 * CP), (sW, 16 * CP), (sRB64, 128)], WS_U)
    vlin(su, vP0S, [(vLd8, CP), (vL8, 16)], sT0)
    su("s_mov_b32 %s, %d" % (sZ8, 8 * CP))
    su("s_lshr_b32 %s, %s, 3" % (sT0, sRB64))
    slin(su, sFU, [(sC, 2048), (sW, 512), (sT0, 96), (sRB64, 4)], WS_FU)
def p0_make(vb):
    vKD = vb.get(10, 2); vVD = vb.get(8, 2); vKO = vb.get(10, 2)
    vKS = vb.get(16, 4); vVF = vb.get(16, 4); vUO = vb.get(8, 4)
    p0 = Stream()
    for i in range(5): p0("ds_read_b64_tr_b16 %s, v%d offset:%d" % (vr(vKD + 2 * i, 2), vP0R, 512 * i), tag="p0r")
    for i in range(4): p0("ds_read_b64_tr_b16 %s, v%d offset:%d" % (vr(vVD + 2 * i, 2), vP0R, L_VS - L_KS - 512 + 512 * i), tag="p0v")
    for j in range(2):
        p0("v_lshlrev_b32 v%d, 16, v%d" % (vUO + 2 * j, vTP + j)); p0("v_and_b32 v%d, 0xffff0000, v%d" % (vUO + 2 * j + 1, vTP + j))
    p0.wait_lgkm("p0r")
    for j in range(1, 10): p0("v_lshlrev_b32 v%d, 16, v%d" % (vKO + j, vKD + j))
    for j in range(10): p0("v_and_b32 v%d, 0xffff0000, v%d" % (vKD + j, vKD + j))
    kel = lambda e: (vKD if e & 1 else vKO) + e // 2
    for j in range(4):
        for s_ in range(16):
            p0(("v_mul_f32 v%d, v%d, v%d" if j == 0 else "v_fmac_f32 v%d, v%d, v%d") % (vKS + s_, kel(s_ + 4 - j), vUO + j))
    p0.wait_lgkm("p0v")
    for s_ in range(16):
        j = s_ // 2
        p0("v_lshlrev_b32 v%d, 16, v%d" % (vVF + 2 * j, vVD + j) if s_ % 2 == 0 else "v_and_b32 v%d, 0xffff0000, v%d" % (vVF + 2 * j + 1, vVD + j))
    for s_ in range(16): p0("v_mul_f32 v%d, v%d, v%d" % (vKS + s_, vKS + s_, vVF + s_))
    for k_, p_ in enumerate((0, 2, 1, 3)):
        for hf in range(2): p0("v_cvt_pk_bf16_f32 v%d, v%d, v%d" % (vUO + 2 * k_ + hf, vKS + p_ + 8 * hf, vKS + p_ + 8 * hf + 4))
    p0("ds_write_b128 v%d, %s" % (vP0W, vr(vUO, 4)), tag="p0w")
    p0("ds_write_b128 v%d, %s offset:16" % (vP0W, vr(vUO + 4, 4)), tag="p0w")
    p0("ds_read_b128 %s, v%d" % (vr(vKS, 4), vP0B), tag="p0b")
    p0("ds_read_b128 %s, v%d offset:1152" % (vr(vKS + 4, 4), vP0B), tag="p0b")
    p0c = Stream()
    p0c.wait_lgkm("p0b")
    p0c("buffer_store_dwordx4 %s, v%d, %s, 0 offen sc1" % (vr(vKS, 4), vP0S, WS), tag="ust")
    p0c("buffer_store_dwordx4 %s, v%d, %s, %s offen sc1" % (vr(vKS + 4, 4), vP0S, WS, sZ8), tag="ust")
    return p0, p0c
m = Stream(); mB = m
va = VA(30, 64); vb = VA(64, 192)
vW2V = [va.get() for _ in range(4)]
vCA = va.get(); vCB = va.get(); vUA = va.get(); vUWA = va.get(); vPADA = va.get()
vYM = va.get(); vYC = va.get(); vYR = va.get(); vYRC = va.get(); vHW = va.get()
vHV1 = va.get(); vQO = va.get(); vXW = va.get(); vXR = va.get(); vFP = va.get(); vOW = va.get(); vOR = va.get(); vGR = va.get()
vZ4 = va.get(4, 4)
vL8 = vb.get(); vLd8 = vb.get(); vG4 = vb.get(); vL15 = vb.get()
vXV = [vb.get() for _ in range(4)]
vWV = [vb.get() for _ in range(4)]
vTP = vb.get(2, 2); vKV = vb.get(); vKH = vb.get()
m("v_and_b32 v%d, 7, v%d" % (vL8, L)); m("v_lshrrev_b32 v%d, 3, v%d" % (vLd8, L)); m("v_and_b32 v%d, 15, v%d" % (vL15, L))
m("v_mul_u32_u24 v%d, 896, v%d" % (vT[5], vLd8))
ka = Stream()
srd23(ka, K, NB); srd23(ka, V, NB)
ka("s_lshl_b32 %s, %s, 7" % (sT0, sC))
vlin(ka, vT[6], [(vL8, 16)], sT0)
slin(ka, sT0, [(sRB64, 64 * 896), (sW, 16 * 896)])
ka("v_add3_u32 v%d, v%d, v%d, %s" % (vKV, vT[5], vT[6], sT0))
ka("s_add_u32 %s, %s, %d" % (sT0, sT3, 8 * 896))
ka("v_subrev_u32 v%d, %s, v%d" % (vKH, sT0, vKV))
ka("s_mov_b32 %s, %d" % (sPO, 8 * 896 - 1024))
ka("s_lshl_b32 %s, %s, 11" % (sW2L, sW))
slin(ka, sT0, [(sC, 512), (sW, 128)])
vlin(ka, vT[2], [(vL8, 16)] if PA else [(vL15, 8)], sT0)
ka("s_add_u32 %s, %s, %d" % (sT1, sT3, L_TP))
slin(ka, sT2, [(sC, 128), (sRB64, 4)])
ka("s_add_u32 %s, %s, %s" % (sCH, sT2, sW)); ka("s_lshr_b32 %s, %s, 1" % (sCH, sCH))
ka("s_lshl_b32 %s, %s, 12" % (sHSRC, sCH))
r2 = Stream()
r2("s_load_dword s82, s[68:69], 0")
r2("s_load_dword %s, s[48:49], %s offset:2044" % (sHP, sHSRC))
r2("s_load_dword %s, %s, %s" % (sDP, P_D, sT2))
tp = Stream(); tp("global_load_dwordx2 %s, v%d, %s" % (vr(vTP, 2), vT[2], P_SHIFT), tag="kv")
kv = Stream()
for src, base in ((K, L_KS + 1024), (V, L_VS)):
    kv.begin(); kv("s_add_u32 m0, %s, %d" % (sW2L, base))
    kv("buffer_load_dwordx4 v%d, %s, 0 offen lds" % (vKV, src), tag="kv"); kv.end()
    kv("buffer_load_dwordx4 v%d, %s, %s offen offset:1024 lds" % (vKV, src, sPO), tag="kv")
kv.begin()
kv("s_mov_b32 m0, %d" % L_KS)
kv("s_mov_b32 exec_lo, 0")
kv("buffer_load_dwordx4 v%d, %s, 0 offen lds" % (vKH, K), tag="kv")
kv("s_mov_b32 exec_lo, -1")
kv.end()
xa = Stream()
slin(xa, sROT, [(sA, 2), (sC, 1)], 6)
for _ in range(2): xa("s_cmp_ge_u32 %s, 7" % sROT); xa("s_cselect_b32 %s, 7, 0" % sT0); xa("s_sub_u32 %s, %s, %s" % (sROT, sROT, sT0))
xa("v_lshrrev_b32 v%d, 4, v%d" % (vG4, L))
xa("s_xor_b32 %s, %s, %s" % (sT0, sW, sHB)); xa("s_andn2_b32 %s, 1, %s" % (sT0, sT0)); xa("s_lshr_b32 %s, %s, 1" % (sT1, sW))
slin(xa, sT1, [(sT1, 32 * 896), (sT0, 64 * 896), (sRB128, 128 * 896)])
xa("v_add_u32 v%d, %s, v%d" % (vT[0], sT1, vT[5]))
xa("v_xor_b32 v%d, v%d, v%d" % (vT[3], vL8, vG4))
xa("v_lshl_add_u32 v%d, v%d, 4, v%d" % (vXV[0], vT[3], vT[0]))
xa("v_xor_b32 v%d, 4, v%d" % (vT[3], vT[3]))
xa("v_lshl_add_u32 v%d, v%d, 4, v%d" % (vXV[1], vT[3], vT[0]))
xa("v_add_u32 v%d, %d, v%d" % (vXV[2], 2 * 6144, vXV[0]))
xa("v_add_u32 v%d, %d, v%d" % (vXV[3], 3 * 6144, vXV[1]))
xa("v_add_u32 v%d, %d, v%d" % (vXV[1], 6144, vXV[1]))
xa("s_lshl_b32 %s, %s, 12" % (sXL, sW))
xa("s_lshl_b32 %s, %s, 7" % (sFH, sROT))
srd23(xa, Q, NB)
wa = Stream()
vSWZ = vT[7]
wa("v_and_b32 v%d, 1, v%d" % (vT[3], vG4)); wa("v_lshlrev_b32 v%d, 2, v%d" % (vT[3], vT[3]))
wa("v_xor_b32 v%d, v%d, v%d" % (vSWZ, vL8, vT[3]))
slin(wa, sT0, [(sW, 16 * 3584), (sCB128, 256)])
vlin(wa, vWV[0], [(vLd8, 3584), (vSWZ, 16)], sT0)
wa("v_add_u32 v%d, %d, v%d" % (vWV[1], 8 * 3584 - 1024, vWV[0]))
wa("v_add_u32 v%d, 128, v%d" % (vWV[2], vWV[0]))
wa("v_add_u32 v%d, 128, v%d" % (vWV[3], vWV[1]))
wa("s_add_u32 %s, %s, 16384" % (sWL, sXL))
wa("s_mul_i32 %s, %s, %d" % (sW0, sROT, 64 * 3584))
srd23(wa, W1, NW)
tXO[0] = sFH; tWO[0] = sW0
def st_groups(t):
    gs = []
    slot = (t % 4) * SLOT
    for q in range(4):
        s = Stream(); s.begin()
        if q == 0: s("s_add_u32 m0, %s, %d" % (sXL, slot))
        s("buffer_load_dwordx4 v%d, %s, %s offen offset:%d lds" % (vXV[q], Q, tXO[t], 1024 * q), tag="st%d" % t)
        s.end(); gs.append(s.ops)
    for q in range(4):
        s = Stream(); s.begin()
        if q in (0, 2): s("s_add_u32 m0, %s, %d" % (sWL, slot + (2048 if q == 2 else 0)))
        s("buffer_load_dwordx4 v%d, %s, %s offen offset:%d lds" % (vWV[q], W1, tWO[t], 1024 * (q & 1)), tag="st%d" % t)
        s.end(); gs.append(s.ops)
    return gs
def w2_groups(k):
    j, kh = k // 2, k % 2
    s = Stream()
    for q in range(2):
        s.begin()
        if q == 0: s("s_add_u32 m0, %s, %d" % (sW2L, 8192 * W2POS[k]))
        s("buffer_load_dwordx4 v%d, %s, %s offen offset:%d lds" % (vW2V[2 * kh + q], W2, tCB[j], 1024 * q), tag="w2_%d" % k)
        s.end()
    return groups(s.ops)
m.extend(xa); m.extend(wa); m.extend(ka)
m("s_waitcnt lgkmcnt(0)")
stamp(m, rt=True)
stamp(m)
if STAMP: m("v_writelane_b32 v%d, s32, 41" % vSTA)
s0g = st_groups(0)
if opt("wf", 1): s0g = s0g[4:] + s0g[:4]
m("s_mov_b64 s[8:9], s[40:41]"); m("s_mov_b64 s[24:25], s[54:55]")
m("s_mov_b64 s[12:13], s[42:43]"); m("s_mov_b64 s[16:17], s[44:45]")
QD = []
if PA:
    tp = Stream(); tp("s_mov_b32 m0, %s" % sT1); tp("s_mov_b64 exec, 0xff")
    tp("global_load_lds_dwordx4 v%d, %s" % (vT[2], P_SHIFT), tag="kv"); tp("s_mov_b64 exec, -1")
if ORD == 0:
    if not opt("tpl", 1): m.extend(tp)
    m.extend(kv)
    if opt("tpl", 1): m.extend(tp)
    QD += [(g_, -1) for g_ in s0g[4:]]
else:
    for g_ in s0g: m.ops.extend(g_)
    m.extend(tp)
m.extend(r2)

su = Stream()
su("s_and_b32 %s, %s, 1" % (sE2, sW))
su("s_mov_b64 s[36:37], s[68:69]"); srd23(su, WS, WS_SIZE)
su("s_mov_b64 s[28:29], s[58:59]"); srd23(su, W2, NW)
srd(su, SSM, 48, NB); srd(su, OUT, 64, NB)
su("v_and_b32 v%d, 31, v%d" % (vS32, L)); su("v_lshrrev_b32 v%d, 5, v%d" % (vHH, L))
su("v_and_b32 v%d, 3, v%d" % (vC4, L)); su("v_bfe_u32 v%d, v%d, 2, 2" % (vR4, L)); su("v_bfe_u32 v%d, v%d, 4, 1" % (vMH, L))
if not PA: p0_addr(su, vb)
for t in range(1, 7):
    if t < 4:
        su("s_add_u32 %s, %s, %d" % (sT0, sA, t)); su("s_and_b32 %s, %s, 3" % (sT0, sT0))
        su("s_lshl_b32 %s, %s, 1" % (sT0, sT0)); su("s_add_u32 %s, %s, %s" % (sT0, sT0, sC))
        su("s_cmp_eq_u32 %s, 0" % sT0); su("s_cselect_b32 %s, 7, %s" % (sT0, sT0)); su("s_sub_u32 %s, %s, 1" % (sT0, sT0))
    else:
        su("s_add_u32 %s, %s, %d" % (sT0, sC, 2 * (t - 4)))
    su("s_cmp_ge_u32 %s, 7" % sT0); su("s_cselect_b32 %s, 7, 0" % sT1); su("s_sub_u32 %s, %s, %s" % (sT0, sT0, sT1))
    su("s_lshl_b32 %s, %s, 7" % (tXO[t], sT0)); su("s_mul_i32 %s, %s, %d" % (tWO[t], sT0, 64 * 3584))
common_setup(su)
su("v_xor_b32 v%d, 4, v%d" % (vFP, vFW))
for i in range(4): su("v_mov_b32 v%d, 0" % (vZ4 + i))
slin(su, sRW, [(sW, RSZ)], L_R)
su("s_lshl_b32 %s, %s, 11" % (sT1, sE2)); su("s_add_u32 %s, %s, %s" % (sHSRC, sHSRC, sT1))
slin(su, sT1, [(sC, 128), (sW, 16 * 896), (sP, 7 * CBS)])
vlin(su, vW2V[0], [(vLd8, 896), (vSWZ, 16)], sT1)
su("v_add_u32 v%d, %d, v%d" % (vW2V[1], 8 * 896 - 1024, vW2V[0]))
su("v_add_u32 v%d, %d, v%d" % (vW2V[2], 64 * 896, vW2V[0]))
su("v_add_u32 v%d, %d, v%d" % (vW2V[3], 64 * 896, vW2V[1]))
su("v_and_b32 v%d, 1, v%d" % (vT[0], L)); su("v_bfe_u32 v%d, v%d, 1, 1" % (vT[1], L))
su("s_add_u32 %s, %s, %d" % (sT0, sRW, 64 + 64 - 32))
vlin(su, vCA, [(vT[0], 32), (vMH, 16), (vT[1], 8)], sT0)
vlin(su, vT[0], [(vHH, 64), (vR4, 8)])
su("v_sub_u32 v%d, v%d, v%d" % (vCA, vCA, vT[0]))
su("s_add_u32 %s, %s, %d" % (sT0, sRW, R_UW + 16))
vlin(su, vCB, [(vMH, UP), (vL15, 16), (vHH, 16)], sT0)
slin(su, sT0, [(sCH, CP), (sE2, 16)], WS_U)
vlin(su, vUA, [(L, 32)], sT0)
su("s_add_u32 %s, %s, %d" % (sT0, sRW, R_UW + 256))
vlin(su, vUWA, [(L, 8)], sT0)
su("s_add_u32 %s, %s, %d" % (sT0, sRW, R_UW))
vlin(su, vPADA, [(vMH, UP), (vL15, 16)], sT0)
vlin(su, vT[0], [(vS32, 16)], sRW)
su("v_cmp_gt_u32 vcc, 32, v%d" % L)
su("v_cndmask_b32 v%d, v%d, v%d, vcc" % (vPADA, vT[0], vPADA))
su("s_add_u32 %s, %s, %d" % (sT0, sRW, R_Y + 64))
su("v_writelane_b32 v%d, %s, 36" % (vPADA, sT0))
vlin(su, vT[0], [(vL15, 4), (vG4, 1)], 1)
su("v_lshrrev_b32 v%d, 2, v%d" % (vT[1], vT[0]))
vlin(su, vYC, [(vT[1], 64), (vT[0], 4)], sT0)
su("s_add_u32 %s, %s, %d" % (sT0, sRW, R_Y))
vlin(su, vYM, [(vL15, 80), (vG4, 16)], sT0)
su("s_lshr_b32 %s, %s, 1" % (sT1, sW)); slin(su, sT2, [(sT1, 2 * RSZ)], L_R)
slin(su, sT0, [(sE2, 2 * 1280), (sT2, 1)], R_Y)
su("v_lshrrev_b32 v%d, 2, v%d" % (vT[0], L))
vlin(su, vYR, [(L, 16), (vT[0], 16)], sT0)
vlin(su, vYRC, [(L, 4), (vT[0], 64)], sT0)
slin(su, sT0, [(sE2, 2048), (sT2, 1)], 64)
su("v_add_u32 v%d, %s, v%d" % (vHW, sT0, vL16))
su("s_lshr_b32 %s, %s, 3" % (sT0, sRB64)); slin(su, sUP, [(sC, 2048), (sT0, 512), (sW, 128)], WS_FU)
h_base(su, vHV1, 4096)
OSW = opt("osw", 2)
su("s_lshr_b32 %s, %s, 1" % (sT1, sW))
slin(su, sT0, [(sRB64, 64 * 896), (sT1, 32 * 896), (sC, 128), (sE2, 64)])
if OSW == 2: vlin(su, vQO, [(vT[0], 896), (vC4, 16)], sT0)
elif OSW == 1: vlin(su, vQO, [(vL15, 896), (vHH, 16), (vMH, 32)], sT0)
else: vlin(su, vQO, [(vS32, 896), (vHH, 16)], sT0)
su("s_mov_b32 %s, %d" % (sQ1, 16 * 896))
su("v_add_u32 v%d, %s, v%d" % (vXW, sRW, vL16))
su("s_xor_b32 %s, %s, 1" % (sT1, sW)); slin(su, sT0, [(sT1, RSZ)], L_R)
su("v_add_u32 v%d, %s, v%d" % (vXR, sT0, vL16))
vlin(su, vOW, [(vS32, 80), (vHH, 16)], sRW)
vlin(su, vOR, [(vT[0], 80), (vC4, 16)], sRW)
vlin(su, vGR, [(L, 4)], sRW)
slin(su, sPH, [(sRB64, 8 * FHS), (sW, 2 * FHS)], WS_FH + FHS)
slin(su, sZB, [(sCH, CP), (sE2, 2048)], WS_Z)
slin(su, sPR, [(sRB64, 7 * 16384), (sC, 16384), (sW, 4096)], WS_P)
tag_fin(su)
tag_keys(su)
sDP = "s101"
su("s_lshl_b32 %s, %s, 3" % (sT0, sW)); su("s_and_b32 %s, %s, 16" % (sT0, sT0)); su("s_lshr_b32 %s, %s, %s" % (sDP, sDP, sT0)); su("s_lshl_b32 %s, %s, 16" % (sDP, sDP))
su("s_cmp_eq_u32 %s, 0" % sE2); su("s_cselect_b32 %s, %s, 0" % (sDP, sDP)); su("s_cselect_b32 %s, 0, %s" % (sHP, sHP))
glue_sel(su)
print("B setup", len(su.ops), file=sys.stderr)
if ORD == 0:
    gs = groups(su.ops); k_ = opt("x0p", 0)
    su.ops = sum(gs[:k_] + s0g[:4] + gs[k_:], [])
m.extend(su)
stamp(m)

if not PA: p0, p0c = p0_make(vb)

vCF = 64; vCC = [128 + 16 * i for i in range(4)]
vHL = 192; vHS = 200; vHX = 208; vUL = 212; vEPB = 192
hc = Stream()
for q in range(2):
    hc("buffer_load_dwordx4 %s, v%d, %s, %s offen offset:%d" % (vr(vHL + 4 * q, 4), vL16, SSM, sHSRC, 1024 * q), tag="hc")
hz = Stream()
hz.begin(); hz("s_mov_b32 exec_hi, 31"); hz("ds_write_b128 v%d, %s" % (vPADA, vr(vZ4, 4)), tag="z0"); hz("s_mov_b32 exec_hi, -1"); hz.end()
hp = Stream()
hp("v_mov_b32 v%d, %s" % (vHX, sHP))
hp.wait_vm("hc")
hp("v_lshlrev_b32 v%d, 16, v%d" % (vT[0], vHL)); hp("v_and_b32 v%d, 0xffff0000, v%d" % (vT[1], vHL))
hp("v_add_f32 v%d, %s, v%d" % (vT[0], sDP, vT[0]))
hp("v_readlane_b32 %s, v%d, 63" % (sT0, vHL + 3))
hp.begin(); hp("s_mov_b64 exec, 1"); hp("v_cvt_pk_bf16_f32 v%d, v%d, v%d" % (vHL, vT[0], vT[1])); hp("s_mov_b64 exec, -1"); hp.end()
hp("v_mov_b32 v%d, %s" % (vHX + 1, sT0))
for q in range(2):
    hp("v_mov_b32_dpp v%d, v%d wave_shr:1 row_mask:0xf bank_mask:0xf" % (vHX + q, vHL + 4 * q + 3))
for q in range(2):
    hp("ds_write_b128 v%d, %s offset:%d" % (vHW, vr(vHL + 4 * q, 4), 1024 * q), tag="hw")
    for j in range(4):
        hp("v_alignbit_b32 v%d, v%d, v%d, 16" % (vHS + 4 * q + j, vHL + 4 * q + j, vHL + 4 * q + j - 1 if j else vHX + q))
for q in range(2):
    hp("ds_write_b128 v%d, %s offset:%d" % (vHW, vr(vHS + 4 * q, 4), RSZ + 1024 * q), tag="hw")
def up_issue(s):
    s("s_load_dwordx8 s[%d:%d], %s, %s glc" % (sPOLL, sPOLL + 7, WSP, sUP))
up = Stream(); up_issue(up)
uc = Stream(); spoll_inline(uc, 8, up_issue, "pu")
ul = Stream()
for q in range(2):
    ul("buffer_load_dwordx4 %s, v%d, %s, 0 offen offset:%d sc1" % (vr(vUL + 4 * q, 4), vUA, WS, 2048 * q), tag="ul")
uw = Stream()
uw.wait_vm("ul")
for q in range(2):
    uw("ds_write2_b64 v%d, %s, %s offset0:%d offset1:%d" % (vUWA, vr(vUL + 4 * q, 2), vr(vUL + 4 * q + 2, 2), 64 * q, 64 * q + 160), tag="uw")

LA = opt("la", 10)
HCT = opt("hct", 7)
FUI = opt("fui", 1 if ORD == 0 else 5)
UPI = opt("upi", 4 if ORD != 1 else 7)
UCB = opt("ucb", 6 if ORD != 1 else 8)
assert UCB != 7
HPI = opt("hpi", 7)
P0I = opt("p0i", 1); P0N = opt("p0n", 3)
for t in range(1, 8):
    if ORD and t == KVT: QD += [(g_, -1) for g_ in groups(kv.ops)]
    if t == HCT: QD += [(g_, -1) for g_ in groups(hc.ops)]
    if t < 7: QD += [(g_, t - 3 if t >= 4 else -1) for g_ in st_groups(t)]
ULQ = opt("ulq", 0)
for k in range(14):
    if k == ULQ and UCB < 8: QD += [(g_, UCB) for g_ in groups(ul.ops)]
    QD += [(g_, [4, 5, 5, 6, 6, 7, 7][k // 2]) for g_ in w2_groups(k)]
LAS = {-1: opt("la0", 4 if ORD == 0 else 8), KVT - 1: opt("la1", LA)}
def qtake(t, nmax=1000, extra=0):
    last = max([i for i, (g_, _) in enumerate(QD) if any(o.tag == "st%d" % (t + 1) for o in g_)] + [-1 - qdone.get(t + 1, 0)])
    s = Stream(); n = 0
    while QD and n <= last + LAS.get(t, LA) + extra and QD[0][1] <= t and n < nmax:
        w_ = opt("win0", 10) if t < 0 else opt("win1", 8) if (ORD == 2 and t == KVT - 1) else opt("win", 0)
        if w_: s("s_waitcnt vmcnt(%d)" % (w_ - 1))
        g_, _ = QD.pop(0); s.ops.extend(g_); n += 1
        for k in qdone: qdone[k] += 1
        for o in g_:
            if o.tag and o.tag.startswith("st"): qdone[int(o.tag[2:])] = 0
    return s
qdone = {0: 0} if ORD else {}
work = {t: Stream() for t in range(-1, 7)}
head = {t: Stream() for t in range(-1, 7)}
tail = {t: Stream() for t in range(-1, 7)}
if ORD == 0:
    m.extend(qtake(-1, opt("prek", 0)))
    m.wait_vm("kv")
    stamp(m)
    m("s_barrier")
    if not PA: work[-1].extend(p0); work[-1].extend(p0c)
    if WARM == 2: warm(tail[-1])
elif ORD == 2:
    if not P0X: head[KVT - 1].wait_vm("kv"); stamp(head[KVT - 1]); head[KVT - 1]("s_barrier")
    if WARM == 2: warm(m)
else:
    gs = groups(p0.ops); tot = sum(gcost(g_) for g_ in gs); acc = 0
    for g_ in gs:
        work[P0I + min(P0N - 1, int(P0N * acc / tot))].ops.extend(g_); acc += gcost(g_)
    head[P0I + P0N].extend(p0c)
if not PA: flag_store(tail[FUI], sFU, "ust")
if UPI < 7: head[UPI].extend(up)
if UCB < 8: tail[UCB - 1].extend(uc)
HZI = opt("hzi", 7)
assert min(HZI, HPI) >= (4 if ORD != 1 else max(4, P0I + P0N + 1)) and FUI >= (0 if ORD != 1 else P0I + P0N) and UPI < UCB and P0I >= 1
if HZI < 7: work[HZI].extend(hz)
else: hp.ops[2:2] = hz.ops
assert HPI != 6
if HPI < 7: work[HPI].extend(hp); tail[HPI].wait_lgkm("hw")
for t in range(-1, 7):
    m.extend(head[t])
    q_ = qtake(t, opt("n5", 99) if t == 5 else 99) if t < 6 else qtake(t, opt("n6", 6))
    if work[t].ops: m.extend(spread(work[t], q_, 0.0, 1.0, unit="any"))
    else: m.extend(q_)
    m.extend(tail[t])
    if t == -1: m.extend(qtake(t, extra=opt("n0t", 4 if ORD == 0 else 0)))
    fstamp(m, 1); fstamp(m, 3)
    if t < 6: m.wait_vm("st%d" % (t + 1))
    fstamp(m, 1); fstamp(m, 3)
    if t < 6: m("s_barrier")
    if t in (-1, 2): stamp(m)
    else: fstamp(m, 1); fstamp(m, 3); fstamp(m, 4)
stamp(m)
MRG = opt("mrg", 1)
def cbase(r): return 192 if (MRG and r == 7) else vCF + 32 * (r & 1)
def conv_readsA(r):
    s = Stream(); base = cbase(r)
    for a in range(4):
        off = 128 * (8 * a + r)
        s("ds_read_b64_tr_b16 %s, v%d offset:%d" % (vr(base + 8 * a, 2), vCA, off + 32), tag="c%d" % r)
        s("ds_read_b64_tr_b16 %s, v%d offset:%d" % (vr(base + 8 * a + 2, 2), vCA, off), tag="c%d" % r)
    return s
def conv_readsB(r):
    s = Stream(); base = cbase(r)
    for i in range(4):
        s("ds_read_b128 %s, v%d offset:%d" % (vr(base + 8 * i + 4, 4), vCB, 32 * (8 * i - r + 7)), tag="c%d" % r)
    return s
def qpop(s, n, lim=6):
    for _ in range(n):
        if QD and QD[0][1] <= lim:
            if lim == 6 and opt("win7", 0): s("s_waitcnt vmcnt(%d)" % (opt("win7", 0) - 1))
            s.ops.extend(QD.pop(0)[0])
if UPI == 7: m.extend(up)
qpop(m, opt("n7", 4))
if UCB == 8:
    m.extend(uc); lf_set(m, F_U); lf_wait(m, F_U, vFR, "lu"); m.extend(ul)
if HPI == 7:
    m.extend(hp); lf_set(m, F_HC)
    qpop(m, opt("n8", 8))
    m.extend(uw)
    lf_wait(m, F_HC, vFP, "lh", conv_readsA(0))
else:
    m.extend(conv_readsA(0))
    m.extend(uw)
m.extend(conv_readsB(0))
NPK = opt("npk", 4)
stamp(m)
qpop(m, opt("n9", 2))
lf_wait(m, F_G0, vFR, "lg")
m("s_setprio %d" % opt("pc", 3))
stamp(m)
def conv_mf(s, r, a, i):
    base = cbase(r); j = a + i
    c = "0" if (r == 0 and a == 0) else vr(vCC[j], 16)
    s("v_mfma_f32_32x32x16_bf16 %s, %s, %s, %s" % (vr(vCC[j], 16), vr(base + 8 * a, 4), vr(base + 8 * i + 4, 4), c))
def y_out(j):
    s = Stream(); R = vCC[j]
    for k in (0, 4, 1, 5, 2, 6, 3, 7): s("v_cvt_pk_f16_f32 v%d, v%d, v%d" % (R + 2 * k, R + 2 * k, R + 2 * k + 1))
    for k in range(4): s("v_permlane16_swap_b32 v%d, v%d" % (R + 2 * k, R + 2 * k + 8))
    s("ds_write_b32 v%d, v%d offset:%d" % (vYC, R + 14, 1280 * j), tag="yw")
    for k in range(1, 4): s("v_pk_add_f16 v%d, v%d, v%d" % (R + k, R + 2 * k, R + 2 * k + 6))
    s("ds_write_b128 v%d, %s offset:%d" % (vYM, vr(R, 4), 1280 * j), tag="yw")
    for o in s.ops:
        if o.kind == "permlane": o.cost = 2
        if o.kind == "ds": o.cost = 3
    return s
WPB = opt("wpb", 6); WFB = opt("wfb", 7); W2A = opt("w2a", 10)
for r in range(7):
    s = Stream()
    s.wait_lgkm("c%d" % r)
    if MRG and r == 6:
        t_ = Stream()
        for j in range(4):
            for r_ in (6, 7):
                for a in range(j + 1): conv_mf(s, r_, a, j - a)
            if j < 3: t_.extend(y_out(j))
        s = spread(s, t_, 0.15, 0.97)
    else:
        for a in range(4):
            for i in range(4 - a): conv_mf(s, r, a, i)
        rd = Stream()
        if MRG and r == 4: rd.extend(conv_readsA(7))
        if MRG and r == 5: rd.extend(conv_readsB(7))
        rd.extend(conv_readsA(r + 1)); rd.extend(conv_readsB(r + 1))
        s = spread(s, rd, 0.0, 0.7)
    f = Stream(); qpop(f, WPB, 7)
    if r == 7 + opt("hp1", 2): hpoll_issue(f)
    if r == opt("wfa", 2): f.wait_vm("w2_%d" % (W2A - 1)); lf_set(f, F_W2B)
    if r == WFB:
        assert not QD
        f.wait_vm("w2_13"); lf_set(f, F_W2)
    m.extend(spread(s, f, 0.0, 1.0))
    fstamp(m, 2)
y2 = []
if not MRG:
    m.wait_lgkm("c7")
    mf = Stream()
    for j in range(4):
        for a in range(j + 1): conv_mf(mf, 7, a, j - a)
    y0, y1, y2 = y_out(0).ops, y_out(1).ops, y_out(2).ops
    plan = {0: [], 1: [], 2: y0[:6], 3: y0[6:11], 4: y0[11:], 5: y1[:6], 6: y1[6:11], 7: y1[11:], 8: y2[:6], 9: []}; y2 = y2[6:]
    for k_, o in enumerate(mf.ops):
        m.ops.append(o); m.ops.extend(plan[k_])
m("s_setprio %d" % opt("pe", 3))
assert not QD
if WFB == 7: m.wait_vm("w2_13"); lf_set(m, F_W2)
stamp(m)
N4 = opt("n4", 18)
order = [(n, t) for n in range(N4) for t in range(2)] + [(n, 0) for n in range(N4, 28)] + [(n, 1) for n in range(N4, 28)]
HS1 = [224 + 4 * i for i in range(8)] + [112 + 4 * i for i in range(4)] + [160 + 4 * i for i in range(8)] + [192 + 4 * i for i in range(8)]
def hload1(n):
    s = Stream(); s("buffer_load_dwordx4 %s, v%d, %s, %s offen offset:%d sc1" % (vr(HS1[n], 4), vHV1, WS, tCB[n // 4], 1024 * (n % 4)), tag="h%d" % n); return s
vA2 = [128, 144]
fin = Stream(); lf_set(fin, F_HI)
NPT = [opt("np0", 4)] * 3 + [opt("np3", 10)]; assert NPT[0] <= NPT[3]
pre, preh, g2 = gemm2(order, vA2, 64, 12, lambda n: HS1[n], hload1, NPT[3], opt("nrd", 8), 0, opt("rtb", 1), fin)
HP1 = opt("hp1", 2); HC1 = opt("hc1", 3)
nis = [0]
def pt(i):
    if HC1 == i: spoll_inline(m, 7, hpoll_issue, "ph1")
    if HC1 <= i:
        k = NPT[i] if i < 3 else 99; assert NPT[i] <= [12, 20, 20, 28][i]
        m.ops.extend(preh.ops[nis[0]:k]); nis[0] = max(nis[0], k)
    if HP1 == i: hpoll_issue(m)
assert HP1 < HC1
pt(0)
m.ops.extend(y2); m.extend(y_out(3))
lf_set(m, F_Y)
pt(1)
yr = Stream()
for q in range(2):
    for y in range(2):
        yr("ds_read_b32 v%d, v%d offset:%d" % (vT[2 * q + y], vYRC, 1280 * q + RSZ * y + 64), tag="yr%d" % q)
        yr("ds_read_b128 %s, v%d offset:%d" % (vr(vEPB + 8 * q + 4 * y, 4), vYR, 1280 * q + RSZ * y), tag="yr%d" % q)
lf_wait(m, F_Y, vFP, "ly", yr)
lf_set(m, F_YD)
lf_issue(m, F_W2, vFR, "lwb")
for q in range(2):
    m.wait_lgkm("yr%d" % q)
    b = vEPB + 8 * q
    if q == 1:
        lf_check(m, F_W2, vFR, "lwb")
        pt(2)
    m("v_pk_add_f16 v%d, v%d, v%d" % (vT[2 * q], vT[2 * q], vT[2 * q + 1]))
    for j in range(4): m("v_pk_add_f16 v%d, v%d, v%d" % (b + j, b + j, b + 4 + j))
    m("v_pk_add_f16 v%d, v%d, v%d" % (b, b, vT[2 * q]))
    tag_put(m, list(range(b, b + 4)))
    m("buffer_store_dwordx4 %s, v%d, %s, %s offen offset:%d sc1" % (vr(b, 4), vL16, WS, sZB, 1024 * q), tag="zst")
stamp(m)
m.extend(pre)
pt(3)
stamp(m)
m("s_setprio %d" % opt("pb", 0))
vE = 224; vPP = 240; vG = vT[0]
def p_issue(s):
    for q in range(4):
        s("buffer_load_dwordx4 %s, v%d, %s, %s offen offset:%d sc1" % (vr(vPP + 4 * q, 4), vL16, WS, sPR, 1024 * q), tag="pp")
nT1 = 28 + N4
head_ = Stream(); tail_ = Stream(); k_ = 0
for o in g2.ops:
    (head_ if k_ < nT1 else tail_).ops.append(o)
    if o.kind == "mfma": k_ += 1
er = Stream()
er("ds_read_b32 v%d, v%d offset:%d" % (vG, vGR, R_EG), tag="er")
for a in range(4): er("ds_read_b128 %s, v%d offset:%d" % (vr(vE + 4 * a, 4), vXW, 1024 * a), tag="er")
xr = Stream()
for a in range(4): xr("ds_read_b128 %s, v%d offset:%d" % (vr(vA2[0] + 4 * a, 4), vXR, R_Y + 1024 * a), tag="xr")
f = Stream(); lf_wait(f, F_YD, vFP, "lyb", inline=False); at(head_, 20, f)
f = Stream()
for a in range(4): f("ds_write_b128 v%d, %s offset:%d" % (vXW, vr(vA2[0] + 4 * a, 4), R_Y + 1024 * a), tag="xw"); f.ops[-1].cost = opt("cwr", 6)
lf_set(f, F_X)
lf_wait(f, F_E, vFW, "le", er, inline=False)
lf_wait(f, F_X, vFP, "lx", xr, inline=False)
f.wait_lgkm("xr")
for j in range(16): f("v_fmac_f32 v%d, v%d, v%d" % (vE + j, vA2[0] + j, vG))
for o in f.ops:
    if o.kind == "waitlgkm": o.cost = opt("cwt", 10)
fp = Stream()
tag_check(fp, p_issue, list(range(vPP, vPP + 16)), "pp")
for t in range(2):
    for j in range(16): mix(fp, vE + j, vPP + 8 * t, j, "v%d" % vG, "v%d" % (vE + j))
PIN = opt("pin", 0)
if PIN: f.extend(fp)
g2 = head_; g2.extend(spread(tail_, f, opt("xlo", 0.1), 1.0))
f = Stream(); p_issue(f); at(g2, opt("ppos", 48), f)
if opt("fine", 0) == 2:
    for i_ in (15, 31, nT1 - 1): f = Stream(); stamp(f); at(g2, i_, f)
m.extend(g2)
stamp(m)
if not PIN: m.extend(fp)
stamp(m)
vO = vPP
for hf in range(2):
    for j in range(4 * hf, 4 * hf + 4): m("v_pk_fma_f32 %s, %s, %s, %s op_sel_hi:[1,0,1]" % (vr(vE + 2 * j, 2), vr(vA2[1] + 2 * j, 2), vr(vG, 2), vr(vE + 2 * j, 2)))
    for j in range(4 * hf, 4 * hf + 4): m("v_cvt_pk_bf16_f32 v%d, v%d, v%d" % (vO + j, vE + 2 * j, vE + 2 * j + 1))
    if OSW == 0: m("buffer_store_dwordx4 %s, v%d, %s, 0 offen offset:%d" % (vr(vO + 4 * hf, 4), vQO, OUT, 32 * hf), tag="ost")
    if OSW == 2: m("ds_write_b128 v%d, %s offset:%d" % (vOW, vr(vO + 4 * hf, 4), 32 * hf), tag="ow")
if OSW == 2:
    for hf in range(2): m("ds_read_b128 %s, v%d offset:%d" % (vr(vO + 8 + 4 * hf, 4), vOR, 1280 * hf), tag="or%d" % hf)
    for hf in range(2):
        m.wait_lgkm("or%d" % hf)
        m("buffer_store_dwordx4 %s, v%d, %s, %s offen" % (vr(vO + 8 + 4 * hf, 4), vQO, OUT, sQ1 if hf else "0"), tag="ost")
if OSW == 1:
    for j in range(4): m("v_permlane16_swap_b32 v%d, v%d" % (vO + j, vO + 4 + j))
    for hf in range(2): m("buffer_store_dwordx4 %s, v%d, %s, %s offen" % (vr(vO + 4 * hf, 4), vQO, OUT, sQ1 if hf else "0"), tag="ost")
stamp(m)
stamp_out(m)
m("s_endpgm")

m = Stream(); mA = m
m("L_A:")
va = VA(30, 64)
vXA = [va.get() for _ in range(4)]; vWA = [va.get() for _ in range(2)]; vQA = [va.get() for _ in range(2)]
vC0 = va.get(2, 2); vHV = [va.get(), va.get()]
vZA = va.get(); vGA = va.get(); vZW = va.get(); vZT = va.get(); vEW = va.get(); vGW = va.get()
vB2 = va.get(8, 4); vQ = va.get(8, 4)
vACC = [64 + 16 * i for i in range(4)]
vFR1 = 128
vB1 = 244; vONE = 248
if PA:
    vb = VA(160, 244)
    vL8 = vb.get(); vLd8 = vb.get(); vG4 = vb.get(); vL15 = vb.get(); vTP = vb.get(2, 2)
    m("v_and_b32 v%d, 7, v%d" % (vL8, L)); m("v_lshrrev_b32 v%d, 3, v%d" % (vLd8, L)); m("v_and_b32 v%d, 15, v%d" % (vL15, L)); m("v_lshrrev_b32 v%d, 4, v%d" % (vG4, L))
    slin(m, sT0, [(sW, 128)], L_TP)
    vlin(m, vTP, [(vL15, 8)], sT0)
m("s_and_b32 %s, %s, 1" % (sE2, sW))
m("v_and_b32 v%d, 31, v%d" % (vS32, L)); m("v_lshrrev_b32 v%d, 5, v%d" % (vHH, L))
slin(m, sT0, [(sCB128, 256), (sE2, 128)])
vlin(m, vQ, [(vS32, 2)], sT0)
slin(m, sT0, [(sC, 128), (sE2, 64)])
vlin(m, vQ + 1, [(vHH, 16)], sT0)
m("v_and_b32 v%d, 3, v%d" % (vC4, L)); m("v_bfe_u32 v%d, v%d, 2, 2" % (vR4, L)); m("v_bfe_u32 v%d, v%d, 4, 1" % (vMH, L))
m("v_mov_b32 v%d, 0" % (vB1 + 1)); m("v_mov_b32 v%d, 0" % (vB1 + 3))
vlin(m, vT[0], [(L, 4)], L_F)
m("ds_write_b32 v%d, v%d" % (vT[0], vB1 + 1), tag="fz")
m("s_waitcnt lgkmcnt(0)")
stamp(m, rt=True)
stamp(m)
if STAMP: m("v_writelane_b32 v%d, s32, 41" % vSTA)
m("s_load_dword s82, s[68:69], 0")
m("s_mov_b64 s[8:9], %s" % P_B1); m("s_mov_b64 s[10:11], %s" % P_B2)
sm = Stream()
sm("global_load_ushort v%d, v%d, s[8:9]" % (vB1, vQ), tag="sm")
sm("global_load_ushort v%d, v%d, s[8:9] offset:64" % (vB1 + 2, vQ), tag="sm")
for j in range(2): sm("global_load_dwordx4 %s, v%d, s[10:11] offset:%d" % (vr(vB2 + 4 * j, 4), vQ + 1, 32 * j), tag="sm")
SMP = opt("smp", 1)
if SMP == 0: m.extend(sm)
if WARM == 1: warm(m)
su = Stream()
su("s_mov_b64 s[36:37], s[68:69]"); srd23(su, WS, WS_SIZE)
if PA: p0_addr(su, vb)
su("v_bfe_u32 v%d, v%d, 1, 3" % (vT[0], L))
su("v_xor_b32 v%d, v%d, v%d" % (vT[0], vT[0], vHH))
su("s_lshr_b32 %s, %s, 1" % (sT1, sW)); su("s_lshl_b32 %s, %s, 13" % (sT1, sT1))
vlin(su, vXA[0], [(vT[0], 16), (vS32, 128)], sT1)
for ks in range(1, 4): su("v_xor_b32 v%d, %d, v%d" % (vXA[ks], 32 * ks, vXA[0]))
su("s_lshl_b32 %s, %s, 6" % (sT1, sE2))
su("v_xor_b32 v%d, %s, v%d" % (vQA[0], sT1, vXA[0])); su("v_xor_b32 v%d, %s, v%d" % (vQA[1], sT1, vXA[1]))
su("v_bfe_u32 v%d, v%d, 3, 1" % (vT[1], L))
vlin(su, vT[0], [(vMH, 32), (vC4, 8), (vR4, 128), (vT[1], 64)])
slin(su, sT1, [(sE2, 2048)], 16384)
vlin(su, vWA[0], [(vHH, 1024), (vT[0], 1)], sT1)
su("v_xor_b32 v%d, 64, v%d" % (vWA[1], vWA[0]))
for i in range(1, 8): su("v_mov_b32 v%d, 0" % (vONE + i))
su("v_sub_u32 v%d, 1, v%d" % (vONE, vHH))
su("v_mul_u32_u24 v%d, 0x3f80, v%d" % (vONE, vONE))
su("v_mov_b32 v%d, v%d" % (vONE + 6, vONE))
common_setup(su)
c_ = math.sqrt(2.0 / math.pi) * 2.0 * math.log2(math.e)
su("s_mov_b32 s64, 0x%x" % f2u(-c_ * 0.044715)); su("s_mov_b32 s65, 0x%x" % f2u(-c_ * 0.044715))
su("v_mov_b32 v%d, 0x%x" % (vC0, f2u(-c_))); su("v_mov_b32 v%d, 0x%x" % (vC0 + 1, f2u(-c_)))
h_base(su, vHV[0], 0)
vHT = vT[7]
vlin(su, vHT, [(L, 128)], sT2)
su("v_add_u32 v%d, 4096, v%d" % (vHV[1], vHV[0]))
su("s_lshr_b32 %s, %s, 1" % (sT1, sW))
slin(su, sT0, [(sC, 64 * CP), (sE2, 32 * CP), (sRB64, 128), (sT1, 64)], WS_Z)
su("v_lshrrev_b32 v%d, 2, v%d" % (vT[0], L))
vlin(su, vZA, [(vT[0], CP), (vC4, 16)], sT0)
slin(su, sT0, [(sRB64, 64 * 8), (sT1, 256)], WS_G)
vlin(su, vGA, [(vS32, 8)], sT0)
slin(su, sT0, [(sW, RSZ)], L_R)
su("v_add_u32 v%d, %s, v%d" % (vEW, sT0, vL16))
vlin(su, vZT, [(vHH, 512), (vR4, 64), (vMH, 32), (vC4, 8)], sT0)
vlin(su, vGW, [(L, 4)], sT0)
slin(su, sPH, [(sRB64, 8 * FHS), (sW, 2 * FHS)], WS_FH)
slin(su, sFH, [(sC, 4), (sPH, 1)])
su("s_mov_b32 %s, %d" % (sQ1, 16 * CP))
su("s_xor_b32 %s, %s, 1" % (sT0, sRB64))
slin(su, sPS, [(sT0, 7 * 16384), (sC, 16384), (sW, 4096)], WS_P)
su("s_xor_b32 %s, %s, 4096" % (sPR, sPS))
tag_fin(su)
tag_keys(su)
print("A setup", len(su.ops), file=sys.stderr)
glue_sel(su)
gs = groups(su.ops); k_ = opt("sa", 300)
m.ops.extend(sum(gs[:k_], []))
stamp(m)
if SMP == 1: m.extend(sm)
pz = Stream()
if ORD != 1 and not P0X: pz("s_barrier")
if PA:
    p0, p0c = p0_make(vb)
    if not P0X: stamp(pz)
    pz("ds_read_b64 %s, v%d" % (vr(vTP, 2), vTP), tag="tp")
    w_ = Stream(); w_.wait_lgkm("tp")
    p0.ops[9:9] = w_.ops
    pz.extend(p0); pz.extend(p0c)
    if not P0X: stamp(pz)
bm = Stream()
bm.wait_vm("sm")
for i in range(2):
    for ft in range(2):
        bm("v_mfma_f32_32x32x16_bf16 %s, %s, %s, %s" % (vr(vACC[2 * i + ft], 16), vr(vB1, 4), vr(vONE + 4 * ft, 4), vr(vACC[2 * i + ft], 16) if ORD == 2 else "0"))
if ORD != 2: m.extend(pz)
m.ops.extend(sum(gs[k_:], []))
stamp(m)
if ORD != 2: m.extend(bm)
m("s_setprio %d" % opt("pg", 2))
def g1_reads(kap):
    t, ks = kap // 4, kap % 4
    slot = (t % 4) * SLOT
    b = vFR1 + 16 * (kap % 2)
    so = slot - (65536 if slot >= 65536 else 0)
    gs = [Stream(), Stream(), Stream()]
    for ft in range(2):
        g_ = gs[2 * ft]
        g_("ds_read_b64_tr_b16 %s, v%d offset:%d" % (vr(b + 8 + 4 * ft, 2), vWA[ft], so + ks * 4096), tag="f%d_%d" % (kap, ft))
        g_("ds_read_b64_tr_b16 %s, v%d offset:%d" % (vr(b + 8 + 4 * ft + 2, 2), vWA[ft], so + ks * 4096 + 512), tag="f%d_%d" % (kap, ft))
        gs[1]("ds_read_b128 %s, v%d offset:%d" % (vr(b + 4 * ft, 4), vXA[ks], so + 4096 * ft), tag="f%d_0" % kap)
    return gs
def g1_mf(s, kap, i, ft):
    b = vFR1 + 16 * (kap % 2)
    s("v_mfma_f32_32x32x16_bf16 %s, %s, %s, %s" % (vr(vACC[2 * i + ft], 16), vr(b + 8 + 4 * ft, 4), vr(b + 4 * i, 4), "0" if (ORD == 2 and kap == 0) else vr(vACC[2 * i + ft], 16)))
def g1_kstep(s, kap, bar):
    rd = g1_reads(kap + 1) if kap + 1 < 28 else [Stream(), Stream(), Stream()]
    s.wait_lgkm("f%d_%d" % (kap, 1 if bar else 0))
    g1_mf(s, kap, 0, 0)
    if ORD == 2 and kap == 4 * KVT - 1:
        s.extend(bm)
        if not P0X: s.extend(pz)
    if bar:
        fstamp(s, 1); s("s_barrier"); fstamp(s, 1)
    s.extend(rd[0])
    g1_mf(s, kap, 1, 0)
    s.extend(rd[1])
    s.wait_lgkm("f%d_1" % kap)
    g1_mf(s, kap, 0, 1)
    s.extend(rd[2])
    g1_mf(s, kap, 1, 1)
    if kap in (16, 17): s("ds_read_b128 %s, v%d offset:4096" % (vr(vQ + 4 * (kap - 16), 4), vQA[kap - 16]), tag="q")
    if kap % 8 == 6 and kap < 24:
        delta = 65536 if kap in (6, 22) else -65536
        for r in vXA + vWA: s("v_add_u32 v%d, 0x%x, v%d" % (r, delta & 0xffffffff, r))
m("s_barrier")
stamp(m)
for g_ in g1_reads(0): m.extend(g_)
m_ = m; m = Stream()
for kap in range(28):
    if kap == 4 * KVT: m_.extend(m); m = Stream()
    g1_kstep(m, kap, kap % 4 == 3 and kap < 27)
    if kap == 11: stamp(m)
    if PA and kap == opt("fuk", 4): flag_store(m, sFU, "ust")
if P0X:
    for o in pz.ops:
        if o.kind == "waitlgkm": o.cost = 4
        if o.kind == "ds" and "write" in o.text: o.cost = 4
    m = spread(m, pz, 0.0, P0X / (112.0 - 16 * KVT))
m_.extend(m); m = m_
m("s_setprio %d" % opt("pge", 1))
if NPK == 0: lf_set(m, F_G0)
stamp(m)
vGT = 128
HFL = OPT.get("hfl", "sc1").replace("_", " ")
def own(n): return vACC[0] + 8 * n
def gelu(n, pk):
    ge = Stream()
    x0 = own(n); T = vGT + 8 * (n % 2)
    if pk:
        for j in range(4): ge("v_pk_mul_f32 %s, %s, %s" % (vr(T + 2 * j, 2), vr(x0 + 2 * j, 2), vr(x0 + 2 * j, 2)))
        for j in range(4): ge("v_pk_fma_f32 %s, %s, %s, %s" % (vr(T + 2 * j, 2), vr(T + 2 * j, 2), sC1, vr(vC0, 2)))
        for j in range(4): ge("v_pk_mul_f32 %s, %s, %s" % (vr(T + 2 * j, 2), vr(T + 2 * j, 2), vr(x0 + 2 * j, 2)))
        for j in range(8): ge("v_exp_f32 v%d, v%d" % (T + j, T + j))
        for j in range(4): ge("v_pk_add_f32 %s, %s, 1.0 op_sel_hi:[1,0]" % (vr(T + 2 * j, 2), vr(T + 2 * j, 2)))
        for j in range(8): ge("v_rcp_f32 v%d, v%d" % (T + j, T + j))
        for j in range(4): ge("v_pk_mul_f32 %s, %s, %s" % (vr(T + 2 * j, 2), vr(T + 2 * j, 2), vr(x0 + 2 * j, 2)))
    else:
        for j in range(8): ge("v_mul_f32 v%d, v%d, v%d" % (T + j, x0 + j, x0 + j))
        for j in range(8): ge("v_fma_f32 v%d, v%d, s64, v%d" % (T + j, T + j, vC0))
        for j in range(8): ge("v_mul_f32 v%d, v%d, v%d" % (T + j, T + j, x0 + j))
        for j in range(8): ge("v_exp_f32 v%d, v%d" % (T + j, T + j))
        for j in range(8): ge("v_add_f32 v%d, 1.0, v%d" % (T + j, T + j))
        for j in range(8): ge("v_rcp_f32 v%d, v%d" % (T + j, T + j))
        for j in range(8): ge("v_mul_f32 v%d, v%d, v%d" % (T + j, T + j, x0 + j))
    for j in range(4): ge("v_cvt_pk_bf16_f32 v%d, v%d, v%d" % (x0 + j, T + 2 * j, T + 2 * j + 1))
    ge("buffer_store_dwordx4 %s, v%d, %s, %s offen offset:%d %s" % (vr(x0, 4), vHV[n // 4], WS, tCB[0], 1024 * (n % 4), HFL), tag="hst%d" % (n // 4))
    return ge
def hflag(s, i):
    flag_store(s, sFH, "hst%d" % i, HFL)
    if opt("ht", 0) & (1 << i):
        s.begin()
        s("s_mov_b32 %s, 0" % ("exec_hi" if i == 0 else "exec_lo"))
        s("buffer_load_dword v%d, v%d, %s, %s offen sc1" % (vSP1, vHT, WS, tCB[0]), tag="ht")
        s("s_mov_b32 %s, -1" % ("exec_hi" if i == 0 else "exec_lo"))
        s.end()
    if i == 0: s("s_add_u32 %s, %s, %d" % (sFH, sFH, FHS))
F0 = opt("f0", 5); PB = opt("pb0", 7)
assert 3 <= F0 <= PB and (PB < 8 or opt("f1", -7) == -1) and opt("ppos", 48) >= 16 and N4 >= 10 and opt("zp", 50) >= 8
for n in range(8):
    ge = gelu(n, n < NPK)
    if n == NPK - 1:
        f = Stream(); lf_set(f, F_G0); ge.ops[24:24] = f.ops
        for o in ge.ops[33:37]: assert o.text.startswith("v_pk_mul")
        T = vGT + 8 * (n % 2)
        f = Stream()
        for j in range(8): f("v_mul_f32 v%d, v%d, v%d" % (T + j, T + j, own(n) + j))
        ge.ops[33:37] = f.ops
    m.extend(ge)
    if n == F0: hflag(m, 0)
    if n == PB: hpoll_issue(m)
    if n == 3: stamp(m)
    elif n < 7: fstamp(m, 2)
stamp(m)
HS0 = [own(n) for n in range(4)] + [208 + 4 * i for i in range(12)] + [own(n) + 4 for n in range(8)] + [own(n) for n in range(4, 8)]
def hload0(n):
    if n < 4: return None
    s = Stream(); s("buffer_load_dwordx4 %s, v%d, %s, %s offen offset:%d sc1" % (vr(HS0[n], 4), vHV[0], WS, tCB[n // 4], 1024 * (n % 4)), tag="h%d" % n); return s
vA2 = [176, 192]
order = [(n, t) for n in range(28) for t in range(2)]
pre, preh, g2 = gemm2(order, vA2, 128, 12, lambda n: HS0[n], hload0, opt("npa", 8), opt("nrd", 8), 4 if opt("own", 0) else 0, opt("rta", 1))
F1 = opt("f1", -7)
OWN = opt("own", 0)
f = Stream(); hflag(f, 1)
pc = Stream()
if F1 == -1: pc.extend(f)
if PB == 8: hpoll_issue(pc)
if opt("wina", 0):
    o_ = preh.ops; preh = Stream()
    for i_, x_ in enumerate(o_):
        if i_ >= opt("wina", 0): preh.wait_vm(o_[i_ - opt("wina", 0)].tag)
        preh.ops.append(x_)
spoll_inline(pc, 7, hpoll_issue, "ph0")
stamp(pc)
if F1 < -1: preh.ops[-F1 - 1:-F1 - 1] = f.ops
pc.extend(preh)
stamp(pc)
if not OWN: m.extend(pc)
m("s_setprio %d" % opt("pa", 2))
lf_wait(m, F_W2B, vFR, "lwa", pre)
if F1 >= 0: at(g2, F1, f)
x_ = 4 * W2A - opt("nrd", 8) - 1
f = Stream(); lf_check(f, F_W2, vFR, "lw2"); at(g2, x_, f)
f = Stream(); lf_issue(f, F_W2, vFR, "lw2"); at(g2, x_ - 2, f)
if OWN: at(g2, 7, pc)
vZL = own(0); vZL2 = own(1); vG = vT[0]
zregs = list(range(vZL, vZL + 4)) + list(range(vZL2, vZL2 + 4))
def z_issue(s):
    s("buffer_load_dwordx4 %s, v%d, %s, 0 offen sc1" % (vr(vZL, 4), vZA, WS), tag="pz")
    s("buffer_load_dwordx4 %s, v%d, %s, %s offen sc1" % (vr(vZL2, 4), vZA, WS, sQ1), tag="pz")
GP = opt("gp", 44)
if GP < 56: f = Stream(); gran_issue(f, vG, vGA, "pg"); at(g2, GP, f)
ZP = opt("zp", 50)
if ZP < 56: f = Stream(); z_issue(f); at(g2, ZP, f)
if opt("fine", 0) == 2:
    for i_ in (7, 23, 39): f = Stream(); stamp(f); at(g2, i_, f)
m.extend(g2)
stamp(m)
vPO = 128
for t in range(2):
    for j in range(8): m("v_cvt_pk_f16_f32 v%d, v%d, v%d" % (vPO + 8 * t + j, vA2[t] + 2 * j, vA2[t] + 2 * j + 1))
    tag_put(m, list(range(vPO + 8 * t, vPO + 8 * t + 8)))
    for q in range(2):
        m("buffer_store_dwordx4 %s, v%d, %s, %s offen offset:%d sc1" % (vr(vPO + 8 * t + 4 * q, 4), vL16, WS, sPS if t else sPR, 2048 * t + 1024 * q), tag="pst")
m("s_setprio %d" % opt("pf", 3))
if opt("whi", 0): lf_wait(m, F_HI, vFR, "lhi")
if GP >= 56: gran_issue(m, vG, vGA, "pg")
if ZP >= 56: z_issue(m)
lf_issue(m, F_Y, vFW, "lya")
stamp(m)
vQF = list(range(208, 224)); vBF = list(range(224, 240)); vZH = 240
for j in range(2): unpack(m, vQF[8 * j:8 * j + 8], vQ + 4 * j); unpack(m, vBF[8 * j:8 * j + 8], vB2 + 4 * j)
gran_check(m, vG, vGA, "pg")
for j in range(16): m("v_mul_f32 v%d, v%d, v%d" % (vQF[j], vQF[j], vG))
m("v_sub_f32 v%d, 1.0, v%d" % (vG, vG))
lf_check(m, F_Y, vFW, "lya")
m("ds_write_b32 v%d, v%d offset:%d" % (vGW, vG, R_EG), tag="ew")
for j in range(16): m("v_mul_f32 v%d, v%d, v%d" % (vBF[j], vBF[j], vG))
tag_check(m, z_issue, zregs, "pz")
stamp(m)
m("ds_write_b128 v%d, %s offset:%d" % (vEW, vr(vZL, 4), R_ZS), tag="zw")
m("ds_write_b128 v%d, %s offset:%d" % (vEW, vr(vZL2, 4), R_ZS + 1024), tag="zw")
for i in range(4):
    m("ds_read_b64_tr_b16 %s, v%d offset:%d" % (vr(vZH + 2 * i, 2), vZT, R_ZS + 1024 * (i >> 1) + 256 * (i & 1)), tag="zr%d" % i)
for a in range(4):
    m.wait_lgkm("zr%d" % a)
    for j in range(4 * a, 4 * a + 4): mix(m, vBF[j], vZH, j, "v%d" % vQF[j], "v%d" % vBF[j])
    m("ds_write_b128 v%d, %s offset:%d" % (vEW, vr(vBF[4 * a], 4), 1024 * a), tag="ew")
lf_set(m, F_E)
m("s_waitcnt lgkmcnt(0)")
stamp(m)
stamp_out(m)
m("s_endpgm")

g = Stream()
g("L_spare:")
g("s_cmp_ge_u32 s2, 256")
g("s_cbranch_scc1 L_end")
if STAMP: g("v_mov_b32 v%d, 0" % vSTA)
for nm, nb in ((Q, NB), (W1, NW), (WS, WS_SIZE), (W2, NW), (SSM, NB)): srd23(g, nm, nb)
g("s_waitcnt lgkmcnt(0)")
g("s_mov_b64 s[8:9], s[40:41]"); g("s_mov_b64 s[24:25], s[54:55]"); g("s_mov_b64 s[20:21], s[48:49]")
g("s_mov_b64 s[36:37], s[68:69]"); g("s_mov_b64 s[28:29], s[58:59]")
stamp(g, rt=True); stamp(g)
if STAMP: g("v_writelane_b32 v%d, s32, 41" % vSTA)
sJ = sA
def pf_w1():
    g("s_sub_u32 %s, %s, 28" % (sT0, sI)); g("s_lshl_b32 %s, %s, 2" % (sT0, sT0)); g("s_add_u32 %s, %s, %s" % (sT0, sT0, sW))
    g("v_lshrrev_b32 v12, 1, v%d" % vLANE); g("v_mul_u32_u24 v12, 3584, v12")
    g("v_and_b32 v13, 1, v%d" % vLANE); g("v_lshl_add_u32 v12, v13, 7, v12")
    g("s_and_b32 %s, %s, 1" % (sCH, sX)); g("s_mul_i32 %s, %s, %d" % (sCH, sCH, 7 * 256))
    g("L_pf1:")
    g("s_lshr_b32 %s, %s, 1" % (sT1, sT0))
    g("s_mul_i32 %s, %s, 147" % (sT2, sT1)); g("s_lshr_b32 %s, %s, 10" % (sT2, sT2))
    g("s_mul_i32 %s, %s, 7" % (sT3, sT2)); g("s_sub_u32 %s, %s, %s" % (sT1, sT1, sT3))
    g("s_lshl_b32 %s, %s, 1" % (sT2, sT2)); g("s_add_u32 %s, %s, %s" % (sT2, sT2, sT1))
    g("s_cmp_ge_u32 %s, 7" % sT2); g("s_cselect_b32 %s, 7, 0" % sT3); g("s_sub_u32 %s, %s, %s" % (sT2, sT2, sT3))
    g("s_lshl_b32 %s, %s, 1" % (sT2, sT2)); g("s_and_b32 %s, %s, 1" % (sT3, sT0)); g("s_add_u32 %s, %s, %s" % (sT2, sT2, sT3))
    g("s_mul_i32 %s, %s, %d" % (sT2, sT2, 32 * 3584))
    g("s_lshl_b32 %s, %s, 8" % (sT1, sT1)); g("s_add_u32 %s, %s, %s" % (sT2, sT2, sT1)); g("s_add_u32 %s, %s, %s" % (sT2, sT2, sCH))
    g("buffer_load_dword v13, v12, %s, %s offen" % (W1, sT2))
    g("s_add_u32 %s, %s, 16" % (sT0, sT0))
    g("s_cmp_lt_u32 %s, 42" % sT0)
    g("s_cbranch_scc1 L_pf1")
    g("s_sub_u32 %s, %s, 42" % (sT0, sT0))
def pf_ssm():
    g("v_lshlrev_b32 v12, 7, v%d" % vLANE)
    g("s_lshr_b32 %s, %s, 1" % (sCH, sX)); g("s_lshl_b32 %s, %s, 16" % (sCH, sCH)); g("s_and_b32 %s, %s, 1" % (sT1, sX)); g("s_lshl_b32 %s, %s, 13" % (sT1, sT1))
    g("s_add_u32 %s, %s, %s" % (sCH, sCH, sT1))
    g("L_pfs:")
    g("s_and_b32 %s, %s, 3" % (sT1, sT0)); g("s_lshl_b32 %s, %s, 14" % (sT1, sT1))
    g("s_lshr_b32 %s, %s, 2" % (sT2, sT0)); g("s_lshl_b32 %s, %s, 18" % (sT2, sT2))
    g("s_add_u32 %s, %s, %s" % (sT1, sT1, sT2)); g("s_add_u32 %s, %s, %s" % (sT1, sT1, sCH))
    g("buffer_load_dword v13, v12, %s, %s offen" % (SSM, sT1))
    g("s_add_u32 %s, %s, 16" % (sT0, sT0))
    g("s_cmp_lt_u32 %s, 28" % sT0)
    g("s_cbranch_scc1 L_pfs")
    g("s_sub_u32 %s, %s, 28" % (sT0, sT0))
def pf_w2():
    g("v_mul_u32_u24 v12, 896, v%d" % vLANE)
    g("s_and_b32 %s, %s, 1" % (sCH, sX)); g("s_mul_i32 %s, %s, %d" % (sCH, sCH, 7 * CBS))
    g("s_lshr_b32 %s, %s, 1" % (sROT, sX)); g("s_mul_i32 %s, %s, 3" % (sROT, sROT)); g("s_add_u32 %s, %s, 1" % (sROT, sROT)); g("s_and_b32 %s, %s, 14" % (sROT, sROT))
    g("L_pf:")
    g("s_mul_i32 %s, %s, 147" % (sT2, sT0)); g("s_lshr_b32 %s, %s, 10" % (sT2, sT2))
    g("s_mul_i32 %s, %s, 7" % (sT3, sT2)); g("s_sub_u32 %s, %s, %s" % (sT1, sT0, sT3))
    g("s_add_u32 %s, %s, %s" % (sT3, sT2, sROT)); g("s_cmp_ge_u32 %s, 14" % sT3); g("s_cselect_b32 %s, 12, 0" % sHB); g("s_sub_u32 %s, %s, %s" % (sT3, sT3, sHB))
    g("s_cmp_ge_u32 %s, 2" % sT2); g("s_cselect_b32 %s, %s, %s" % (sT2, sT3, sT2))
    g("s_lshl_b32 %s, %s, 1" % (sT3, sT1)); g("s_add_u32 %s, %s, %s" % (sT2, sT2, sT3))
    g("s_cmp_ge_u32 %s, 14" % sT2); g("s_cselect_b32 %s, 14, 0" % sT3); g("s_sub_u32 %s, %s, %s" % (sT2, sT2, sT3))
    g("s_mul_i32 %s, %s, %d" % (sT2, sT2, CBS // 2)); g("s_lshl_b32 %s, %s, 7" % (sT1, sT1))
    g("s_add_u32 %s, %s, %s" % (sT1, sT1, sT2)); g("s_add_u32 %s, %s, %s" % (sT1, sT1, sCH))
    g("buffer_load_dword v13, v12, %s, %s offen" % (W2, sT1))
    g("s_add_u32 %s, %s, 16" % (sT0, sT0))
    g("s_cmp_lt_u32 %s, %d" % (sT0, opt("pfn", 98)))
    g("s_cbranch_scc1 L_pf")
def gate_loads():
    g("s_sub_u32 %s, %s, 28" % (sJ, sI)); g("s_lshl_b32 %s, %s, 2" % (sRB64, sX)); g("s_add_u32 %s, %s, %s" % (sJ, sJ, sRB64))
    slin(g, sRB64, [(sJ, 64), (sW, 16)])
    g("v_lshrrev_b32 v11, 3, v%d" % vLANE); g("v_add_u32 v11, %s, v11" % sRB64)
    g("v_and_b32 v15, 7, v%d" % vLANE); g("v_lshlrev_b32 v15, 4, v15")
    g("v_mul_u32_u24 v14, 896, v11"); g("v_add_u32 v14, v14, v15")
    g("s_mov_b32 %s, %d" % (sT1, 8 * 896))
    for i in range(7):
        g("global_load_dwordx4 v[%d:%d], v15, %s offset:%d" % (80 + 4 * i, 83 + 4 * i, P_GATE, 128 * i), tag="gq")
    for i in range(14):
        g("buffer_load_dwordx4 v[%d:%d], v14, %s, %s offen offset:%d" % (16 + 4 * i, 19 + 4 * i, Q, sT1 if i >= 7 else "0", 128 * (i % 7)), tag="gq")
def gate_fin():
    g("s_waitcnt vmcnt(0)")
    stamp(g)
    g("v_add_u32 v%d, 0x%x, v%d" % (vTAG, TAG_INC, vTAG))
    for i in range(56):
        acc = 140 + 2 * (i // 28) + (i % 2)
        g("v_dot2_f32_bf16 v%d, v%d, v%d, %s" % (acc, 16 + i, 80 + i % 28, "0" if i % 28 < 2 else "v%d" % acc))
    g("v_add_f32 v140, v140, v141"); g("v_add_f32 v142, v142, v143")
    for ctl in ("quad_perm:[1,0,3,2]", "quad_perm:[2,3,0,1]", "row_half_mirror"):
        for r_ in (140, 142): g("v_add_f32_dpp v%d, v%d, v%d %s row_mask:0xf bank_mask:0xf" % (r_, r_, r_, ctl))
    g("v_and_b32 v15, 1, v%d" % vLANE); g("v_cmp_eq_u32 vcc, 1, v15")
    g("v_cndmask_b32 v140, v140, v142, vcc")
    g("v_mul_f32 v140, 0x%x, v140" % f2u(-math.log2(math.e)))
    g("v_exp_f32 v140, v140"); g("v_add_f32 v140, 1.0, v140"); g("v_rcp_f32 v140, v140")
    g("v_mov_b32 v141, v%d" % vTAG)
    g("v_lshl_add_u32 v11, v15, 3, v11")
    g("v_lshlrev_b32 v11, 3, v11"); g("v_add_u32 v11, 0x%x, v11" % WS_G)
    g("s_mov_b32 exec_lo, 0x03030303"); g("s_mov_b32 exec_hi, 0x03030303")
    g("buffer_store_dwordx2 v[140:141], v11, %s, 0 offen sc1" % WS)
    g("s_mov_b64 exec, -1")
g("s_cmp_ge_u32 %s, 4" % sE2)
g("s_cbranch_scc1 L_gate")
for ch in opt("sp", "12"):
    {"1": pf_w1, "s": pf_ssm, "2": pf_w2}[ch]()
    stamp(g)
g("s_branch L_spare_done")
g("L_gate:")
g("v_mov_b32 v12, 0")
g("buffer_load_dword v%d, v12, %s, 0 offen sc1" % (vTAG, WS))
if opt("gd", 1): g("s_waitcnt vmcnt(0)")
gate_loads(); gate_fin()
if opt("wb", 0):
    g("s_cmp_lt_u32 s2, 248"); g("s_cbranch_scc1 L_nowb")
    g("s_cmp_lg_u32 %s, 1" % sW); g("s_cbranch_scc1 L_nowb")
    g("s_lshr_b32 %s, %s, 1" % (sT0, sX)); g("s_and_b32 %s, %s, 1" % (sT1, sX))
    slin(g, sT2, [(sT0, 64 * FHS), (sT1, 8 * FHS)], WS_FH + FHS * (opt("wb", 0) & 1))
    g("v_lshrrev_b32 v12, 4, v%d" % vLANE); g("v_bfe_u32 v13, v%d, 2, 2" % vLANE); g("v_and_b32 v14, 3, v%d" % vLANE)
    vlin(g, 15, [(12, 16 * FHS), (13, 2 * FHS), (14, 8)], sT2)
    g("v_cmp_eq_u32 vcc, 3, v14"); g("v_subb_co_u32 v14, vcc, 0, 0, vcc"); g("v_lshl_add_u32 v15, v14, 2, v15")
    g("s_mov_b32 %s, 0" % sSPIN)
    g("L_wbp:")
    g("s_sleep 2")
    g("buffer_load_dwordx2 v[18:19], v15, %s, 0 offen sc1" % WS)
    g("s_add_u32 %s, %s, 1" % (sSPIN, sSPIN))
    g("s_waitcnt vmcnt(0)")
    g("v_xor_b32 v18, v18, v%d" % vTAG); g("v_xor_b32 v19, v19, v%d" % vTAG); g("v_or_b32 v18, v18, v19")
    g("v_cmp_ne_u32 vcc, 0, v18")
    g("s_cmp_gt_u32 %s, 24" % sSPIN)
    g("s_cbranch_scc1 L_nowb")
    g("s_cbranch_vccnz L_wbp")
    stamp(g)
    g("buffer_wbl2 sc1")
    g("s_waitcnt vmcnt(0)")
    g("L_nowb:")
g("s_cmp_lg_u32 s2, 255"); g("s_cbranch_scc1 L_spare_done")
g("s_cmp_lg_u32 %s, 0" % sW); g("s_cbranch_scc1 L_spare_done")
g("s_waitcnt vmcnt(0)")
g("v_lshrrev_b32 v12, 3, v%d" % vLANE); g("v_mul_u32_u24 v12, 96, v12"); g("v_lshl_add_u32 v12, v%d, 2, v12" % vLANE)
g("v_lshlrev_b32 v13, 7, v%d" % vLANE); g("v_add_u32 v13, 0x%x, v13" % (WS_G + 4))
g("v_add_u32 v14, 8192, v13")
g("s_mov_b32 %s, 0" % sSPIN)
g("L_upd:")
g("s_sleep 8")
for i in range(14):
    g("s_mov_b32 %s, 0x%x" % (sT0, WS_FU + 1024 * i))
    g("buffer_load_dword v%d, v12, %s, %s offen sc1" % (18 + i, WS, sT0))
g("buffer_load_dword v32, v13, %s, 0 offen sc1" % WS)
g("buffer_load_dword v33, v14, %s, 0 offen sc1" % WS)
g("s_add_u32 %s, %s, 1" % (sSPIN, sSPIN))
g("s_waitcnt vmcnt(0)")
for i in range(16): g("v_xor_b32 v%d, v%d, v%d" % (18 + i, 18 + i, vTAG))
for i in range(1, 16): g("v_or_b32 v18, v18, v%d" % (18 + i))
g("v_cmp_ne_u32 vcc, 0, v18")
g("s_cmp_gt_u32 %s, 0x40000" % sSPIN)
g("s_cbranch_scc1 L_upd_go")
g("s_cbranch_vccnz L_upd")
g("L_upd_go:")
g("v_mov_b32 v12, 0")
g("s_mov_b64 exec, 1")
g("buffer_store_dword v%d, v12, %s, 0 offen sc1" % (vTAG, WS))
g("s_mov_b64 exec, -1")
g("L_spare_done:")
stamp_out(g)
g("L_end:")
g("s_endpgm")

drops = [d for d in OPT.get("drop", "").split(",") if d]
for st in (mA, mB, g):
    k_ = 0
    for o in st.ops:
        if "STAMPIDX" in o.text:
            o.text = o.text.replace("STAMPIDX", str(k_)); k_ += 1
        if "STAMPIDY" in o.text: o.text = o.text.replace("STAMPIDY", str(k_ + 19))
    assert k_ <= (20 if STAMP == 3 else 40)
    if st is g: continue
    if drops:
        keep = []; dropped = set()
        for o in st.ops:
            if o.kind in VMEMK and o.tag and any(re.fullmatch(d, o.tag) for d in drops):
                dropped.add(o.tag); continue
            if o.kind == "waitvm" and o.waitfor in dropped: continue
            keep.append(o)
        st.ops = keep
    if opt("x16", 0):
        X = opt("x16", 0)
        res = []; k = 0; gs_ = groups(st.ops); pend2 = None
        for gi_, g_ in enumerate(gs_):
            o = g_[0]
            if pend2 and gi_ >= pend2[0]: res.append(pend2[1]); pend2 = None
            if o.kind == "mfma" and len(g_) == 1:
                k += 1
                ph = (1 if k <= 116 else 4) if st is mA else (2 if k <= 80 else 4)
                if X & ph:
                    mm = re.match(r"v_mfma_f32_32x32x16_bf16 v\[(\d+):\d+\], (\S+), (\S+), (\S+)", o.text)
                    two = []
                    for h_ in range(2):
                        b_ = int(mm.group(1)) + 4 * (2 * ((k // 4) & 1) + h_)
                        o2 = Op("v_mfma_f32_16x16x32_bf16 v[%d:%d], %s, %s, v[%d:%d]" % (b_, b_ + 3, mm.group(2), mm.group(3), b_, b_ + 3), None); analyze(o2); two.append(o2)
                    j_ = gi_ + 1
                    while j_ < len(gs_) and gs_[j_][0].kind not in ("mfma", "waitvm", "waitlgkm", "ctl") and j_ - gi_ < 12: j_ += 1
                    res.append(two[0]); pend2 = (gi_ + 1 + (j_ - gi_ - 1) // 2, two[1])
                    continue
            res.extend(g_)
        st.ops = res
    for t_ in OPT.get("nochk", "").split(","):
        st.ops = [o for o in st.ops if o.text != "s_cbranch_vccnz L_spin_%s" % t_ and o.text != "s_cbranch_scc1 L_spin_%s" % t_]
    seen_w = {}
    for i_, o in enumerate(st.ops):
        if o.kind in ("waitvm", "waitlgkm"): seen_w.setdefault((o.kind, o.waitfor), i_)
        elif o.tag and isinstance(o.tag, str):
            k_ = "waitvm" if o.kind in VMEMK else "waitlgkm"
            assert (k_, o.tag) not in seen_w, ("op after its wait", o.tag, o.text)
nb = lambda st: sum(o.text == "s_barrier" for o in st.ops)
assert nb(mA) == nb(mB), (nb(mA), nb(mB))
assert npoll[0] <= 20
print("polls", pollnames, file=sys.stderr)
full = Stream(); full.extend(pro); full.extend(mB)
mops = finalize(full) + finalize(mA)
tail_ = "\n" + render(insert_nops(spins.ops)) + "\n" + render(insert_nops(resolve_waits(g.ops)))
hdr = open("cdna_kernels/%s.s.ref" % NAME).read().split("; Override launch")[0]
def emit(ops):
    out = hdr + "; @launch grid=(256,1,1) block=(512,1,1) lds=%d\n" % LDS_TOTAL
    out += '.amdgcn_target "amdgcn-amd-amdhsa--gfx950"\n.text\n.globl %s_kernel\n.p2align 12\n.type %s_kernel,@function\n%s_kernel:\n' % (NAME, NAME, NAME)
    out += render(ops) + tail_ + "\nL_code_end:\n"
    out = out.replace("CODE_BYTES", "L_code_end-%s_kernel-128" % NAME)
    out += '.section .rodata,"a"\n.p2align 6\n.amdhsa_kernel %s_kernel\n' % NAME
    out += "  .amdhsa_next_free_vgpr 256\n  .amdhsa_next_free_sgpr 102\n  .amdhsa_accum_offset 256\n  .amdhsa_group_segment_fixed_size 0\n"
    out += "  .amdhsa_kernarg_size 120\n  .amdhsa_user_sgpr_count 2\n  .amdhsa_user_sgpr_kernarg_segment_ptr 1\n  .amdhsa_system_sgpr_workgroup_id_x 1\n.end_amdhsa_kernel\n"
    return out
if WARM:
    import subprocess, tempfile, os
    td = tempfile.mkdtemp()
    open(td + "/a.s", "w").write(emit(mops).replace("s_branch L_stub0", "s_branch L_back"))
    subprocess.run(["clang", "-x", "assembler", "-target", "amdgcn-amd-amdhsa", "-mcpu=gfx950", "-c", td + "/a.s", "-o", td + "/a.o"], check=True)
    dis = subprocess.run(["llvm-objdump", "-d", td + "/a.o"], capture_output=True, text=True).stdout
    addrs = [int(x, 16) for x in re.findall(r"// ([0-9A-F]{12}):", dis)]
    res = []; k = 0; ns = 0; pos_ = []
    for o in mops:
        if o.kind != "label":
            if addrs[k] + 4 * ns >= 4096 * (ns + 1) and o.text != "s_branch L_stub0" and res[-1].text != "L_back:":
                pos_.append(len(res)); ns += 1
                res.append(None); res.append(None)
            k += 1
        res.append(o)
    for i, p_ in enumerate(pos_):
        res[p_] = Op("L_stub%d:" % i, "label"); res[p_ + 1] = Op("s_cbranch_execz %s" % ("L_stub%d" % (i + 1) if i + 1 < ns else "L_back"), "ctl")
    mops = res
    print("main code bytes", addrs[k - 1], "stubs", ns, file=sys.stderr)
open(sys.argv[1], "w").write(emit(mops))
```

```python
import sys, math, struct
sys.path.insert(0, "gen")
from asmlib import *

NAME = "gated_mix__ssm_conv_h3__dense_activation_gelu__prompt"
STAMP = int(sys.argv[2]) if len(sys.argv) > 2 else 0
OPT = dict(a.split("=") for a in sys.argv[3:])
def opt(k, d): return type(d)(OPT.get(k, d))
f2u = lambda f: struct.unpack("<I", struct.pack("<f", f))[0]

FUS = 128; FHS = 128
WS_FU = 0x60000
WS_FH = 0x80000
WS_G  = 0x8000
WS_U  = 0x100000
WS_Z  = 0x300000
WS_P  = 0xE40000
CP = 4224
WS_H  = 0x500000
CBS = 128 * 896
WS_STAMP = 0x1200000
WS_SIZE = 0x1200000 + (0x80000 if STAMP else 0)
TAG_INC = 0x9E3779B9
SLOT = 32768
L_R = 114688; RSZ = 11920
R_UW = 4160; UP = 1280; R_Y = 6720; R_ZS = 4096; R_EG = 6144
L_KS = 131072
L_VS = L_KS + 72 * 128
L_P0 = L_VS + 64 * 128
L_TP = L_P0 + 4 * 2304
L_F = 163840 - 256
F_W2, F_HC, F_U, F_G0, F_Y, F_YD, F_X, F_E, F_KV, F_W2B, F_HI, F_S = range(12)
LDS_TOTAL = 163840
W2POS = [12, 13, 0, 1, 2, 3, 4, 5, 6, 7, 8, 9, 10, 11]

Q, K, V, SSM, W1, W2, OUT, WS = ["s[%d:%d]" % (b, b + 3) for b in range(8, 40, 4)]
WSP = "s[36:37]"
P_SHIFT, P_D, P_B1, P_B2, P_GATE = "s[46:47]", "s[50:51]", "s[56:57]", "s[60:61]", "s[62:63]"
sW, sX, sI, sA, sC, sRB128, sCB128, sRB64 = "s70", "s71", "s72", "s73", "s74", "s75", "s76", "s77"
sT0, sT1, sT2, sT3 = "s78", "s79", "s80", "s81"
sTAG = "s[82:83]"
sROT, sSPIN, sCH, sHB = "s84", "s85", "s86", "s87"
sXL, sWL, sW2L, sRW, sPO, sE2, sHSRC = "s88", "s89", "s3", "s4", "s5", "s6", "s7"
sC1 = "s[64:65]"
sST = "s[66:67]"
sFU, sFH, sPH = "s99", "s100", "s62"
sZB, sQ1, sZ8, sPS, sPR, sMSK = "s63", "s56", "s97", "s57", "s60", "s61"
sW0, sHP, sDP, sW8, sUP = "s98", "s0", "s83", "s1", "s64"
sP = sHB
tXO = ["s40", "s41", "s42", "s43", "s44", "s45", "s48"]
tWO = ["s49", "s52", "s53", "s54", "s55", "s58", "s59"]
tCB = ["s%d" % i for i in range(90, 97)]
sPOLL = 12

class VA:
    def __init__(self, lo, hi): self.n = lo; self.hi = hi
    def get(self, k=1, align=1):
        self.n = (self.n + align - 1) // align * align
        r = self.n; self.n += k
        assert self.n <= self.hi, "out of regs"
        return r
def vr(b, k=1): return "v%d" % b if k == 1 else "v[%d:%d]" % (b, b + k - 1)

spins = Stream()
vLANE, vTAG, vSTA = 1, 2, 3
vT = list(range(4, 12))
vSP0, vSP1, vDUM, vFW, vFR, vFL, vL16, vONEF = range(12, 20)
vTK = list(range(20, 24))
vW2R = list(range(24, 28))
vS32, vHH = 28, 29
L = vLANE
DUMMY_DS[0] = "ds_read_b32 v%d, v%d" % (vDUM, vL16)

def stamp(s, rt=False, idx=None):
    if not STAMP: return
    s.begin()
    s("%s %s" % ("s_memrealtime" if (rt or STAMP == 2) else "s_memtime", sST))
    s("s_waitcnt lgkmcnt(0)")
    s("v_writelane_b32 v%d, s66, %s" % (vSTA, "STAMPIDX" if idx is None else str(idx)))
    if STAMP == 3 and idx is None:
        s("s_memrealtime %s" % sST); s("s_waitcnt lgkmcnt(0)")
        s("v_writelane_b32 v%d, s66, STAMPIDY" % vSTA)
    s.end()
def fstamp(s, lvl=2):
    if opt("fine", 0) == lvl: stamp(s)

def lstamps(g2, m, pos):
    if opt("fine", 0) != 5 or not STAMP: m.extend(g2); return
    for k, i_ in enumerate(pos):
        f = Stream(); f("%s s[%d:%d]" % ("s_memrealtime" if STAMP == 2 else "s_memtime", 40 + 2 * k, 41 + 2 * k)); f.smem_done(); at(g2, i_, f)
    m.extend(g2)
    m("s_waitcnt lgkmcnt(0)")
    for k in range(len(pos)): m("v_writelane_b32 v%d, s%d, STAMPIDX" % (vSTA, 40 + 2 * k))
def slin(s, dst, terms, const=0):
    tmp = sT3; first = True
    for reg, mult in terms:
        d = dst if first else tmp
        if mult == 1: src = reg
        else:
            if mult & (mult - 1) == 0: s("s_lshl_b32 %s, %s, %d" % (d, reg, mult.bit_length() - 1))
            else: s("s_mul_i32 %s, %s, %d" % (d, reg, mult))
            src = d
        if first:
            if src != dst: s("s_mov_b32 %s, %s" % (dst, src))
        else: s("s_add_u32 %s, %s, %s" % (dst, dst, src))
        first = False
    if const: s("s_add_u32 %s, %s, 0x%x" % (dst, dst, const))
def vlin(s, dst, terms, base=None):
    acc = None
    terms = sorted(terms, key=lambda t: t[1] & (t[1] - 1) == 0)
    for reg, mult in terms:
        p2 = mult & (mult - 1) == 0
        if acc is None:
            if p2 and isinstance(base, str):
                s("v_lshl_add_u32 v%d, v%d, %d, %s" % (dst, reg, mult.bit_length() - 1, base)); base = None
            elif p2: s("v_lshlrev_b32 v%d, %d, v%d" % (dst, mult.bit_length() - 1, reg))
            else: s("v_mul_u32_u24 v%d, %d, v%d" % (dst, mult, reg))
            acc = dst
        else:
            assert p2
            s("v_lshl_add_u32 v%d, v%d, %d, v%d" % (dst, reg, mult.bit_length() - 1, dst))
    if base is not None:
        s("v_add_u32 v%d, %s, v%d" % (dst, base if isinstance(base, str) else "0x%x" % base, dst))

def flag_store(s, sreg, tagwait, fl="sc1"):
    s.wait_vm(tagwait)
    s.begin()
    s("s_mov_b64 exec, 1")
    s("buffer_store_dword v%d, off, %s, %s %s" % (vTAG, WS, sreg, fl), tag="flag")
    s("s_mov_b64 exec, -1")
    s.end()

npoll = [0]; pollnames = []
def spin_tail(t, tag, lim=0x40000, post=None):
    if STAMP: t("v_writelane_b32 v%d, %s, %d" % (vSTA, sSPIN, 44 + npoll[0]))
    npoll[0] += 1; pollnames.append(tag)
    out = "L_post_%s" % tag if post else "L_ok_%s" % tag
    t("s_cmp_gt_u32 %s, 0x%x" % (sSPIN, lim))
    t("s_cbranch_scc1 %s" % out)
    t("s_cbranch_vccz %s" % out)
    t("s_sleep 1")
    t("s_branch L_spin2_%s" % tag)
    if post:
        t("L_post_%s:" % tag)
        for o in post.ops: t(o.text)
        t("s_waitcnt lgkmcnt(0)")
        t("s_branch L_ok_%s" % tag)
def spoll_check(s, n, issue, tag):
    def cmp(s, lbl):
        s("s_waitcnt lgkmcnt(0)")
        for i in range(0, n, 2):
            if i + 1 < n: s("s_cmp_lg_u64 s[%d:%d], %s" % (sPOLL + i, sPOLL + i + 1, sTAG))
            else: s("s_cmp_lg_u32 s%d, s82" % (sPOLL + i))
            s("s_cbranch_scc1 %s" % lbl)
    s.begin()
    cmp(s, "L_spin_%s" % tag)
    s("L_ok_%s:" % tag)
    s.end()
    t = spins
    t("L_spin_%s:" % tag)
    t("s_mov_b32 %s, 0" % sSPIN)
    t("L_spin2_%s:" % tag)
    t("s_add_u32 %s, %s, 1" % (sSPIN, sSPIN))
    if STAMP: t("v_writelane_b32 v%d, %s, %d" % (vSTA, sSPIN, 44 + npoll[0]))
    npoll[0] += 1; pollnames.append(tag)
    t("s_cmp_gt_u32 %s, 0x40000" % sSPIN)
    t("s_cbranch_scc1 L_ok_%s" % tag)
    if opt("psl", 1): t("s_sleep %d" % opt("psl", 1))
    issue(t)
    cmp(t, "L_spin2_%s" % tag)
    t("s_branch L_ok_%s" % tag)
def hpoll_issue(s): s("s_load_dwordx8 s[%d:%d], %s, %s glc" % (sPOLL, sPOLL + 7, WSP, sPH))
def gran_issue(s, vdst, vaddr, tag):
    s("buffer_load_dwordx2 %s, v%d, %s, 0 offen sc1" % (vr(vdst, 2), vaddr, WS), tag=tag)
def gran_check(s, vdst, vaddr, tag):
    s.wait_vm(tag)
    s.begin()
    s("v_cmp_ne_u32 vcc, v%d, v%d" % (vdst + 1, vTAG))
    s("s_cbranch_vccnz L_spin_%s" % tag)
    s("L_ok_%s:" % tag)
    s.end()
    t = spins
    t("L_spin_%s:" % tag)
    t("s_mov_b32 %s, 0" % sSPIN)
    t("L_spin2_%s:" % tag)
    gran_issue(t, vdst, vaddr, tag)
    t("s_add_u32 %s, %s, 1" % (sSPIN, sSPIN))
    t("s_waitcnt vmcnt(0)")
    t("v_cmp_ne_u32 vcc, v%d, v%d" % (vdst + 1, vTAG))
    spin_tail(t, tag)
def tag_cmp(s, regs):
    for k, r in enumerate(regs): s("v_xor_b32 v%d, v%d, v%d" % (r, vTK[k % 4], r))
    s("v_or_b32 v%d, v%d, v%d" % (vSP0, regs[0], regs[1]))
    for k in range(2, len(regs), 2): s("v_or3_b32 v%d, v%d, v%d, v%d" % (vSP0, vSP0, regs[k], regs[k + 1]))
    s("v_and_b32 v%d, %s, v%d" % (vSP0, sMSK, vSP0))
    s("v_cmp_ne_u32 vcc, 0, v%d" % vSP0)
def tag_check(s, issue, regs, tag):
    s.wait_vm(tag)
    tag_cmp(s, regs)
    s.begin(); s._g -= 1
    s("s_cbranch_vccnz L_spin_%s" % tag)
    s("L_ok_%s:" % tag)
    s.end()
    t = spins
    t("L_spin_%s:" % tag)
    t("s_mov_b32 %s, 0" % sSPIN)
    t("L_spin2_%s:" % tag)
    issue(t)
    t("s_add_u32 %s, %s, 1" % (sSPIN, sSPIN))
    t("s_waitcnt vmcnt(0)")
    tag_cmp(t, regs)
    spin_tail(t, tag)
def tag_put(s, regs):
    for k, r in enumerate(regs): s("v_bfi_b32 v%d, %s, v%d, v%d" % (r, sMSK, vTK[k % 4], r))
def tag_keys(s):
    s("v_lshlrev_b32 v%d, 3, v%d" % (vTK[3], L))
    s("v_bfe_u32 v%d, v%d, v%d, 8" % (vTK[3], vTAG, vTK[3]))
    s("v_lshl_or_b32 v%d, v%d, 15, v%d" % (vTK[3], vTK[3], vTK[3]))
    s("v_and_b32 v%d, %s, v%d" % (vTK[0], sMSK, vTK[3]))
    for k in range(1, 4):
        s("v_lshrrev_b32 v%d, %d, v%d" % (vTK[k], 2 * k, vTK[3])); s("v_and_b32 v%d, %s, v%d" % (vTK[k], sMSK, vTK[k]))
def lf_set(s, k): s("ds_write_b32 v%d, v%d offset:%d" % (vFW, vONEF, 16 * k), tag="lfs")
def lf_issue(s, k, addr, tag): s("ds_read_b32 v%d, v%d offset:%d" % (vFL, addr, 16 * k), tag=tag)
def lf_check(s, k, addr, tag, post=None):
    s.wait_lgkm(tag)
    s.begin()
    s("v_cmp_eq_u32 vcc, 0, v%d" % vFL)
    s("s_cbranch_vccnz L_spin_%s" % tag)
    s("L_ok_%s:" % tag)
    s.end()
    t = spins
    t("L_spin_%s:" % tag)
    t("s_mov_b32 %s, 0" % sSPIN)
    t("L_spin2_%s:" % tag)
    lf_issue(t, k, addr, tag)
    t("s_add_u32 %s, %s, 1" % (sSPIN, sSPIN))
    t("s_waitcnt lgkmcnt(0)")
    t("v_cmp_eq_u32 vcc, 0, v%d" % vFL)
    spin_tail(t, tag, 0x400000, post)
def lf_wait(s, k, addr, tag, data=None, inline=True, sl=1):
    if inline:
        s("s_mov_b32 %s, 0" % sSPIN)
        s("L_rt_%s:" % tag)
    lf_issue(s, k, addr, tag)
    if data: s.extend(data)
    if not inline: return lf_check(s, k, addr, tag, data)
    s.wait_lgkm(tag)
    s("v_cmp_eq_u32 vcc, 0, v%d" % vFL)
    s("s_cbranch_vccz L_ok_%s" % tag)
    inl_tail(s, tag, 0x400000, sl)
def inl_tail(s, tag, lim, sl):
    if sl: s("s_sleep %d" % sl)
    s("s_add_u32 %s, %s, 1" % (sSPIN, sSPIN))
    if STAMP: s("v_writelane_b32 v%d, %s, %d" % (vSTA, sSPIN, 44 + npoll[0]))
    npoll[0] += 1; pollnames.append(tag)
    s("s_cmp_lt_u32 %s, 0x%x" % (sSPIN, lim))
    s("s_cbranch_scc1 L_rt_%s" % tag)
    s("L_ok_%s:" % tag)
def spoll_inline(s, n, issue, tag):
    s.begin()
    s("s_mov_b32 %s, 0" % sSPIN)
    s("s_branch L_c_%s" % tag)
    s("L_rt_%s:" % tag)
    if opt("psl", 1): s("s_sleep %d" % opt("psl", 1))
    s("s_add_u32 %s, %s, 1" % (sSPIN, sSPIN))
    if STAMP: s("v_writelane_b32 v%d, %s, %d" % (vSTA, sSPIN, 44 + npoll[0]))
    npoll[0] += 1; pollnames.append(tag)
    s("s_cmp_gt_u32 %s, 0x40000" % sSPIN)
    s("s_cbranch_scc1 L_ok_%s" % tag)
    issue(s)
    s("L_c_%s:" % tag)
    s("s_waitcnt lgkmcnt(0)")
    for i in range(0, n, 2):
        if i + 1 < n: s("s_cmp_lg_u64 s[%d:%d], %s" % (sPOLL + i, sPOLL + i + 1, sTAG))
        else: s("s_cmp_lg_u32 s%d, s82" % (sPOLL + i))
        s("s_cbranch_scc1 L_rt_%s" % tag)
    s("L_ok_%s:" % tag)
    s.end()

def srd(s, name, lo, nbytes):
    b = int(name[2:].split(":")[0])
    s("s_mov_b64 s[%d:%d], s[%d:%d]" % (b, b + 1, lo, lo + 1))
    s("s_mov_b32 s%d, 0x%x" % (b + 2, nbytes)); s("s_mov_b32 s%d, 0x20000" % (b + 3))
def srd23(s, nm, nb):
    b = int(nm[2:].split(":")[0])
    s("s_mov_b32 s%d, 0x%x" % (b + 2, nb)); s("s_mov_b32 s%d, 0x20000" % (b + 3))
def glue_sel(s):
    for o in s.ops:
        if o.text.startswith(("s_cselect", "v_cndmask")): o.glue = True
def unpack(s, dst, src):
    for j in range(4):
        s("v_lshlrev_b32 v%d, 16, v%d" % (dst[2 * j], src + j)); s("v_and_b32 v%d, 0xffff0000, v%d" % (dst[2 * j + 1], src + j))
def mix(s, d, h16, j, a, c):
    s("v_fma_mix_f32 v%d, v%d, %s, %s op_sel:[%d,0,0] op_sel_hi:[1,0,0]" % (d, h16 + j // 2, a, c, j & 1))

NB = 2048 * 448 * 2
NW = 448 * 1792 * 2
ORD = opt("ord", 0)
SOA = opt("soa", 1)
PBA = opt("pba", 0)
G16 = opt("g16", 1)
assert not G16 or ORD == 0
BW = opt("bw", 0)
m = Stream()
if STAMP: m("s_memrealtime s[32:33]")
m("s_load_dwordx16 s[40:55], s[0:1], 0")
m("s_load_dwordx8 s[56:63], s[0:1], 64")
m("s_load_dwordx4 s[64:67], s[0:1], 96")
m("s_load_dwordx2 s[68:69], s[0:1], 112")
m("v_lshrrev_b32 v%d, 6, v0" % vT[2])
m("v_and_b32 v%d, 63, v0" % vLANE)
m("s_and_b32 %s, s2, 7" % sX)
m("v_readfirstlane_b32 %s, v%d" % (sE2, vT[2]))
m("s_lshr_b32 %s, s2, 3" % sI)
m("s_and_b32 %s, %s, 3" % (sW, sE2))
m("s_cmp_lt_u32 s2, 224")
m("s_cbranch_scc1 L_main")
m("s_getpc_b64 s[4:5]")
m("v_lshlrev_b32 v%d, 7, v0" % vT[0])
m("v_min_u32 v%d, CODE_BYTES, v%d" % (vT[0], vT[0]))
m("global_load_dword v255, v%d, s[4:5]" % vT[0], tag="cpf")
m("s_branch L_spare")
m("L_main:")
if STAMP: m("v_mov_b32 v%d, 0" % vSTA)
m("s_mul_i32 %s, %s, 37" % (sA, sI)); m("s_lshr_b32 %s, %s, 8" % (sA, sA))
m("s_mul_i32 %s, %s, 7" % (sC, sA)); m("s_sub_u32 %s, %s, %s" % (sC, sI, sC))
m("s_lshr_b32 %s, %s, 1" % (sT0, sX)); slin(m, sRB128, [(sT0, 4), (sA, 1)])
m("s_and_b32 %s, %s, 1" % (sHB, sX))
slin(m, sRB64, [(sRB128, 2), (sHB, 1)])
slin(m, sCB128, [(sP, 7), (sC, 1)])
m("s_cmp_ge_u32 %s, 4" % sE2)
m("s_cbranch_scc%d L_A" % (0 if BW else 1))
pro = m

vC4 = vT[4]; vR4 = vT[5]; vMH = vT[3]
ROTX = opt("rotx", 1); ROTA = opt("rota", 0)
def common_setup(su):
    su("v_lshlrev_b32 v%d, 4, v%d" % (vL16, L))
    su("v_mov_b32 v%d, 1" % vONEF)
    slin(su, sT0, [(sW, 4)], L_F)
    su("v_mov_b32 v%d, %s" % (vFW, sT0))
    vlin(su, vFR, [(vC4, 4)], L_F)
    su("v_and_b32 v%d, 1, v%d" % (vT[0], L)); su("v_bfe_u32 v%d, v%d, 1, 1" % (vT[1], L)); su("v_bfe_u32 v%d, v%d, 3, 1" % (vT[2], L))
    su("s_lshl_b32 %s, %s, 13" % (sT1, sE2))
    vlin(su, vW2R[1], [(vHH, 512), (vR4, 128), (vT[2], 64), (vMH, 32), (vT[0], 16), (vT[1], 8)], sT1)
    su("s_lshl_b32 %s, %s, 6" % (sT1, sE2))
    su("v_xor_b32 v%d, %s, v%d" % (vW2R[1], sT1, vW2R[1]))
    su("v_xor_b32 v%d, 64, v%d" % (vW2R[0], vW2R[1]))
    su("v_add_u32 v%d, 0x10000, v%d" % (vW2R[2], vW2R[0])); su("v_add_u32 v%d, 0x10000, v%d" % (vW2R[3], vW2R[1]))
    su("s_mul_i32 %s, %s, %d" % (tCB[0], sC, CBS))
    su("s_lshr_b32 %s, %s, 1" % (sT0, sX))
    if ROTA: su("s_add_u32 %s, %s, %s" % (sT0, sT0, sA)); su("s_and_b32 %s, %s, 3" % (sT0, sT0))
    su("s_mul_i32 %s, %s, 3" % (sT0, sT0)); su("s_add_u32 %s, %s, 1" % (sT0, sT0)); su("s_lshr_b32 %s, %s, 1" % (sT0, sT0))
    su("s_add_u32 %s, %s, %s" % (sT0, sT0, sC)); su("s_mul_i32 %s, %s, %d" % (sT0, sT0, CBS))
    su("s_cmp_ge_u32 %s, %d" % (sT0, 7 * CBS)); su("s_cselect_b32 %s, %d, 0" % (sT1, 7 * CBS)); su("s_sub_u32 %s, %s, %s" % (sT0, sT0, sT1))
    su("s_add_u32 %s, %s, %d" % (sT2, tCB[0], CBS)); su("s_cmp_ge_u32 %s, %d" % (sT2, 7 * CBS)); su("s_cselect_b32 %s, 0, %s" % (sT2, sT2))
    for j in range(1, 7):
        su("s_add_u32 %s, %s, %d" % (tCB[j], sT0 if j == 1 else tCB[j - 1], CBS)); su("s_cmp_ge_u32 %s, %d" % (tCB[j], 7 * CBS)); su("s_cselect_b32 %s, 0, %s" % (tCB[j], tCB[j]))
        if j > 1: su("s_cmp_eq_u32 %s, %s" % (tCB[j], tCB[0])); su("s_cselect_b32 %s, %s, %s" % (tCB[j], sT2, tCB[j]))
    su("s_mov_b32 %s, 0x10001" % sMSK)
def h_base(su, dst, extra):
    su("s_mul_i32 %s, %s, 43" % (sT1, sRB128)); su("s_lshr_b32 %s, %s, 7" % (sT1, sT1))
    slin(su, sT2, [(sT1, 14 * CBS - 12 * 8192), (sRB128, 4 * 8192), (sP, 7 * CBS), (sW, 8192)], WS_H + extra)
    su("v_add_u32 v%d, %s, v%d" % (dst, sT2, vL16))
def tag_fin(s):
    s("s_waitcnt lgkmcnt(0)")
    s("s_add_u32 s82, s82, 0x%x" % TAG_INC); s("s_mov_b32 s101, s83"); s("s_mov_b32 s83, s82"); s("v_mov_b32 v%d, s82" % vTAG)
def w2_reads(s, n, reg, ts=(0, 1)):
    j, ks = n // 4, n % 4
    off = 8192 * W2POS[2 * j] + 2048 * ks; hi = off >= 65536; off -= 65536 * hi
    for t in ts:
        b = reg(n, t)
        s("ds_read_b64_tr_b16 %s, v%d offset:%d" % (vr(b, 2), vW2R[2 * hi + t], off), tag="w2r%d_%d" % (n, t))
        s("ds_read_b64_tr_b16 %s, v%d offset:%d" % (vr(b + 2, 2), vW2R[2 * hi + t], off + 1024), tag="w2r%d_%d" % (n, t))
def gemm2(order, acc, ring, nring, hreg, hload, npre, nrd, hfrom=0, rate=1, fin=None, extra=None):
    slot = {nt: ring + 4 * (i % nring) for i, nt in enumerate(order)}
    assert nrd < nring
    pre = Stream()
    for n, t in order[:nrd]: w2_reads(pre, n, lambda a, b: slot[(a, b)], (t,))
    need = []
    for n, t in order:
        if n not in need and hload(n): need.append(n)
    preh = Stream()
    for n in need[:npre]: preh.extend(hload(n))
    need = need[npre:]
    if not need and fin: preh.extend(fin)
    s = Stream(); seen = set(); first = set()
    for i, (n, t) in enumerate(order):
        if n not in seen and hload(n): s.wait_vm("h%d" % n)
        s.wait_lgkm("w2r%d_%d" % (n, t))
        c = vr(acc[t], 16) if t in first else "0"
        first.add(t)
        s("v_mfma_f32_32x32x16_bf16 %s, %s, %s, %s" % (vr(acc[t], 16), vr(slot[(n, t)], 4), vr(hreg(n), 4), c), tag=(n, t))
        if extra and n < 4:
            s("v_mfma_f32_32x32x16_bf16 %s, %s, %s, %s" % (vr(extra[0][t], 16), vr(slot[(n, t)], 4), vr(extra[1](n), 4), vr(extra[0][t], 16) if (n or t) else "0"), tag=None)
        if (n not in seen or rate == 2) and need and n >= hfrom:
            s.extend(hload(need.pop(0)))
            if not need and fin: s.extend(fin)
        seen.add(n)
        if i + nrd < len(order):
            n2, t2 = order[i + nrd]; w2_reads(s, n2, lambda a, b: slot[(a, b)], (t2,))
    assert not need
    return pre, preh, s
def at(seg, i, f):
    if i < 0: seg.ops[0:0] = f.ops; return
    k = -1
    for p_, o in enumerate(seg.ops):
        if o.kind == "mfma" and o.tag:
            k += 1
            if k == i:
                if p_ + 1 < len(seg.ops) and seg.ops[p_ + 1].kind == "mfma" and not seg.ops[p_ + 1].tag: p_ += 1
                seg.ops[p_ + 1:p_ + 1] = f.ops; return
    assert False
def stamp_out(s):
    if not STAMP: return
    s("s_waitcnt vmcnt(0)")
    stamp(s)
    stamp(s, rt=True, idx=40)
    s("v_lshrrev_b32 v%d, 6, v0" % vT[1])
    slin(s, sT0, [("s2", 2048)], WS_STAMP)
    vlin(s, vT[0], [(vLANE, 4), (vT[1], 256)])
    s("buffer_store_dword v%d, v%d, %s, %s offen" % (vSTA, vT[0], WS, sT0))

WARM = opt("warm", 2)
def warm(m):
    m.begin(); m("s_mov_b64 exec, 0"); m("s_branch L_stub0"); m("L_back:"); m("s_mov_b64 exec, -1"); m.end()
PA = opt("p0a", 1) and ORD != 1
P0X = opt("p0x", 0)
KVT = opt("kvt", 1)
def p0_addr(su, vb):
    global vP0R, vP0W, vP0B, vP0S
    vP0R = vb.get(); vP0W = vb.get(); vP0B = vb.get(); vP0S = vb.get()
    slin(su, sT0, [(sW, 32)], L_KS + 512)
    vlin(su, vP0R, [(vG4, 2048), (vR4, 128), (vC4, 8)], sT0)
    slin(su, sT0, [(sW, 2304)], L_P0)
    vlin(su, vP0W, [(vL15, 144), (vG4, 32)], sT0)
    vlin(su, vP0B, [(vLd8, 144), (vL8, 16)], sT0)
    slin(su, sT0, [(sC, 64 * CP), (sW, 16 * CP), (sRB64, 128)], WS_U)
    vlin(su, vP0S, [(vLd8, CP), (vL8, 16)], sT0)
    su("s_mov_b32 %s, %d" % (sZ8, 8 * CP))
    su("s_lshr_b32 %s, %s, 3" % (sT0, sRB64))
    slin(su, sFU, [(sC, 2048), (sW, 512), (sT0, 96), (sRB64, 4)], WS_FU)
def p0_make(vb):
    vKD = vb.get(10, 2); vVD = vb.get(8, 2); vKO = vb.get(10, 2)
    vKS = vb.get(16, 4); vVF = vb.get(16, 4); vUO = vb.get(8, 4)
    p0 = Stream()
    for i in range(5): p0("ds_read_b64_tr_b16 %s, v%d offset:%d" % (vr(vKD + 2 * i, 2), vP0R, 512 * i), tag="p0r")
    for i in range(4): p0("ds_read_b64_tr_b16 %s, v%d offset:%d" % (vr(vVD + 2 * i, 2), vP0R, L_VS - L_KS - 512 + 512 * i), tag="p0v")
    for j in range(2):
        p0("v_lshlrev_b32 v%d, 16, v%d" % (vUO + 2 * j, vTP + j)); p0("v_and_b32 v%d, 0xffff0000, v%d" % (vUO + 2 * j + 1, vTP + j))
    p0.wait_lgkm("p0r")
    for j in range(1, 10): p0("v_lshlrev_b32 v%d, 16, v%d" % (vKO + j, vKD + j))
    for j in range(10): p0("v_and_b32 v%d, 0xffff0000, v%d" % (vKD + j, vKD + j))
    kel = lambda e: (vKD if e & 1 else vKO) + e // 2
    for j in range(4):
        for s_ in range(16):
            p0(("v_mul_f32 v%d, v%d, v%d" if j == 0 else "v_fmac_f32 v%d, v%d, v%d") % (vKS + s_, kel(s_ + 4 - j), vUO + j))
    p0.wait_lgkm("p0v")
    for s_ in range(16):
        j = s_ // 2
        p0("v_lshlrev_b32 v%d, 16, v%d" % (vVF + 2 * j, vVD + j) if s_ % 2 == 0 else "v_and_b32 v%d, 0xffff0000, v%d" % (vVF + 2 * j + 1, vVD + j))
    for s_ in range(16): p0("v_mul_f32 v%d, v%d, v%d" % (vKS + s_, vKS + s_, vVF + s_))
    for k_, p_ in enumerate((0, 2, 1, 3)):
        for hf in range(2): p0("v_cvt_pk_bf16_f32 v%d, v%d, v%d" % (vUO + 2 * k_ + hf, vKS + p_ + 8 * hf, vKS + p_ + 8 * hf + 4))
    p0("ds_write_b128 v%d, %s" % (vP0W, vr(vUO, 4)), tag="p0w")
    p0("ds_write_b128 v%d, %s offset:16" % (vP0W, vr(vUO + 4, 4)), tag="p0w")
    p0("ds_read_b128 %s, v%d" % (vr(vKS, 4), vP0B), tag="p0b")
    p0("ds_read_b128 %s, v%d offset:1152" % (vr(vKS + 4, 4), vP0B), tag="p0b")
    p0c = Stream()
    p0c.wait_lgkm("p0b")
    p0c("buffer_store_dwordx4 %s, v%d, %s, 0 offen sc1" % (vr(vKS, 4), vP0S, WS), tag="ust")
    p0c("buffer_store_dwordx4 %s, v%d, %s, %s offen sc1" % (vr(vKS + 4, 4), vP0S, WS, sZ8), tag="ust")
    return p0, p0c
m = Stream(); mB = m
va = VA(30, 64); vb = VA(64, 192)
vW2V = [va.get() for _ in range(4)]
vCA = va.get(); vCB = va.get(); vUA = va.get(); vUWA = va.get(); vPADA = va.get()
vYM = va.get(); vYC = va.get(); vYR = va.get(); vYRC = va.get(); vHW = va.get()
vHV1 = va.get(); vQO = va.get(); vXW = va.get(); vXR = va.get(); vFP = va.get(); vOW = va.get(); vOR = va.get(); vGR = va.get()
vZ4 = va.get(4, 4)
vL8 = vb.get(); vLd8 = vb.get(); vG4 = vb.get(); vL15 = vb.get()
vXV = [vb.get() for _ in range(4)]
vWV = [vb.get() for _ in range(4)]
vTP = vb.get(2, 2); vKV = vb.get(); vKH = vb.get()
m("v_and_b32 v%d, 7, v%d" % (vL8, L)); m("v_lshrrev_b32 v%d, 3, v%d" % (vLd8, L)); m("v_and_b32 v%d, 15, v%d" % (vL15, L))
m("v_mul_u32_u24 v%d, 896, v%d" % (vT[5], vLd8))
ka = Stream()
srd23(ka, K, NB); srd23(ka, V, NB)
ka("s_lshl_b32 %s, %s, 7" % (sT0, sC))
vlin(ka, vT[6], [(vL8, 16)], sT0)
slin(ka, sT0, [(sRB64, 64 * 896), (sW, 16 * 896)])
ka("v_add3_u32 v%d, v%d, v%d, %s" % (vKV, vT[5], vT[6], sT0))
ka("s_add_u32 %s, %s, %d" % (sT0, sT3, 8 * 896))
ka("v_subrev_u32 v%d, %s, v%d" % (vKH, sT0, vKV))
ka("s_mov_b32 %s, %d" % (sPO, 8 * 896 - 1024))
ka("s_lshl_b32 %s, %s, 11" % (sW2L, sW))
slin(ka, sT0, [(sC, 512), (sW, 128)])
vlin(ka, vT[2], [(vL8, 16)] if PA else [(vL15, 8)], sT0)
ka("s_add_u32 %s, %s, %d" % (sT1, sT3, L_TP))
slin(ka, sT2, [(sC, 128), (sRB64, 4)])
ka("s_add_u32 %s, %s, %s" % (sCH, sT2, sW)); ka("s_lshr_b32 %s, %s, 1" % (sCH, sCH))
ka("s_lshl_b32 %s, %s, 12" % (sHSRC, sCH))
r2 = Stream()
r2("s_load_dword s82, s[68:69], 0")
r2("s_load_dword %s, s[48:49], %s offset:2044" % (sHP, sHSRC))
r2("s_load_dword %s, %s, %s" % (sDP, P_D, sT2))
tp = Stream(); tp("global_load_dwordx2 %s, v%d, %s" % (vr(vTP, 2), vT[2], P_SHIFT), tag="kv")
kv = Stream()
for src, base in ((K, L_KS + 1024), (V, L_VS)):
    kv.begin(); kv("s_add_u32 m0, %s, %d" % (sW2L, base))
    kv("buffer_load_dwordx4 v%d, %s, 0 offen lds" % (vKV, src), tag="kv"); kv.end()
    kv("buffer_load_dwordx4 v%d, %s, %s offen offset:1024 lds" % (vKV, src, sPO), tag="kv")
kv.begin()
kv("s_mov_b32 m0, %d" % L_KS)
kv("s_mov_b32 exec_lo, 0")
kv("buffer_load_dwordx4 v%d, %s, 0 offen lds" % (vKH, K), tag="kv")
kv("s_mov_b32 exec_lo, -1")
kv.end()
xa = Stream()
slin(xa, sROT, [(sA, 2), (sC, 1)], 6)
for _ in range(2): xa("s_cmp_ge_u32 %s, 7" % sROT); xa("s_cselect_b32 %s, 7, 0" % sT0); xa("s_sub_u32 %s, %s, %s" % (sROT, sROT, sT0))
xa("v_lshrrev_b32 v%d, 4, v%d" % (vG4, L))
xa("s_xor_b32 %s, %s, %s" % (sT0, sW, sHB)); xa("s_andn2_b32 %s, 1, %s" % (sT0, sT0)); xa("s_lshr_b32 %s, %s, 1" % (sT1, sW))
slin(xa, sT1, [(sT1, 32 * 896), (sT0, 64 * 896), (sRB128, 128 * 896)])
xa("v_add_u32 v%d, %s, v%d" % (vT[0], sT1, vT[5]))
xa("v_xor_b32 v%d, v%d, v%d" % (vT[3], vL8, vG4))
xa("v_lshl_add_u32 v%d, v%d, 4, v%d" % (vXV[0], vT[3], vT[0]))
xa("v_xor_b32 v%d, 4, v%d" % (vT[3], vT[3]))
xa("v_lshl_add_u32 v%d, v%d, 4, v%d" % (vXV[1], vT[3], vT[0]))
xa("v_add_u32 v%d, %d, v%d" % (vXV[2], 2 * 6144, vXV[0]))
xa("v_add_u32 v%d, %d, v%d" % (vXV[3], 3 * 6144, vXV[1]))
xa("v_add_u32 v%d, %d, v%d" % (vXV[1], 6144, vXV[1]))
xa("s_lshl_b32 %s, %s, 12" % (sXL, sW))
xa("s_lshl_b32 %s, %s, 7" % (sFH, sROT))
srd23(xa, Q, NB)
wa = Stream()
vSWZ = vT[7]
wa("v_and_b32 v%d, 1, v%d" % (vT[3], vG4)); wa("v_lshlrev_b32 v%d, 2, v%d" % (vT[3], vT[3]))
wa("v_xor_b32 v%d, v%d, v%d" % (vSWZ, vL8, vT[3]))
slin(wa, sT0, [(sW, 16 * 3584), (sCB128, 256)])
vlin(wa, vWV[0], [(vLd8, 3584), (vSWZ, 16)], sT0)
if G16: wa("v_xor_b32 v%d, 32, v%d" % (vWV[1], vWV[0]))
wa("v_add_u32 v%d, %d, v%d" % (vWV[1], 8 * 3584 - 1024, vWV[1 if G16 else 0]))
wa("v_add_u32 v%d, 128, v%d" % (vWV[2], vWV[0]))
wa("v_add_u32 v%d, 128, v%d" % (vWV[3], vWV[1]))
wa("s_add_u32 %s, %s, 16384" % (sWL, sXL))
wa("s_mul_i32 %s, %s, %d" % (sW0, sROT, 64 * 3584))
srd23(wa, W1, NW)
tXO[0] = sFH; tWO[0] = sW0
def st_groups(t):
    gs = []
    slot = (t % 4) * SLOT
    for q in range(4):
        s = Stream(); s.begin()
        if q == 0: s("s_add_u32 m0, %s, %d" % (sXL, slot))
        s("buffer_load_dwordx4 v%d, %s, %s offen offset:%d lds" % (vXV[q], Q, tXO[t], 1024 * q), tag="st%d" % t)
        s.end(); gs.append(s.ops)
    for q in range(4):
        s = Stream(); s.begin()
        if q in (0, 2): s("s_add_u32 m0, %s, %d" % (sWL, slot + (2048 if q == 2 else 0)))
        s("buffer_load_dwordx4 v%d, %s, %s offen offset:%d lds" % (vWV[q], W1, tWO[t], 1024 * (q & 1)), tag="st%d" % t)
        s.end(); gs.append(s.ops)
    return gs
def w2_groups(k):
    j, kh = k // 2, k % 2
    s = Stream()
    for q in range(2):
        s.begin()
        if q == 0: s("s_add_u32 m0, %s, %d" % (sW2L, 8192 * W2POS[k]))
        s("buffer_load_dwordx4 v%d, %s, %s offen offset:%d lds" % (vW2V[2 * kh + q], W2, tCB[j], 1024 * q), tag="w2_%d" % k)
        s.end()
    return groups(s.ops)
m.extend(xa); m.extend(wa); m.extend(ka)
m("s_waitcnt lgkmcnt(0)")
stamp(m, rt=True)
stamp(m)
if STAMP: m("v_writelane_b32 v%d, s32, 41" % vSTA)
s0g = st_groups(0)
if opt("wf", 1): s0g = s0g[4:] + s0g[:4]
m("s_mov_b64 s[8:9], s[40:41]"); m("s_mov_b64 s[24:25], s[54:55]")
m("s_mov_b64 s[12:13], s[42:43]"); m("s_mov_b64 s[16:17], s[44:45]")
QD = []
if PA:
    tp = Stream(); tp("s_mov_b32 m0, %s" % sT1); tp("s_mov_b64 exec, 0xff")
    tp("global_load_lds_dwordx4 v%d, %s" % (vT[2], P_SHIFT), tag="kv"); tp("s_mov_b64 exec, -1")
if ORD == 0:
    if not opt("tpl", 1): m.extend(tp)
    m.extend(kv)
    if opt("tpl", 1): m.extend(tp)
    QD += [(g_, -1) for g_ in s0g[4:]]
else:
    for g_ in s0g: m.ops.extend(g_)
    m.extend(tp)
m.extend(r2)

su = Stream()
su("s_and_b32 %s, %s, 1" % (sE2, sW))
su("s_mov_b64 s[36:37], s[68:69]"); srd23(su, WS, WS_SIZE)
su("s_mov_b64 s[28:29], s[58:59]"); srd23(su, W2, NW)
srd(su, SSM, 48, NB); srd(su, OUT, 64, NB)
su("v_and_b32 v%d, 31, v%d" % (vS32, L)); su("v_lshrrev_b32 v%d, 5, v%d" % (vHH, L))
su("v_and_b32 v%d, 3, v%d" % (vC4, L)); su("v_bfe_u32 v%d, v%d, 2, 2" % (vR4, L)); su("v_bfe_u32 v%d, v%d, 4, 1" % (vMH, L))
if not PA: p0_addr(su, vb)
for t in range(1, 7):
    if t < 4:
        su("s_add_u32 %s, %s, %d" % (sT0, sA, t)); su("s_and_b32 %s, %s, 3" % (sT0, sT0))
        su("s_lshl_b32 %s, %s, 1" % (sT0, sT0)); su("s_add_u32 %s, %s, %s" % (sT0, sT0, sC))
        su("s_cmp_eq_u32 %s, 0" % sT0); su("s_cselect_b32 %s, 7, %s" % (sT0, sT0)); su("s_sub_u32 %s, %s, 1" % (sT0, sT0))
    else:
        su("s_add_u32 %s, %s, %d" % (sT0, sC, 2 * (t - 4)))
    su("s_cmp_ge_u32 %s, 7" % sT0); su("s_cselect_b32 %s, 7, 0" % sT1); su("s_sub_u32 %s, %s, %s" % (sT0, sT0, sT1))
    su("s_lshl_b32 %s, %s, 7" % (tXO[t], sT0)); su("s_mul_i32 %s, %s, %d" % (tWO[t], sT0, 64 * 3584))
common_setup(su)
su("v_xor_b32 v%d, 4, v%d" % (vFP, vFW))
for i in range(4): su("v_mov_b32 v%d, 0" % (vZ4 + i))
slin(su, sRW, [(sW, RSZ)], L_R)
su("s_lshl_b32 %s, %s, 11" % (sT1, sE2)); su("s_add_u32 %s, %s, %s" % (sHSRC, sHSRC, sT1))
slin(su, sT1, [(sC, 128), (sW, 16 * 896), (sP, 7 * CBS)])
vlin(su, vW2V[0], [(vLd8, 896), (vSWZ, 16)], sT1)
su("v_add_u32 v%d, %d, v%d" % (vW2V[1], 8 * 896 - 1024, vW2V[0]))
su("v_add_u32 v%d, %d, v%d" % (vW2V[2], 64 * 896, vW2V[0]))
su("v_add_u32 v%d, %d, v%d" % (vW2V[3], 64 * 896, vW2V[1]))
su("v_and_b32 v%d, 1, v%d" % (vT[0], L)); su("v_bfe_u32 v%d, v%d, 1, 1" % (vT[1], L))
su("s_add_u32 %s, %s, %d" % (sT0, sRW, 64 + 64 - 32))
vlin(su, vCA, [(vT[0], 32), (vMH, 16), (vT[1], 8)], sT0)
vlin(su, vT[0], [(vHH, 64), (vR4, 8)])
su("v_sub_u32 v%d, v%d, v%d" % (vCA, vCA, vT[0]))
su("s_add_u32 %s, %s, %d" % (sT0, sRW, R_UW + 16))
vlin(su, vCB, [(vMH, UP), (vL15, 16), (vHH, 16)], sT0)
slin(su, sT0, [(sCH, CP), (sE2, 16)], WS_U)
vlin(su, vUA, [(L, 32)], sT0)
su("s_add_u32 %s, %s, %d" % (sT0, sRW, R_UW + 256))
vlin(su, vUWA, [(L, 8)], sT0)
su("s_add_u32 %s, %s, %d" % (sT0, sRW, R_UW))
vlin(su, vPADA, [(vMH, UP), (vL15, 16)], sT0)
vlin(su, vT[0], [(vS32, 16)], sRW)
su("v_cmp_gt_u32 vcc, 32, v%d" % L)
su("v_cndmask_b32 v%d, v%d, v%d, vcc" % (vPADA, vT[0], vPADA))
su("s_add_u32 %s, %s, %d" % (sT0, sRW, R_Y + 64))
su("v_writelane_b32 v%d, %s, 36" % (vPADA, sT0))
vlin(su, vT[0], [(vL15, 4), (vG4, 1)], 1)
su("v_lshrrev_b32 v%d, 2, v%d" % (vT[1], vT[0]))
vlin(su, vYC, [(vT[1], 64), (vT[0], 4)], sT0)
su("s_add_u32 %s, %s, %d" % (sT0, sRW, R_Y))
vlin(su, vYM, [(vL15, 80), (vG4, 16)], sT0)
su("s_lshr_b32 %s, %s, 1" % (sT1, sW)); slin(su, sT2, [(sT1, 2 * RSZ)], L_R)
slin(su, sT0, [(sE2, 2 * 1280), (sT2, 1)], R_Y)
su("v_lshrrev_b32 v%d, 2, v%d" % (vT[0], L))
vlin(su, vYR, [(L, 16), (vT[0], 16)], sT0)
vlin(su, vYRC, [(L, 4), (vT[0], 64)], sT0)
slin(su, sT0, [(sE2, 2048), (sT2, 1)], 64)
su("v_add_u32 v%d, %s, v%d" % (vHW, sT0, vL16))
su("s_lshr_b32 %s, %s, 3" % (sT0, sRB64)); slin(su, sUP, [(sC, 2048), (sT0, 512), (sW, 128)], WS_FU)
h_base(su, vHV1, 4096)
OSW = opt("osw", 2)
su("s_lshr_b32 %s, %s, 1" % (sT1, sW))
slin(su, sT0, [(sRB64, 64 * 896), (sT1, 32 * 896), (sC, 128), (sE2, 64)])
if OSW == 2: vlin(su, vQO, [(vT[0], 896), (vC4, 16)], sT0)
elif OSW == 1: vlin(su, vQO, [(vL15, 896), (vHH, 16), (vMH, 32)], sT0)
else: vlin(su, vQO, [(vS32, 896), (vHH, 16)], sT0)
su("s_mov_b32 %s, %d" % (sQ1, 16 * 896))
su("v_add_u32 v%d, %s, v%d" % (vXW, sRW, vL16))
su("s_xor_b32 %s, %s, 1" % (sT1, sW)); slin(su, sT0, [(sT1, RSZ)], L_R)
su("v_add_u32 v%d, %s, v%d" % (vXR, sT0, vL16))
vlin(su, vOW, [(vS32, 80), (vHH, 16)], sRW)
vlin(su, vOR, [(vT[0], 80), (vC4, 16)], sRW)
vlin(su, vGR, [(L, 4)], sRW)
slin(su, sPH, [(sRB64, 8 * FHS), (sW, 2 * FHS)], WS_FH + FHS)
slin(su, sZB, [(sCH, CP), (sE2, 2048)], WS_Z)
slin(su, sPR, [(sRB64, 7 * 16384), (sC, 16384), (sW, 4096)], WS_P)
tag_fin(su)
tag_keys(su)
sDP = "s101"
su("s_lshl_b32 %s, %s, 3" % (sT0, sW)); su("s_and_b32 %s, %s, 16" % (sT0, sT0)); su("s_lshr_b32 %s, %s, %s" % (sDP, sDP, sT0)); su("s_lshl_b32 %s, %s, 16" % (sDP, sDP))
su("s_cmp_eq_u32 %s, 0" % sE2); su("s_cselect_b32 %s, %s, 0" % (sDP, sDP)); su("s_cselect_b32 %s, 0, %s" % (sHP, sHP))
glue_sel(su)
print("B setup", len(su.ops), file=sys.stderr)
if ORD == 0:
    gs = groups(su.ops); k_ = opt("x0p", 0)
    su.ops = sum(gs[:k_] + s0g[:4] + gs[k_:], [])
m.extend(su)
stamp(m)

if not PA: p0, p0c = p0_make(vb)

vCF = 64; vCC = [128 + 16 * i for i in range(4)]
vHL = 192; vHS = 200; vHX = 208; vUL = 212; vEPB = 192
hc = Stream()
for q in range(2):
    hc("buffer_load_dwordx4 %s, v%d, %s, %s offen offset:%d" % (vr(vHL + 4 * q, 4), vL16, SSM, sHSRC, 1024 * q), tag="hc")
hz = Stream()
hz.begin(); hz("s_mov_b32 exec_hi, 31"); hz("ds_write_b128 v%d, %s" % (vPADA, vr(vZ4, 4)), tag="z0"); hz("s_mov_b32 exec_hi, -1"); hz.end()
hp = Stream()
hp("v_mov_b32 v%d, %s" % (vHX, sHP))
hp.wait_vm("hc")
hp("v_lshlrev_b32 v%d, 16, v%d" % (vT[0], vHL)); hp("v_and_b32 v%d, 0xffff0000, v%d" % (vT[1], vHL))
hp("v_add_f32 v%d, %s, v%d" % (vT[0], sDP, vT[0]))
hp("v_readlane_b32 %s, v%d, 63" % (sT0, vHL + 3))
hp.begin(); hp("s_mov_b64 exec, 1"); hp("v_cvt_pk_bf16_f32 v%d, v%d, v%d" % (vHL, vT[0], vT[1])); hp("s_mov_b64 exec, -1"); hp.end()
hp("v_mov_b32 v%d, %s" % (vHX + 1, sT0))
for q in range(2):
    hp("v_mov_b32_dpp v%d, v%d wave_shr:1 row_mask:0xf bank_mask:0xf" % (vHX + q, vHL + 4 * q + 3))
for q in range(2):
    hp("ds_write_b128 v%d, %s offset:%d" % (vHW, vr(vHL + 4 * q, 4), 1024 * q), tag="hw")
    for j in range(4):
        hp("v_alignbit_b32 v%d, v%d, v%d, 16" % (vHS + 4 * q + j, vHL + 4 * q + j, vHL + 4 * q + j - 1 if j else vHX + q))
for q in range(2):
    hp("ds_write_b128 v%d, %s offset:%d" % (vHW, vr(vHS + 4 * q, 4), RSZ + 1024 * q), tag="hw")
def up_issue(s):
    s("s_load_dwordx8 s[%d:%d], %s, %s glc" % (sPOLL, sPOLL + 7, WSP, sUP))
up = Stream(); up_issue(up)
uc = Stream(); spoll_inline(uc, 8, up_issue, "pu")
ul = Stream()
for q in range(2):
    ul("buffer_load_dwordx4 %s, v%d, %s, 0 offen offset:%d sc1" % (vr(vUL + 4 * q, 4), vUA, WS, 2048 * q), tag="ul")
uw = Stream()
uw.wait_vm("ul")
for q in range(2):
    uw("ds_write2_b64 v%d, %s, %s offset0:%d offset1:%d" % (vUWA, vr(vUL + 4 * q, 2), vr(vUL + 4 * q + 2, 2), 64 * q, 64 * q + 160), tag="uw")

LA = opt("la", 10)
HCT = opt("hct", 7)
FUI = opt("fui", 1 if ORD == 0 else 5)
UPI = opt("upi", 4 if ORD != 1 else 7)
UCB = opt("ucb", 5 if ORD != 1 else 8)
assert UCB != 7
HPI = opt("hpi", 7)
P0I = opt("p0i", 1); P0N = opt("p0n", 3)
for t in range(1, 8):
    if ORD and t == KVT: QD += [(g_, -1) for g_ in groups(kv.ops)]
    if t == HCT: QD += [(g_, -1) for g_ in groups(hc.ops)]
    if t < 7: QD += [(g_, t - 3 if t >= 4 else -1) for g_ in st_groups(t)]
ULQ = opt("ulq", 0)
for k in range(14):
    if k == ULQ and UCB < 8: QD += [(g_, UCB) for g_ in groups(ul.ops)]
    QD += [(g_, [4, 5, 5, 6, 6, 7, 7][k // 2]) for g_ in w2_groups(k)]
LAS = {-1: opt("la0", 4 if ORD == 0 else 8), KVT - 1: opt("la1", LA)}
def qtake(t, nmax=1000, extra=0):
    last = max([i for i, (g_, _) in enumerate(QD) if any(o.tag == "st%d" % (t + 1) for o in g_)] + [-1 - qdone.get(t + 1, 0)])
    s = Stream(); n = 0
    while QD and n <= last + LAS.get(t, LA) + extra and QD[0][1] <= t and n < nmax:
        w_ = opt("win0", 10) if t < 0 else opt("win1", 8) if (ORD == 2 and t == KVT - 1) else opt("win", 0)
        if w_: s("s_waitcnt vmcnt(%d)" % (w_ - 1))
        g_, _ = QD.pop(0); s.ops.extend(g_); n += 1
        for k in qdone: qdone[k] += 1
        for o in g_:
            if o.tag and o.tag.startswith("st"): qdone[int(o.tag[2:])] = 0
    return s
qdone = {0: 0} if ORD else {}
work = {t: Stream() for t in range(-1, 7)}
head = {t: Stream() for t in range(-1, 7)}
tail = {t: Stream() for t in range(-1, 7)}
if ORD == 0:
    m.extend(qtake(-1, opt("prek", 0)))
    m.wait_vm("kv")
    stamp(m)
    m("s_barrier")
    if not PA: work[-1].extend(p0); work[-1].extend(p0c)
    if WARM == 2: warm(tail[-1])
elif ORD == 2:
    if not P0X: head[KVT - 1].wait_vm("kv"); stamp(head[KVT - 1]); head[KVT - 1]("s_barrier")
    if WARM == 2: warm(m)
else:
    gs = groups(p0.ops); tot = sum(gcost(g_) for g_ in gs); acc = 0
    for g_ in gs:
        work[P0I + min(P0N - 1, int(P0N * acc / tot))].ops.extend(g_); acc += gcost(g_)
    head[P0I + P0N].extend(p0c)
if not PA: flag_store(tail[FUI], sFU, "ust")
if UPI < 7: head[UPI].extend(up)
if UCB < 8: tail[UCB - 1].extend(uc)
HZI = opt("hzi", 7)
assert min(HZI, HPI) >= (4 if ORD != 1 else max(4, P0I + P0N + 1)) and FUI >= (0 if ORD != 1 else P0I + P0N) and UPI < UCB and P0I >= 1
if HZI < 7: work[HZI].extend(hz)
else: hp.ops[2:2] = hz.ops
assert HPI != 6
if HPI < 7: work[HPI].extend(hp); tail[HPI].wait_lgkm("hw")
for t in range(-1, 7):
    m.extend(head[t])
    q_ = qtake(t, opt("n5", 99) if t == 5 else 99) if t < 6 else qtake(t, opt("n6", 6))
    if work[t].ops: m.extend(spread(work[t], q_, 0.0, 1.0, unit="any"))
    else: m.extend(q_)
    m.extend(tail[t])
    if t == -1: m.extend(qtake(t, extra=opt("n0t", 4 if ORD == 0 else 0)))
    fstamp(m, 1); fstamp(m, 3)
    if t < 6: m.wait_vm("st%d" % (t + 1))
    fstamp(m, 1); fstamp(m, 3)
    if t < 6: m("s_barrier")
    if t in (-1, 2): stamp(m)
    else: fstamp(m, 1); fstamp(m, 3); fstamp(m, 4)
stamp(m)
MRG = opt("mrg", 1)
def cbase(r): return 192 if (MRG and r == 7) else vCF + 32 * (r & 1)
def conv_readsA(r):
    s = Stream(); base = cbase(r)
    for a in range(4):
        off = 128 * (8 * a + r)
        s("ds_read_b64_tr_b16 %s, v%d offset:%d" % (vr(base + 8 * a, 2), vCA, off + 32), tag="c%d" % r)
        s("ds_read_b64_tr_b16 %s, v%d offset:%d" % (vr(base + 8 * a + 2, 2), vCA, off), tag="c%d" % r)
    return s
def conv_readsB(r):
    s = Stream(); base = cbase(r)
    for i in range(4):
        s("ds_read_b128 %s, v%d offset:%d" % (vr(base + 8 * i + 4, 4), vCB, 32 * (8 * i - r + 7)), tag="c%d" % r)
    return s
def qpop(s, n, lim=6):
    for _ in range(n):
        if QD and QD[0][1] <= lim:
            if lim == 6 and opt("win7", 0): s("s_waitcnt vmcnt(%d)" % (opt("win7", 0) - 1))
            s.ops.extend(QD.pop(0)[0])
if UPI == 7: m.extend(up)
qpop(m, opt("n7", 4))
if UCB == 8:
    m.extend(uc); lf_set(m, F_U); lf_wait(m, F_U, vFR, "lu"); m.extend(ul)
if HPI == 7:
    m.extend(hp); lf_set(m, F_HC)
    qpop(m, opt("n8", 8))
    m.extend(uw)
    lf_wait(m, F_HC, vFP, "lh", conv_readsA(0))
else:
    m.extend(conv_readsA(0))
    m.extend(uw)
m.extend(conv_readsB(0))
NPK = opt("npk", 4)
stamp(m)
qpop(m, opt("n9", 2))
if opt("wfa", 2) < 0: m.wait_vm("w2_%d" % (opt("w2a", 10) - 1)); lf_set(m, F_W2B)
lf_wait(m, F_G0, vFR, "lg")
m("s_setprio %d" % opt("pc", 3))
stamp(m)
def conv_mf(s, r, a, i):
    base = cbase(r); j = a + i
    c = "0" if (r == 0 and a == 0) else vr(vCC[j], 16)
    s("v_mfma_f32_32x32x16_bf16 %s, %s, %s, %s" % (vr(vCC[j], 16), vr(base + 8 * a, 4), vr(base + 8 * i + 4, 4), c))
def y_out(j):
    s = Stream(); R = vCC[j]
    for k in (0, 4, 1, 5, 2, 6, 3, 7): s("v_cvt_pk_f16_f32 v%d, v%d, v%d" % (R + 2 * k, R + 2 * k, R + 2 * k + 1))
    for k in range(4): s("v_permlane16_swap_b32 v%d, v%d" % (R + 2 * k, R + 2 * k + 8))
    s("ds_write_b32 v%d, v%d offset:%d" % (vYC, R + 14, 1280 * j), tag="yw")
    for k in range(1, 4): s("v_pk_add_f16 v%d, v%d, v%d" % (R + k, R + 2 * k, R + 2 * k + 6))
    s("ds_write_b128 v%d, %s offset:%d" % (vYM, vr(R, 4), 1280 * j), tag="yw")
    for o in s.ops:
        if o.kind == "permlane": o.cost = 2
        if o.kind == "ds": o.cost = 3
    return s
WPB = opt("wpb", 6); WFB = opt("wfb", 7); W2A = opt("w2a", 10)
for r in range(7):
    s = Stream()
    s.wait_lgkm("c%d" % r)
    if MRG and r == 6:
        t_ = Stream()
        for j in range(4):
            for r_ in (6, 7):
                for a in range(j + 1): conv_mf(s, r_, a, j - a)
            if j < 3: t_.extend(y_out(j))
        s = spread(s, t_, 0.15, 0.97)
    else:
        for a in range(4):
            for i in range(4 - a): conv_mf(s, r, a, i)
        rd = Stream()
        if MRG and r == 4: rd.extend(conv_readsA(7))
        if MRG and r == 5: rd.extend(conv_readsB(7))
        rd.extend(conv_readsA(r + 1)); rd.extend(conv_readsB(r + 1))
        s = spread(s, rd, 0.0, 0.7)
    f = Stream(); qpop(f, WPB, 7)
    if r == 7 + opt("hp1", 2): hpoll_issue(f)
    if r == opt("wfa", 2): f.wait_vm("w2_%d" % (W2A - 1)); lf_set(f, F_W2B)
    if r == WFB:
        assert not QD
        f.wait_vm("w2_13"); lf_set(f, F_W2)
    m.extend(spread(s, f, 0.0, 1.0))
    fstamp(m, 2)
y2 = []
if not MRG:
    m.wait_lgkm("c7")
    mf = Stream()
    for j in range(4):
        for a in range(j + 1): conv_mf(mf, 7, a, j - a)
    y0, y1, y2 = y_out(0).ops, y_out(1).ops, y_out(2).ops
    plan = {0: [], 1: [], 2: y0[:6], 3: y0[6:11], 4: y0[11:], 5: y1[:6], 6: y1[6:11], 7: y1[11:], 8: y2[:6], 9: []}; y2 = y2[6:]
    for k_, o in enumerate(mf.ops):
        m.ops.append(o); m.ops.extend(plan[k_])
m("s_setprio %d" % opt("pe", 3))
assert not QD
if WFB == 7: m.wait_vm("w2_13"); lf_set(m, F_W2)
stamp(m)
N4 = opt("n4", 18)
NS = 4 if SOA else 0
order = [(n, t) for n in range(NS, N4) for t in range(2)] + [(n, 0) for n in range(N4, 28)] + [(n, 1) for n in range(N4, 28)]
HS1 = [None] * NS + [224 + 4 * i for i in range(8)] + [112 + 4 * i for i in range(4)] + [160 + 4 * i for i in range(8)] + [192 + 4 * i for i in range(8)]
def hload1(n):
    s = Stream(); s("buffer_load_dwordx4 %s, v%d, %s, %s offen offset:%d sc1" % (vr(HS1[n], 4), vHV1, WS, tCB[n // 4], 1024 * (n % 4)), tag="h%d" % n); return s
vA2 = [128, 144]
fin = Stream(); lf_set(fin, F_HI)
NPT = [opt("np0", 4)] * 3 + [opt("np3", 10)]; assert NPT[0] <= NPT[3]
pre, preh, g2 = gemm2(order, vA2, 64, 12, lambda n: HS1[n], hload1, NPT[3], opt("nrd", 8), 0, opt("rtb", 1), fin)
HP1 = opt("hp1", 2); HC1 = opt("hc1", 3)
nis = [0]
if opt("winb", 0):
    o_ = preh.ops; preh = Stream(); assert NPT[0] <= opt("winb", 0)
    for i_, x_ in enumerate(o_):
        if i_ >= opt("winb", 0) and x_.kind == "vmem": preh.wait_vm(o_[i_ - opt("winb", 0)].tag)
        preh.ops.append(x_)
def pt(i):
    if HC1 == i: spoll_inline(m, 7, hpoll_issue, "ph1")
    if HC1 <= i:
        k = NPT[i] if i < 3 else 99; assert NPT[i] <= [12, 20, 20, 28][i]
        m.ops.extend(preh.ops[nis[0]:k]); nis[0] = max(nis[0], k)
    if HP1 == i: hpoll_issue(m)
assert HP1 < HC1
pt(0)
m.ops.extend(y2); m.extend(y_out(3))
lf_set(m, F_Y)
PRB = opt("prb", 0)
if PRB: lf_wait(m, F_W2, vFR, "lwb", pre)
pt(1)
yr = Stream()
for q in range(2):
    for y in range(2):
        yr("ds_read_b32 v%d, v%d offset:%d" % (vT[2 * q + y], vYRC, 1280 * q + RSZ * y + 64), tag="yr%d" % q)
        yr("ds_read_b128 %s, v%d offset:%d" % (vr(vEPB + 8 * q + 4 * y, 4), vYR, 1280 * q + RSZ * y), tag="yr%d" % q)
lf_wait(m, F_Y, vFP, "ly", yr)
lf_set(m, F_YD)
if not PRB: lf_issue(m, F_W2, vFR, "lwb")
for q in range(2):
    m.wait_lgkm("yr%d" % q)
    b = vEPB + 8 * q
    if q == 1:
        if not PRB: lf_check(m, F_W2, vFR, "lwb")
        pt(2)
    m("v_pk_add_f16 v%d, v%d, v%d" % (vT[2 * q], vT[2 * q], vT[2 * q + 1]))
    for j in range(4): m("v_pk_add_f16 v%d, v%d, v%d" % (b + j, b + j, b + 4 + j))
    m("v_pk_add_f16 v%d, v%d, v%d" % (b, b, vT[2 * q]))
    tag_put(m, list(range(b, b + 4)))
    m("buffer_store_dwordx4 %s, v%d, %s, %s offen offset:%d sc1" % (vr(b, 4), vL16, WS, sZB, 1024 * q), tag="zst")
stamp(m)
m("s_setprio %d" % opt("pe2", 3))
if not PRB: m.extend(pre)
pt(3)
stamp(m)
m("s_setprio %d" % opt("pb", 0))
vE = 224; vPP = 240; vG = vT[0]
def p_issue(s):
    for q in range(4):
        s("buffer_load_dwordx4 %s, v%d, %s, %s offen offset:%d sc1" % (vr(vPP + 4 * q, 4), vL16, WS, sPR, 1024 * q), tag="pp")
nT1 = 28 + N4 - 2 * NS
head_ = Stream(); tail_ = Stream(); k_ = 0
for o in g2.ops:
    (head_ if k_ < nT1 else tail_).ops.append(o)
    if o.kind == "mfma": k_ += 1
er = Stream()
er("ds_read_b32 v%d, v%d offset:%d" % (vG, vGR, R_EG), tag="er")
for a in range(4): er("ds_read_b128 %s, v%d offset:%d" % (vr(vE + 4 * a, 4), vXW, 1024 * a), tag="er")
xr = Stream()
for a in range(4): xr("ds_read_b128 %s, v%d offset:%d" % (vr(vA2[0] + 4 * a, 4), vXR, R_Y + 1024 * a), tag="xr")
f = Stream(); lf_wait(f, F_YD, vFP, "lyb", inline=False); at(head_, 20, f)
f = Stream()
for a in range(4): f("ds_write_b128 v%d, %s offset:%d" % (vXW, vr(vA2[0] + 4 * a, 4), R_Y + 1024 * a), tag="xw"); f.ops[-1].cost = opt("cwr", 6)
lf_set(f, F_X)
if PBA:
    lf_wait(f, F_X, vFP, "lx", xr, inline=False)
    lf_wait(f, F_E, vFW, "le", er, inline=False)
else:
    lf_wait(f, F_E, vFW, "le", er, inline=False)
    lf_wait(f, F_X, vFP, "lx", xr, inline=False)
    f.wait_lgkm("xr")
    for j in range(16): f("v_fmac_f32 v%d, v%d, v%d" % (vE + j, vA2[0] + j, vG))
for o in f.ops:
    if o.kind == "waitlgkm": o.cost = opt("cwt", 10)
fp = Stream()
if PBA:
    for j in range(8): fp("v_pk_add_f32 %s, %s, %s" % (vr(vA2[1] + 2 * j, 2), vr(vA2[1] + 2 * j, 2), vr(vA2[0] + 2 * j, 2)))
    fp.wait_lgkm("er")
else:
    tag_check(fp, p_issue, list(range(vPP, vPP + 16)), "pp")
    for j in range(8): fp("v_pk_add_f16 v%d, v%d, v%d" % (vPP + j, vPP + j, vPP + 8 + j))
    for j in range(16): mix(fp, vE + j, vPP, j, "v%d" % vG, "v%d" % (vE + j))
PIN = opt("pin", 0) and not PBA
if PIN: f.extend(fp)
g2 = head_; g2.extend(spread(tail_, f, opt("xlo", 0.1), 1.0))
if not PBA: f = Stream(); p_issue(f); at(g2, opt("ppos", 48) - 2 * NS, f)
if opt("fine", 0) == 2:
    for i_ in (15, 31, nT1 - 1): f = Stream(); stamp(f); at(g2, i_, f)
lstamps(g2, m, [0, 7, 13, 19, 25, 31, 37, 42])
stamp(m)
if not PIN: m.extend(fp)
stamp(m)
vO = vPP
for hf in range(2):
    for j in range(4 * hf, 4 * hf + 4): m("v_pk_fma_f32 %s, %s, %s, %s op_sel_hi:[1,0,1]" % (vr(vE + 2 * j, 2), vr(vA2[1] + 2 * j, 2), vr(vG, 2), vr(vE + 2 * j, 2)))
    for j in range(4 * hf, 4 * hf + 4): m("v_cvt_pk_bf16_f32 v%d, v%d, v%d" % (vO + j, vE + 2 * j, vE + 2 * j + 1))
    if OSW == 0: m("buffer_store_dwordx4 %s, v%d, %s, 0 offen offset:%d" % (vr(vO + 4 * hf, 4), vQO, OUT, 32 * hf), tag="ost")
    if OSW == 2: m("ds_write_b128 v%d, %s offset:%d" % (vOW, vr(vO + 4 * hf, 4), 32 * hf), tag="ow")
if OSW == 2:
    for hf in range(2): m("ds_read_b128 %s, v%d offset:%d" % (vr(vO + 8 + 4 * hf, 4), vOR, 1280 * hf), tag="or%d" % hf)
    for hf in range(2):
        m.wait_lgkm("or%d" % hf)
        m("buffer_store_dwordx4 %s, v%d, %s, %s offen" % (vr(vO + 8 + 4 * hf, 4), vQO, OUT, sQ1 if hf else "0"), tag="ost")
if OSW == 1:
    for j in range(4): m("v_permlane16_swap_b32 v%d, v%d" % (vO + j, vO + 4 + j))
    for hf in range(2): m("buffer_store_dwordx4 %s, v%d, %s, %s offen" % (vr(vO + 4 * hf, 4), vQO, OUT, sQ1 if hf else "0"), tag="ost")
stamp(m)
stamp_out(m)
m("s_endpgm")

m = Stream(); mA = m
m("L_A:")
va = VA(30, 64)
vXA = [va.get() for _ in range(4)]; vWA = [va.get() for _ in range(2)]; vQA = [va.get() for _ in range(2)]
vC0 = va.get(2, 2); vHV = [va.get(), va.get()]
vZA = va.get(); vGA = va.get(); vZW = va.get(); vZT = va.get(); vEW = va.get(); vGW = va.get()
vB2 = va.get(8, 4); vQ = va.get(8, 4)
vACC = [64 + 16 * i for i in range(4)]
vFR1 = 128
vB1 = 244; vONE = 248; vBI = 240
if PA:
    vb = VA(160, 240)
    vL8 = vb.get(); vLd8 = vb.get(); vG4 = vb.get(); vL15 = vb.get(); vTP = vb.get(2, 2)
    m("v_and_b32 v%d, 7, v%d" % (vL8, L)); m("v_lshrrev_b32 v%d, 3, v%d" % (vLd8, L)); m("v_and_b32 v%d, 15, v%d" % (vL15, L)); m("v_lshrrev_b32 v%d, 4, v%d" % (vG4, L))
    slin(m, sT0, [(sW, 128)], L_TP)
    vlin(m, vTP, [(vL15, 8)], sT0)
m("s_and_b32 %s, %s, 1" % (sE2, sW))
m("v_and_b32 v%d, 31, v%d" % (vS32, L)); m("v_lshrrev_b32 v%d, 5, v%d" % (vHH, L))
slin(m, sT0, [(sCB128, 256), (sE2, 128)])
if G16:
    m("v_bfe_u32 v%d, v%d, 4, 1" % (vMH, L))
    vlin(m, vQ, [(vMH, 16), (vHH, 8)], sT0)
else: vlin(m, vQ, [(vS32, 2)], sT0)
slin(m, sT0, [(sC, 128), (sE2, 64)])
vlin(m, vQ + 1, [(vHH, 16)], sT0)
m("v_and_b32 v%d, 3, v%d" % (vC4, L)); m("v_bfe_u32 v%d, v%d, 2, 2" % (vR4, L)); m("v_bfe_u32 v%d, v%d, 4, 1" % (vMH, L))
m("v_mov_b32 v%d, 0" % (vB1 + 1)); m("v_mov_b32 v%d, 0" % (vB1 + 3))
vlin(m, vT[0], [(L, 4)], L_F)
m("ds_write_b32 v%d, v%d" % (vT[0], vB1 + 1), tag="fz")
m("s_waitcnt lgkmcnt(0)")
stamp(m, rt=True)
stamp(m)
if STAMP: m("v_writelane_b32 v%d, s32, 41" % vSTA)
m("s_load_dword s82, s[68:69], 0")
m("s_mov_b64 s[8:9], %s" % P_B1); m("s_mov_b64 s[10:11], %s" % P_B2)
sm = Stream()
if G16:
    for mt in range(4): sm("global_load_dwordx2 %s, v%d, s[8:9] offset:%d" % (vr(vACC[0] + 2 * mt, 2), vQ, 32 * mt), tag="sm")
else:
    sm("global_load_ushort v%d, v%d, s[8:9]" % (vB1, vQ), tag="sm")
    sm("global_load_ushort v%d, v%d, s[8:9] offset:64" % (vB1 + 2, vQ), tag="sm")
for j in range(2): sm("global_load_dwordx4 %s, v%d, s[10:11] offset:%d" % (vr(vB2 + 4 * j, 4), vQ + 1, 32 * j), tag="sm")
SMP = opt("smp", 1)
if SMP == 0: m.extend(sm)
if WARM == 1: warm(m)
su = Stream()
su("s_mov_b64 s[36:37], s[68:69]"); srd23(su, WS, WS_SIZE)
if PA: p0_addr(su, vb)
su("v_bfe_u32 v%d, v%d, 1, 3" % (vT[0], L))
su("v_xor_b32 v%d, v%d, v%d" % (vT[0], vT[0], vHH))
su("s_lshr_b32 %s, %s, 1" % (sT1, sW)); su("s_lshl_b32 %s, %s, 13" % (sT1, sT1))
vlin(su, vXA[0], [(vT[0], 16), (vS32, 128)], sT1)
for ks in range(1, 4): su("v_xor_b32 v%d, %d, v%d" % (vXA[ks], 32 * ks, vXA[0]))
su("s_lshl_b32 %s, %s, 6" % (sT1, sE2))
su("v_xor_b32 v%d, %s, v%d" % (vQA[0], sT1, vXA[0])); su("v_xor_b32 v%d, %s, v%d" % (vQA[1], sT1, vXA[1]))
if G16:
    vXA, vWA = vWA, vXA
    su("v_bfe_u32 v%d, v%d, 1, 3" % (vT[0], L))
    su("v_xor_b32 v%d, v%d, v%d" % (vT[0], vT[0], vG4))
    su("s_lshr_b32 %s, %s, 1" % (sT1, sW)); su("s_lshl_b32 %s, %s, 13" % (sT1, sT1))
    vlin(su, vXA[0], [(vT[0], 16), (vL15, 128)], sT1)
    su("v_xor_b32 v%d, 64, v%d" % (vXA[1], vXA[0]))
    su("v_and_b32 v%d, 1, v%d" % (vT[0], L)); su("v_bfe_u32 v%d, v%d, 1, 1" % (vT[1], L)); su("v_bfe_u32 v%d, v%d, 3, 1" % (vT[2], L))
    slin(su, sT1, [(sE2, 2048)], 16384)
    vlin(su, vWA[0], [(vMH, 1024 + 32), (vHH, 4096), (vR4, 128), (vT[2], 64), (vT[0], 16), (vT[1], 8)], sT1)
    for mt in range(1, 4): su("v_xor_b32 v%d, %d, v%d" % (vWA[mt], 32 * mt, vWA[0]))
else:
    su("v_bfe_u32 v%d, v%d, 3, 1" % (vT[1], L))
    vlin(su, vT[0], [(vMH, 32), (vC4, 8), (vR4, 128), (vT[1], 64)])
    slin(su, sT1, [(sE2, 2048)], 16384)
    vlin(su, vWA[0], [(vHH, 1024), (vT[0], 1)], sT1)
    su("v_xor_b32 v%d, 64, v%d" % (vWA[1], vWA[0]))
    for i in range(1, 8): su("v_mov_b32 v%d, 0" % (vONE + i))
    su("v_sub_u32 v%d, 1, v%d" % (vONE, vHH))
    su("v_mul_u32_u24 v%d, 0x3f80, v%d" % (vONE, vONE))
    su("v_mov_b32 v%d, v%d" % (vONE + 6, vONE))
common_setup(su)
c_ = math.sqrt(2.0 / math.pi) * 2.0 * math.log2(math.e)
su("s_mov_b32 s64, 0x%x" % f2u(-c_ * 0.044715)); su("s_mov_b32 s65, 0x%x" % f2u(-c_ * 0.044715))
su("v_mov_b32 v%d, 0x%x" % (vC0, f2u(-c_))); su("v_mov_b32 v%d, 0x%x" % (vC0 + 1, f2u(-c_)))
h_base(su, vHV[0], 0)
vHT = vT[7]
vlin(su, vHT, [(L, 128)], sT2)
su("v_add_u32 v%d, 4096, v%d" % (vHV[1], vHV[0]))
su("s_lshr_b32 %s, %s, 1" % (sT1, sW))
slin(su, sT0, [(sC, 64 * CP), (sE2, 32 * CP), (sRB64, 128), (sT1, 64)], WS_Z)
su("v_lshrrev_b32 v%d, 2, v%d" % (vT[0], L))
vlin(su, vZA, [(vT[0], CP), (vC4, 16)], sT0)
slin(su, sT0, [(sRB64, 64 * 8), (sT1, 256)], WS_G)
vlin(su, vGA, [(vS32, 8)], sT0)
slin(su, sT0, [(sW, RSZ)], L_R)
su("v_add_u32 v%d, %s, v%d" % (vEW, sT0, vL16))
vlin(su, vZT, [(vHH, 512), (vR4, 64), (vMH, 32), (vC4, 8)], sT0)
vlin(su, vGW, [(L, 4)], sT0)
slin(su, sPH, [(sRB64, 8 * FHS), (sW, 2 * FHS)], WS_FH)
slin(su, sFH, [(sC, 4), (sPH, 1)])
su("s_mov_b32 %s, %d" % (sQ1, 16 * CP))
su("s_xor_b32 %s, %s, 1" % (sT0, sRB64))
slin(su, sPS, [(sT0, 7 * 16384), (sC, 16384), (sW, 4096)], WS_P)
su("s_xor_b32 %s, %s, 4096" % (sPR, sPS))
sPL = sZB
slin(su, sPL, [(sRB64, 7 * 16384), (sC, 16384), (sW, 4096)], WS_P)
su("s_xor_b32 %s, %s, 1" % (sT1, sW)); slin(su, sT0, [(sT1, RSZ)], L_R)
su("v_add_u32 v%d, %s, v%d" % (vZW, sT0, vL16))
tag_fin(su)
tag_keys(su)
print("A setup", len(su.ops), file=sys.stderr)
glue_sel(su)
gs = groups(su.ops); k_ = opt("sa", 300)
m.ops.extend(sum(gs[:k_], []))
stamp(m)
if SMP == 1: m.extend(sm)
pz = Stream()
if ORD != 1 and not P0X: pz("s_barrier")
if PA:
    p0, p0c = p0_make(vb)
    if not P0X: stamp(pz)
    pz("ds_read_b64 %s, v%d" % (vr(vTP, 2), vTP), tag="tp")
    w_ = Stream(); w_.wait_lgkm("tp")
    p0.ops[9:9] = w_.ops
    pz.extend(p0); pz.extend(p0c)
    if not P0X: stamp(pz)
bm = Stream()
bm.wait_vm("sm")
if G16:
    for j in range(2): unpack(bm, list(range(vBI + 8 * j, vBI + 8 * j + 8)), vACC[0] + 4 * j)
for i in range(0 if G16 else 2):
    for ft in range(2):
        bm("v_mfma_f32_32x32x16_bf16 %s, %s, %s, %s" % (vr(vACC[2 * i + ft], 16), vr(vB1, 4), vr(vONE + 4 * ft, 4), vr(vACC[2 * i + ft], 16) if ORD == 2 else "0"))
if ORD != 2: m.extend(pz)
m.ops.extend(sum(gs[k_:], []))
stamp(m)
if ORD != 2: m.extend(bm)
m("s_setprio %d" % opt("pg", 2))
def g1_reads(kap):
    t, ks = kap // 4, kap % 4
    slot = (t % 4) * SLOT
    b = vFR1 + 16 * (kap % 2)
    so = slot - (65536 if slot >= 65536 else 0)
    gs = [Stream(), Stream(), Stream()]
    for ft in range(2):
        g_ = gs[2 * ft]
        g_("ds_read_b64_tr_b16 %s, v%d offset:%d" % (vr(b + 8 + 4 * ft, 2), vWA[ft], so + ks * 4096), tag="f%d_%d" % (kap, ft))
        g_("ds_read_b64_tr_b16 %s, v%d offset:%d" % (vr(b + 8 + 4 * ft + 2, 2), vWA[ft], so + ks * 4096 + 512), tag="f%d_%d" % (kap, ft))
        gs[1]("ds_read_b128 %s, v%d offset:%d" % (vr(b + 4 * ft, 4), vXA[ks], so + 4096 * ft), tag="f%d_0" % kap)
    return gs
def g1_mf(s, kap, i, ft):
    b = vFR1 + 16 * (kap % 2)
    s("v_mfma_f32_32x32x16_bf16 %s, %s, %s, %s" % (vr(vACC[2 * i + ft], 16), vr(b + 8 + 4 * ft, 4), vr(b + 4 * i, 4), "0" if (ORD == 2 and kap == 0) else vr(vACC[2 * i + ft], 16)))
def g1_kstep(s, kap, bar):
    rd = g1_reads(kap + 1) if kap + 1 < 28 else [Stream(), Stream(), Stream()]
    s.wait_lgkm("f%d_%d" % (kap, 1 if bar else 0))
    g1_mf(s, kap, 0, 0)
    if ORD == 2 and kap == 4 * KVT - 1:
        s.extend(bm)
        if not P0X: s.extend(pz)
    if bar:
        fstamp(s, 1); s("s_barrier"); fstamp(s, 1)
    s.extend(rd[0])
    g1_mf(s, kap, 1, 0)
    s.extend(rd[1])
    s.wait_lgkm("f%d_1" % kap)
    g1_mf(s, kap, 0, 1)
    s.extend(rd[2])
    g1_mf(s, kap, 1, 1)
    if kap in (16, 17): s("ds_read_b128 %s, v%d offset:4096" % (vr(vQ + 4 * (kap - 16), 4), vQA[kap - 16]), tag="q")
    if kap % 8 == 6 and kap < 24:
        delta = 65536 if kap in (6, 22) else -65536
        for r in vXA + vWA: s("v_add_u32 v%d, 0x%x, v%d" % (r, delta & 0xffffffff, r))
def h_reads(kk):
    t = kk // 2; slot = (t % 4) * SLOT
    b = vFR1 + 32 * (kk % 2)
    so = slot - (65536 if slot >= 65536 else 0)
    s = Stream()
    for mt in range(4):
        for hf in range(2):
            s("ds_read_b64_tr_b16 %s, v%d offset:%d" % (vr(b + 16 + 4 * mt + 2 * hf, 2), vWA[mt], so + 8192 * (kk % 2) + 512 * hf), tag="w%d_%d" % (kk, mt))
        if mt == 0:
            for nt in range(4): s("ds_read_b128 %s, v%d offset:%d" % (vr(b + 4 * nt, 4), vXA[kk % 2], so + 2048 * nt), tag="x%d_%d" % (kk, nt))
    return s
def h_step(kk):
    b = vFR1 + 32 * (kk % 2); bar = kk % 2 == 1 and kk < 13
    BP = opt("bpos", 3) if bar else 0
    s = Stream(); s2 = Stream()
    for i_ in range(16):
        mt, nt = i_ // 4, i_ % 4
        d = s if i_ < BP else s2
        if mt == 0: d.wait_lgkm("x%d_%d" % (kk, nt if kk == 0 else 3))
        elif nt == 0: d.wait_lgkm("w%d_%d" % (kk, mt))
        acc = vr(vACC[0] + 8 * (4 * (nt // 2) + mt) + 4 * (nt % 2), 4)
        d("v_mfma_f32_16x16x32_bf16 %s, %s, %s, %s" % (acc, vr(b + 16 + 4 * mt, 4), vr(b + 4 * nt, 4), acc if kk else vr(vBI + 4 * mt, 4)))
    if bar:
        s.wait_lgkm("w%d_3" % kk); fstamp(s, 1); s("s_barrier"); fstamp(s, 1)
    rd = h_reads(kk + 1) if kk < 13 else Stream()
    if kk == 8:
        for j in range(2): rd("ds_read_b128 %s, v%d offset:4096" % (vr(vQ + 4 * j, 4), vQA[j]), tag="q")
        rd.ops = rd.ops[-2:] + rd.ops[:-2]
    if bar: s.ops.extend(rd.ops[:2]); rd.ops = rd.ops[2:]
    if kk in (2, 6, 10):
        for r in vXA + vWA: rd("v_add_u32 v%d, 0x%x, v%d" % (r, (65536 if kk != 6 else -65536) & 0xffffffff, r))
    s.extend(spread(s2, rd, 0.0, opt("rhi", 0.85) if kk not in (2, 6, 10) else 1.0) if rd.ops else s2)
    return s
m("s_barrier")
stamp(m)
if G16:
    m.extend(h_reads(0))
    for kk in range(14):
        m.extend(h_step(kk))
        if kk == 5: stamp(m)
        if kk == opt("fuk", 4) // 2: flag_store(m, sFU, "ust")
else:
    for g_ in g1_reads(0): m.extend(g_)
m_ = m; m = Stream()
for kap in range(0 if G16 else 28):
    if kap == 4 * KVT: m_.extend(m); m = Stream()
    g1_kstep(m, kap, kap % 4 == 3 and kap < 27)
    if kap == 11: stamp(m)
    if PA and kap == opt("fuk", 4): flag_store(m, sFU, "ust")
if P0X:
    for o in pz.ops:
        if o.kind == "waitlgkm": o.cost = 4
        if o.kind == "ds" and "write" in o.text: o.cost = 4
    m = spread(m, pz, 0.0, P0X / (112.0 - 16 * KVT))
m_.extend(m); m = m_
m("s_setprio %d" % opt("pge", 1))
if NPK == 0: lf_set(m, F_G0)
stamp(m)
vGT = 128
HFL = OPT.get("hfl", "sc1").replace("_", " ")
def own(n): return vACC[0] + 8 * n
def gelu(n, pk):
    ge = Stream()
    x0 = own(n); T = vGT + 8 * (n % 2)
    if pk:
        for j in range(4): ge("v_pk_mul_f32 %s, %s, %s" % (vr(T + 2 * j, 2), vr(x0 + 2 * j, 2), vr(x0 + 2 * j, 2)))
        for j in range(4): ge("v_pk_fma_f32 %s, %s, %s, %s" % (vr(T + 2 * j, 2), vr(T + 2 * j, 2), sC1, vr(vC0, 2)))
        for j in range(4): ge("v_pk_mul_f32 %s, %s, %s" % (vr(T + 2 * j, 2), vr(T + 2 * j, 2), vr(x0 + 2 * j, 2)))
        for j in range(8): ge("v_exp_f32 v%d, v%d" % (T + j, T + j))
        for j in range(4): ge("v_pk_add_f32 %s, %s, 1.0 op_sel_hi:[1,0]" % (vr(T + 2 * j, 2), vr(T + 2 * j, 2)))
        for j in range(8): ge("v_rcp_f32 v%d, v%d" % (T + j, T + j))
        for j in range(4): ge("v_pk_mul_f32 %s, %s, %s" % (vr(T + 2 * j, 2), vr(T + 2 * j, 2), vr(x0 + 2 * j, 2)))
    else:
        for j in range(8): ge("v_mul_f32 v%d, v%d, v%d" % (T + j, x0 + j, x0 + j))
        for j in range(8): ge("v_fma_f32 v%d, v%d, s64, v%d" % (T + j, T + j, vC0))
        for j in range(8): ge("v_mul_f32 v%d, v%d, v%d" % (T + j, T + j, x0 + j))
        for j in range(8): ge("v_exp_f32 v%d, v%d" % (T + j, T + j))
        for j in range(8): ge("v_add_f32 v%d, 1.0, v%d" % (T + j, T + j))
        for j in range(8): ge("v_rcp_f32 v%d, v%d" % (T + j, T + j))
        for j in range(8): ge("v_mul_f32 v%d, v%d, v%d" % (T + j, T + j, x0 + j))
    for j in (0, 2, 1, 3): ge("v_cvt_pk_bf16_f32 v%d, v%d, v%d" % (x0 + j, T + 2 * j, T + 2 * j + 1))
    if G16:
        for j in range(2): ge("v_permlane16_swap_b32 v%d, v%d" % (x0 + j, x0 + 2 + j))
    ge("buffer_store_dwordx4 %s, v%d, %s, %s offen offset:%d %s" % (vr(x0, 4), vHV[n // 4], WS, tCB[0], 1024 * (n % 4), HFL), tag="hst%d" % (n // 4))
    return ge
def hflag(s, i):
    flag_store(s, sFH, "hst%d" % i, HFL)
    if opt("ht", 0) & (1 << i):
        s.begin()
        s("s_mov_b32 %s, 0" % ("exec_hi" if i == 0 else "exec_lo"))
        s("buffer_load_dword v%d, v%d, %s, %s offen sc1" % (vSP1, vHT, WS, tCB[0]), tag="ht")
        s("s_mov_b32 %s, -1" % ("exec_hi" if i == 0 else "exec_lo"))
        s.end()
    if i == 0: s("s_add_u32 %s, %s, %d" % (sFH, sFH, FHS))
F0 = opt("f0", 4.5); PB = opt("pb0", 6.0)
assert 3 <= F0 <= PB and (PB != 8 or opt("f1", -7) == -1) and opt("ppos", 48) >= 16 and N4 >= 10 and opt("zp", 50) >= 8
for n in range(8):
    ge = gelu(n, n < NPK)
    if n == NPK - 1:
        f = Stream(); lf_set(f, F_G0); ge.ops[24:24] = f.ops
        for o in ge.ops[33:37]: assert o.text.startswith("v_pk_mul")
        T = vGT + 8 * (n % 2)
        f = Stream()
        for j in range(8): f("v_mul_f32 v%d, v%d, v%d" % (T + j, T + j, own(n) + j))
        ge.ops[33:37] = f.ops
    for pos_, fn_ in ((PB, hpoll_issue), (F0, lambda s_: hflag(s_, 0))):
        if n - 1 < pos_ <= n:
            f = Stream(); fn_(f); k_ = int(round(len(ge.ops) * (pos_ - n + 1))); ge.ops[k_:k_] = f.ops
    m.extend(ge)
    if n == 3: stamp(m)
    elif n < 7: fstamp(m, 2)
stamp(m)
HS0 = [own(n) for n in range(4)] + [208 + 4 * i for i in range(12)] + [own(n) + 4 for n in range(8)] + [own(n) for n in range(4, 8)]
if SOA: HS0 = [own(n) for n in range(4)] + [own(n) + 4 for n in range(8)] + [240 + 4 * i for i in range(4)] + [208 + 4 * i for i in range(8)] + [own(2), own(3), own(0) + 4, own(1) + 4]
vSA = [208, 224]
def hload0(n):
    if n < 4: return None
    s = Stream(); s("buffer_load_dwordx4 %s, v%d, %s, %s offen offset:%d sc1" % (vr(HS0[n], 4), vHV[0], WS, tCB[n // 4], 1024 * (n % 4)), tag="h%d" % n); return s
vA2 = [176, 192]
order = [(n, t) for n in range(28) for t in range(2)]
pre, preh, g2 = gemm2(order, vA2, 128, 12, lambda n: HS0[n], hload0, opt("npa", 8), opt("nrd", 8), 4 if opt("own", 0) else 0, opt("rta", 1), None, (vSA, lambda n: own(4 + n)) if SOA else None)
vSP = [own(4 + k // 4) + k % 4 for k in range(16)]
vG = vT[0]; vSR = vB2
assert SOA and (opt("npa", 8) <= 22 and opt("rta", 1) == 1 if opt("own", 0) else opt("npa", 8) + 4 * opt("rta", 1) <= 12)
SWP = opt("swp", 7)
f = Stream(); f2 = Stream()
if SWP == 7: lf_issue(f, F_Y, vFR, "lya")
for k in range(16): f("v_cvt_pk_f16_f32 v%d, v%d, v%d" % (vSP[k], vSA[k // 8] + 2 * (k % 8), vSA[k // 8] + 2 * (k % 8) + 1))
lf_check(f2, F_Y, vFR, "lya")
for q in range(2): f2("ds_write_b128 v%d, %s offset:%d" % (vZW, vr(vSP[4 * q], 4), 1024 * q), tag="sw")
lf_set(f2, F_S)
if SWP == 7: f.extend(f2)
else:
    at(g2, SWP, f2); f2 = Stream(); lf_issue(f2, F_Y, vFR, "lya"); at(g2, SWP - 2, f2)
qg = Stream()
for j in range(2): unpack(qg, list(range(208 + 8 * j, 216 + 8 * j)), vQ + 4 * j)
gran_check(qg, vG, vGA, "pg")
for j in range(16): qg("v_mul_f32 v%d, v%d, v%d" % (208 + j, 208 + j, vG))
qg("v_sub_f32 v%d, 1.0, v%d" % (vG, vG))
for j in range(8): qg("v_cvt_pk_f16_f32 v%d, v%d, v%d" % (vQ + j, 208 + 2 * j, 209 + 2 * j))
GP = opt("gp", 44)
if GP < 0: f.extend(qg)
fpack = f
SRP = opt("srp", 24)
sr = Stream()
for q in range(2): sr("ds_read_b128 %s, v%d offset:%d" % (vr(vSR + 4 * q, 4), vEW, 1024 * q), tag="sr")
for j in range(2):
    f = Stream()
    if j == 0: f.wait_lgkm("sr")
    for k in range(4 * j, 4 * j + 4): f("v_pk_add_f16 v%d, v%d, v%d" % (vSR + k, vSR + k, vSP[8 + k]))
    at(g2, SRP + 3 + j, f)
f = Stream(); lf_check(f, F_S, vT[2], "ls", sr); at(g2, SRP + 2, f)
f = Stream(); f("v_xor_b32 v%d, 4, v%d" % (vT[2], vFW)); lf_issue(f, F_S, vT[2], "ls"); f.extend(sr); at(g2, SRP, f)
F1 = opt("f1", -7)
OWN = opt("own", 0)
f = Stream(); hflag(f, 1)
pc = Stream()
if F1 == -1: pc.extend(f)
if PB == 8: hpoll_issue(pc)
if opt("wina", 0):
    o_ = preh.ops; preh = Stream()
    for i_, x_ in enumerate(o_):
        if i_ >= opt("wina", 0): preh.wait_vm(o_[i_ - opt("wina", 0)].tag)
        preh.ops.append(x_)
for j in range(2): unpack(m, list(range(vSA[1] + 8 * j, vSA[1] + 8 * j + 8)), vB2 + 4 * j)
if GP < 0: gran_issue(m, vG, vGA, "pg")
spoll_inline(pc, 7, hpoll_issue, "ph0")
stamp(pc)
if F1 < -1: preh.ops[-F1 - 1:-F1 - 1] = f.ops
pc.extend(preh)
stamp(pc)
if not OWN and not opt("prf", 1): m.extend(pc)
m("s_setprio %d" % (opt("po", 3) if OWN else opt("pa", 2)))
if OWN: pc("s_setprio %d" % opt("pa", 2))
lf_wait(m, F_W2B, vFR, "lwa", pre)
if not OWN and opt("prf", 1): m.extend(pc)
if F1 >= 0: at(g2, F1, f)
x_ = 4 * W2A - opt("nrd", 8) - 1
assert (x_ < SRP or x_ - 2 > SRP + 2) and x_ - 2 > 7 and SWP < SRP and (SWP == 7 or (SWP >= 10 and (x_ < SWP - 2 or x_ - 2 > SWP)))
f = Stream(); lf_check(f, F_W2, vFR, "lw2"); at(g2, x_, f)
f = Stream(); lf_issue(f, F_W2, vFR, "lw2"); at(g2, x_ - 2, f)
if OWN: fpack.extend(pc)
at(g2, 7, fpack)
if PB == 9: assert OWN; f = Stream(); hpoll_issue(f); at(g2, opt("pbo", 3), f)
vZL = own(0); vZL2 = own(1)
zregs = list(range(vZL, vZL + 4)) + list(range(vZL2, vZL2 + 4))
def z_issue(s):
    s("buffer_load_dwordx4 %s, v%d, %s, 0 offen sc1" % (vr(vZL, 4), vZA, WS), tag="pz")
    s("buffer_load_dwordx4 %s, v%d, %s, %s offen sc1" % (vr(vZL2, 4), vZA, WS, sQ1), tag="pz")
if 0 <= GP < 56: f = Stream(); gran_issue(f, vG, vGA, "pg"); at(g2, GP, f)
ZP = opt("zp", 50)
if ZP < 56: f = Stream(); z_issue(f); at(g2, ZP, f)
if opt("fine", 0) == 2:
    for i_ in (7, 23, 39): f = Stream(); stamp(f); at(g2, i_, f)
lstamps(g2, m, [0, 6, 8, 15, 23, 31, 39, 47])
stamp(m)
vPO = 128
for t in range(2):
    for j in range(8): m("v_cvt_pk_f16_f32 v%d, v%d, v%d" % (vPO + 8 * t + j, vA2[t] + 2 * j, vA2[t] + 2 * j + 1))
    tag_put(m, list(range(vPO + 8 * t, vPO + 8 * t + 8)))
    for q in range(2):
        m("buffer_store_dwordx4 %s, v%d, %s, %s offen offset:%d sc1" % (vr(vPO + 8 * t + 4 * q, 4), vL16, WS, sPS if t else sPR, 2048 * t + 1024 * q), tag="pst")
m("s_setprio %d" % opt("pf", 3))
if opt("whi", 0): lf_wait(m, F_HI, vFR, "lhi")
if GP >= 56: gran_issue(m, vG, vGA, "pg")
if ZP >= 56: z_issue(m)
stamp(m)
vBF = list(range(224, 240)); vZH = 240
if GP >= 0: m.extend(qg)
m("ds_write_b32 v%d, v%d offset:%d" % (vGW, vG, R_EG), tag="ew")
for j in range(16): mix(m, vBF[j], vSR, j, "v%d" % vG, "0")
tag_check(m, z_issue, zregs, "pz")
stamp(m)
m("ds_write_b128 v%d, %s offset:%d" % (vEW, vr(vZL, 4), R_ZS), tag="zw")
m("ds_write_b128 v%d, %s offset:%d" % (vEW, vr(vZL2, 4), R_ZS + 1024), tag="zw")
for i in range(4):
    m("ds_read_b64_tr_b16 %s, v%d offset:%d" % (vr(vZH + 2 * i, 2), vZT, R_ZS + 1024 * (i >> 1) + 256 * (i & 1)), tag="zr%d" % i)
vPP = 144
def p_issue(s):
    for q in range(4):
        s("buffer_load_dwordx4 %s, v%d, %s, %s offen offset:%d sc1" % (vr(vPP + 4 * q, 4), vL16, WS, sPL, 1024 * q), tag="pp")
if PBA and opt("ppa", 0) == 0: p_issue(m)
for a in range(4):
    m.wait_lgkm("zr%d" % a)
    for j in range(4 * a, 4 * a + 4):
        m("v_fma_mix_f32 v%d, v%d, v%d, v%d op_sel:[%d,%d,0] op_sel_hi:[1,1,0]" % (vBF[j], vZH + j // 2, vQ + j // 2, vBF[j], j & 1, j & 1))
stamp(m)
if PBA:
    if opt("ppa", 0) == 2: lf_wait(m, F_HI, vFR, "lhi")
    if opt("ppa", 0) >= 1: p_issue(m)
    tag_check(m, p_issue, list(range(vPP, vPP + 16)), "pp")
    for j in range(8): m("v_pk_add_f16 v%d, v%d, v%d" % (vPP + j, vPP + j, vPP + 8 + j))
for a in range(4):
    if PBA:
        for j in range(4 * a, 4 * a + 4): mix(m, vBF[j], vPP, j, "v%d" % vG, "v%d" % vBF[j])
    m("ds_write_b128 v%d, %s offset:%d" % (vEW, vr(vBF[4 * a], 4), 1024 * a), tag="ew")
lf_set(m, F_E)
m("s_waitcnt lgkmcnt(0)")
stamp(m)
stamp_out(m)
m("s_endpgm")

g = Stream()
g("L_spare:")
g("s_cmp_ge_u32 s2, 256")
g("s_cbranch_scc1 L_end")
if STAMP: g("v_mov_b32 v%d, 0" % vSTA)
for nm, nb in ((Q, NB), (W1, NW), (WS, WS_SIZE), (W2, NW), (SSM, NB)): srd23(g, nm, nb)
g("s_waitcnt lgkmcnt(0)")
g("s_mov_b64 s[8:9], s[40:41]"); g("s_mov_b64 s[24:25], s[54:55]"); g("s_mov_b64 s[20:21], s[48:49]")
g("s_mov_b64 s[36:37], s[68:69]"); g("s_mov_b64 s[28:29], s[58:59]")
stamp(g, rt=True); stamp(g)
if STAMP: g("v_writelane_b32 v%d, s32, 41" % vSTA)
sJ = sA
def pf_w1():
    g("s_sub_u32 %s, %s, 28" % (sT0, sI)); g("s_lshl_b32 %s, %s, 2" % (sT0, sT0)); g("s_add_u32 %s, %s, %s" % (sT0, sT0, sW))
    g("v_lshrrev_b32 v12, 1, v%d" % vLANE); g("v_mul_u32_u24 v12, 3584, v12")
    g("v_and_b32 v13, 1, v%d" % vLANE); g("v_lshl_add_u32 v12, v13, 7, v12")
    g("s_and_b32 %s, %s, 1" % (sCH, sX)); g("s_mul_i32 %s, %s, %d" % (sCH, sCH, 7 * 256))
    g("L_pf1:")
    g("s_lshr_b32 %s, %s, 1" % (sT1, sT0))
    g("s_mul_i32 %s, %s, 147" % (sT2, sT1)); g("s_lshr_b32 %s, %s, 10" % (sT2, sT2))
    g("s_mul_i32 %s, %s, 7" % (sT3, sT2)); g("s_sub_u32 %s, %s, %s" % (sT1, sT1, sT3))
    g("s_lshl_b32 %s, %s, 1" % (sT2, sT2)); g("s_add_u32 %s, %s, %s" % (sT2, sT2, sT1))
    g("s_cmp_ge_u32 %s, 7" % sT2); g("s_cselect_b32 %s, 7, 0" % sT3); g("s_sub_u32 %s, %s, %s" % (sT2, sT2, sT3))
    g("s_lshl_b32 %s, %s, 1" % (sT2, sT2)); g("s_and_b32 %s, %s, 1" % (sT3, sT0)); g("s_add_u32 %s, %s, %s" % (sT2, sT2, sT3))
    g("s_mul_i32 %s, %s, %d" % (sT2, sT2, 32 * 3584))
    g("s_lshl_b32 %s, %s, 8" % (sT1, sT1)); g("s_add_u32 %s, %s, %s" % (sT2, sT2, sT1)); g("s_add_u32 %s, %s, %s" % (sT2, sT2, sCH))
    g("buffer_load_dword v13, v12, %s, %s offen" % (W1, sT2))
    g("s_add_u32 %s, %s, 16" % (sT0, sT0))
    g("s_cmp_lt_u32 %s, 42" % sT0)
    g("s_cbranch_scc1 L_pf1")
    g("s_sub_u32 %s, %s, 42" % (sT0, sT0))
def pf_ssm():
    g("v_lshlrev_b32 v12, 7, v%d" % vLANE)
    g("s_lshr_b32 %s, %s, 1" % (sCH, sX)); g("s_lshl_b32 %s, %s, 16" % (sCH, sCH)); g("s_and_b32 %s, %s, 1" % (sT1, sX)); g("s_lshl_b32 %s, %s, 13" % (sT1, sT1))
    g("s_add_u32 %s, %s, %s" % (sCH, sCH, sT1))
    g("L_pfs:")
    g("s_and_b32 %s, %s, 3" % (sT1, sT0)); g("s_lshl_b32 %s, %s, 14" % (sT1, sT1))
    g("s_lshr_b32 %s, %s, 2" % (sT2, sT0)); g("s_lshl_b32 %s, %s, 18" % (sT2, sT2))
    g("s_add_u32 %s, %s, %s" % (sT1, sT1, sT2)); g("s_add_u32 %s, %s, %s" % (sT1, sT1, sCH))
    g("buffer_load_dword v13, v12, %s, %s offen" % (SSM, sT1))
    g("s_add_u32 %s, %s, 16" % (sT0, sT0))
    g("s_cmp_lt_u32 %s, 28" % sT0)
    g("s_cbranch_scc1 L_pfs")
    g("s_sub_u32 %s, %s, 28" % (sT0, sT0))
def pf_w2():
    g("v_mul_u32_u24 v12, 896, v%d" % vLANE)
    g("s_and_b32 %s, %s, 1" % (sCH, sX)); g("s_mul_i32 %s, %s, %d" % (sCH, sCH, 7 * CBS))
    g("s_lshr_b32 %s, %s, 1" % (sROT, sX)); g("s_mul_i32 %s, %s, 3" % (sROT, sROT)); g("s_add_u32 %s, %s, 1" % (sROT, sROT)); g("s_and_b32 %s, %s, 14" % (sROT, sROT))
    g("L_pf:")
    g("s_mul_i32 %s, %s, 147" % (sT2, sT0)); g("s_lshr_b32 %s, %s, 10" % (sT2, sT2))
    g("s_mul_i32 %s, %s, 7" % (sT3, sT2)); g("s_sub_u32 %s, %s, %s" % (sT1, sT0, sT3))
    g("s_add_u32 %s, %s, %s" % (sT3, sT2, sROT)); g("s_cmp_ge_u32 %s, 14" % sT3); g("s_cselect_b32 %s, 12, 0" % sHB); g("s_sub_u32 %s, %s, %s" % (sT3, sT3, sHB))
    g("s_cmp_ge_u32 %s, 2" % sT2); g("s_cselect_b32 %s, %s, %s" % (sT2, sT3, sT2))
    g("s_lshl_b32 %s, %s, 1" % (sT3, sT1)); g("s_add_u32 %s, %s, %s" % (sT2, sT2, sT3))
    g("s_cmp_ge_u32 %s, 14" % sT2); g("s_cselect_b32 %s, 14, 0" % sT3); g("s_sub_u32 %s, %s, %s" % (sT2, sT2, sT3))
    g("s_mul_i32 %s, %s, %d" % (sT2, sT2, CBS // 2)); g("s_lshl_b32 %s, %s, 7" % (sT1, sT1))
    g("s_add_u32 %s, %s, %s" % (sT1, sT1, sT2)); g("s_add_u32 %s, %s, %s" % (sT1, sT1, sCH))
    g("buffer_load_dword v13, v12, %s, %s offen" % (W2, sT1))
    g("s_add_u32 %s, %s, 16" % (sT0, sT0))
    g("s_cmp_lt_u32 %s, %d" % (sT0, opt("pfn", 98)))
    g("s_cbranch_scc1 L_pf")
def gate_loads():
    g("s_sub_u32 %s, %s, 28" % (sJ, sI)); g("s_lshl_b32 %s, %s, 2" % (sRB64, sX)); g("s_add_u32 %s, %s, %s" % (sJ, sJ, sRB64))
    slin(g, sRB64, [(sJ, 64), (sW, 16)])
    g("v_lshrrev_b32 v11, 3, v%d" % vLANE); g("v_add_u32 v11, %s, v11" % sRB64)
    g("v_and_b32 v15, 7, v%d" % vLANE); g("v_lshlrev_b32 v15, 4, v15")
    g("v_mul_u32_u24 v14, 896, v11"); g("v_add_u32 v14, v14, v15")
    g("s_mov_b32 %s, %d" % (sT1, 8 * 896))
    for i in range(7):
        g("global_load_dwordx4 v[%d:%d], v15, %s offset:%d" % (80 + 4 * i, 83 + 4 * i, P_GATE, 128 * i), tag="gq")
    for i in range(14):
        g("buffer_load_dwordx4 v[%d:%d], v14, %s, %s offen offset:%d" % (16 + 4 * i, 19 + 4 * i, Q, sT1 if i >= 7 else "0", 128 * (i % 7)), tag="gq")
def gate_fin():
    g("s_waitcnt vmcnt(0)")
    stamp(g)
    g("v_add_u32 v%d, 0x%x, v%d" % (vTAG, TAG_INC, vTAG))
    for i in range(56):
        acc = 140 + 2 * (i // 28) + (i % 2)
        g("v_dot2_f32_bf16 v%d, v%d, v%d, %s" % (acc, 16 + i, 80 + i % 28, "0" if i % 28 < 2 else "v%d" % acc))
    g("v_add_f32 v140, v140, v141"); g("v_add_f32 v142, v142, v143")
    for ctl in ("quad_perm:[1,0,3,2]", "quad_perm:[2,3,0,1]", "row_half_mirror"):
        for r_ in (140, 142): g("v_add_f32_dpp v%d, v%d, v%d %s row_mask:0xf bank_mask:0xf" % (r_, r_, r_, ctl))
    g("v_and_b32 v15, 1, v%d" % vLANE); g("v_cmp_eq_u32 vcc, 1, v15")
    g("v_cndmask_b32 v140, v140, v142, vcc")
    g("v_mul_f32 v140, 0x%x, v140" % f2u(-math.log2(math.e)))
    g("v_exp_f32 v140, v140"); g("v_add_f32 v140, 1.0, v140"); g("v_rcp_f32 v140, v140")
    g("v_mov_b32 v141, v%d" % vTAG)
    g("v_lshl_add_u32 v11, v15, 3, v11")
    g("v_lshlrev_b32 v11, 3, v11"); g("v_add_u32 v11, 0x%x, v11" % WS_G)
    g("s_mov_b32 exec_lo, 0x03030303"); g("s_mov_b32 exec_hi, 0x03030303")
    g("buffer_store_dwordx2 v[140:141], v11, %s, 0 offen sc1" % WS)
    g("s_mov_b64 exec, -1")
g("s_cmp_ge_u32 %s, 4" % sE2)
g("s_cbranch_scc1 L_gate")
for ch in opt("sp", "12"):
    {"1": pf_w1, "s": pf_ssm, "2": pf_w2}[ch]()
    stamp(g)
g("s_branch L_spare_done")
g("L_gate:")
g("v_mov_b32 v12, 0")
g("buffer_load_dword v%d, v12, %s, 0 offen sc1" % (vTAG, WS))
if opt("gd", 1): g("s_waitcnt vmcnt(0)")
gate_loads(); gate_fin()
if opt("wb", 0):
    g("s_cmp_lt_u32 s2, 248"); g("s_cbranch_scc1 L_nowb")
    g("s_cmp_lg_u32 %s, 1" % sW); g("s_cbranch_scc1 L_nowb")
    g("s_lshr_b32 %s, %s, 1" % (sT0, sX)); g("s_and_b32 %s, %s, 1" % (sT1, sX))
    slin(g, sT2, [(sT0, 64 * FHS), (sT1, 8 * FHS)], WS_FH + FHS * (opt("wb", 0) & 1))
    g("v_lshrrev_b32 v12, 4, v%d" % vLANE); g("v_bfe_u32 v13, v%d, 2, 2" % vLANE); g("v_and_b32 v14, 3, v%d" % vLANE)
    vlin(g, 15, [(12, 16 * FHS), (13, 2 * FHS), (14, 8)], sT2)
    g("v_cmp_eq_u32 vcc, 3, v14"); g("v_subb_co_u32 v14, vcc, 0, 0, vcc"); g("v_lshl_add_u32 v15, v14, 2, v15")
    g("s_mov_b32 %s, 0" % sSPIN)
    g("L_wbp:")
    g("s_sleep 2")
    g("buffer_load_dwordx2 v[18:19], v15, %s, 0 offen sc1" % WS)
    g("s_add_u32 %s, %s, 1" % (sSPIN, sSPIN))
    g("s_waitcnt vmcnt(0)")
    g("v_xor_b32 v18, v18, v%d" % vTAG); g("v_xor_b32 v19, v19, v%d" % vTAG); g("v_or_b32 v18, v18, v19")
    g("v_cmp_ne_u32 vcc, 0, v18")
    g("s_cmp_gt_u32 %s, 24" % sSPIN)
    g("s_cbranch_scc1 L_nowb")
    g("s_cbranch_vccnz L_wbp")
    stamp(g)
    g("buffer_wbl2 sc1")
    g("s_waitcnt vmcnt(0)")
    g("L_nowb:")
g("s_cmp_lg_u32 s2, 255"); g("s_cbranch_scc1 L_spare_done")
g("s_cmp_lg_u32 %s, 0" % sW); g("s_cbranch_scc1 L_spare_done")
g("s_waitcnt vmcnt(0)")
g("v_lshrrev_b32 v12, 3, v%d" % vLANE); g("v_mul_u32_u24 v12, 96, v12"); g("v_lshl_add_u32 v12, v%d, 2, v12" % vLANE)
g("v_lshlrev_b32 v13, 7, v%d" % vLANE); g("v_add_u32 v13, 0x%x, v13" % (WS_G + 4))
g("v_add_u32 v14, 8192, v13")
g("s_mov_b32 %s, 0" % sSPIN)
g("L_upd:")
g("s_sleep 8")
for i in range(14):
    g("s_mov_b32 %s, 0x%x" % (sT0, WS_FU + 1024 * i))
    g("buffer_load_dword v%d, v12, %s, %s offen sc1" % (18 + i, WS, sT0))
g("buffer_load_dword v32, v13, %s, 0 offen sc1" % WS)
g("buffer_load_dword v33, v14, %s, 0 offen sc1" % WS)
g("s_add_u32 %s, %s, 1" % (sSPIN, sSPIN))
g("s_waitcnt vmcnt(0)")
for i in range(16): g("v_xor_b32 v%d, v%d, v%d" % (18 + i, 18 + i, vTAG))
for i in range(1, 16): g("v_or_b32 v18, v18, v%d" % (18 + i))
g("v_cmp_ne_u32 vcc, 0, v18")
g("s_cmp_gt_u32 %s, 0x40000" % sSPIN)
g("s_cbranch_scc1 L_upd_go")
g("s_cbranch_vccnz L_upd")
g("L_upd_go:")
g("v_mov_b32 v12, 0")
g("s_mov_b64 exec, 1")
g("buffer_store_dword v%d, v12, %s, 0 offen sc1" % (vTAG, WS))
g("s_mov_b64 exec, -1")
g("L_spare_done:")
stamp_out(g)
g("L_end:")
g("s_endpgm")

drops = [d for d in OPT.get("drop", "").split(",") if d]
for st in (mA, mB, g):
    k_ = 0
    for o in st.ops:
        if "STAMPIDX" in o.text:
            o.text = o.text.replace("STAMPIDX", str(k_)); k_ += 1
        if "STAMPIDY" in o.text: o.text = o.text.replace("STAMPIDY", str(k_ + 19))
    assert k_ <= (20 if STAMP == 3 else 40)
    if st is g: continue
    if drops:
        keep = []; dropped = set()
        for o in st.ops:
            if o.kind in VMEMK and o.tag and any(re.fullmatch(d, o.tag) for d in drops):
                dropped.add(o.tag); continue
            if o.kind == "waitvm" and o.waitfor in dropped: continue
            keep.append(o)
        st.ops = keep
    if opt("x16", 0):
        X = opt("x16", 0)
        res = []; k = 0; gs_ = groups(st.ops); pend2 = None
        for gi_, g_ in enumerate(gs_):
            o = g_[0]
            if pend2 and gi_ >= pend2[0]: res.append(pend2[1]); pend2 = None
            if o.kind == "mfma" and len(g_) == 1:
                k += 1
                ph = (1 if k <= 116 else 4) if st is mA else (2 if k <= 80 else 4)
                if X & ph:
                    mm = re.match(r"v_mfma_f32_32x32x16_bf16 v\[(\d+):\d+\], (\S+), (\S+), (\S+)", o.text)
                    two = []
                    for h_ in range(2):
                        b_ = int(mm.group(1)) + 4 * (2 * ((k // 4) & 1) + h_)
                        o2 = Op("v_mfma_f32_16x16x32_bf16 v[%d:%d], %s, %s, v[%d:%d]" % (b_, b_ + 3, mm.group(2), mm.group(3), b_, b_ + 3), None); analyze(o2); two.append(o2)
                    j_ = gi_ + 1
                    while j_ < len(gs_) and gs_[j_][0].kind not in ("mfma", "waitvm", "waitlgkm", "ctl") and j_ - gi_ < 12: j_ += 1
                    res.append(two[0]); pend2 = (gi_ + 1 + (j_ - gi_ - 1) // 2, two[1])
                    continue
            res.extend(g_)
        st.ops = res
    for t_ in OPT.get("nochk", "").split(","):
        st.ops = [o for o in st.ops if o.text != "s_cbranch_vccnz L_spin_%s" % t_ and o.text != "s_cbranch_scc1 L_spin_%s" % t_ and o.text != "s_cbranch_scc1 L_rt_%s" % t_]
    seen_w = {}
    for i_, o in enumerate(st.ops):
        if o.kind in ("waitvm", "waitlgkm"): seen_w.setdefault((o.kind, o.waitfor), i_)
        elif o.tag and isinstance(o.tag, str):
            k_ = "waitvm" if o.kind in VMEMK else "waitlgkm"
            assert (k_, o.tag) not in seen_w, ("op after its wait", o.tag, o.text)
nb = lambda st: sum(o.text == "s_barrier" for o in st.ops)
assert nb(mA) == nb(mB), (nb(mA), nb(mB))
assert npoll[0] <= 20
print("polls", pollnames, file=sys.stderr)
full = Stream(); full.extend(pro); full.extend(mB)
mops = finalize(full) + finalize(mA)
tail_ = "\n" + render(insert_nops(spins.ops)) + "\n" + render(insert_nops(resolve_waits(g.ops)))
hdr = open("cdna_kernels/%s.s.ref" % NAME).read().split("; Override launch")[0]
def emit(ops):
    out = hdr + "; @launch grid=(256,1,1) block=(512,1,1) lds=%d\n" % LDS_TOTAL
    out += '.amdgcn_target "amdgcn-amd-amdhsa--gfx950"\n.text\n.globl %s_kernel\n.p2align 12\n.type %s_kernel,@function\n%s_kernel:\n' % (NAME, NAME, NAME)
    out += render(ops) + tail_ + "\nL_code_end:\n"
    out = out.replace("CODE_BYTES", "L_code_end-%s_kernel-128" % NAME)
    out += '.section .rodata,"a"\n.p2align 6\n.amdhsa_kernel %s_kernel\n' % NAME
    out += "  .amdhsa_next_free_vgpr 256\n  .amdhsa_next_free_sgpr 102\n  .amdhsa_accum_offset 256\n  .amdhsa_group_segment_fixed_size 0\n"
    out += "  .amdhsa_kernarg_size 120\n  .amdhsa_user_sgpr_count 2\n  .amdhsa_user_sgpr_kernarg_segment_ptr 1\n  .amdhsa_system_sgpr_workgroup_id_x 1\n.end_amdhsa_kernel\n"
    return out
if WARM:
    import subprocess, tempfile, os
    td = tempfile.mkdtemp()
    open(td + "/a.s", "w").write(emit(mops).replace("s_branch L_stub0", "s_branch L_back"))
    subprocess.run(["clang", "-x", "assembler", "-target", "amdgcn-amd-amdhsa", "-mcpu=gfx950", "-c", td + "/a.s", "-o", td + "/a.o"], check=True)
    dis = subprocess.run(["llvm-objdump", "-d", td + "/a.o"], capture_output=True, text=True).stdout
    addrs = [int(x, 16) for x in re.findall(r"// ([0-9A-F]{12}):", dis)]
    res = []; k = 0; ns = 0; pos_ = []
    for o in mops:
        if o.kind != "label":
            if addrs[k] + 4 * ns >= 4096 * (ns + 1) and o.text != "s_branch L_stub0" and res[-1].text != "L_back:":
                pos_.append(len(res)); ns += 1
                res.append(None); res.append(None)
            k += 1
        res.append(o)
    for i, p_ in enumerate(pos_):
        res[p_] = Op("L_stub%d:" % i, "label"); res[p_ + 1] = Op("s_cbranch_execz %s" % ("L_stub%d" % (i + 1) if i + 1 < ns else "L_back"), "ctl")
    mops = res
    print("main code bytes", addrs[k - 1], "stubs", ns, file=sys.stderr)
open(sys.argv[1], "w").write(emit(mops))
```
